```python
import torch

def _softmax(x, axis=-1):
    return torch.softmax(x, dim=axis)
def _gelu(x):
    return torch.nn.functional.gelu(x, approximate="tanh")
def _silu(x):
    return torch.nn.functional.silu(x)
def _sigmoid(x):
    return torch.sigmoid(x)
def _layernorm(x, axis=-1, eps=1e-5):
    m = x.mean(dim=axis, keepdim=True)
    v = x.var(dim=axis, keepdim=True, unbiased=False)
    return (x - m) / torch.sqrt(v + eps)
def _scatter_add(tgt, idx, src, axis=0):
    return tgt.clone().index_add_(axis, idx, src)
def _segment_sum(src, seg, n):
    out = torch.zeros((n,) + src.shape[1:], dtype=src.dtype)
    return out.index_add_(0, seg, src)
def _pad(x, pw):
    flat = tuple(v for pair in reversed(pw) for v in pair)
    return torch.nn.functional.pad(x, flat)

kernel_name = 'concat_heads__compressed_kv_cla__sliding_local_dilated__prompt'

def setup_inputs():

    _w = (lambda a: (lambda t: t.to(torch.bfloat16) if t.is_floating_point() else t)(torch.as_tensor(a)))
    def _A_setup():
        B, H, Sq, Sk, D, M = 1, 32, 2048, 2048, 128, 640
        Dc = 4 * D
        return {
            "x": _w((lambda *s: torch.randn(*s, dtype=torch.bfloat16) * 0.2)(B, Sq, M)),
            "c_kv": _w((lambda *s: torch.randn(*s, dtype=torch.bfloat16) * 1.6)(B, Sk, Dc)),
            "w_q": _w((lambda *s: torch.randn(*s, dtype=torch.bfloat16) * 3.2)(M, H, D) * (M ** -0.5)),
            "w_uk": _w((lambda *s: torch.randn(*s, dtype=torch.bfloat16) * 3.2)(Dc, H, D) * (Dc ** -0.5)),
            "w_uv": _w((lambda *s: torch.randn(*s, dtype=torch.bfloat16) * 1.6)(Dc, H, D) * (Dc ** -0.5)),
            "w_o": _w((lambda *s: torch.randn(*s, dtype=torch.bfloat16) * 1.6)(H, D, M) * ((H * D) ** -0.5)),
        }
    _A_in = _A_setup()

    def _B_setup():
        B, S, D = 1, 2048, 640
        return {
            "x": _w((lambda *s: torch.randn(*s, dtype=torch.bfloat16) * 0.4)(B, S, D)),
            "wqkv": _w((lambda *s: torch.randn(*s, dtype=torch.bfloat16) * 0.4)(D, 3 * D)),
            "wo": _w((lambda *s: torch.randn(*s, dtype=torch.bfloat16) * 0.05)(D, D)),
        }
    _B_in = _B_setup()

    return {
        "A_x": _A_in["x"],
        "A_c_kv": _A_in["c_kv"],
        "A_w_q": _A_in["w_q"],
        "A_w_uk": _A_in["w_uk"],
        "A_w_uv": _A_in["w_uv"],
        "A_w_o": _A_in["w_o"],
        "B_x": _B_in["x"],
        "B_wqkv": _B_in["wqkv"],
        "B_wo": _B_in["wo"],
    }

def reference(A_x, A_c_kv, A_w_q, A_w_uk, A_w_uv, A_w_o, B_x, B_wqkv, B_wo):
    def _A_ref(x, c_kv, w_q, w_uk, w_uv, w_o):
        B, Sq, M = x.shape[0], x.shape[1], x.shape[2]
        Sk = c_kv.shape[1]
        H, D = w_q.shape[1], w_q.shape[2]
        q = torch.einsum("bqm,mhd->bhqd", x, w_q)
        k = torch.einsum("bkc,chd->bhkd", c_kv, w_uk)
        v = torch.einsum("bkc,chd->bhkd", c_kv, w_uv)
        scores = torch.einsum("bhqd,bhkd->bhqk", q, k) * (D ** -0.5)
        off = Sk - Sq
        qi = torch.arange(Sq)[:, None]
        kj = torch.arange(Sk)[None, :]
        cmask = kj <= (qi + off)
        scores = torch.where(cmask[None, None], scores, -1e9)
        p = _softmax(scores, axis=-1)
        ctx = torch.einsum("bhqk,bhkd->bhqd", p, v)
        return torch.einsum("bhqd,hdm->bqm", ctx, w_o)

    def _B_ref(x, wqkv, wo):
        B, S, D = x.shape
        H = 32; Dh = D // H
        W, dil = 8, 2
        qkv = (lambda x, *d: x.permute(*d))((x @ wqkv).reshape(B, S, 3, H, Dh), 2, 0, 3, 1, 4)
        q, k, v = qkv[0], qkv[1], qkv[2]
        scale = Dh ** -0.5
        pos = torch.arange(S)
        off = torch.arange(W) * dil
        idx = pos[:, None] - off[None, :]
        mask = idx >= 0
        idx_c = torch.where(mask, idx, 0).reshape(-1)
        kg = k[:, :, idx_c, :].reshape(B, H, S, W, Dh)
        vg = v[:, :, idx_c, :].reshape(B, H, S, W, Dh)
        logits = torch.einsum("bhsd,bhswd->bhsw", q, kg) * scale
        logits = torch.where(mask[None, None, :, :], logits, -1e9)
        attn = _softmax(logits, axis=-1)
        o = torch.einsum("bhsw,bhswd->bhsd", attn, vg)
        return (lambda x, *d: x.permute(*d))(o, 0, 2, 1, 3).reshape(B, S, D) @ wo

    a = _A_ref(A_x, A_c_kv, A_w_q, A_w_uk, A_w_uv, A_w_o)
    b = _B_ref(B_x, B_wqkv, B_wo)
    return torch.concatenate([a, b], axis=-1)
```

```python
import re

def v(i, n=1): return f"v{i}" if n == 1 else f"v[{i}:{i+n-1}]"
def a(i, n=1): return f"a{i}" if n == 1 else f"a[{i}:{i+n-1}]"
def s(i, n=1): return f"s{i}" if n == 1 else f"s[{i}:{i+n-1}]"

_reg_re = re.compile(r"^(-|\|)?(abs\()?([vas])(\d+|\[(\d+):(\d+)\])\)?\|?$")
def parse_reg(tok):
    tok = tok.strip()
    if tok in ("vcc", "exec"): return [(tok, 0), (tok, 1)]
    if tok in ("vcc_lo", "exec_lo"): return [(tok[:-3], 0)]
    if tok in ("vcc_hi", "exec_hi"): return [(tok[:-3], 1)]
    if tok == "m0": return [("m0", 0)]
    m = _reg_re.match(tok)
    if not m: return []
    f = m.group(3)
    if m.group(5) is not None:
        return [(f, i) for i in range(int(m.group(5)), int(m.group(6)) + 1)]
    return [(f, int(m.group(4)))]

def split_ops(rest):
    ops, depth, cur = [], 0, ""
    for ch in rest:
        if ch in "[(": depth += 1
        if ch in "])": depth -= 1
        if ch == "," and depth == 0:
            ops.append(cur.strip()); cur = ""
        else: cur += ch
    if cur.strip(): ops.append(cur.strip())
    return ops

TRANS = ("v_exp_f32", "v_log_f32", "v_rcp_f32", "v_rsq_f32", "v_sqrt_f32", "v_sin_f32", "v_cos_f32")

class Ins:
    __slots__ = ("text", "mn", "ops", "mods", "defs", "uses", "kind", "tag", "label", "target")
    def __init__(self, text, tag=None):
        self.text = text; self.tag = tag; self.label = None; self.target = None
        t = text.split(";")[0].strip()
        if t.endswith(":"):
            self.kind = "label"; self.label = t[:-1]; self.mn = ""; self.ops = []; self.defs = []; self.uses = []; self.mods = ""
            return
        if t.startswith(".") or not t:
            self.kind = "dir"; self.mn = ""; self.ops = []; self.defs = []; self.uses = []; self.mods = ""
            return
        parts = t.split(None, 1)
        mn = parts[0]; rest = parts[1] if len(parts) > 1 else ""
        mn = re.sub(r"_(e32|e64)$", "", mn)
        self.mn = mn
        ops = split_ops(rest)
        mods = ""
        if ops:
            last = ops[-1].split(None, 1)
            if len(last) > 1 and not mn.startswith("s_waitcnt"):
                ops[-1] = last[0]; mods = last[1]
        self.ops = ops; self.mods = mods
        R = [parse_reg(o) for o in ops]
        defs, uses = [], []
        if mn.startswith("v_mfma"):
            self.kind = "mfma"; defs = R[0]; uses = R[1] + R[2] + R[3]
        elif mn.startswith("ds_read") or mn == "ds_bpermute_b32" or mn == "ds_swizzle_b32":
            self.kind = "ds"; defs = R[0]; uses = sum(R[1:], [])
        elif mn.startswith("ds_write"):
            self.kind = "ds"; uses = sum(R, [])
        elif mn.startswith("buffer_load") or mn.startswith("global_load"):
            self.kind = "vmem"
            if " lds" in " " + mods or mn.startswith("global_load_lds"):
                uses = sum(R, []) + [("m0", 0)]
            else:
                defs = R[0]; uses = sum(R[1:], [])
        elif mn.startswith("buffer_store") or mn.startswith("global_store") or mn.startswith("buffer_atomic") or mn.startswith("global_atomic"):
            self.kind = "vmem"; uses = sum(R, [])
            if "atomic" in mn and "sc0" in mods: defs = R[0]
        elif mn.startswith("buffer_wbl2") or mn.startswith("buffer_inv"):
            self.kind = "vmem"
        elif mn.startswith("s_load") or mn.startswith("s_memtime") or mn.startswith("s_memrealtime") or mn.startswith("s_buffer_load"):
            self.kind = "smem"; defs = R[0]; uses = sum(R[1:], [])
        elif mn.startswith("s_cbranch") or mn == "s_branch":
            self.kind = "branch"; self.target = ops[0]
            if "vcc" in mn: uses = [("vcc", 0), ("vcc", 1)]
            if "exec" in mn: uses = [("exec", 0), ("exec", 1)]
            if "scc" in mn: uses = [("scc", 0)]
        elif mn in ("s_waitcnt", "s_nop", "s_barrier", "s_endpgm", "s_setprio", "s_sleep"):
            self.kind = "ctl"
        elif mn.startswith("s_cmp") or mn.startswith("s_bitcmp"):
            self.kind = "salu"; uses = sum(R, []); defs = [("scc", 0)]
        elif mn.startswith("s_"):
            self.kind = "salu"; defs = R[0] + [("scc", 0)]; uses = sum(R[1:], [])
            if mn in ("s_mov_b32", "s_mov_b64", "s_mul_i32", "s_movk_i32", "s_mul_hi_u32", "s_getreg_b32"): defs = R[0]
            if mn.startswith("s_cselect"): defs = R[0]; uses += [("scc", 0)]
            if mn in ("s_addc_u32", "s_subb_u32"): uses += [("scc", 0)]
            if mn in ("s_addk_i32", "s_mulk_i32"): uses += R[0]
            if "saveexec" in mn: defs += [("exec", 0), ("exec", 1)]; uses += [("exec", 0), ("exec", 1)]
        elif mn.startswith("v_"):
            self.kind = "valu"
            if mn.startswith("v_cmp"):
                defs = R[0]; uses = sum(R[1:], [])
                if mn.startswith("v_cmpx"): defs = defs + [("exec", 0), ("exec", 1)]
            elif mn.startswith("v_permlane") and "swap" in mn:
                defs = R[0] + R[1]; uses = R[0] + R[1]
            elif mn in ("v_add_co_u32", "v_sub_co_u32", "v_addc_co_u32", "v_subb_co_u32"):
                defs = R[0] + R[1]; uses = sum(R[2:], [])
            elif mn in ("v_fmac_f32", "v_dot2c_f32_bf16", "v_writelane_b32"):
                defs = R[0]; uses = sum(R, [])
            else:
                defs = R[0]; uses = sum(R[1:], [])
                if mn == "v_cndmask_b32" and len(ops) == 3: uses += [("vcc", 0), ("vcc", 1)]
            if "_dpp" in mn or "row_" in mods or "quad_perm" in mods: uses += R[0]
        else:
            raise ValueError("unknown instruction: " + text)
        self.defs = defs; self.uses = uses
    def passes(self):
        if "32x32x16" in self.mn: return 8
        if "16x16x32" in self.mn: return 4
        raise ValueError(self.mn)
    def states(self):
        if self.kind in ("label", "dir"): return 0
        if self.mn == "s_nop": return int(self.ops[0]) + 1
        return 1

class Prog:
    def __init__(self):
        self.ins = []
        self.lq = []
        self.vq = []
        self.auto = True
    def raw(self, text, tag=None):
        i = Ins(text, tag); self.ins.append(i); return i
    def _wait(self, vm=None, lg=None):
        parts = []
        if vm is not None: parts.append(f"vmcnt({vm})"); self.vq = self.vq[len(self.vq)-vm:] if vm else []
        if lg is not None: parts.append(f"lgkmcnt({lg})"); self.lq = self.lq[len(self.lq)-lg:] if lg else []
        self.ins.append(Ins("s_waitcnt " + " ".join(parts)))
    def need(self, regs):
        regs = set(regs)
        lg = vm = None
        for k in range(len(self.lq) - 1, -1, -1):
            if self.lq[k] & regs:
                lg = min(15, len(self.lq) - 1 - k); break
        for k in range(len(self.vq) - 1, -1, -1):
            if self.vq[k][0] & regs:
                vm = min(63, len(self.vq) - 1 - k); break
        if lg is not None or vm is not None: self._wait(vm, lg)
    def needr(self, *opstrs):
        regs = []
        for o in opstrs: regs += parse_reg(o)
        self.need(regs)
    def wait_tag(self, pred):
        for k in range(len(self.vq) - 1, -1, -1):
            if pred(self.vq[k][1]):
                self._wait(vm=min(63, len(self.vq) - 1 - k)); return
    def wait_lds_all(self):
        if self.lq: self._wait(lg=0)
    def wait_all(self):
        self._wait(0, 0)
    def __call__(self, text, tag=None):
        i = Ins(text, tag)
        if self.auto and i.kind not in ("label", "dir"):
            self.need(i.uses + i.defs)
        self.ins.append(i)
        if i.kind == "ds": self.lq.append(set(i.defs))
        elif i.kind == "vmem": self.vq.append((set(i.defs), tag))
        elif i.kind == "smem": self.lq.append(set(i.defs)); self.lq.append(set(i.defs))
        elif i.mn == "s_waitcnt":
            m = re.search(r"vmcnt\((\d+)\)", text)
            if m:
                n = int(m.group(1)); self.vq = self.vq[len(self.vq)-n:] if n and len(self.vq) > n else ([] if not n else self.vq)
            m = re.search(r"lgkmcnt\((\d+)\)", text)
            if m:
                n = int(m.group(1)); self.lq = self.lq[len(self.lq)-n:] if n and len(self.lq) > n else ([] if not n else self.lq)
        return i
    def label(self, name): self.ins.append(Ins(name + ":"))
    def state(self): return ([set(x) for x in self.lq], [(set(x), t) for x, t in self.vq])
    def set_state(self, st): self.lq = [set(x) for x in st[0]]; self.vq = [(set(x), t) for x, t in st[1]]
    def text(self):
        out = []
        for i in self.ins:
            out.append(i.text if i.kind in ("label", "dir") else "    " + i.text)
        return "\n".join(out) + "\n"

def _isv(r): return r[0] in ("v", "a")
def _iss(r): return r[0] in ("s", "vcc")

def required(p, c):
    pd, pu, cd, cu = set(p.defs), set(p.uses), set(c.defs), set(c.uses)
    req = 0
    raw = pd & cu
    if p.kind == "valu":
        vraw = {r for r in raw if _isv(r)}
        sraw = {r for r in raw if _iss(r)}
        if c.kind == "mfma" and vraw: req = max(req, 2)
        if c.kind == "valu":
            if p.mn in TRANS and vraw and c.mn not in TRANS: req = max(req, 1)
            if p.mn in TRANS and vraw and c.mn in TRANS: req = max(req, 1)
            if c.mn.startswith("v_permlane") and vraw: req = max(req, 2)
            if (c.mn.startswith("v_readfirstlane") or c.mn.startswith("v_readlane")) and vraw: req = max(req, 1)
            if ("_dpp" in c.mn or "row_" in c.mods or "quad_perm" in c.mods) and vraw: req = max(req, 2)
            if sraw: req = max(req, 2)
            if (c.mn.startswith("v_readlane") or c.mn.startswith("v_writelane")) and sraw: req = max(req, 4)
        if p.mn.startswith("v_dot2"):
            if c.kind == "valu" and c.mn == p.mn:
                ab = set(parse_reg(c.ops[1])) | set(parse_reg(c.ops[2]))
                if pd & ab: req = max(req, 3)
            elif pd & (cu | cd): req = max(req, 3)
        if c.kind == "vmem" and sraw: req = max(req, 5)
        if c.kind == "salu" and sraw: req = max(req, 1)
        if ("exec", 0) in pd:
            if c.kind == "mfma": req = max(req, 4)
            if c.kind == "valu" and (c.mn.startswith("v_readfirstlane") or c.mn.startswith("v_permlane") or "_dpp" in c.mn): req = max(req, 5)
    if p.kind == "salu":
        if ("m0", 0) in pd and c.kind == "vmem" and ("m0", 0) in cu: req = max(req, 1)
    if p.kind == "vmem" and ("store_dwordx4" in p.mn or "store_dwordx3" in p.mn):
        data = set(parse_reg(p.ops[0] if p.mn.startswith("buffer") else p.ops[1]))
        if data & cd: req = max(req, 2 if c.kind == "valu" else 1)
    if p.kind == "mfma":
        n = p.passes()
        D = pd
        if c.kind == "mfma":
            cA = set(parse_reg(c.ops[1])) | set(parse_reg(c.ops[2])); cC = set(parse_reg(c.ops[3]))
            if D & cA: req = max(req, {4: 8, 8: 12}[n])
            if D & cC:
                if not (cC == D and c.passes() == n): req = max(req, {4: 6, 8: 10}[n])
            if (D & cd) and not (D & cC): req = max(req, {4: 8, 8: 12}[n])
        elif c.kind in ("valu", "vmem", "ds"):
            if D & (cu | cd): req = max(req, {4: 8, 8: 12}[n])
        pC = set(parse_reg(p.ops[3]))
        if c.kind == "valu" and (pC & cd): req = max(req, {4: 3, 8: 7}[n])
    return req

def check_hazards(ins, maxd=20):
    labels = {i.label: k for k, i in enumerate(ins) if i.kind == "label"}
    preds = {k: [] for k in range(len(ins))}
    for k, i in enumerate(ins):
        if i.kind == "branch":
            if i.target in labels: preds[labels[i.target]].append(k)
            if i.mn != "s_branch" and k + 1 < len(ins): preds[k + 1].append(k)
        elif i.mn == "s_endpgm": pass
        elif k + 1 < len(ins): preds[k + 1].append(k)
    viol = []
    for k, c in enumerate(ins):
        if c.kind in ("label", "dir", "ctl"): continue
        seen = {}
        stack = [(p, 0) for p in preds[k]]
        while stack:
            j, d = stack.pop()
            if j in seen and seen[j] <= d: continue
            seen[j] = d
            p = ins[j]
            if p.kind not in ("label", "dir", "ctl"):
                r = required(p, c)
                if r > d: viol.append((j, k, r, d))
            nd = d + p.states()
            if nd < maxd:
                for q in preds[j]: stack.append((q, nd))
    return viol

def fix_hazards(prog):
    n = 0
    while True:
        viol = check_hazards(prog.ins)
        if not viol: return n
        need = {}
        for j, k, r, d in viol: need[k] = max(need.get(k, 0), r - d)
        for k in sorted(need, reverse=True):
            x = need[k]
            while x > 0:
                m = min(x, 16); prog.ins.insert(k, Ins(f"s_nop {m-1}")); x -= m; n += 1
```

```python
from fused import *

NSLOT = 4
SCR = 131072
OOB = 0x7f000000
THR = 2.0**40

def gen_aux(ctx):
    P, name = ctx["P"], ctx["name"]
    sGW, sK, sMQ = sU0, sU1, sU2
    P(f"s_lshl_b32 {s(sGW)}, s2, 3"); P(f"s_add_u32 {s(sGW)}, {s(sGW)}, {s(sWV)}")
    P(f"s_cmp_ge_u32 {s(sGW)}, 1480"); P(f"s_cbranch_scc1 {name}_rt_done")
    P(f"s_mul_i32 {s(sK)}, {s(sGW)}, 6554"); P(f"s_lshr_b32 {s(sK)}, {s(sK)}, 16")
    P(f"s_mul_i32 {s(sT)}, {s(sK)}, 10"); P(f"s_sub_u32 {s(sMQ)}, {s(sGW)}, {s(sT)}")
    vo = 32
    bfe(P, T0, 3, 3); P(f"v_mul_u32_u24 {v(T0)}, 1280, {v(T0)}"); bfe(P, T1, 0, 3); P(f"v_lshl_add_u32 {v(T0)}, {v(T1)}, 4, {v(T0)}")
    for i in range(4): P(f"v_add_u32 {v(vo+i)}, {i*(8*1280-1024)}, {v(T0)}")
    P(f"s_add_u32 m0, {s(sM4)}, {SCR}")
    va = 36
    bfe(P, T0, 2, 2); bfe(P, T1, 0, 2); P(f"v_lshlrev_b32 {v(T1)}, 3, {v(T1)}"); P(f"v_lshl_add_u32 {v(T0)}, {v(T0)}, 7, {v(T1)}")
    P(f"v_add_u32 {v(T0)}, {s(sM4)}, {v(T0)}"); P(f"v_add_u32 {v(T0)}, {SCR}, {v(T0)}")
    P(f"s_cmp_ge_u32 {s(sK)}, 128"); P(f"s_cbranch_scc1 {name}_rt_B")
    st0 = P.state()
    for isB in (0, 1):
        if isB:
            P.label(f"{name}_rt_B"); P.set_state(st0)
            P(f"s_sub_u32 {s(sK)}, {s(sK)}, 128")
        P(f"s_mul_i32 {s(sT)}, {s(sK)}, {32*1280}"); P(f"s_lshl_b32 {s(sT2)}, {s(sMQ)}, 7"); P(f"s_add_u32 {s(sT)}, {s(sT)}, {s(sT2)}")
        for i in range(4): P(f"buffer_load_dwordx4 {v(vo+i)}, {s(sBWO if isB else sWO,4)}, {s(sT)} offen offset:{i*1024} lds", "rt")
        if isB:
            bfe(P, T1, 4, 2); P(f"v_lshl_add_u32 {v(va)}, {v(T1)}, 10, {v(T0)}")
            step = 4*128
        else:
            bfe(P, T1, 5, 1); P(f"v_lshl_add_u32 {v(va)}, {v(T1)}, 11, {v(T0)}")
            bfe(P, T1, 4, 1); P(f"v_lshl_add_u32 {v(va)}, {v(T1)}, 9, {v(va)}")
            step = 8*128
        P.wait_tag(lambda t: t == "rt")
        for f in range(4):
            for i in range(2): P(f"ds_read_b64_tr_b16 {v(40+4*f+2*i,2)}, {v(va)} offset:{f*32 + i*step}")
        nk = 20 if isB else 128
        P(f"s_mul_i32 {s(sK)}, {s(sK)}, 5120"); P(f"s_add_u32 {s(sK)}, {s(sK)}, {BWOF if isB else WOF}")
        for f in range(4):
            P(f"s_lshl_b32 {s(sT)}, {s(sMQ)}, 2"); P(f"s_add_u32 {s(sT)}, {s(sT)}, {f}")
            P(f"s_mul_i32 {s(sT2)}, {s(sT)}, 205"); P(f"s_lshr_b32 {s(sT2)}, {s(sT2)}, 10")
            P(f"s_mul_i32 {s(sTa)}, {s(sT2)}, 5"); P(f"s_sub_u32 {s(sT)}, {s(sT)}, {s(sTa)}"); P(f"s_lshl_b32 {s(sT)}, {s(sT)}, 10")
            P(f"s_mul_i32 {s(sT2)}, {s(sT2)}, {nk*5120}"); P(f"s_add_u32 {s(sT)}, {s(sT)}, {s(sT2)}"); P(f"s_add_u32 {s(sT)}, {s(sT)}, {s(sK)}")
            P(f"buffer_store_dwordx4 {v(40+4*f,4)}, {v(vL16)}, {s(sWS,4)}, {s(sT)} offen {ST}")
        if not isB: P(f"s_branch {name}_rt_done")
    P.label(f"{name}_rt_done")
    P("s_waitcnt lgkmcnt(0)")
    P.vq = [(set(), None)] * 4

def gen_battn(ctx):
    P, name = ctx["P"], ctx["name"]
    vTok, vH, vCA, vCB, vCC, vTP = 32, 33, 34, 35, 36, 40
    D = 48
    LG, PP, OO = 218, 226, 48
    vo = 230
    P(f"s_lshr_b32 {s(sT)}, s2, 2"); P(f"s_lshl_b32 {s(sT)}, {s(sT)}, 5")
    bfe(P, T0, 0, 5); P(f"v_add_u32 {v(vTok)}, {s(sT)}, {v(T0)}")
    P(f"s_and_b32 {s(sT)}, s2, 3"); P(f"s_lshl_b32 {s(sT)}, {s(sT)}, 2"); P(f"s_add_u32 {s(sT)}, {s(sT)}, {s(sWV)}"); P(f"s_sub_u32 {s(sT)}, {s(sT)}, 4")
    P(f"s_lshl_b32 {s(sT)}, {s(sT)}, 1")
    bfe(P, T0, 5, 1); P(f"v_add_u32 {v(vH)}, {s(sT)}, {v(T0)}")
    P(f"v_mul_u32_u24 {v(vH)}, 20, {v(vH)}")
    P(f"v_lshl_add_u32 {v(vCA)}, {v(T0)}, 2, {v(vH)}"); P(f"v_add_u32 {v(vCB)}, 8, {v(vCA)}")
    P(f"v_lshlrev_b32 {v(T1)}, 4, {v(T0)}"); P(f"v_sub_u32 {v(vCC)}, {v(vH)}, {v(T1)}"); P(f"v_add_u32 {v(vCC)}, 16, {v(vCC)}")
    P(f"v_lshrrev_b32 {v(T0)}, 6, {v(vTok)}"); P(f"v_mul_u32_u24 {v(T0)}, 81920, {v(T0)}")
    P(f"v_bfe_u32 {v(T1)}, {v(vTok)}, 4, 2"); P(f"v_lshl_add_u32 {v(T0)}, {v(T1)}, 10, {v(T0)}")
    P(f"v_and_b32 {v(T1)}, 15, {v(vTok)}"); P(f"v_lshl_add_u32 {v(T0)}, {v(T1)}, 4, {v(T0)}")
    for i, c in enumerate((vCA, vCB, vCC)):
        P(f"v_lshrrev_b32 {v(T1)}, 5, {v(c)}"); P(f"v_lshl_add_u32 {v(vo+i)}, {v(T1)}, 12, {v(T0)}")
        P(f"v_bfe_u32 {v(T1)}, {v(c)}, 3, 2"); P(f"v_lshl_add_u32 {v(vo+i)}, {v(T1)}, 8, {v(vo+i)}")
        P(f"v_and_b32 {v(T1)}, 7, {v(c)}"); P(f"v_lshl_add_u32 {v(vo+i)}, {v(T1)}, 1, {v(vo+i)}")
    for c in (vCA, vCB, vCC):
        P(f"v_and_b32 {v(T1)}, 7, {v(c)}"); P(f"v_lshlrev_b32 {v(T1)}, 1, {v(T1)}")
        P(f"v_lshrrev_b32 {v(c)}, 3, {v(c)}"); P(f"v_lshl_add_u32 {v(c)}, {v(c)}, 9, {v(T1)}")
    for w in range(8):
        P(f"v_subrev_u32 {v(T0)}, {2*w}, {v(vTok)}"); P(f"v_max_i32 {v(T0)}, 0, {v(T0)}")
        P(f"v_lshrrev_b32 {v(T1)}, 5, {v(T0)}"); P(f"v_mul_u32_u24 {v(T1)}, {120*1024}, {v(T1)}")
        P(f"v_and_b32 {v(T0)}, 31, {v(T0)}"); P(f"v_lshl_add_u32 {v(vTP+w)}, {v(T0)}, 4, {v(T1)}")
    P(f"s_mov_b32 {s(sU0)}, {QKV}"); P(f"s_mov_b32 {s(sU1)}, {QKV + 40*1024}"); P(f"s_mov_b32 {s(sU2)}, {QKV + 80*1024}")
    tmp = [233, 234, 235, 236, 237, 238]
    def load_row(dst, w, sec, k):
        ta, tb, tc = tmp[3*(k%2):3*(k%2)+3]
        P(f"v_add_u32 {v(ta)}, {v(vCA)}, {v(vTP+w)}"); P(f"v_add_u32 {v(tb)}, {v(vCB)}, {v(vTP+w)}"); P(f"v_add_u32 {v(tc)}, {v(vCC)}, {v(vTP+w)}")
        for d, so in (dst if isinstance(dst, list) else [(dst, sec)]):
            P(f"buffer_load_dwordx4 {v(d,4)}, {v(ta)}, {s(sWS,4)}, {s(so)} offen {LD}")
            P(f"buffer_load_dwordx4 {v(d+4,4)}, {v(tb)}, {s(sWS,4)}, {s(so)} offen {LD}")
            P(f"buffer_load_dwordx2 {v(d+8,2)}, {v(tc)}, {s(sWS,4)}, {s(so)} offen {LD}")
    for w in range(8):
        rows = [(D + 10*(1+w), sU1), (D + 10*(9+w), sU2)]
        if w == 0: rows = [(D, sU0)] + rows
        load_row(rows, w, None, w)
    for w in range(8):
        for i in range(10):
            c = "0" if i == 0 else v(LG+w)
            P(f"v_dot2_f32_bf16 {v(LG+w)}, {v(D+i)}, {v(D+10*(1+w)+i)}, {c}")
    P(f"s_mov_b32 {s(sU0)}, {fbits(20**-0.5)}"); P(f"s_mov_b32 {s(sU1)}, 0xffff0000"); P(f"s_mov_b32 {s(sU2)}, {fbits(math.log2(math.e))}")
    def round_pairs():
        for w in range(0, 8, 2): P(f"v_cvt_pk_bf16_f32 {v(PP+w//2)}, {v(LG+w)}, {v(LG+w+1)}")
        for w in range(0, 8, 2):
            P(f"v_lshlrev_b32 {v(LG+w)}, 16, {v(PP+w//2)}"); P(f"v_and_b32 {v(LG+w+1)}, {s(sU1)}, {v(PP+w//2)}")
    round_pairs()
    for w in range(8): P(f"v_mul_f32 {v(LG+w)}, {s(sU0)}, {v(LG+w)}")
    round_pairs()
    P(f"v_mov_b32 {v(T1)}, {fbits(-1e9)}")
    for w in range(1, 8):
        m = s(sM + 2*(w%2), 2)
        P(f"v_cmp_gt_u32 {m}, {2*w}, {v(vTok)}")
        P(f"v_cndmask_b32 {v(LG+w)}, {v(LG+w)}, {v(T1)}, {m}")
    P(f"v_max3_f32 {v(T0)}, {v(LG)}, {v(LG+1)}, {v(LG+2)}"); P(f"v_max3_f32 {v(T0)}, {v(T0)}, {v(LG+3)}, {v(LG+4)}")
    P(f"v_max3_f32 {v(T0)}, {v(T0)}, {v(LG+5)}, {v(LG+6)}"); P(f"v_max_f32 {v(T0)}, {v(T0)}, {v(LG+7)}")
    for w in range(8): P(f"v_sub_f32 {v(LG+w)}, {v(LG+w)}, {v(T0)}")
    for w in range(8): P(f"v_mul_f32 {v(LG+w)}, {s(sU2)}, {v(LG+w)}")
    for w in range(8): P(f"v_exp_f32 {v(LG+w)}, {v(LG+w)}")
    P(f"v_add_f32 {v(T0)}, {v(LG)}, {v(LG+1)}")
    for w in range(2, 8): P(f"v_add_f32 {v(T0)}, {v(T0)}, {v(LG+w)}")
    P(f"v_rcp_f32 {v(T0)}, {v(T0)}")
    for w in range(8): P(f"v_mul_f32 {v(LG+w)}, {v(T0)}, {v(LG+w)}")
    for w in range(0, 8, 2): P(f"v_cvt_pk_bf16_f32 {v(PP+w//2)}, {v(LG+w)}, {v(LG+w+1)}")
    P(f"s_mov_b32 {s(sU0)}, 0x05040100"); P(f"s_mov_b32 {s(sU1)}, 0x07060302")
    tq = [LG + i for i in range(8)]
    n = 0
    for wp in range(4):
        for i in range(10):
            a0, a1 = D + 10*(9+2*wp) + i, D + 10*(10+2*wp) + i
            t0, t1 = tq[(2*n) % 8], tq[(2*n+1) % 8]; n += 1
            P(f"v_perm_b32 {v(t0)}, {v(a1)}, {v(a0)}, {s(sU0)}"); P(f"v_perm_b32 {v(t1)}, {v(a1)}, {v(a0)}, {s(sU1)}")
            P(f"v_dot2_f32_bf16 {v(OO+2*i)}, {v(t0)}, {v(PP+wp)}, {'0' if wp == 0 else v(OO+2*i)}")
            P(f"v_dot2_f32_bf16 {v(OO+2*i+1)}, {v(t1)}, {v(PP+wp)}, {'0' if wp == 0 else v(OO+2*i+1)}")
    R = 72
    for i in range(10): P(f"v_cvt_pk_bf16_f32 {v(R+i)}, {v(OO+2*i)}, {v(OO+2*i+1)}")
    P(f"s_mov_b32 {s(sU0)}, {BO}")
    P(f"buffer_store_dwordx4 {v(R,4)}, {v(vo)}, {s(sWS,4)}, {s(sU0)} offen {ST}")
    P(f"buffer_store_dwordx4 {v(R+4,4)}, {v(vo+1)}, {s(sWS,4)}, {s(sU0)} offen {ST}")
    P(f"buffer_store_dwordx2 {v(R+8,2)}, {v(vo+2)}, {s(sWS,4)}, {s(sU0)} offen {ST}")

vO, vS, vP, vNM, vF, vT = 32, 96, 128, 144, 160, 192
vLsum, vLS, vCur, vD, vMX, vMX2, vNI = 200, 201, 202, 203, 204, 205, 206
PD = 6

def gen_attn(ctx):
    P, SP, name, vQ = ctx["P"], ctx["SP"], ctx["name"], ctx["vQ"]
    ctx["poll"](FLG1, f"{name}_poll1")
    P("s_barrier")
    SP()
    P(f"s_lshl_b32 {s(sT)}, {s(sG)}, 2"); P(f"s_sub_u32 {s(sDLim)}, 63, {s(sT)}")
    P(f"s_lshr_b32 {s(sNB)}, {s(sDLim)}, 1"); P(f"s_add_u32 {s(sNB)}, {s(sNB)}, 1")
    P(f"s_add_u32 {s(sT)}, {s(sJL)}, 1"); P(f"s_lshr_b32 {s(sT)}, {s(sT)}, 1"); P(f"s_sub_u32 {s(sNB)}, {s(sNB)}, {s(sT)}")
    P(f"s_mov_b32 {s(sREM)}, {s(sJL)}")
    P(f"s_mov_b32 {s(sTHR)}, {fbits(THR)}")
    P(f"s_cmp_lt_u32 {s(sWV)}, 4"); P(f"s_cbranch_scc1 {name}_nodma0")
    P(f"s_lshl_b32 {s(sDBase)}, {s(sH)}, 19")
    P(f"s_sub_u32 {s(sT)}, {s(sWV)}, 4"); P(f"s_lshl_b32 {s(sDM0)}, {s(sT)}, 13")
    P(f"s_and_b32 {s(sDIdx)}, {s(sT)}, 1"); P(f"s_add_u32 {s(sDIdx)}, {s(sDIdx)}, 1")
    P(f"s_cmp_ge_u32 {s(sT)}, 2"); P(f"s_cselect_b32 {s(sT2)}, 2, 0"); P(f"s_sub_u32 {s(sDIdx)}, {s(sDIdx)}, {s(sT2)}")
    P(f"s_cselect_b32 {s(sT2)}, 0, 0")
    P(f"s_cmp_ge_u32 {s(sT)}, 2"); P(f"s_cselect_b32 {s(sT2)}, {VF}, 0")
    P(f"s_mov_b32 {s(sU0)}, {s(sDBase)}")
    P(f"s_add_u32 {s(sDBase)}, {s(sDBase)}, {s(sT2)}")
    P(f"s_mov_b32 {s(sSlot)}, 0")
    def dma_stage(first=False):
        P(f"s_lshl_b32 {s(sDOff)}, {s(sDIdx)}, 13"); P(f"s_add_u32 {s(sDOff)}, {s(sDOff)}, {s(sDBase)}")
        P(f"s_cmp_le_u32 {s(sDIdx)}, {s(sDLim)}"); P(f"s_cselect_b32 {s(sDOff)}, {s(sDOff)}, {OOB}")
        if first:
            P(f"s_cmp_eq_u32 {s(sWV)}, 6"); P(f"s_cselect_b32 {s(sDOff)}, {s(sU0)}, {s(sDOff)}")
        P(f"s_add_u32 m0, {s(sSlot)}, {s(sDM0)}")
        P(f"s_add_u32 {s(sDIdx)}, {s(sDIdx)}, 2")
        for i in range(4): P(f"buffer_load_dwordx4 {v(vL16)}, {s(sWS,4)}, {s(sDOff)} offen offset:{i*1024} {LD} lds", "kv")
        P(f"s_add_u32 m0, m0, 4096"); P(f"s_add_u32 {s(sDOff)}, {s(sDOff)}, 4096")
        for i in range(4): P(f"buffer_load_dwordx4 {v(vL16)}, {s(sWS,4)}, {s(sDOff)} offen offset:{i*1024} {LD} lds", "kv")
        P(f"s_add_u32 {s(sSlot)}, {s(sSlot)}, 32768"); P(f"s_and_b32 {s(sSlot)}, {s(sSlot)}, {NSLOT*32768-1}")
    for u in range(NSLOT): dma_stage(u == 0)
    P.label(f"{name}_nodma0")
    P.vq = []
    gen_aux(ctx)
    P(f"s_cmp_lt_u32 {s(sWV)}, 4"); P(f"s_cbranch_scc1 {name}_nobattn")
    P.vq = []
    gen_battn(ctx)
    P.label(f"{name}_nobattn")
    P("s_waitcnt vmcnt(0)")
    P("s_barrier")
    SP()
    P.vq = []; P.lq = []
    for i in range(64): P(f"v_mov_b32 {v(vO+i)}, 0")
    for i in range(8): P(f"v_mov_b32 {v(vP+8+i)}, 0")
    for i in range(16): P(f"v_mov_b32 {v(vNM+i)}, 0")
    P(f"v_mov_b32 {v(vLsum)}, 0"); P(f"v_mov_b32 {v(vCur)}, {v(vL16)}"); P(f"v_mov_b32 {v(vNI)}, 0xff800000")
    bfe(P, T0, 0, 5); bfe(P, T1, 5, 1); P(f"v_lshlrev_b32 {v(T1)}, 2, {v(T1)}"); P(f"v_sub_u32 {v(vD)}, {v(T0)}, {v(T1)}")
    def mask_nm():
        for r in range(16):
            m = s(sM + 2*(r%2), 2)
            P(f"v_cmp_gt_i32 {m}, {8*(r//4) + r%4}, {v(vD)}")
            P(f"v_cndmask_b32 {v(vNM+r)}, {v(vNM+r)}, {v(vNI)}, {m}")
    for i in range(8): P(f"ds_read_b128 {v(vF+4*i,4)}, {v(vCur)} offset:{16384 + i*1024}")
    P(f"s_cmp_lg_u32 {s(sJL)}, 0"); P(f"s_cbranch_scc1 {name}_nomask0")
    mask_nm()
    P.label(f"{name}_nomask0")
    for i in range(8):
        P(f"v_mfma_f32_32x32x16_bf16 {v(vS,16)}, {v(vF+4*i,4)}, {v(vQ+4*i,4)}, {v(vNM,16) if i == 0 else v(vS,16)}")
    def frag_read(n, par, cur=True):
        off = (par*8192 + n*1024) if n < 8 else (16384 + par*8192 + (n-8)*1024)
        return f"ds_read_b128 {v(vF+4*(n%8),4)}, {v(vCur)} offset:{off}"
    for n in range(PD): P(frag_read(n, 0))
    def rowmax(S):
        P(f"v_max3_f32 {v(vMX)}, {v(S)}, {v(S+1)}, {v(S+2)}")
        for i in range(3, 15, 2): P(f"v_max3_f32 {v(vMX)}, {v(vMX)}, {v(S+i)}, {v(S+i+1)}")
        P(f"v_max_f32 {v(vMX)}, {v(vMX)}, {v(S+15)}")
        P(f"v_mov_b32 {v(vMX2)}, {v(vMX)}")
        P(f"v_permlane32_swap_b32 {v(vMX)}, {v(vMX2)}")
        P(f"v_max_f32 {v(vMX)}, {v(vMX)}, {v(vMX2)}")
    rowmax(vS)
    for i in range(16): P(f"v_sub_f32 {v(vS+i)}, {v(vS+i)}, {v(vMX)}")
    for i in range(16): P(f"v_sub_f32 {v(vNM+i)}, 0, {v(vMX)}")
    entry = P.state()
    P(f"s_cmp_lt_u32 {s(sWV)}, 4"); P(f"s_cbranch_scc0 {name}_lo_E")

    def softmax_ops(par):
        S = vS + 16*par; PP = vP + 8*par
        ops = []
        for r in range(16):
            ops.append((2.0, f"v_exp_f32 {v(vT + r%8)}, {v(S+r)}"))
            if r >= 1:
                q = r - 1
                if q == 1: ops.append((1.0, f"v_add_f32 {v(vLS)}, {v(vT)}, {v(vT+1)}"))
                elif q > 1: ops.append((1.0, f"v_add_f32 {v(vLS)}, {v(vLS)}, {v(vT + q%8)}"))
                if q % 2 == 1: ops.append((1.0, f"v_cvt_pk_bf16_f32 {v(PP + q//2)}, {v(vT + (q-1)%8)}, {v(vT + q%8)}"))
        ops.append((1.0, f"v_cvt_pk_bf16_f32 {v(PP+7)}, {v(vT+6)}, {v(vT+7)}"))
        ops.append((1.0, f"v_add_f32 {v(vLS)}, {v(vLS)}, {v(vT+7)}"))
        return ops
    def check(par, role, kind):
        P(f"v_cmp_nge_f32 vcc, {s(sTHR)}, {v(vLS)}")
        P(f"s_cbranch_vccnz {name}_{role}_fb{kind}{par}")
        P.label(f"{name}_{role}_fbr{kind}{par}")
        P(f"v_add_f32 {v(vLsum)}, {v(vLsum)}, {v(vLS)}")
    def fallback(par, role, kind):
        S = vS + 16*par; S2 = vS + 16*(1-par)
        P.label(f"{name}_{role}_fb{kind}{par}")
        rowmax(S)
        P(f"v_max_f32 {v(vMX)}, 0, {v(vMX)}")
        P(f"v_sub_f32 {v(vMX2)}, 0, {v(vMX)}"); P(f"v_exp_f32 {v(vMX2)}, {v(vMX2)}")
        for i in range(16): P(f"v_sub_f32 {v(S+i)}, {v(S+i)}, {v(vMX)}")
        for i in range(16): P(f"v_sub_f32 {v(S2+i)}, {v(S2+i)}, {v(vMX)}")
        for i in range(16): P(f"v_sub_f32 {v(vNM+i)}, {v(vNM+i)}, {v(vMX)}")
        for i in range(64): P(f"v_mul_f32 {v(vO+i)}, {v(vMX2)}, {v(vO+i)}")
        P(f"v_mul_f32 {v(vLsum)}, {v(vMX2)}, {v(vLsum)}")
        for c, o in softmax_ops(par): P(o)
        P(f"s_branch {name}_{role}_fbr{kind}{par}")
    def sync(role):
        if role == "lo": P(f"s_waitcnt vmcnt({8*(NSLOT-2)}) lgkmcnt(0)")
        else: P("s_waitcnt lgkmcnt(0)")
        P("s_barrier")
        P(f"v_add_u32 {v(vCur)}, 0x8000, {v(vCur)}"); P(f"v_and_b32 {v(vCur)}, {NSLOT*32768-1}, {v(vCur)}")
    def mfA(par, i):
        S = vS + 16*(1-par)
        return f"v_mfma_f32_32x32x16_bf16 {v(S,16)}, {v(vF+4*i,4)}, {v(vQ+4*i,4)}, {v(vNM,16) if i == 0 else v(S,16)}"
    def mfC(par, i):
        db, t = i // 2, i % 2
        return f"v_mfma_f32_32x32x16_bf16 {v(vO+16*db,16)}, {v(vF+4*i,4)}, {v(vP+8*(1-par)+4*t,4)}, {v(vO+16*db,16)}"
    BG = 12
    def period(par, role):
        ops = softmax_ops(par)
        tot = sum(c for c, _ in ops); acc = 0.0; k = 0
        pend = []
        dma = []
        for n in range(16):
            P(mfA(par, n) if n < 8 else mfC(par, n - 8))
            m = n + PD
            if m < 16: P(frag_read(m, par))
            elif par == 0: P(frag_read(m - 16, 1))
            else:
                pend.append(m - 16)
                if n == BG:
                    sync(role)
                if n >= BG:
                    for x in pend: P(frag_read(x, 0))
                    pend = []
                if n == BG + 1 and role == "lo": dma_stage()
            lim = tot * (n + 1) / 15.0
            while k < len(ops) and acc + ops[k][0] <= lim + 1e-9:
                P(ops[k][1]); acc += ops[k][0]; k += 1
        assert k == len(ops)
        check(par, role, "m")
    def tailC(par, first):
        for n in range(8, 16): P(frag_read(n, par))
    def epilogue(role):
        P(f"v_mov_b32 {v(vMX2)}, {v(vLsum)}")
        P(f"v_permlane32_swap_b32 {v(vLsum)}, {v(vMX2)}")
        P(f"v_add_f32 {v(vLsum)}, {v(vLsum)}, {v(vMX2)}"); P(f"v_rcp_f32 {v(vLsum)}, {v(vLsum)}")
        bfe(P, T0, 4, 1); bfe(P, T1, 0, 4); P(f"v_lshlrev_b32 {v(T1)}, 4, {v(T1)}"); P(f"v_lshl_add_u32 {v(T0)}, {v(T0)}, 10, {v(T1)}")
        bfe(P, T1, 5, 1); P(f"v_lshl_add_u32 {v(vD)}, {v(T1)}, 8, {v(T0)}")
        P(f"s_lshr_b32 {s(sT)}, {s(sRow0)}, 6"); P(f"s_lshl_b32 {s(sT)}, {s(sT)}, 19"); P(f"s_lshl_b32 {s(sT2)}, {s(sH)}, 14"); P(f"s_add_u32 {s(sT)}, {s(sT)}, {s(sT2)}")
        P(f"s_and_b32 {s(sT2)}, {s(sRow0)}, 32"); P(f"s_lshl_b32 {s(sT2)}, {s(sT2)}, 6"); P(f"s_add_u32 {s(sT)}, {s(sT)}, {s(sT2)}")
        P(f"s_add_u32 {s(sT)}, {s(sT)}, {CTX}")
        for db in range(4):
            for i in range(16): P(f"v_mul_f32 {v(vO+16*db+i)}, {v(vLsum)}, {v(vO+16*db+i)}")
            for i in range(8): P(f"v_cvt_pk_bf16_f32 {v(vS+8*db+i)}, {v(vO+16*db+2*i)}, {v(vO+16*db+2*i+1)}")
            for u in range(2): P(f"buffer_store_dwordx4 {v(vS+8*db+4*u,4)}, {v(vD)}, {s(sWS,4)}, {s(sT)} offen offset:{u*512} {ST}")
            if db < 3: P(f"s_add_u32 {s(sT)}, {s(sT)}, 4096")
    for role in ("hi", "lo"):
        R = f"{name}_{role}"
        P.set_state(entry)
        for par in (0, 1):
            P.label(f"{R}_{'EO'[par]}")
            P(f"s_cmp_le_u32 {s(sREM)}, 1"); P(f"s_cbranch_scc1 {R}_sp{par}")
            P.label(f"{R}_go{par}")
            P(f"s_sub_u32 {s(sREM)}, {s(sREM)}, 1")
            period(par, role)
            st = P.state()
            assert [sorted(x) for x in st[0]] == [sorted(x) for x in entry[0]], (st[0], entry[0])
        P(f"s_branch {R}_E")
        for par in (0, 1):
            P.set_state(entry); fallback(par, role, "m")
        for par in (0, 1):
            P.set_state(entry)
            P.label(f"{R}_sp{par}")
            P(f"s_cmp_eq_u32 {s(sREM)}, 0"); P(f"s_cbranch_scc1 {R}_tail{par}")
            mask_nm()
            P(f"s_branch {R}_go{par}")
        for par in (0, 1):
            P.set_state(entry)
            P.label(f"{R}_tail{par}")
            P("s_waitcnt lgkmcnt(0)")
            for n in range(8, 16): P(frag_read(n, par))
            interleave(P, [mfC(par, i) for i in range(8)], [o for c, o in softmax_ops(par)])
            check(par, role, "t")
            if par == 1:
                sync(role)
                if role == "lo": dma_stage()
            for n in range(8, 16): P(frag_read(n, 1 - par))
            for i in range(8): P(mfC(1 - par, i))
            P(f"s_branch {R}_epi")
            st = P.state()
            fallback(par, role, "t")
        P.label(f"{R}_epi")
        P.lq = []
        epilogue(role)
        P(f"s_cmp_eq_u32 {s(sNB)}, 0"); P(f"s_cbranch_scc1 {name}_att_done")
        P.label(f"{R}_rest")
        if role == "lo": P(f"s_waitcnt vmcnt({8*(NSLOT-2)})")
        P("s_barrier")
        if role == "lo": dma_stage()
        P(f"s_sub_u32 {s(sNB)}, {s(sNB)}, 1"); P(f"s_cmp_lg_u32 {s(sNB)}, 0"); P(f"s_cbranch_scc1 {R}_rest")
        if role == "hi": P(f"s_branch {name}_att_done")
    P.label(f"{name}_att_done")
    P("s_waitcnt vmcnt(0) lgkmcnt(0)")
    P("s_barrier")
    SP()
    if STOP == "A": return
    ctx["publish"](FLG2)
    import outp
    outp.gen_out(ctx)
```

```python
from asmlib import *
MB = 1 << 20
KF, VF, CTX, QKV, BO, WOF, BWOF = 0, 16*MB, 32*MB, 48*MB, 56*MB, 60*MB, 66*MB
WS_BYTES = 268435456
ARG = dict(A_x=0, A_ckv=8, A_wq=16, A_wuk=24, A_wuv=32, A_wo=40, B_x=48, B_wqkv=56, B_wo=64, out=72, dbg=80, ws=88)
SZ = dict(A_x=2621440, A_ckv=2097152, A_wq=5242880, A_wuk=4194304, A_wuv=4194304, A_wo=5242880,
          B_x=2621440, B_wqkv=2457600, B_wo=819200, out=5242880, dbg=256, ws=WS_BYTES)

def kernel_start(P, name, nwg):
    P.raw(f".globl {name}"); P.raw(".p2align 8"); P.raw(f".type {name},@function"); P.label(name)
    P(f"s_cmp_ge_u32 s2, {nwg}"); P(f"s_cbranch_scc1 {name}_end")

def kernel_desc(name, vgpr, agpr=0, sgpr=96):
    acc = (vgpr + 3) // 4 * 4
    nfv = acc + agpr if agpr else vgpr
    return "\n".join([".p2align 6", f".amdhsa_kernel {name}", f"  .amdhsa_next_free_vgpr {nfv}", f"  .amdhsa_next_free_sgpr {sgpr}",
        f"  .amdhsa_accum_offset {acc}", "  .amdhsa_group_segment_fixed_size 0", "  .amdhsa_kernarg_size 96",
        "  .amdhsa_user_sgpr_count 2", "  .amdhsa_user_sgpr_kernarg_segment_ptr 1", "  .amdhsa_system_sgpr_workgroup_id_x 1",
        ".end_amdhsa_kernel"]) + "\n"

def load_ptr(P, sreg, name): P(f"s_load_dwordx2 {s(sreg,2)}, s[0:1], {ARG[name]}")
def make_srd(P, srd, ptr, size):
    P(f"s_mov_b32 {s(srd)}, {s(ptr)}"); P(f"s_mov_b32 {s(srd+1)}, {s(ptr+1)}")
    P(f"s_mov_b32 {s(srd+2)}, {size}"); P(f"s_mov_b32 {s(srd+3)}, 0x20000")

def interleave(P, mfmas, fillers):
    n = len(mfmas); m = len(fillers); k = 0
    for i, mf in enumerate(mfmas):
        emit(P, mf)
        upto = (m * (i + 1) + n - 1) // n
        while k < upto:
            emit(P, fillers[k]); k += 1
def emit(P, x):
    if callable(x): x()
    elif isinstance(x, tuple): P(x[0], x[1])
    else: P(x)

import os
PROF = int(os.environ.get("PROF", "0"))
PROFOFF = 100*MB
class Stamps:
    def __init__(self, P, kidx, base=64, nmax=14):
        self.P = P; self.k = kidx; self.base = base; self.n = 0; self.nmax = nmax
    def stamp(self, real=False):
        if not PROF: return
        assert self.n < self.nmax
        self.P.raw(f"{'s_memrealtime' if real else 's_memtime'} {s(self.base + 2*self.n, 2)}")
        self.n += 1
    def flush(self, srd, swave, vt):
        if not PROF: return
        P = self.P
        P.raw("s_waitcnt lgkmcnt(0)")
        P.raw(f"s_lshl_b32 s3, s2, 3"); P.raw(f"s_add_u32 s3, s3, {s(swave)}"); P.raw("s_lshl_b32 s3, s3, 6")
        P.raw(f"s_add_u32 s3, s3, {PROFOFF + self.k*256*8*64}")
        P.raw(f"v_mov_b32 {v(vt+1)}, 0")
        for i in range(self.n):
            P.raw(f"v_mov_b32 {v(vt)}, {s(self.base + 2*i)}")
            P.raw(f"buffer_store_dword {v(vt)}, {v(vt+1)}, {s(srd,4)}, s3 offen offset:{4*i}")
            P.raw("s_nop 1")
```

```python
from common import *
import math
ST = os.environ.get("ST", "sc1")
LD = os.environ.get("LD", "sc1")
STOP = os.environ.get("STOP", "")
FLG1, FLG2 = 70*MB, 70*MB + 4096
QSCALE = math.log2(math.e) / math.sqrt(128.0)
import struct
def fbits(x): return "0x%08x" % struct.unpack("<I", struct.pack("<f", x))[0]

sCKV, sWKV, sWS, sBX, sBW, sAX, sWQ, sWO, sBWO, sOUT, sDBG = 8, 12, 16, 20, 24, 28, 32, 36, 40, 44, 48
sX, sJ, sWV, sT, sT2, sTa, sTw, sM4, sM2 = 52, 53, 54, 55, 56, 57, 58, 59, 60
sOffA, sOffW, sOutKV, sOffBA, sOffBW, sOutB, sSt = 61, 62, 63, 64, 65, 66, 67
sOffX, sOffQW, sH, sG, sRow0, sJL, sREM, sNB = 68, 69, 70, 71, 72, 73, 74, 75
sSlot, sDOff, sDIdx, sDLim, sDBase, sTHR, sDM0 = 76, 77, 78, 79, 80, 81, 82
sNON = 84
sU0, sU1, sU2, sU3 = 86, 87, 88, 89
sM = 90
sSTAMP = 96
vL16, vTID, vSTAMP = 240, 241, 255
T0, T1, T2, T3 = 242, 243, 244, 245

class Stamp:
    def __init__(self, P): self.P = P; self.n = 0
    def __call__(self, real=False, idx=None):
        if not PROF: return
        if idx is not None: self.n = idx
        P = self.P
        P.raw(f"{'s_memrealtime' if real else 's_memtime'} {s(sSTAMP,2)}"); P("s_waitcnt lgkmcnt(0)")
        P.raw(f"v_writelane_b32 {v(vSTAMP)}, {s(sSTAMP)}, {self.n}")
        self.n += 1
    def flush(self):
        if not PROF: return
        P = self.P
        P.raw(f"s_lshl_b32 s3, s2, 3"); P.raw(f"s_add_u32 s3, s3, {s(sWV)}"); P.raw("s_lshl_b32 s3, s3, 8")
        P.raw(f"s_add_u32 s3, s3, {PROFOFF}")
        P.raw(f"v_lshrrev_b32 {v(T0)}, 2, {v(vL16)}"); P.raw("s_nop 1")
        P.raw(f"buffer_store_dword {v(vSTAMP)}, {v(T0)}, {s(sWS,4)}, s3 offen")

def bfe(P, dst, off, n): P(f"v_bfe_u32 {v(dst)}, {v(vTID)}, {off}, {n}")

def act_voff(P, dst, i, stride):
    bfe(P, T0, 4, 2)
    if i % 2: P(f"v_xor_b32 {v(T0)}, 4, {v(T0)}")
    bfe(P, T1, 0, 3); P(f"v_xor_b32 {v(T0)}, {v(T0)}, {v(T1)}"); P(f"v_lshlrev_b32 {v(T0)}, 4, {v(T0)}")
    bfe(P, T1, 3, 3)
    P(f"v_mul_u32_u24 {v(T1)}, {stride}, {v(T1)}")
    P(f"v_add_u32 {v(T0)}, {v(T0)}, {v(T1)}")
    P(f"v_add_u32 {v(dst)}, {8*i*stride - i*1024}, {v(T0)}")
def w256_voff(P, dst, i, stride):
    bfe(P, T0, 4, 2); bfe(P, T1, 2, 2)
    P(f"v_xor_b32 {v(T1)}, {v(T1)}, {v(T0)}"); P(f"v_lshlrev_b32 {v(T1)}, 6, {v(T1)}")
    bfe(P, T2, 0, 2); P(f"v_lshl_add_u32 {v(T1)}, {v(T2)}, 4, {v(T1)}")
    P(f"v_mul_u32_u24 {v(T0)}, {stride}, {v(T0)}")
    P(f"v_add_u32 {v(T1)}, {v(T1)}, {v(T0)}")
    P(f"v_add_u32 {v(dst)}, {4*i*stride - i*1024}, {v(T1)}")
def w512_voff(P, dst, i, stride_log):
    bfe(P, T2, 5, 1)
    P(f"v_add_u32 {v(T0)}, {2*i}, {v(T2)}")
    bfe(P, T1, 2, 3); P(f"v_xor_b32 {v(T1)}, {v(T1)}, {v(T0)}"); P(f"v_lshlrev_b32 {v(T1)}, 6, {v(T1)}")
    bfe(P, T0, 0, 2); P(f"v_lshl_add_u32 {v(T1)}, {v(T0)}, 4, {v(T1)}")
    P(f"v_lshl_add_u32 {v(T1)}, {v(T2)}, {stride_log}, {v(T1)}")
    P(f"v_add_u32 {v(dst)}, {(2*i << stride_log) - i*1024}, {v(T1)}")
def act_raddr(P, dst, ks, sbase):
    bfe(P, T0, 5, 1); P(f"v_add_u32 {v(T0)}, {2*ks}, {v(T0)}"); bfe(P, T1, 1, 3)
    P(f"v_xor_b32 {v(T0)}, {v(T0)}, {v(T1)}"); P(f"v_lshlrev_b32 {v(T0)}, 4, {v(T0)}")
    bfe(P, T1, 0, 5); P(f"v_lshl_add_u32 {v(T0)}, {v(T1)}, 7, {v(T0)}")
    P(f"v_add_u32 {v(dst)}, {sbase}, {v(T0)}")
def w_raddr(P, dst, unit, rowlog, base):
    bfe(P, T0, 2, 2); P(f"v_xor_b32 {v(T1)}, {unit}, {v(T0)}"); P(f"v_lshlrev_b32 {v(T1)}, 6, {v(T1)}")
    bfe(P, T2, 5, 1); P(f"v_lshl_add_u32 {v(T0)}, {v(T2)}, 3, {v(T0)}"); P(f"v_lshl_add_u32 {v(T1)}, {v(T0)}, {rowlog}, {v(T1)}")
    bfe(P, T0, 4, 1); P(f"v_lshl_add_u32 {v(T1)}, {v(T0)}, 5, {v(T1)}")
    bfe(P, T0, 0, 2); P(f"v_lshl_add_u32 {v(T1)}, {v(T0)}, 3, {v(T1)}")
    P(f"v_add_u32 {v(dst)}, {base}, {v(T1)}")

def gen(P, name):
    kernel_start(P, name, 256)
    SP = Stamp(P)
    P(f"s_load_dwordx16 s[64:79], s[0:1], 0"); P(f"s_load_dwordx8 s[80:87], s[0:1], 64")
    P(f"v_mov_b32 {v(vTID)}, v0")
    P(f"v_lshrrev_b32 v1, 6, v0")
    P(f"s_and_b32 {s(sX)}, s2, 7"); P(f"s_lshr_b32 {s(sJ)}, s2, 3")
    P(f"v_readfirstlane_b32 {s(sWV)}, v1")
    P(f"v_and_b32 v1, 63, v0"); P(f"v_lshlrev_b32 {v(vL16)}, 4, v1")
    vA, vA2, vW, voffA, voffW, voffBA, voffBW, vBA, vBW, vBAc, vBWc = 10, 14, 18, 20, 24, 26, 28, 32, 36, 37, 41
    for i in range(4): act_voff(P, voffA + i, i, 1024)
    for i in range(2): w512_voff(P, voffW + i, i, 13)
    P("s_waitcnt lgkmcnt(0)")
    SP(True); SP()
    sMT, sNT = sU0, sU1
    make_srd(P, sWS, 86, SZ["ws"])
    P(f"s_and_b32 {s(sMT)}, {s(sJ)}, 7"); P(f"s_lshr_b32 {s(sNT)}, {s(sJ)}, 3")
    make_srd(P, sCKV, 66, SZ["A_ckv"])
    P(f"s_cmp_ge_u32 {s(sNT)}, 2")
    P(f"s_cselect_b32 {s(sWKV)}, s72, s70"); P(f"s_cselect_b32 {s(sWKV+1)}, s73, s71")
    P(f"s_mov_b32 {s(sWKV+2)}, {SZ['A_wuk']}"); P(f"s_mov_b32 {s(sWKV+3)}, 0x20000")
    make_srd(P, sAX, 64, SZ["A_x"]); make_srd(P, sWQ, 68, SZ["A_wq"]); make_srd(P, sWO, 74, SZ["A_wo"])
    make_srd(P, sBX, 76, SZ["B_x"]); make_srd(P, sBW, 78, SZ["B_wqkv"]); make_srd(P, sBWO, 80, SZ["B_wo"])
    make_srd(P, sOUT, 82, SZ["out"]); make_srd(P, sDBG, 84, SZ["dbg"])
    P(f"s_and_b32 {s(sT)}, {s(sNT)}, 1"); P(f"s_lshl_b32 {s(sT)}, {s(sT)}, 1"); P(f"s_lshl_b32 {s(sT2)}, {s(sX)}, 2"); P(f"s_add_u32 {s(sT)}, {s(sT)}, {s(sT2)}")
    P(f"s_lshl_b32 {s(sOffW)}, {s(sT)}, 8"); P(f"s_lshl_b32 {s(sT2)}, {s(sWV)}, 15"); P(f"s_add_u32 {s(sOffW)}, {s(sOffW)}, {s(sT2)}")
    P(f"s_lshl_b32 {s(sOffA)}, {s(sMT)}, 18"); P(f"s_add_u32 {s(sOffA)}, {s(sOffA)}, {s(sT2)}")
    P(f"s_lshl_b32 {s(sM4)}, {s(sWV)}, 12"); P(f"s_lshl_b32 {s(sM2)}, {s(sWV)}, 11")

    ASLOT = [0, 32768, 65536]; WSLOT = [98304 + 16384*i for i in range(4)]
    BSLOT = [65536, 0, 98304, 32768, 131072]
    XSLOT = [65536, 0, 32768]
    def dma_act(st, part):
        P(f"s_add_u32 m0, {s(sM4)}, {ASLOT[st%3]}")
        P(f"s_add_u32 {s(sTa)}, {s(sOffA)}, {st*128}")
        for i in part: P(f"buffer_load_dwordx4 {v(voffA+i)}, {s(sCKV,4)}, {s(sTa)} offen offset:{i*1024} lds", ("A", st))
    def dma_w(h):
        P(f"s_add_u32 m0, {s(sM2)}, {WSLOT[h%4]}")
        P(f"s_add_u32 {s(sTw)}, {s(sOffW)}, {h*32*8192}")
        for i in range(2): P(f"buffer_load_dwordx4 {v(voffW+i)}, {s(sWKV,4)}, {s(sTw)} offen offset:{i*1024} lds", ("W", h))
    def dma_b(st):
        P(f"s_add_u32 m0, {s(sM2)}, {BSLOT[st%5]}")
        P(f"s_add_u32 {s(sTa)}, {s(sOffBA)}, {st*128}")
        for i in range(2): P(f"buffer_load_dwordx4 {v(voffBA+i)}, {s(sBX,4)}, {s(sTa)} offen offset:{i*1024} lds", ("B", st))
        P(f"s_add_u32 m0, {s(sM2)}, {BSLOT[st%5]+16384}")
        P(f"s_add_u32 {s(sTw)}, {s(sOffBW)}, {st*64*3840}")
        for i in range(2): P(f"buffer_load_dwordx4 {v(voffBW+i)}, {s(sBW,4)}, {s(sTw)} offen offset:{i*1024} lds", ("B", st))
    dma_act(0, range(4)); dma_w(0)
    P("s_barrier")
    dma_w(1); dma_act(1, range(4))
    P(f"s_lshr_b32 {s(sT2)}, {s(sWV)}, 2"); P(f"s_add_u32 {s(sT)}, {s(sT)}, {s(sT2)}"); P(f"s_lshl_b32 {s(sOutKV)}, {s(sT)}, 19")
    P(f"s_lshl_b32 {s(sT)}, {s(sMT)}, 16"); P(f"s_add_u32 {s(sOutKV)}, {s(sOutKV)}, {s(sT)}")
    P(f"s_and_b32 {s(sT)}, {s(sWV)}, 1"); P(f"s_lshl_b32 {s(sT)}, {s(sT)}, 15"); P(f"s_add_u32 {s(sOutKV)}, {s(sOutKV)}, {s(sT)}")
    P(f"s_and_b32 {s(sT)}, {s(sWV)}, 2"); P(f"s_lshl_b32 {s(sT)}, {s(sT)}, 11"); P(f"s_add_u32 {s(sOutKV)}, {s(sOutKV)}, {s(sT)}")
    P(f"s_lshr_b32 {s(sT)}, {s(sNT)}, 1"); P(f"s_lshl_b32 {s(sT)}, {s(sT)}, 24"); P(f"s_add_u32 {s(sOutKV)}, {s(sOutKV)}, {s(sT)}")
    sCB, sTB = sU2, sU3
    P(f"s_min_u32 {s(sT)}, {s(sJ)}, 29"); P(f"s_and_b32 {s(sT2)}, {s(sX)}, 1"); P(f"s_mul_i32 {s(sT2)}, {s(sT2)}, 30"); P(f"s_add_u32 {s(sT)}, {s(sT)}, {s(sT2)}")
    P(f"s_lshr_b32 {s(sCB)}, {s(sT)}, 2"); P(f"s_and_b32 {s(sTB)}, {s(sT)}, 3")
    P(f"s_lshr_b32 {s(sT2)}, {s(sX)}, 1"); P(f"s_lshl_b32 {s(sT2)}, {s(sT2)}, 2"); P(f"s_add_u32 {s(sTB)}, {s(sTB)}, {s(sT2)}")
    P(f"s_lshl_b32 {s(sT)}, {s(sTB)}, 3"); P(f"s_add_u32 {s(sT)}, {s(sT)}, {s(sWV)}"); P(f"s_mul_i32 {s(sOffBA)}, {s(sT)}, {16*1280}")
    P(f"s_mul_i32 {s(sOffBW)}, {s(sWV)}, {8*3840}"); P(f"s_lshl_b32 {s(sT)}, {s(sCB)}, 8"); P(f"s_add_u32 {s(sOffBW)}, {s(sOffBW)}, {s(sT)}")
    P(f"s_and_b32 {s(sT2)}, {s(sWV)}, 1"); P(f"s_lshl_b32 {s(sT)}, {s(sTB)}, 1"); P(f"s_add_u32 {s(sT)}, {s(sT)}, {s(sT2)}"); P(f"s_mul_i32 {s(sOutB)}, {s(sT)}, {2*120*1024}")
    P(f"s_lshr_b32 {s(sT2)}, {s(sWV)}, 1"); P(f"s_lshl_b32 {s(sT)}, {s(sCB)}, 2"); P(f"s_add_u32 {s(sT)}, {s(sT)}, {s(sT2)}"); P(f"s_lshl_b32 {s(sT)}, {s(sT)}, 11")
    P(f"s_add_u32 {s(sOutB)}, {s(sOutB)}, {s(sT)}"); P(f"s_add_u32 {s(sOutB)}, {s(sOutB)}, {QKV}")
    P(f"s_and_b32 {s(sH)}, {s(sJ)}, 3"); P(f"s_lshl_b32 {s(sT)}, {s(sX)}, 2"); P(f"s_add_u32 {s(sH)}, {s(sH)}, {s(sT)}")
    P(f"s_lshr_b32 {s(sG)}, {s(sJ)}, 2")
    P(f"s_lshl_b32 {s(sT)}, {s(sG)}, 2"); P(f"s_add_u32 {s(sT)}, {s(sT)}, {s(sWV)}")
    P(f"s_sub_u32 {s(sT2)}, 63, {s(sT)}"); P(f"s_sub_u32 {s(sT)}, {s(sT)}, 4")
    P(f"s_cmp_lt_u32 {s(sWV)}, 4"); P(f"s_cselect_b32 {s(sJL)}, {s(sT2)}, {s(sT)}")
    P(f"s_lshl_b32 {s(sRow0)}, {s(sJL)}, 5")
    P(f"s_mul_i32 {s(sOffX)}, {s(sRow0)}, 1280")
    P(f"s_lshl_b32 {s(sOffQW)}, {s(sH)}, 8"); P(f"s_lshl_b32 {s(sT)}, {s(sWV)}, 16"); P(f"s_add_u32 {s(sOffQW)}, {s(sOffQW)}, {s(sT)}")
    dma_w(2); dma_w(3); dma_act(2, range(4))
    P(f"s_cmp_lg_u32 {s(sWV)}, 4"); P(f"s_cbranch_scc1 {name}_nonon")
    P(f"s_memrealtime {s(sNON,2)}"); P("s_waitcnt lgkmcnt(0)")
    P(f"v_mov_b32 v4, {s(sNON)}"); P(f"v_mov_b32 v5, {s(sNON+1)}"); P("v_mov_b32 v6, 0"); P("v_mov_b32 v7, 0"); P("v_mov_b32 v8, 0")
    P("s_mov_b64 exec, 1")
    P.raw(f"buffer_atomic_cmpswap_x2 v[4:7], v8, {s(sDBG,4)}, 0 offen")
    P("s_mov_b64 exec, -1")
    P.label(f"{name}_nonon")
    P.vq.append((set(), "nonce"))
    P.vq.pop()
    for i in range(2): act_voff(P, voffBA + i, i, 1280)
    for i in range(2): w256_voff(P, voffBW + i, i, 3840)
    P(f"s_and_b32 {s(sT)}, {s(sWV)}, 1"); P(f"s_lshl_b32 {s(sT2)}, {s(sT)}, 14"); P(f"s_lshl_b32 {s(sT)}, {s(sT)}, 13")
    for ks in range(4):
        act_raddr(P, vA + ks, ks, s(sT2))
        P(f"v_add_u32 {v(vA2+ks)}, 0x10000, {v(vA+ks)}")
        P(f"v_add_u32 {v(vBA+ks)}, {s(sT)}, {v(T0)}")
    P(f"s_and_b32 {s(sT)}, {s(sWV)}, 6")
    for cb in range(2):
        P(f"s_add_u32 {s(sT2)}, {s(sT)}, {cb}")
        w_raddr(P, vW + cb, s(sT2), 9, 98304)
    P(f"s_lshr_b32 {s(sT2)}, {s(sWV)}, 1")
    w_raddr(P, vBW, s(sT2), 8, 16384)

    ACC = 64; FR = [192, 216]
    def fA(set_, tb): return FR[set_] + 4*tb
    def fW(set_, cb): return FR[set_] + 16 + 4*cb
    def reads(q):
        st, ks = q // 4, q % 4; h, kh = q // 2, q % 2; se = q % 2
        sl = st % 3
        def rA(tb):
            base = vA2 if sl == 2 else vA; off = (ASLOT[sl] if sl < 2 else 0) + tb*4096
            return f"ds_read_b128 {v(fA(se,tb),4)}, {v(base+ks)} offset:{off}"
        def rW(cb, i):
            return f"ds_read_b64_tr_b16 {v(fW(se,cb)+2*i,2)}, {v(vW+cb)} offset:{(h%4)*16384 + (16*kh+4*i)*512}"
        return [rW(0,0), rW(0,1), rA(0), rW(1,0), rW(1,1), rA(1), rA(2), rA(3)]
    st0 = P.state()
    P(f"s_cmp_ge_u32 {s(sNT)}, 2"); P(f"s_cbranch_scc1 {name}_V")
    for isV in (0, 1):
        if isV: P.label(f"{name}_V"); P.set_state(st0)
        P.wait_tag(lambda t: t in (("A", 0), ("W", 0))); P("s_barrier")
        SP(idx=2)
        for r in reads(0): P(r)
        for q in range(32):
            se = q % 2; hs = q // 2
            mf = []
            for tb in range(4):
                for cb in range(2):
                    d = v(ACC + (tb*2+cb)*16, 16); c = "0" if q == 0 else d
                    x, y = (fA(se,tb), fW(se,cb)) if isV else (fW(se,cb), fA(se,tb))
                    mf.append(f"v_mfma_f32_32x32x16_bf16 {d}, {v(x,4)}, {v(y,4)}, {c}")
            fill = []
            if q % 2 == 1 and q < 31:
                def sync(hs=hs):
                    P.wait_tag(lambda t: t == ("W", hs+1) or t == ("A", (hs+1)//2)); P("s_barrier")
                fill.append(sync)
            if q < 31: fill += reads(q + 1)
            if q % 2 == 1:
                if 1 <= hs <= 12: fill.insert(3, lambda hs=hs: dma_w(hs + 3))
                sa = hs // 2 + 2
                if hs >= 2 and sa <= 7: fill.insert(6, lambda hs=hs, sa=sa: dma_act(sa, [0,1] if hs % 2 == 0 else [2,3]))
                if hs == 12: fill.insert(6, lambda: dma_b(0))
                if hs == 14: fill.insert(3, lambda: dma_b(1)); fill.insert(7, lambda: dma_b(2))
            interleave(P, mf, fill)
        if not isV: P(f"s_branch {name}_J")
    P.label(f"{name}_J")
    SP()
    P.wait_tag(lambda t: t == ("B", 0)); P("s_barrier")
    dma_b(3); dma_b(4)
    BFR = [192 + 12*i for i in range(4)]
    BACC = 128
    voffX, voffQW, vXr, vQWr, vXc = 20, 24, 10, 14, 42
    def baddr(st):
        return [f"v_add_u32 {v(vBAc+ks)}, {BSLOT[st%5]}, {v(vBA+ks)}" for ks in range(4)] + [f"v_add_u32 {v(vBWc)}, {BSLOT[st%5]}, {v(vBW)}"]
    def breads(q):
        ks = q % 4; se = q % 4
        return [f"ds_read_b64_tr_b16 {v(BFR[se]+8,2)}, {v(vBWc)} offset:{(16*ks)*256}",
                f"ds_read_b64_tr_b16 {v(BFR[se]+10,2)}, {v(vBWc)} offset:{(16*ks+4)*256}",
                f"ds_read_b128 {v(BFR[se],4)}, {v(vBAc+ks)} offset:0",
                f"ds_read_b128 {v(BFR[se]+4,4)}, {v(vBAc+ks)} offset:4096"]
    for x in baddr(0): P(x)
    for r in breads(0) + breads(1): P(r)
    for i in range(64): P(f"v_cvt_pk_bf16_f32 {v(ACC+i)}, {v(ACC+2*i)}, {v(ACC+2*i+1)}")
    for i in range(4): act_voff(P, voffX + i, i, 1280)
    for i in range(2): w256_voff(P, voffQW + i, i, 8192)
    for ks in range(4): act_raddr(P, vXr + ks, ks, s(sM4))
    for db in range(4): w_raddr(P, vQWr + db, db, 8, 98304)
    def kvstore(n):
        tb, r = n // 4, n % 4
        P(f"s_add_u32 {s(sSt)}, {s(sOutKV)}, {tb*8192}")
        P(f"buffer_store_dwordx4 {v(ACC+n*4,4)}, {v(vL16)}, {s(sWS,4)}, {s(sSt)} offen offset:{r*1024} {ST}", ("S", n))
    def dma_x(st):
        P(f"s_add_u32 m0, {s(sM4)}, {XSLOT[st%3]}")
        P(f"s_add_u32 {s(sTa)}, {s(sOffX)}, {st*128}")
        for i in range(4): P(f"buffer_load_dwordx4 {v(voffX+i)}, {s(sAX,4)}, {s(sTa)} offen offset:{i*1024} lds", ("X", st))
    def dma_qw(st):
        P(f"s_add_u32 m0, {s(sM2)}, {WSLOT[st%4]}")
        P(f"s_add_u32 {s(sTw)}, {s(sOffQW)}, {st*64*8192}")
        for i in range(2): P(f"buffer_load_dwordx4 {v(voffQW+i)}, {s(sWQ,4)}, {s(sTw)} offen offset:{i*1024} lds", ("Q", st))
    NSB = int(os.environ.get("NSB", "10"))
    NQ = 40
    for q in range(NQ):
        st, ks = q // 4, q % 4; se = q % 4
        mf = []
        for tb in range(2):
            d = v(BACC + tb*16, 16); c = "0" if q == 0 else d
            mf.append(f"v_mfma_f32_32x32x16_bf16 {d}, {v(BFR[se]+8,4)}, {v(BFR[se]+4*tb,4)}, {c}")
        fill = []
        if ks == 2 and st < 9:
            def sync(st=st):
                P.wait_tag(lambda t: t == ("B", st+1)); P("s_barrier")
                for x in baddr(st+1): P(x)
            fill.append(sync)
        if ks == 2 and st == 9: fill.append("s_barrier")
        if q + 2 < NQ: fill += breads(q + 2)
        if ks == 3:
            if 1 <= st <= 5: fill.append(lambda st=st: dma_b(st + 4))
            if st == 6: fill.append(lambda: dma_x(0))
            if st == 7: fill.append(lambda: dma_x(1))
            if st == 8: fill.append(lambda: (dma_qw(0), dma_qw(1)))
            if st == 9: fill.append(lambda: dma_x(2))
        if ks == 0 and st < NSB: fill.append(lambda n=st: kvstore(n))
        interleave(P, mf, fill)
    SP()
    P.wait_tag(lambda t: t in (("X", 0), ("Q", 0))); P("s_barrier")
    dma_qw(2); dma_qw(3)
    QACC = 176; QFR = [0, 46]
    QFR = [46, 128]
    QFR = [128, 148]
    BPK = 46
    def xaddr(st): return [f"v_add_u32 {v(vXc+ks)}, {XSLOT[st%3]}, {v(vXr+ks)}" for ks in range(4)]
    def qreads(q):
        st, ks = q // 4, q % 4; se = q % 2
        out = []
        for db in range(4):
            for i in range(2):
                out.append(f"ds_read_b64_tr_b16 {v(QFR[se]+4*db+2*i,2)}, {v(vQWr+db)} offset:{(st%4)*16384 + (16*ks+4*i)*256}")
        out.insert(2, f"ds_read_b128 {v(QFR[se]+16,4)}, {v(vXc+ks)} offset:0")
        return out
    for tb in range(2):
        for i in range(8): P(f"v_cvt_pk_bf16_f32 {v(BPK+tb*8+i)}, {v(BACC+tb*16+2*i)}, {v(BACC+tb*16+2*i+1)}")
    for x in xaddr(0): P(x)
    for r in qreads(0): P(r)
    for tb in range(2):
        b = BPK + tb*8
        for (x, y) in ((0,2),(1,3),(4,6),(5,7)): P(f"v_permlane32_swap_b32 {v(b+x)}, {v(b+y)}")
    def bstore(n):
        tb, c = n // 2, n % 2
        P(f"s_add_u32 {s(sSt)}, {s(sOutB)}, {tb*120*1024}")
        P(f"buffer_store_dwordx4 {v(BPK+tb*8+4*c,4)}, {v(vL16)}, {s(sWS,4)}, {s(sSt)} offen offset:{c*1024} {ST}", ("S", 16+n))
    late = [lambda n=n: kvstore(n) for n in range(NSB, 16)] + [lambda n=n: bstore(n) for n in range(4)]
    SPQ = int(os.environ.get("SPQ", "2"))
    PUB = int(os.environ.get("PUB", "9"))
    def publish(flg):
        lab = f"{name}_pub{flg}"
        P(f"s_cmp_lg_u32 {s(sWV)}, 4"); P(f"s_cbranch_scc1 {lab}")
        P(f"s_lshl_b32 {s(sT)}, s2, 3"); P(f"s_add_u32 {s(sT)}, {s(sT)}, {flg}")
        P(f"v_mov_b32 {v(T0)}, {s(sNON)}"); P(f"v_mov_b32 {v(T1)}, {s(sNON+1)}"); P(f"v_mov_b32 {v(T2)}, 0")
        P("s_mov_b64 exec, 1")
        P.raw(f"buffer_store_dwordx2 {v(T0,2)}, {v(T2)}, {s(sWS,4)}, {s(sT)} offen sc1")
        P("s_mov_b64 exec, -1")
        P.label(lab)
    P(f"v_mov_b32 {v(T2)}, 0")
    P(f"buffer_load_dwordx2 {v(T0,2)}, {v(T2)}, {s(sDBG,4)}, 0 offen sc1")
    tag_loaded = [False]
    for q in range(40):
        st, ks = q // 4, q % 4; se = q % 2
        mf = []
        for db in range(4):
            d = v(QACC + db*16, 16); c = "0" if q == 0 else d
            mf.append(f"v_mfma_f32_32x32x16_bf16 {d}, {v(QFR[se]+4*db,4)}, {v(QFR[se]+16,4)}, {c}")
        fill = []
        if ks == 3:
            def sync(st=st):
                if st == 0:
                    P(f"v_readfirstlane_b32 {s(sNON)}, {v(T0)}"); P(f"v_readfirstlane_b32 {s(sNON+1)}, {v(T1)}")
                if st < 9: P.wait_tag(lambda t: t in (("X", st+1), ("Q", st+1)))
                if st == PUB: P.wait_tag(lambda t: t is not None and t[0] == "S")
                if st < 9 or st == PUB: P("s_barrier")
                if st == PUB: publish(FLG1)
                if st < 9:
                    for x in xaddr(st+1): P(x)
            fill.append(sync)
        if q < 39: fill += qreads(q + 1)
        if ks == 3 and st >= 1:
            if st + 2 <= 9: fill.insert(4, lambda st=st: dma_x(st + 2))
            if st + 3 <= 9: fill.insert(8, lambda st=st: dma_qw(st + 3))
        if ks in (0, 1, 2)[:SPQ] and late: fill.insert(3, late.pop(0))
        interleave(P, mf, fill)
    assert not late
    SP()
    vQ = 0
    P(f"s_mov_b32 {s(sT)}, {fbits(QSCALE)}")
    for i in range(64): P(f"v_mul_f32 {v(QACC+i)}, {s(sT)}, {v(QACC+i)}")
    for i in range(32): P(f"v_cvt_pk_bf16_f32 {v(vQ+i)}, {v(QACC+2*i)}, {v(QACC+2*i+1)}")
    def poll(flg, lab):
        P(f"v_lshlrev_b32 {v(T3)}, 1, {v(vL16)}")
        P(f"s_mov_b32 {s(sT)}, {flg}"); P(f"s_mov_b32 {s(sT2)}, 0x400000")
        P.label(lab)
        P(f"buffer_load_dwordx4 {v(246,4)}, {v(T3)}, {s(sWS,4)}, {s(sT)} offen sc1")
        P(f"buffer_load_dwordx4 {v(250,4)}, {v(T3)}, {s(sWS,4)}, {s(sT)} offen offset:16 sc1")
        P("s_waitcnt vmcnt(0)")
        for i in range(8): P(f"v_xor_b32 {v(246+i)}, {s(sNON + i%2)}, {v(246+i)}")
        P(f"v_or3_b32 {v(246)}, {v(246)}, {v(247)}, {v(248)}"); P(f"v_or3_b32 {v(249)}, {v(249)}, {v(250)}, {v(251)}")
        P(f"v_or3_b32 {v(246)}, {v(246)}, {v(252)}, {v(253)}"); P(f"v_or_b32 {v(246)}, {v(246)}, {v(249)}")
        P(f"v_cmp_ne_u32 vcc, 0, {v(246)}")
        P(f"s_cbranch_vccz {lab}_ok")
        P("s_sleep 2")
        P(f"s_sub_u32 {s(sT2)}, {s(sT2)}, 1"); P(f"s_cmp_lg_u32 {s(sT2)}, 0"); P(f"s_cbranch_scc1 {lab}")
        P.label(lab + "_ok")
    ctx = dict(P=P, SP=SP, name=name, vQ=vQ, poll=poll, publish=publish)
    if STOP == "Q":
        P("s_waitcnt vmcnt(0)")
    else:
        import attn
        attn.gen_attn(ctx)
    SP(); SP(True); SP.flush()
    P.label(f"{name}_end"); P("s_endpgm")
    return kernel_desc(name, 256, sgpr=100)
```

```python
from fused import *

def gen_out(ctx):
    P, SP, name = ctx["P"], ctx["SP"], ctx["name"]
    ACC, RING, DEPTH = 0, 80, 4
    vL2, vOut, vLA = 224, 225, 226
    sC, sWf, sTile = sU0, sU1, sU2
    sTB, sCB = sU3, sSt
    P(f"s_lshr_b32 {s(sTB)}, {s(sX)}, 1"); P(f"s_lshl_b32 {s(sTB)}, {s(sTB)}, 3"); P(f"s_and_b32 {s(sT)}, {s(sJ)}, 7"); P(f"s_add_u32 {s(sTB)}, {s(sTB)}, {s(sT)}")
    P(f"s_and_b32 {s(sCB)}, {s(sX)}, 1"); P(f"s_lshl_b32 {s(sCB)}, {s(sCB)}, 2"); P(f"s_lshr_b32 {s(sT)}, {s(sJ)}, 3"); P(f"s_add_u32 {s(sCB)}, {s(sCB)}, {s(sT)}")
    P(f"v_add_u32 {v(vL2)}, 1024, {v(vL16)}")
    bfe(P, T0, 0, 4); P(f"v_mul_u32_u24 {v(T0)}, 2560, {v(T0)}"); bfe(P, T1, 4, 2); P(f"v_lshl_add_u32 {v(vOut)}, {v(T1)}, 3, {v(T0)}")
    P(f"s_mul_i32 {s(sTile)}, {s(sTB)}, {64*2560}"); P(f"s_mul_i32 {s(sT)}, {s(sCB)}, 160"); P(f"s_add_u32 {s(sTile)}, {s(sTile)}, {s(sT)}")
    ctx["poll"](FLG2, f"{name}_poll2")
    SP()
    P(f"s_cmp_lt_u32 {s(sWV)}, 4"); P(f"s_cbranch_scc0 {name}_o_hi")
    def loads(k, slot):
        b = RING + 36*slot
        for mb in range(5):
            vo, im = (vL16, mb*1024) if mb < 4 else (vL2, 3072)
            P(f"buffer_load_dwordx4 {v(b+16+4*mb,4)}, {v(vo)}, {s(sWS,4)}, {s(sWf)} offen offset:{im} {LD}")
        for T in range(4):
            P(f"buffer_load_dwordx4 {v(b+4*T,4)}, {v(vL16)}, {s(sWS,4)}, {s(sC)} offen offset:{T*1024} {LD}")
        P(f"s_add_u32 {s(sWf)}, {s(sWf)}, 5120"); P(f"s_add_u32 {s(sC)}, {s(sC)}, 4096")
    def setA(k0expr):
        P(f"s_lshl_b32 {s(sC)}, {s(sTB)}, 19"); P(f"s_lshl_b32 {s(sT2)}, {s(sT)}, 12"); P(f"s_add_u32 {s(sC)}, {s(sC)}, {s(sT2)}"); P(f"s_add_u32 {s(sC)}, {s(sC)}, {CTX}")
        P(f"s_mul_i32 {s(sWf)}, {s(sCB)}, {128*5120}"); P(f"s_mul_i32 {s(sT2)}, {s(sT)}, 5120"); P(f"s_add_u32 {s(sWf)}, {s(sWf)}, {s(sT2)}"); P(f"s_add_u32 {s(sWf)}, {s(sWf)}, {WOF}")
    def setB():
        P(f"s_mul_i32 {s(sT)}, {s(sWV)}, 5")
        P(f"s_mul_i32 {s(sC)}, {s(sTB)}, {20*4096}"); P(f"s_lshl_b32 {s(sT2)}, {s(sT)}, 12"); P(f"s_add_u32 {s(sC)}, {s(sC)}, {s(sT2)}"); P(f"s_add_u32 {s(sC)}, {s(sC)}, {BO}")
        P(f"s_mul_i32 {s(sWf)}, {s(sCB)}, {20*5120}"); P(f"s_mul_i32 {s(sT2)}, {s(sT)}, 5120"); P(f"s_add_u32 {s(sWf)}, {s(sWf)}, {s(sT2)}"); P(f"s_add_u32 {s(sWf)}, {s(sWf)}, {BWOF}")
    def mfmas(slot, first):
        b = RING + 36*slot
        for mb in range(5):
            for T in range(4):
                d = v(ACC + (mb*4+T)*4, 4)
                P(f"v_mfma_f32_16x16x32_bf16 {d}, {v(b+16+4*mb,4)}, {v(b+4*T,4)}, {'0' if first else d}")
    def dump(base_sgpr_expr):
        for t in range(20): P(f"ds_write_b128 {v(vLA)}, {v(ACC+4*t,4)} offset:{t*1024}")
    st0 = P.state()
    for role in ("lo", "hi"):
        if role == "hi": P.label(f"{name}_o_hi"); P.set_state(st0)
        nB, nA = (5, 14) if role == "lo" else (0, 18)
        n = nB + nA
        def issue(k):
            if k == 0 and nB: setB()
            if k == nB:
                if role == "lo": P(f"s_mul_i32 {s(sT)}, {s(sWV)}, 14")
                else: P(f"s_mul_i32 {s(sT)}, {s(sWV)}, 18"); P(f"s_sub_u32 {s(sT)}, {s(sT)}, 16")
                setA(None)
            loads(k, k % DEPTH)
        P(f"s_mul_i32 {s(sT)}, {s(sWV)}, 20480"); P(f"v_add_u32 {v(vLA)}, {s(sT)}, {v(vL16)}")
        for k in range(DEPTH): issue(k)
        for k in range(n):
            mfmas(k % DEPTH, k == 0 or k == nB)
            if k + DEPTH < n: issue(k + DEPTH)
            if nB and k == nB - 1: dump(None)
        def out_tile(t, regs, colbase):
            mb, T = t // 4, t % 4
            P(f"v_cvt_pk_bf16_f32 {v(regs)}, {v(regs)}, {v(regs+1)}"); P(f"v_cvt_pk_bf16_f32 {v(regs+1)}, {v(regs+2)}, {v(regs+3)}")
        if role == "hi":
            dump(None)
            P("s_waitcnt lgkmcnt(0)"); P("s_barrier")
            P(f"s_sub_u32 {s(sT)}, {s(sWV)}, 4"); P(f"s_mul_i32 {s(sT)}, {s(sT)}, 5")
            P(f"s_lshl_b32 {s(sT2)}, {s(sT)}, 10"); P(f"v_add_u32 {v(vLA)}, {s(sT2)}, {v(vL16)}")
            P(f"v_add_u32 {v(vLA+1)}, 40960, {v(vLA)}")
            for i in range(5):
                for p in range(4): P(f"ds_read_b128 {v(RING+16*i+4*p,4)}, {v(vLA + p//2)} offset:{i*1024 + (p%2)*20480}")
            for i in range(5):
                r = RING + 16*i
                for e in range(4):
                    P(f"v_add_f32 {v(r+e)}, {v(r+e)}, {v(r+4+e)}"); P(f"v_add_f32 {v(r+8+e)}, {v(r+8+e)}, {v(r+12+e)}")
                for e in range(4): P(f"v_add_f32 {v(r+e)}, {v(r+e)}, {v(r+8+e)}")
                P(f"v_cvt_pk_bf16_f32 {v(r)}, {v(r)}, {v(r+1)}"); P(f"v_cvt_pk_bf16_f32 {v(r+1)}, {v(r+2)}, {v(r+3)}")
                P(f"s_add_u32 {s(sTa)}, {s(sT)}, {i}")
                P(f"s_and_b32 {s(sT2)}, {s(sTa)}, 3"); P(f"s_mul_i32 {s(sT2)}, {s(sT2)}, {16*2560}")
                P(f"s_lshr_b32 {s(sTa)}, {s(sTa)}, 2"); P(f"s_lshl_b32 {s(sTa)}, {s(sTa)}, 5")
                P(f"s_add_u32 {s(sTa)}, {s(sTa)}, {s(sT2)}"); P(f"s_add_u32 {s(sTa)}, {s(sTa)}, {s(sTile)}")
                P(f"buffer_store_dwordx2 {v(r,2)}, {v(vOut)}, {s(sOUT,4)}, {s(sTa)} offen offset:1280")
        else:
            P("s_waitcnt lgkmcnt(0)"); P("s_barrier")
            P(f"v_add_u32 {v(vLA)}, {81920}, {v(vLA)}")
            for t in range(20): P(f"ds_read_b128 {v(RING+4*t,4)}, {v(vLA)} offset:{t*1024}")
            for i in range(80): P(f"v_add_f32 {v(ACC+i)}, {v(ACC+i)}, {v(RING+i)}")
            dump(None)
            P("s_waitcnt lgkmcnt(0)")
            P(f"s_branch {name}_o_j")
    P.label(f"{name}_o_j")
    P("s_waitcnt lgkmcnt(0)"); P("s_barrier")
    P.lq = []
    P(f"s_lshl_b32 {s(sT2)}, {s(sWV)}, 10"); P(f"s_add_u32 {s(sT2)}, {s(sT2)}, 81920"); P(f"v_add_u32 {v(vLA)}, {s(sT2)}, {v(vL16)}")
    P(f"v_add_u32 {v(vLA+1)}, 40960, {v(vLA)}")
    for i in range(3):
        for p in range(4): P(f"ds_read_b128 {v(16*i+4*p,4)}, {v(vLA + p//2)} offset:{i*8192 + (p%2)*20480}")
    for i in range(3):
        r = 16*i
        if i == 2: P(f"s_cmp_ge_u32 {s(sWV)}, 4"); P(f"s_cbranch_scc1 {name}_o_done")
        for e in range(4):
            P(f"v_add_f32 {v(r+e)}, {v(r+e)}, {v(r+4+e)}"); P(f"v_add_f32 {v(r+8+e)}, {v(r+8+e)}, {v(r+12+e)}")
        for e in range(4): P(f"v_add_f32 {v(r+e)}, {v(r+e)}, {v(r+8+e)}")
        P(f"v_cvt_pk_bf16_f32 {v(r)}, {v(r)}, {v(r+1)}"); P(f"v_cvt_pk_bf16_f32 {v(r+1)}, {v(r+2)}, {v(r+3)}")
        P(f"s_add_u32 {s(sTa)}, {s(sWV)}, {8*i}")
        P(f"s_and_b32 {s(sT2)}, {s(sTa)}, 3"); P(f"s_mul_i32 {s(sT2)}, {s(sT2)}, {16*2560}")
        P(f"s_lshr_b32 {s(sTa)}, {s(sTa)}, 2"); P(f"s_lshl_b32 {s(sTa)}, {s(sTa)}, 5")
        P(f"s_add_u32 {s(sTa)}, {s(sTa)}, {s(sT2)}"); P(f"s_add_u32 {s(sTa)}, {s(sTa)}, {s(sTile)}")
        P(f"buffer_store_dwordx2 {v(r,2)}, {v(vOut)}, {s(sOUT,4)}, {s(sTa)} offen")
    P.label(f"{name}_o_done")
    if PROF: P("s_waitcnt vmcnt(0)")
```

```python
import sys
sys.path.insert(0, "gen")
from common import *
NAME = "concat_heads__compressed_kv_cla__sliding_local_dilated__prompt_kernel"
def build(out):
    import fused
    P = Prog()
    d = fused.gen(P, NAME)
    n = fix_hazards(P)
    cnt = {}
    for i in P.ins:
        for r in i.defs:
            if r[0] == "s" and 8 <= r[1] <= 51: cnt.setdefault(r[1], set()).add(i.text)
    assert all(len(cnt.get(k, [])) == 1 for k in range(8, 52)), cnt
    print("instructions:", len(P.ins), "nops inserted:", n, file=sys.stderr)
    hdr = open("concat_heads__compressed_kv_cla__sliding_local_dilated__prompt.s.ref").read().split("; Override")[0]
    txt = hdr + "; @launch grid=(256,1,1) block=(512,1,1) lds=163840" + '\n.amdgcn_target "amdgcn-amd-amdhsa--gfx950"\n.text\n' + P.text().replace(NAME + '_', 'L_') + '.section .rodata,"a"\n' + d
    open(out, "w").write(txt)
if __name__ == "__main__":
    build(sys.argv[1])
```

```python
import re

def v(i, n=1): return f"v{i}" if n == 1 else f"v[{i}:{i+n-1}]"
def a(i, n=1): return f"a{i}" if n == 1 else f"a[{i}:{i+n-1}]"
def s(i, n=1): return f"s{i}" if n == 1 else f"s[{i}:{i+n-1}]"

_reg_re = re.compile(r"^(-|\|)?(abs\()?([vas])(\d+|\[(\d+):(\d+)\])\)?\|?$")
def parse_reg(tok):
    tok = tok.strip()
    if tok in ("vcc", "exec"): return [(tok, 0), (tok, 1)]
    if tok in ("vcc_lo", "exec_lo"): return [(tok[:-3], 0)]
    if tok in ("vcc_hi", "exec_hi"): return [(tok[:-3], 1)]
    if tok == "m0": return [("m0", 0)]
    m = _reg_re.match(tok)
    if not m: return []
    f = m.group(3)
    if m.group(5) is not None:
        return [(f, i) for i in range(int(m.group(5)), int(m.group(6)) + 1)]
    return [(f, int(m.group(4)))]

def split_ops(rest):
    ops, depth, cur = [], 0, ""
    for ch in rest:
        if ch in "[(": depth += 1
        if ch in "])": depth -= 1
        if ch == "," and depth == 0:
            ops.append(cur.strip()); cur = ""
        else: cur += ch
    if cur.strip(): ops.append(cur.strip())
    return ops

TRANS = ("v_exp_f32", "v_log_f32", "v_rcp_f32", "v_rsq_f32", "v_sqrt_f32", "v_sin_f32", "v_cos_f32")

class Ins:
    __slots__ = ("text", "mn", "ops", "mods", "defs", "uses", "kind", "tag", "label", "target")
    def __init__(self, text, tag=None):
        self.text = text; self.tag = tag; self.label = None; self.target = None
        t = text.split(";")[0].strip()
        if t.endswith(":"):
            self.kind = "label"; self.label = t[:-1]; self.mn = ""; self.ops = []; self.defs = []; self.uses = []; self.mods = ""
            return
        if t.startswith(".") or not t:
            self.kind = "dir"; self.mn = ""; self.ops = []; self.defs = []; self.uses = []; self.mods = ""
            return
        parts = t.split(None, 1)
        mn = parts[0]; rest = parts[1] if len(parts) > 1 else ""
        mn = re.sub(r"_(e32|e64)$", "", mn)
        self.mn = mn
        ops = split_ops(rest)
        mods = ""
        if ops:
            last = ops[-1].split(None, 1)
            if len(last) > 1 and not mn.startswith("s_waitcnt"):
                ops[-1] = last[0]; mods = last[1]
        self.ops = ops; self.mods = mods
        R = [parse_reg(o) for o in ops]
        defs, uses = [], []
        if mn.startswith("v_mfma"):
            self.kind = "mfma"; defs = R[0]; uses = R[1] + R[2] + R[3]
        elif mn.startswith("ds_read") or mn == "ds_bpermute_b32" or mn == "ds_swizzle_b32":
            self.kind = "ds"; defs = R[0]; uses = sum(R[1:], [])
        elif mn.startswith("ds_write"):
            self.kind = "ds"; uses = sum(R, [])
        elif mn.startswith("buffer_load") or mn.startswith("global_load"):
            self.kind = "vmem"
            if " lds" in " " + mods or mn.startswith("global_load_lds"):
                uses = sum(R, []) + [("m0", 0)]
            else:
                defs = R[0]; uses = sum(R[1:], [])
        elif mn.startswith("buffer_store") or mn.startswith("global_store") or mn.startswith("buffer_atomic") or mn.startswith("global_atomic"):
            self.kind = "vmem"; uses = sum(R, [])
            if "atomic" in mn and "sc0" in mods: defs = R[0]
        elif mn.startswith("buffer_wbl2") or mn.startswith("buffer_inv"):
            self.kind = "vmem"
        elif mn.startswith("s_load") or mn.startswith("s_memtime") or mn.startswith("s_memrealtime") or mn.startswith("s_buffer_load"):
            self.kind = "smem"; defs = R[0]; uses = sum(R[1:], [])
        elif mn.startswith("s_cbranch") or mn == "s_branch":
            self.kind = "branch"; self.target = ops[0]
            if "vcc" in mn: uses = [("vcc", 0), ("vcc", 1)]
            if "exec" in mn: uses = [("exec", 0), ("exec", 1)]
            if "scc" in mn: uses = [("scc", 0)]
        elif mn in ("s_waitcnt", "s_nop", "s_barrier", "s_endpgm", "s_setprio", "s_sleep"):
            self.kind = "ctl"
        elif mn.startswith("s_cmp") or mn.startswith("s_bitcmp"):
            self.kind = "salu"; uses = sum(R, []); defs = [("scc", 0)]
        elif mn.startswith("s_"):
            self.kind = "salu"; defs = R[0] + [("scc", 0)]; uses = sum(R[1:], [])
            if mn in ("s_mov_b32", "s_mov_b64", "s_mul_i32", "s_movk_i32", "s_mul_hi_u32", "s_getreg_b32"): defs = R[0]
            if mn.startswith("s_cselect"): defs = R[0]; uses += [("scc", 0)]
            if mn in ("s_addc_u32", "s_subb_u32"): uses += [("scc", 0)]
            if mn in ("s_addk_i32", "s_mulk_i32"): uses += R[0]
            if "saveexec" in mn: defs += [("exec", 0), ("exec", 1)]; uses += [("exec", 0), ("exec", 1)]
        elif mn.startswith("v_"):
            self.kind = "valu"
            if mn.startswith("v_cmp"):
                defs = R[0]; uses = sum(R[1:], [])
                if mn.startswith("v_cmpx"): defs = defs + [("exec", 0), ("exec", 1)]
            elif mn.startswith("v_permlane") and "swap" in mn:
                defs = R[0] + R[1]; uses = R[0] + R[1]
            elif mn in ("v_add_co_u32", "v_sub_co_u32", "v_addc_co_u32", "v_subb_co_u32"):
                defs = R[0] + R[1]; uses = sum(R[2:], [])
            elif mn in ("v_fmac_f32", "v_dot2c_f32_bf16", "v_writelane_b32"):
                defs = R[0]; uses = sum(R, [])
            else:
                defs = R[0]; uses = sum(R[1:], [])
                if mn == "v_cndmask_b32" and len(ops) == 3: uses += [("vcc", 0), ("vcc", 1)]
            if "_dpp" in mn or "row_" in mods or "quad_perm" in mods: uses += R[0]
        else:
            raise ValueError("unknown instruction: " + text)
        self.defs = defs; self.uses = uses
    def passes(self):
        if "32x32x16" in self.mn: return 8
        if "16x16x32" in self.mn: return 4
        raise ValueError(self.mn)
    def states(self):
        if self.kind in ("label", "dir"): return 0
        if self.mn == "s_nop": return int(self.ops[0]) + 1
        return 1

class Prog:
    def __init__(self):
        self.ins = []
        self.lq = []
        self.vq = []
        self.auto = True
    def raw(self, text, tag=None):
        i = Ins(text, tag); self.ins.append(i); return i
    def _wait(self, vm=None, lg=None):
        parts = []
        if vm is not None: parts.append(f"vmcnt({vm})"); self.vq = self.vq[len(self.vq)-vm:] if vm else []
        if lg is not None: parts.append(f"lgkmcnt({lg})"); self.lq = self.lq[len(self.lq)-lg:] if lg else []
        self.ins.append(Ins("s_waitcnt " + " ".join(parts)))
    def need(self, regs):
        regs = set(regs)
        lg = vm = None
        for k in range(len(self.lq) - 1, -1, -1):
            if self.lq[k] & regs:
                lg = min(15, len(self.lq) - 1 - k); break
        for k in range(len(self.vq) - 1, -1, -1):
            if self.vq[k][0] & regs:
                vm = min(63, len(self.vq) - 1 - k); break
        if lg is not None or vm is not None: self._wait(vm, lg)
    def needr(self, *opstrs):
        regs = []
        for o in opstrs: regs += parse_reg(o)
        self.need(regs)
    def wait_tag(self, pred):
        for k in range(len(self.vq) - 1, -1, -1):
            tg = self.vq[k][1]
            if any(pred(x) for x in tg) if isinstance(tg, list) else pred(tg):
                self._wait(vm=min(63, len(self.vq) - 1 - k)); return
    def wait_lds_all(self):
        if self.lq: self._wait(lg=0)
    def wait_all(self):
        self._wait(0, 0)
    def __call__(self, text, tag=None):
        i = Ins(text, tag)
        if self.auto and i.kind not in ("label", "dir"):
            self.need(i.uses + i.defs)
        self.ins.append(i)
        if i.kind == "ds": self.lq.append(set(i.defs))
        elif i.kind == "vmem": self.vq.append((set(i.defs), tag))
        elif i.kind == "smem": self.lq.append(set(i.defs)); self.lq.append(set(i.defs))
        elif i.mn == "s_waitcnt":
            m = re.search(r"vmcnt\((\d+)\)", text)
            if m:
                n = int(m.group(1)); self.vq = self.vq[len(self.vq)-n:] if n and len(self.vq) > n else ([] if not n else self.vq)
            m = re.search(r"lgkmcnt\((\d+)\)", text)
            if m:
                n = int(m.group(1)); self.lq = self.lq[len(self.lq)-n:] if n and len(self.lq) > n else ([] if not n else self.lq)
        return i
    def label(self, name): self.ins.append(Ins(name + ":"))
    def state(self): return ([set(x) for x in self.lq], [(set(x), t) for x, t in self.vq])
    def set_state(self, st): self.lq = [set(x) for x in st[0]]; self.vq = [(set(x), t) for x, t in st[1]]
    def text(self):
        out = []
        for i in self.ins:
            out.append(i.text if i.kind in ("label", "dir") else "    " + i.text)
        return "\n".join(out) + "\n"

def merge_states(a, b):
    def merge(qa, qb, getd, gett):
        n = max(len(qa), len(qb))
        out = [[set(), []] for _ in range(n)]
        best = {}
        for q in (qa, qb):
            for k, e in enumerate(q):
                d = len(q) - 1 - k
                keys = [("r", r) for r in getd(e)]
                tg = gett(e)
                keys += [("t", x) for x in (tg if isinstance(tg, list) else [tg]) if x is not None]
                for key in keys:
                    best.setdefault((id(q), key), d); best[(id(q), key)] = min(best[(id(q), key)], d)
        fin = {}
        for (qi, key), d in best.items(): fin[key] = min(fin.get(key, 1 << 30), d)
        for key, d in fin.items():
            if key[0] == "r": out[n - 1 - d][0].add(key[1])
            else: out[n - 1 - d][1].append(key[1])
        return out
    lq = [x[0] for x in merge(a[0], b[0], lambda e: e, lambda e: None)]
    vq = [(x[0], x[1]) for x in merge(a[1], b[1], lambda e: e[0], lambda e: e[1])]
    return (lq, vq)

def _isv(r): return r[0] in ("v", "a")
def _iss(r): return r[0] in ("s", "vcc")

def required(p, c):
    pd, pu, cd, cu = set(p.defs), set(p.uses), set(c.defs), set(c.uses)
    req = 0
    raw = pd & cu
    if p.kind == "valu":
        vraw = {r for r in raw if _isv(r)}
        sraw = {r for r in raw if _iss(r)}
        if c.kind == "mfma" and vraw: req = max(req, 2)
        if c.kind == "valu":
            if p.mn in TRANS and vraw and c.mn not in TRANS: req = max(req, 1)
            if p.mn in TRANS and vraw and c.mn in TRANS: req = max(req, 1)
            if c.mn.startswith("v_permlane") and vraw: req = max(req, 2)
            if (c.mn.startswith("v_readfirstlane") or c.mn.startswith("v_readlane")) and vraw: req = max(req, 1)
            if ("_dpp" in c.mn or "row_" in c.mods or "quad_perm" in c.mods) and vraw: req = max(req, 2)
            if sraw: req = max(req, 2)
            if (c.mn.startswith("v_readlane") or c.mn.startswith("v_writelane")) and sraw: req = max(req, 4)
        if p.mn.startswith("v_dot2"):
            if c.kind == "valu" and c.mn == p.mn:
                ab = set(parse_reg(c.ops[1])) | set(parse_reg(c.ops[2]))
                if pd & ab: req = max(req, 3)
            elif pd & (cu | cd): req = max(req, 3)
        if c.kind == "vmem" and sraw: req = max(req, 5)
        if c.kind == "salu" and sraw: req = max(req, 1)
        if ("exec", 0) in pd:
            if c.kind == "mfma": req = max(req, 4)
            if c.kind == "valu" and (c.mn.startswith("v_readfirstlane") or c.mn.startswith("v_permlane") or "_dpp" in c.mn): req = max(req, 5)
    if p.kind == "salu":
        if ("m0", 0) in pd and c.kind == "vmem" and ("m0", 0) in cu: req = max(req, 1)
    if p.kind == "vmem" and ("store_dwordx4" in p.mn or "store_dwordx3" in p.mn):
        data = set(parse_reg(p.ops[0] if p.mn.startswith("buffer") else p.ops[1]))
        if data & cd: req = max(req, 2 if c.kind == "valu" else 1)
    if p.kind == "mfma":
        n = p.passes()
        D = pd
        if c.kind == "mfma":
            cA = set(parse_reg(c.ops[1])) | set(parse_reg(c.ops[2])); cC = set(parse_reg(c.ops[3]))
            if D & cA: req = max(req, {4: 8, 8: 12}[n])
            if D & cC:
                if not (cC == D and c.passes() == n): req = max(req, {4: 6, 8: 10}[n])
            if (D & cd) and not (D & cC): req = max(req, {4: 8, 8: 12}[n])
        elif c.kind in ("valu", "vmem", "ds"):
            if D & (cu | cd): req = max(req, {4: 8, 8: 12}[n])
        pC = set(parse_reg(p.ops[3]))
        if c.kind == "valu" and (pC & cd): req = max(req, {4: 3, 8: 7}[n])
    return req

def check_hazards(ins, maxd=20):
    labels = {i.label: k for k, i in enumerate(ins) if i.kind == "label"}
    preds = {k: [] for k in range(len(ins))}
    for k, i in enumerate(ins):
        if i.kind == "branch":
            if i.target in labels: preds[labels[i.target]].append(k)
            if i.mn != "s_branch" and k + 1 < len(ins): preds[k + 1].append(k)
        elif i.mn == "s_endpgm": pass
        elif k + 1 < len(ins): preds[k + 1].append(k)
    viol = []
    for k, c in enumerate(ins):
        if c.kind in ("label", "dir", "ctl"): continue
        seen = {}
        stack = [(p, 0) for p in preds[k]]
        while stack:
            j, d = stack.pop()
            if j in seen and seen[j] <= d: continue
            seen[j] = d
            p = ins[j]
            if p.kind not in ("label", "dir", "ctl"):
                r = required(p, c)
                if r > d: viol.append((j, k, r, d))
            nd = d + p.states()
            if nd < maxd:
                for q in preds[j]: stack.append((q, nd))
    return viol

def fix_hazards(prog):
    n = 0
    while True:
        viol = check_hazards(prog.ins)
        if not viol: return n
        need = {}
        for j, k, r, d in viol: need[k] = max(need.get(k, 0), r - d)
        for k in sorted(need, reverse=True):
            x = need[k]
            while x > 0:
                m = min(x, 16); prog.ins.insert(k, Ins(f"s_nop {m-1}")); x -= m; n += 1
```

```python
from aux_part import *

vO, vS, vP, vNM, vF, vT = 32, 96, 128, 144, 160, 192
vLsum, vLS, vCur, vD, vMX, vMX2, vNI = 200, 201, 202, 203, 204, 205, 206
vRdFull, vWrFree, vRdFree, vWrFull, vFV, vCV, vFullV = 248, 249, 250, 251, 252, 253, 254
sCNT, sSEC, sNeed, sLd, sU = sREM, sNB, sOffA, sOffW, sOutKV
PD = int(os.environ.get("PD", "6"))
WAIT2 = int(os.environ.get("WAIT2", "1"))
SPINMAX = int(os.environ.get("SPINMAX", "0x100000"), 0)
E = os.environ.get
X_NOVALU, X_NOLDS, X_PRIO = E("X_NOVALU"), E("X_NOLDS"), E("X_PRIO", "lo")
SLEEP = int(E("SLEEP", "1"))
DGAP = E("DGAP", "s_nop_15").replace("_", " ", 1).replace("_", " ").replace("s sleep", "s_sleep").replace("s nop", "s_nop")
RG0 = int(E("RG0", "1")); RSP = int(E("RSP", "1")); BEARLY = 0; BMID = int(E("BMID", "0"))
CAP = float(E("CAP", "24"))

def gen_attn(ctx):
    P, SP, name = ctx["P"], ctx["SP"], ctx["name"]
    def vq(role, i): return 4*i if role == "hi" else 4*((i + 4) % 8)
    def dma_ops(first=False):
        ops = []
        def pre():
            P(f"s_lshl_b32 {s(sDOff)}, {s(sDIdx)}, 13"); P(f"s_add_u32 {s(sDOff)}, {s(sDOff)}, {s(sDBase)}")
            P(f"s_cmp_le_u32 {s(sDIdx)}, {s(sDLim)}"); P(f"s_cselect_b32 {s(sDOff)}, {s(sDOff)}, {OOB}")
            if first:
                P(f"s_cmp_eq_u32 {s(sWV)}, 6"); P(f"s_cselect_b32 {s(sDOff)}, {s(sU0)}, {s(sDOff)}")
            P(f"s_add_u32 m0, {s(sSlot)}, {s(sDM0)}")
            P(f"s_add_u32 {s(sDIdx)}, {s(sDIdx)}, 2")
        def ld(i):
            if E("X_NODMA"): return
            P(f"buffer_load_dwordx4 {v(vL16)}, {s(sWS,4)}, {s(sDOff)} offen offset:{(i%4)*1024} {LD} lds", ("kv", dma_ops.n))
        def mid(): P(f"s_add_u32 m0, m0, 4096"); P(f"s_add_u32 {s(sDOff)}, {s(sDOff)}, 4096")
        def post():
            P(f"s_add_u32 {s(sSlot)}, {s(sSlot)}, 32768"); P(f"s_and_b32 {s(sSlot)}, {s(sSlot)}, {NSLOT*32768-1}")
            P(f"s_add_u32 {s(sLd)}, {s(sLd)}, 1"); dma_ops.n += 1
        ops.append(lambda: (pre(), ld(0)))
        for i in range(1, 8): ops.append((lambda i=i: (mid(), ld(i))) if i == 4 else (lambda i=i: ld(i)))
        ops.append(post)
        return ops
    dma_ops.n = 0
    def dma_stage(first=False, gap=None):
        for i, f in enumerate(dma_ops(first)):
            f()
            if gap and i < 7: P(gap)

    def early():
        P(f"s_lshl_b32 {s(sT)}, {s(sG)}, 2"); P(f"s_sub_u32 {s(sDLim)}, 63, {s(sT)}")
        P(f"s_lshr_b32 {s(sU)}, {s(sDLim)}, 1"); P(f"s_add_u32 {s(sU)}, {s(sU)}, 1")
        P(f"s_cmp_lt_u32 {s(sWV)}, 4"); P(f"s_cbranch_scc1 {name}_nodma0")
        st = P.state()
        P(f"s_lshr_b32 {s(sT)}, {s(sH)}, 1"); P(f"s_lshl_b32 {s(sT)}, {s(sT)}, 7"); P(f"s_add_u32 {s(sT)}, {s(sT)}, {FK}")
        ctx["poll"](sT, 16, f"{name}_poll1")
        P(f"s_lshl_b32 {s(sDBase)}, {s(sH)}, 19")
        P(f"s_sub_u32 {s(sT)}, {s(sWV)}, 4"); P(f"s_lshl_b32 {s(sDM0)}, {s(sT)}, 13")
        P(f"s_and_b32 {s(sDIdx)}, {s(sT)}, 1"); P(f"s_add_u32 {s(sDIdx)}, {s(sDIdx)}, 1")
        P(f"s_cmp_ge_u32 {s(sT)}, 2"); P(f"s_cselect_b32 {s(sT2)}, 2, 0"); P(f"s_sub_u32 {s(sDIdx)}, {s(sDIdx)}, {s(sT2)}")
        P(f"s_cmp_ge_u32 {s(sT)}, 2"); P(f"s_cselect_b32 {s(sT2)}, {VF}, 0")
        P(f"s_mov_b32 {s(sU0)}, {s(sDBase)}")
        P(f"s_add_u32 {s(sDBase)}, {s(sDBase)}, {s(sT2)}")
        P(f"s_mov_b32 {s(sSlot)}, 32768"); P(f"s_mov_b32 {s(sLd)}, 0")
        dma_stage(True); dma_stage()
        P.label(f"{name}_nodma0")
        P.set_state(st)
    if ctx.get("early_only"): return early

    P(f"s_cmp_lt_u32 {s(sWV)}, 4"); P(f"s_cbranch_scc1 {name}_nodma1")
    st = P.state()
    dma_stage()
    P.label(f"{name}_nodma1")
    P.set_state(st)
    for i in range(64): P(f"v_mov_b32 {v(vO+i)}, 0")
    for i in range(8): P(f"v_mov_b32 {v(vP+8+i)}, 0")
    for i in range(16): P(f"v_mov_b32 {v(vNM+i)}, 0")
    P(f"v_mov_b32 {v(vLsum)}, 0"); P(f"v_add_u32 {v(vCur)}, 0x8000, {v(vL16)}"); P(f"v_mov_b32 {v(vNI)}, 0xff800000")
    bfe(P, T0, 0, 5); bfe(P, T1, 5, 1); P(f"v_lshlrev_b32 {v(T1)}, 2, {v(T1)}"); P(f"v_sub_u32 {v(vD)}, {v(T0)}, {v(T1)}")
    P(f"v_lshrrev_b32 {v(T0)}, 2, {v(vL16)}"); P(f"v_add_u32 {v(T0)}, {CT}, {v(T0)}")
    bfe(P, T1, 0, 2); P(f"v_lshl_add_u32 {v(vRdFull)}, {v(T1)}, 8, {v(T0)}")
    bfe(P, T1, 0, 3); P(f"v_lshl_add_u32 {v(vRdFree)}, {v(T1)}, 8, {v(T0)}"); P(f"v_add_u32 {v(vRdFree)}, 1024, {v(vRdFree)}")
    P(f"s_lshl_b32 {s(sT)}, {s(sWV)}, 8"); P(f"v_add_u32 {v(vWrFull)}, {s(sT)}, {v(T0)}")
    P(f"v_add_u32 {v(vWrFree)}, 1024, {v(vWrFull)}"); P(f"v_subrev_u32 {v(vWrFull)}, 1024, {v(vWrFull)}")
    P(f"v_mov_b32 {v(vFV)}, 0"); P(f"v_mov_b32 {v(vFullV)}, 1")
    if PROF: P("s_mov_b32 s98, 0"); P("s_mov_b32 s7, 0"); P("s_mov_b32 s99, 0")
    P(f"s_mov_b32 {s(sTHR)}, {fbits(THR)}"); P(f"s_mov_b32 {s(sNeed)}, 2")
    P(f"s_max_u32 {s(sCNT)}, {s(sJL)}, 1"); P(f"s_sub_u32 {s(sCNT)}, {s(sCNT)}, 1")
    P(f"s_cmp_eq_u32 {s(sJL)}, 0"); P(f"s_cselect_b32 {s(sSEC)}, 1, 0")
    P("s_waitcnt lgkmcnt(0)")
    P(f"s_cmp_lg_u32 {s(sWV)}, 3"); P(f"s_cbranch_scc1 {name}_noinit")
    for i in range(12): P(f"ds_write_b32 {v(T0)}, {v(vFullV if i < 4 else vFV)} offset:{i*256}")
    P.label(f"{name}_noinit")
    P(f"s_waitcnt vmcnt(16) lgkmcnt(0)")
    P("s_barrier")
    SP()
    P.vq = []; P.lq = []
    def mask_nm():
        for r in range(16):
            m = s(sM + 2*(r%2), 2)
            P(f"v_cmp_gt_i32 {m}, {8*(r//4) + r%4}, {v(vD)}")
            P(f"v_cndmask_b32 {v(vNM+r)}, {v(vNM+r)}, {v(vNI)}, {m}")
    for i in range(8): P(f"ds_read_b128 {v(vF+4*i,4)}, {v(vCur)} offset:{16384 + i*1024}")
    P(f"s_cmp_lg_u32 {s(sJL)}, 0"); P(f"s_cbranch_scc1 {name}_nomask0")
    mask_nm()
    P.label(f"{name}_nomask0")
    P("s_waitcnt lgkmcnt(0)")
    P(f"s_cmp_lt_u32 {s(sWV)}, 4"); P(f"s_cbranch_scc0 {name}_a0lo")
    for role in ("hi", "lo"):
        if role == "lo": P.label(f"{name}_a0lo")
        if X_PRIO == role: P("s_setprio 1")
        for i in range(8):
            P(f"v_mfma_f32_32x32x16_bf16 {v(vS,16)}, {v(vF+4*i,4)}, {v(vq(role,i),4)}, {v(vNM,16) if i == 0 else v(vS,16)}")
        if role == "hi": P(f"s_branch {name}_a0j")
    P.label(f"{name}_a0j")
    def frag_read(n, par):
        if X_NOLDS and frag_read.loop: return "; none"
        off = (par*8192 + n*1024) if n < 8 else (16384 + par*8192 + (n-8)*1024)
        return f"ds_read_b128 {v(vF+4*(n%8),4)}, {v(vCur)} offset:{off}"
    frag_read.loop = bool(X_NOLDS)
    def rowmax(S):
        P(f"v_max3_f32 {v(vMX)}, {v(S)}, {v(S+1)}, {v(S+2)}")
        for i in range(3, 15, 2): P(f"v_max3_f32 {v(vMX)}, {v(vMX)}, {v(S+i)}, {v(S+i+1)}")
        P(f"v_max_f32 {v(vMX)}, {v(vMX)}, {v(S+15)}")
        P(f"v_mov_b32 {v(vMX2)}, {v(vMX)}")
        P(f"v_permlane32_swap_b32 {v(vMX)}, {v(vMX2)}")
        P(f"v_max_f32 {v(vMX)}, {v(vMX)}, {v(vMX2)}")
    SP()
    for n in range(PD): P(frag_read(n, 0))
    rowmax(vS)
    for i in range(16): P(f"v_sub_f32 {v(vS+i)}, {v(vS+i)}, {v(vMX)}")
    for i in range(16): P(f"v_sub_f32 {v(vNM+i)}, 0, {v(vMX)}")
    sidx = SP.n
    entry = P.state()
    P(f"s_cmp_lt_u32 {s(sWV)}, 4"); P(f"s_cbranch_scc0 {name}_lo_E")

    def softmax_ops(par):
        S = vS + 16*par; PP = vP + 8*par
        ops = []
        for r in range(16):
            ops.append((8, f"v_exp_f32 {v(vT + r%8)}, {v(S+r)}"))
            if r >= 1:
                q = r - 1
                if q == 1: ops.append((4, f"v_add_f32 {v(vLS)}, {v(vT)}, {v(vT+1)}"))
                elif q > 1: ops.append((4, f"v_add_f32 {v(vLS)}, {v(vLS)}, {v(vT + q%8)}"))
                if q % 2 == 1: ops.append((4, f"v_cvt_pk_bf16_f32 {v(PP + q//2)}, {v(vT + (q-1)%8)}, {v(vT + q%8)}"))
        ops.append((4, f"v_cvt_pk_bf16_f32 {v(PP+7)}, {v(vT+6)}, {v(vT+7)}"))
        ops.append((4, f"v_add_f32 {v(vLS)}, {v(vLS)}, {v(vT+7)}"))
        ops.append((4, f"v_cmp_nge_f32 vcc, {s(sTHR)}, {v(vLS)}"))
        return ops
    def check(par, role, kind):
        P(f"s_cbranch_vccnz {name}_{role}_fb{kind}{par}")
        P.label(f"{name}_{role}_fbr{kind}{par}")
        P(f"v_add_f32 {v(vLsum)}, {v(vLsum)}, {v(vLS)}")
    def fallback(par, role, kind):
        S = vS + 16*par; S2 = vS + 16*(1-par)
        P.label(f"{name}_{role}_fb{kind}{par}")
        rowmax(S)
        P(f"v_max_f32 {v(vMX)}, 0, {v(vMX)}")
        P(f"v_sub_f32 {v(vMX2)}, 0, {v(vMX)}"); P(f"v_exp_f32 {v(vMX2)}, {v(vMX2)}")
        for i in range(16): P(f"v_sub_f32 {v(S+i)}, {v(S+i)}, {v(vMX)}")
        for i in range(16): P(f"v_sub_f32 {v(S2+i)}, {v(S2+i)}, {v(vMX)}")
        for i in range(16): P(f"v_sub_f32 {v(vNM+i)}, {v(vNM+i)}, {v(vMX)}")
        for i in range(64): P(f"v_mul_f32 {v(vO+i)}, {v(vMX2)}, {v(vO+i)}")
        P(f"v_mul_f32 {v(vLsum)}, {v(vMX2)}, {v(vLsum)}")
        for c, o in softmax_ops(par)[:-1]: P(o)
        P(f"s_branch {name}_{role}_fbr{kind}{par}")
    spins = []
    def ctl_cmp(sreg): P(f"v_cmp_gt_u32 vcc, {s(sreg)}, {v(vCV)}")
    def ctl_check(addr, sreg, lab, cmp=True):
        if cmp: ctl_cmp(sreg)
        P(f"s_cbranch_vccnz {lab}")
        P.label(lab + "_r")
        spins.append((addr, sreg, lab))
    def emit_spins():
        for addr, sreg, lab in spins:
            P.label(lab)
            if PROF: P.raw(f"s_add_u32 s{98 if addr == vRdFull else 7}, s{98 if addr == vRdFull else 7}, 0x10000")
            P.raw(f"s_mov_b32 {s(sT2)}, {SPINMAX}")
            P.label(lab + "_l")
            if PROF: P.raw(f"s_add_u32 s{98 if addr == vRdFull else 7}, s{98 if addr == vRdFull else 7}, 1")
            P.raw(f"ds_read_b32 {v(vCV)}, {v(addr)}"); P.raw("s_waitcnt lgkmcnt(0)")
            P.raw(f"v_cmp_gt_u32 vcc, {s(sreg)}, {v(vCV)}")
            P.raw(f"s_cbranch_vccz {lab}_r")
            P.raw(f"s_sleep {SLEEP if '_ld' in lab else 1}")
            P.raw(f"s_sub_u32 {s(sT2)}, {s(sT2)}, 1"); P.raw(f"s_cmp_lg_u32 {s(sT2)}, 0"); P.raw(f"s_cbranch_scc1 {lab}_l")
            P.raw(f"s_branch {lab}_r")
        spins.clear()
    def advance():
        P(f"v_add_u32 {v(vCur)}, 0x8000, {v(vCur)}"); P(f"v_and_b32 {v(vCur)}, {NSLOT*32768-1}, {v(vCur)}")
        P(f"s_add_u32 {s(sNeed)}, {s(sNeed)}, 1")
    def free_write():
        P(f"ds_write_b32 {v(vWrFree)}, {v(vFV)}"); P(f"v_add_u32 {v(vFV)}, 1, {v(vFV)}")
    def full_publish(cnt, delta):
        P(f"s_add_u32 {s(sT)}, {s(sLd)}, {delta & 0xffffffff}" if delta else f"s_mov_b32 {s(sT)}, {s(sLd)}")
        P(f"v_mov_b32 {v(vFullV)}, {s(sT)}")
        if callable(cnt): cnt()
        else: P(f"s_waitcnt vmcnt({cnt})")
        P(f"ds_write_b32 {v(vWrFull)}, {v(vFullV)}")
    def mfA(par, i, role):
        S = vS + 16*(1-par)
        return f"v_mfma_f32_32x32x16_bf16 {v(S,16)}, {v(vF+4*i,4)}, {v(vq(role,i),4)}, {v(vNM,16) if i == 0 else v(S,16)}"
    def mfC(par, i):
        db, t = i // 2, i % 2
        return f"v_mfma_f32_32x32x16_bf16 {v(vO+16*db,16)}, {v(vF+4*i,4)}, {v(vP+8*(1-par)+4*t,4)}, {v(vO+16*db,16)}"
    def period(par, role):
        R = f"{name}_{role}"
        ops = [] if X_NOVALU else softmax_ops(par)
        extra = {n: [] for n in range(16)}
        if par == 0:
            extra[0].append((8, free_write))
            if role == "lo":
                extra[1].append((4, lambda: P(f"ds_read_b32 {v(vCV)}, {v(vRdFree)}")))
                extra[4].append((8, lambda: (P(f"s_sub_u32 {s(sTa)}, {s(sLd)}, 3"), ctl_cmp(sTa))))
                extra[5].append((4, lambda: ctl_check(vRdFree, sTa, f"{R}_spF", False)))
                for i, f in enumerate(dma_ops()): extra[6 + i].append((4, f))
        else:
            if role == "lo": extra[0].append((16, lambda: full_publish(8, -1)))
            extra[2].append((4, lambda: P(f"ds_read_b32 {v(vCV)}, {v(vRdFull)}")))
            extra[14-PD].append((4, lambda: ctl_cmp(sNeed)))
            extra[15-PD].append((16, lambda: (ctl_check(vRdFull, sNeed, f"{R}_spU", False), advance())))
        if E("X_NOCHK"): ops = [o for o in ops if "v_cmp" not in o[1]]
        k = 0
        carry = 0.0
        for n in range(16):
            if n % 2 == 0 and WAIT2: P.needr(v(vF+4*(n%8),4), v(vF+4*((n+1)%8),4))
            P(mfA(par, n, role) if n < 8 else mfC(par, n - 8))
            used = 4 + (4 if n % 2 == 1 else 0) + sum(c for c, _ in extra[n])
            m = n + PD
            pre = [f for c, f in extra[n]]
            if par == 1 and n == 15-PD:
                P(frag_read(m, par))
                for f in pre: f()
            else:
                P(frag_read(m, par) if m < 16 else frag_read(m - 16, 1 - par))
                for f in pre: f()
            rem_cost = sum(c for c, _ in ops[k:])
            cap = CAP
            if n == 14: cap = 1e9
            while k < len(ops) and n < 15 and (used + ops[k][0] <= cap + carry or rem_cost > (14 - n) * 18):
                P(ops[k][1]); used += ops[k][0]; rem_cost -= ops[k][0]; k += 1
            carry = 0.0
        assert k == len(ops)
        if E("X_NOCHK"): P.label(f"{name}_{role}_fbrm{par}")
        else: check(par, role, "m")
    def epilogue(role):
        P(f"v_mov_b32 {v(vFV)}, {BIG}"); P(f"ds_write_b32 {v(vWrFree)}, {v(vFV)}")
        P(f"v_mov_b32 {v(vMX2)}, {v(vLsum)}")
        P(f"v_permlane32_swap_b32 {v(vLsum)}, {v(vMX2)}")
        P(f"v_add_f32 {v(vLsum)}, {v(vLsum)}, {v(vMX2)}"); P(f"v_rcp_f32 {v(vLsum)}, {v(vLsum)}")
        bfe(P, T0, 4, 1); bfe(P, T1, 0, 4); P(f"v_lshlrev_b32 {v(T1)}, 4, {v(T1)}"); P(f"v_lshl_add_u32 {v(T0)}, {v(T0)}, 10, {v(T1)}")
        bfe(P, T1, 5, 1); P(f"v_lshl_add_u32 {v(vD)}, {v(T1)}, 8, {v(T0)}")
        P(f"s_lshr_b32 {s(sT)}, {s(sRow0)}, 6"); P(f"s_lshl_b32 {s(sT)}, {s(sT)}, 19"); P(f"s_lshl_b32 {s(sT2)}, {s(sH)}, 14"); P(f"s_add_u32 {s(sT)}, {s(sT)}, {s(sT2)}")
        P(f"s_and_b32 {s(sT2)}, {s(sRow0)}, 32"); P(f"s_lshl_b32 {s(sT2)}, {s(sT2)}, 6"); P(f"s_add_u32 {s(sT)}, {s(sT)}, {s(sT2)}")
        P(f"s_add_u32 {s(sT)}, {s(sT)}, {CTX}")
        for db in range(4):
            for i in range(16): P(f"v_mul_f32 {v(vO+16*db+i)}, {v(vLsum)}, {v(vO+16*db+i)}")
            for i in range(8): P(f"v_cvt_pk_bf16_f32 {v(vS+8*db+i)}, {v(vO+16*db+2*i)}, {v(vO+16*db+2*i+1)}")
            for u in range(2): P(f"buffer_store_dwordx4 {v(vS+8*db+4*u,4)}, {v(vD)}, {s(sWS,4)}, {s(sT)} offen offset:{u*512} {ST}", "ctx")
            if db < 3: P(f"s_add_u32 {s(sT)}, {s(sT)}, 4096")
    def wave_flag(fn_off, tag):
        fn_off()
        P(f"v_mov_b32 {v(T0)}, {s(sNON)}"); P(f"v_mov_b32 {v(T1)}, {s(sNON+1)}"); P(f"v_mov_b32 {v(T2)}, 0")
        P.wait_tag(lambda t: t == tag)
        P("s_mov_b64 exec, 1")
        P(f"buffer_store_dwordx2 {v(T0,2)}, {v(T2)}, {s(sWS,4)}, {s(sT)} offen sc1", "flag")
        P("s_mov_b64 exec, -1")
    def ctx_off():
        P(f"s_lshl_b32 {s(sT)}, {s(sJL)}, 8"); P(f"s_lshl_b32 {s(sT2)}, {s(sH)}, 3"); P(f"s_add_u32 {s(sT)}, {s(sT)}, {s(sT2)}"); P(f"s_add_u32 {s(sT)}, {s(sT)}, {FC}")
    def loader_iter(lab):
        P(f"s_cmp_gt_u32 {s(sLd)}, {s(sU)}"); P(f"s_cbranch_scc1 {lab}_skip")
        st = P.state()
        P(f"ds_read_b32 {v(vCV)}, {v(vRdFree)}")
        P(f"s_sub_u32 {s(sTa)}, {s(sLd)}, 3")
        ctl_check(vRdFree, sTa, lab)
        dma_stage(gap=DGAP)
        n = dma_ops.n
        full_publish(lambda: P.wait_tag(lambda t: isinstance(t, tuple) and t[0] == "kv" and t[1] <= n - 2), -1)
        st2 = P.state()
        P.label(f"{lab}_skip")
        P.set_state(merge_states(st, st2))
    for role in ("hi", "lo"):
        R = f"{name}_{role}"
        P.set_state(entry)
        for par in (0, 1):
            P.label(f"{R}_{'EO'[par]}")
            P(f"s_sub_u32 {s(sCNT)}, {s(sCNT)}, 1"); P(f"s_cbranch_scc1 {R}_sp{par}")
            P.label(f"{R}_go{par}")
            period(par, role)
            st = P.state()
            assert X_NOLDS or [sorted(x) for x in st[0]] == [sorted(x) for x in entry[0]], (st[0], entry[0])
        P(f"s_branch {R}_E")
        for par in (0, 1):
            P.set_state(entry); fallback(par, role, "m")
        for par in (0, 1):
            P.set_state(entry)
            P.label(f"{R}_sp{par}")
            P(f"s_cmp_lg_u32 {s(sSEC)}, 0"); P(f"s_cbranch_scc1 {R}_tail{par}")
            P(f"s_mov_b32 {s(sSEC)}, 1"); P(f"s_mov_b32 {s(sCNT)}, 0")
            mask_nm()
            P(f"s_branch {R}_go{par}")
        for par in (0, 1):
            P.set_state(entry)
            P.label(f"{R}_tail{par}")
            P("s_waitcnt lgkmcnt(0)")
            if par == 0: free_write()
            for n in range(8, 16): P(frag_read(n, par))
            if par == 1: P(f"ds_read_b32 {v(vCV)}, {v(vRdFull)}")
            if role == "lo" and par == 1: full_publish(8, -1)
            interleave(P, [mfC(par, i) for i in range(8)], [o for c, o in softmax_ops(par)])
            check(par, role, "t")
            if par == 1:
                ctl_check(vRdFull, sNeed, f"{R}_spT"); advance()
            for n in range(8, 16): P(frag_read(n, 1 - par))
            for i in range(8): P(mfC(1 - par, i))
            P(f"s_branch {R}_epi")
            fallback(par, role, "t")
        emit_spins()
        P.label(f"{R}_epi")
        P.lq = []
        dma_ops.n = 10
        P.vq = [(set(), ("kv", 8))]*8 + [(set(), ("kv", 9))]*8 if role == "lo" else []
        SP(idx=sidx)
        if X_PRIO == role and E("PRIO0", "1") == "1": P("s_setprio 0")
        epilogue(role)
        SP()
        if role == "hi":
            wave_flag(ctx_off, "ctx")
            P(f"s_branch {name}_att_done")
        else:
            it = [0]
            def li(n=1):
                for _ in range(n):
                    it[0] += 1; loader_iter(f"{R}_ld{it[0]}")
            P(f"s_sub_u32 {s(sAR)}, {s(sWV)}, 4"); P(f"s_mul_i32 {s(sAR)}, {s(sAR)}, {AREA}"); P(f"s_add_u32 {s(sAR)}, {s(sAR)}, {SCR}")
            bc = battn_chunks(ctx, 0)
            bc[0]()
            li(2)
            wave_flag(ctx_off, "ctx")
            P(f"s_lshl_b32 {s(sAW)}, s2, 2"); P(f"s_add_u32 {s(sAW)}, {s(sAW)}, {s(sWV)}"); P(f"s_sub_u32 {s(sAW)}, {s(sAW)}, {4 + 128*RG0}")
            def skip_if(gmin, lab, body):
                P(f"s_sub_u32 {s(sT)}, {s(sG)}, {RG0}"); P(f"s_cmp_ge_u32 {s(sT)}, {gmin}"); P(f"s_cbranch_scc1 {lab}")
                st = P.state(); n0 = dma_ops.n
                body()
                P.label(lab)
                dma_ops.n += 10
                P.vq = [(set(), ("kv", dma_ops.n - 2))]*8 + [(set(), ("kv", dma_ops.n - 1))]*8
                P.lq = []
            def do_retile():
                r = [retile_chunks(ctx, i) for i in range(3)]
                r[0][0](); li(RSP)
                r[0][1](); r[1][0](); li(RSP)
                r[1][1](); r[2][0](); li(RSP)
                r[2][1](); li(2)
                def aux_off():
                    P(f"s_lshl_b32 {s(sT)}, {s(sAW)}, 3"); P(f"s_add_u32 {s(sT)}, {s(sT)}, {FA}")
                wave_flag(aux_off, "aux")
                li(1)
            P.needr(v(0, 4))
            skip_if(AUXG, f"{R}_sk1", do_retile)
            bc[1]()
            if BMID:
                li(1); bc[2](); li(1); bc[3](); li(1); bc[4](); li(1); bc[5]()
            P(f"s_sub_u32 {s(sAM)}, {s(sU)}, {BEARLY}")
            P.label(f"{R}_rest")
            P(f"s_cmp_gt_u32 {s(sLd)}, {s(sAM)}"); P(f"s_cbranch_scc1 {R}_fin")
            P(f"ds_read_b32 {v(vCV)}, {v(vRdFree)}")
            P(f"s_sub_u32 {s(sTa)}, {s(sLd)}, 3")
            ctl_check(vRdFree, sTa, f"{R}_ldr")
            if PROF: P.raw("s_memtime s[96:97]"); P.raw("s_waitcnt lgkmcnt(0)"); P.raw("s_sub_u32 s99, s99, s96")
            dma_stage(gap=DGAP)
            if PROF and E("TDMA"): P.raw("s_memtime s[96:97]"); P.raw("s_waitcnt lgkmcnt(0)"); P.raw("s_add_u32 s99, s99, s96")
            full_publish(8, -1)
            if PROF and not E("TDMA"): P.raw("s_memtime s[96:97]"); P.raw("s_waitcnt lgkmcnt(0)"); P.raw("s_add_u32 s99, s99, s96")
            P(f"s_branch {R}_rest")
            P.label(f"{R}_fin")
            full_publish(0, 0); P.vq = []
            P(f"s_mov_b32 {s(sT)}, {FA}")
            for i in range(4): P(f"buffer_load_dwordx4 {v(16+4*i,4)}, {v(vL16)}, {s(sWS,4)}, {s(sT)} offen offset:{i*1024} sc1")
            if not BMID:
                for f in bc[2:]: f()
            P(f"s_mov_b32 {s(sT)}, {FA}"); P(f"s_mov_b32 {s(sT2)}, {int(E('POLLMAX', '0x40000'), 0)}")
            P.needr(v(16, 16))
            st = P.state()
            P(f"s_branch {name}_pollA_c")
            P.label(f"{name}_pollA")
            for i in range(4): P(f"buffer_load_dwordx4 {v(16+4*i,4)}, {v(vL16)}, {s(sWS,4)}, {s(sT)} offen offset:{i*1024} sc1")
            P("s_waitcnt vmcnt(0)")
            P.label(f"{name}_pollA_c")
            for i in range(16): P(f"v_xor_b32 {v(16+i)}, {s(sNON + i%2)}, {v(16+i)}")
            for i in range(1, 15, 2): P(f"v_or3_b32 v16, v16, {v(16+i)}, {v(17+i)}")
            P("v_or_b32 v16, v16, v31")
            P("v_cmp_ne_u32 vcc, 0, v16"); P(f"s_cbranch_vccz {name}_pollA_ok")
            P("s_sleep 4"); P(f"s_sub_u32 {s(sT2)}, {s(sT2)}, 1"); P(f"s_cmp_lg_u32 {s(sT2)}, 0"); P(f"s_cbranch_scc1 {name}_pollA")
            P.label(f"{name}_pollA_ok")
            P.set_state(st)
            ctx["lo_state"] = P.state()
            def b_off():
                P(f"s_lshl_b32 {s(sT)}, s2, 2"); P(f"s_add_u32 {s(sT)}, {s(sT)}, {s(sWV)}"); P(f"s_lshl_b32 {s(sT)}, {s(sT)}, 3"); P(f"s_add_u32 {s(sT)}, {s(sT)}, {FB - 32}")
            ctx["bflag"] = lambda: wave_flag(b_off, "aux")
            P(f"s_branch {name}_att_done")
            emit_spins()
    P.label(f"{name}_att_done")
    if PROF:
        P.raw(f"v_writelane_b32 {v(vSTAMP)}, s98, 20"); P.raw(f"v_writelane_b32 {v(vSTAMP)}, s7, 21"); P.raw(f"v_writelane_b32 {v(vSTAMP)}, s99, 22")
    P.vq = []; P.lq = []
    SP()
    import outp
    outp.gen_out(ctx)
```

```python
from fused import *

NSLOT = 4
SCR = 131072
AREA = 7424
CT = SCR + 4*AREA
OOB = 0x7f000000
BIG = 0x7fffffff
THR = 2.0**40
AUXG = int(os.environ.get("AUXG", "4"))
BINV = int(os.environ.get("BINV", "0"))
LDB = "" if BINV else LD
sAR = sOutB
sAW, sAK, sAM = 4, 5, 6

def retile_chunks(ctx, rnd):
    P, name = ctx["P"], ctx["name"]
    vo, va = 32, 36
    sK, sMQ = sAK, sAM
    L = f"{name}_rt{rnd}"
    def c1():
        P(f"s_add_u32 {s(sT)}, {s(sAW)}, {512*rnd}")
        P(f"s_mul_i32 {s(sK)}, {s(sT)}, 6554"); P(f"s_lshr_b32 {s(sK)}, {s(sK)}, 16")
        P(f"s_mul_i32 {s(sT2)}, {s(sK)}, 10"); P(f"s_sub_u32 {s(sMQ)}, {s(sT)}, {s(sT2)}")
        bfe(P, T0, 3, 3); P(f"v_mul_u32_u24 {v(T0)}, 1280, {v(T0)}"); bfe(P, T1, 0, 3); P(f"v_lshl_add_u32 {v(T0)}, {v(T1)}, 4, {v(T0)}")
        for i in range(4): P(f"v_add_u32 {v(vo+i)}, {i*(8*1280-1024)}, {v(T0)}")
        P(f"s_mov_b32 m0, {s(sAR)}")
        P(f"s_mul_i32 {s(sT)}, {s(sK)}, {32*1280}"); P(f"s_lshl_b32 {s(sT2)}, {s(sMQ)}, 7"); P(f"s_add_u32 {s(sT)}, {s(sT)}, {s(sT2)}")
        P(f"s_cmp_ge_u32 {s(sK)}, 128"); P(f"s_cbranch_scc1 {L}_b")
        st = P.state()
        for i in range(4): P(f"buffer_load_dwordx4 {v(vo+i)}, {s(sWO,4)}, {s(sT)} offen offset:{i*1024} {NT.get(sWO, '')} lds", "rt")
        P(f"s_branch {L}_j")
        P.label(f"{L}_b"); P.set_state(st)
        P(f"s_sub_u32 {s(sT)}, {s(sT)}, {128*32*1280}")
        for i in range(4): P(f"buffer_load_dwordx4 {v(vo+i)}, {s(sBWO,4)}, {s(sT)} offen offset:{i*1024} lds", "rt")
        P.label(f"{L}_j")
    def c2():
        bfe(P, T0, 2, 2); bfe(P, T1, 0, 2); P(f"v_lshlrev_b32 {v(T1)}, 3, {v(T1)}"); P(f"v_lshl_add_u32 {v(T0)}, {v(T0)}, 7, {v(T1)}")
        P(f"v_add_u32 {v(T0)}, {s(sAR)}, {v(T0)}")
        P.wait_tag(lambda t: t == "rt")
        P(f"s_cmp_ge_u32 {s(sK)}, 128"); P(f"s_cbranch_scc1 {L}_b2")
        st = P.state()
        for isB in (0, 1):
            if isB:
                P.label(f"{L}_b2"); P.set_state(st)
                bfe(P, T1, 4, 2); P(f"v_lshl_add_u32 {v(va)}, {v(T1)}, 10, {v(T0)}"); step = 4*128
                P(f"s_sub_u32 {s(sTw)}, {s(sK)}, 128"); P(f"s_mul_i32 {s(sTw)}, {s(sTw)}, 5120"); P(f"s_add_u32 {s(sTw)}, {s(sTw)}, {BWOF}")
                P(f"s_cmp_lt_u32 {s(sK)}, 148"); P(f"s_cselect_b32 {s(sTw)}, {s(sTw)}, {OOB}")
            else:
                bfe(P, T1, 5, 1); P(f"v_lshl_add_u32 {v(va)}, {v(T1)}, 11, {v(T0)}")
                bfe(P, T1, 4, 1); P(f"v_lshl_add_u32 {v(va)}, {v(T1)}, 9, {v(va)}"); step = 8*128
                P(f"s_mul_i32 {s(sTw)}, {s(sK)}, 5120"); P(f"s_add_u32 {s(sTw)}, {s(sTw)}, {WOF}")
            for f in range(4):
                for i in range(2): P(f"ds_read_b64_tr_b16 {v(40+4*f+2*i,2)}, {v(va)} offset:{f*32 + i*step}")
            nk = 20 if isB else 128
            for f in range(4):
                P(f"s_lshl_b32 {s(sT)}, {s(sMQ)}, 2"); P(f"s_add_u32 {s(sT)}, {s(sT)}, {f}")
                P(f"s_mul_i32 {s(sT2)}, {s(sT)}, 205"); P(f"s_lshr_b32 {s(sT2)}, {s(sT2)}, 10")
                P(f"s_mul_i32 {s(sTa)}, {s(sT2)}, 5"); P(f"s_sub_u32 {s(sT)}, {s(sT)}, {s(sTa)}"); P(f"s_lshl_b32 {s(sT)}, {s(sT)}, 10")
                P(f"s_mul_i32 {s(sT2)}, {s(sT2)}, {nk*5120}"); P(f"s_add_u32 {s(sT)}, {s(sT)}, {s(sT2)}"); P(f"s_add_u32 {s(sT)}, {s(sT)}, {s(sTw)}")
                P(f"buffer_store_dwordx4 {v(40+4*f,4)}, {v(vL16)}, {s(sWS,4)}, {s(sT)} offen {ST}", "aux")
            if not isB: P(f"s_branch {L}_j2")
        P.label(f"{L}_j2")
    return [c1, c2]

def battn_chunks(ctx, rnd):
    P, name = ctx["P"], ctx["name"]
    sID, sBS = sISV, sFQ
    vTok, vH, vCA, vCB, vCC, vTP = 32, 33, 34, 35, 36, 40
    D = 48
    LG, PP, OO = 218, 226, 48
    vo = 230
    tmp = [233, 234, 235, 236, 237, 238]
    vFl = 0
    def flag_offs(which):
        if which == 0: P(f"s_lshr_b32 {s(sT)}, {s(sID)}, 4")
        else:
            P(f"s_lshr_b32 {s(sT)}, {s(sID)}, 2"); P(f"s_max_u32 {s(sT)}, {s(sT)}, 1"); P(f"s_sub_u32 {s(sT)}, {s(sT)}, 1"); P(f"s_lshr_b32 {s(sT)}, {s(sT)}, 2")
        P(f"s_lshl_b32 {s(sT)}, {s(sT)}, 7"); P(f"s_add_u32 {s(sT)}, {s(sT)}, {FQ}")
    def c0():
        P(f"s_mov_b32 {s(sID)}, s2")
        P(f"v_lshrrev_b32 {v(T3)}, 1, {v(vL16)}"); P(f"v_min_u32 {v(T3)}, 112, {v(T3)}")
        for wh in range(2):
            flag_offs(wh)
            P(f"buffer_load_dwordx2 {v(vFl+2*wh,2)}, {v(T3)}, {s(sWS,4)}, {s(sT)} offen sc1")
    def c1():
        for i in range(4): P(f"v_xor_b32 {v(vFl+i)}, {s(sNON + i%2)}, {v(vFl+i)}")
        P(f"v_or3_b32 {v(vFl)}, {v(vFl)}, {v(vFl+1)}, {v(vFl+2)}"); P(f"v_or_b32 {v(vFl)}, {v(vFl)}, {v(vFl+3)}")
        P(f"v_cmp_ne_u32 vcc, 0, {v(vFl)}"); P(f"s_cbranch_vccz {name}_pq{rnd}ok")
        st = P.state()
        for wh in range(2):
            flag_offs(wh); ctx['poll'](sT, 15, f"{name}_pq{rnd}{wh}")
        P.label(f"{name}_pq{rnd}ok"); P.set_state(st)
        P(f"s_lshr_b32 {s(sT)}, {s(sID)}, 2"); P(f"s_lshl_b32 {s(sT)}, {s(sT)}, 5")
        bfe(P, T0, 0, 5); P(f"v_add_u32 {v(vTok)}, {s(sT)}, {v(T0)}")
        P(f"s_and_b32 {s(sT)}, {s(sID)}, 3"); P(f"s_lshl_b32 {s(sT)}, {s(sT)}, 2"); P(f"s_add_u32 {s(sT)}, {s(sT)}, {s(sWV)}"); P(f"s_sub_u32 {s(sT)}, {s(sT)}, 4")
        P(f"s_lshl_b32 {s(sT)}, {s(sT)}, 1")
        bfe(P, T0, 5, 1); P(f"v_add_u32 {v(vH)}, {s(sT)}, {v(T0)}")
        P(f"v_mul_u32_u24 {v(vH)}, 20, {v(vH)}")
        P(f"v_lshl_add_u32 {v(vCA)}, {v(T0)}, 2, {v(vH)}"); P(f"v_add_u32 {v(vCB)}, 8, {v(vCA)}")
        P(f"v_lshlrev_b32 {v(T1)}, 4, {v(T0)}"); P(f"v_sub_u32 {v(vCC)}, {v(vH)}, {v(T1)}"); P(f"v_add_u32 {v(vCC)}, 16, {v(vCC)}")
        P(f"v_lshrrev_b32 {v(T0)}, 6, {v(vTok)}"); P(f"v_mul_u32_u24 {v(T0)}, 81920, {v(T0)}")
        P(f"v_bfe_u32 {v(T1)}, {v(vTok)}, 4, 2"); P(f"v_lshl_add_u32 {v(T0)}, {v(T1)}, 10, {v(T0)}")
        P(f"v_and_b32 {v(T1)}, 15, {v(vTok)}"); P(f"v_lshl_add_u32 {v(T0)}, {v(T1)}, 4, {v(T0)}")
        for i, c in enumerate((vCA, vCB, vCC)):
            P(f"v_lshrrev_b32 {v(T1)}, 5, {v(c)}"); P(f"v_lshl_add_u32 {v(vo+i)}, {v(T1)}, 12, {v(T0)}")
            P(f"v_bfe_u32 {v(T1)}, {v(c)}, 3, 2"); P(f"v_lshl_add_u32 {v(vo+i)}, {v(T1)}, 8, {v(vo+i)}")
            P(f"v_and_b32 {v(T1)}, 7, {v(c)}"); P(f"v_lshl_add_u32 {v(vo+i)}, {v(T1)}, 1, {v(vo+i)}")
        for c in (vCA, vCB, vCC):
            P(f"v_and_b32 {v(T1)}, 7, {v(c)}"); P(f"v_lshlrev_b32 {v(T1)}, 1, {v(T1)}")
            P(f"v_lshrrev_b32 {v(c)}, 3, {v(c)}"); P(f"v_lshl_add_u32 {v(c)}, {v(c)}, 9, {v(T1)}")
        bfe(P, T0, 0, 5); P(f"v_lshlrev_b32 {v(T0)}, 4, {v(T0)}")
        for c in (vCA, vCB, vCC): P(f"v_add_u32 {v(c)}, {v(c)}, {v(T0)}")
        P(f"s_lshr_b32 {s(sT)}, {s(sID)}, 2"); P(f"s_mul_i32 {s(sU0)}, {s(sT)}, {120*1024}"); P(f"s_add_u32 {s(sU0)}, {s(sU0)}, {QKV}")
        P(f"buffer_load_dwordx4 {v(D,4)}, {v(vCA)}, {s(sWS,4)}, {s(sU0)} offen {LD}")
        P(f"buffer_load_dwordx4 {v(D+4,4)}, {v(vCB)}, {s(sWS,4)}, {s(sU0)} offen {LD}")
        P(f"buffer_load_dwordx2 {v(D+8,2)}, {v(vCC)}, {s(sWS,4)}, {s(sU0)} offen {LD}")
        P(f"s_cmp_eq_u32 {s(sT)}, 0"); P(f"s_cselect_b32 {s(sT2)}, 0, {120*1024}"); P(f"s_sub_u32 {s(sU0)}, {s(sU0)}, {s(sT2)}")
        bfe(P, T1, 5, 1); P(f"v_mul_lo_u32 {v(T1)}, {v(T1)}, {s(sT2)}"); P(f"v_add_u32 {v(vTP)}, {v(T0)}, {v(T1)}")
        P(f"s_and_b32 {s(sT)}, {s(sID)}, 3"); P(f"s_lshl_b32 {s(sT)}, {s(sT)}, 2"); P(f"s_add_u32 {s(sT)}, {s(sT)}, {s(sWV)}"); P(f"s_sub_u32 {s(sT)}, {s(sT)}, 4")
        P(f"s_mul_i32 {s(sT)}, {s(sT)}, 2560"); P(f"s_add_u32 {s(sBS)}, {s(sU0)}, {s(sT)}")
        stage(1)
        bfe(P, T1, 5, 1); P(f"v_add_u32 {v(T0)}, {s(sAR)}, {v(T0)}"); P(f"v_add_u32 {v(T0)}, {18*16}, {v(T0)}")
        P(f"v_mul_u32_u24 {v(T2)}, 3072, {v(T1)}"); P(f"v_add_u32 {v(vTP+1)}, {v(T0)}, {v(T2)}")
        P(f"v_lshl_add_u32 {v(vTP+2)}, {v(T1)}, 3, {v(T0)}")
    def stage(sec):
        for c in range(5):
            P(f"s_add_u32 m0, {s(sAR)}, {c*1024}"); P(f"s_add_u32 {s(sT)}, {s(sBS)}, {sec*40*1024 + c*512}")
            P(f"buffer_load_dwordx4 {v(vTP)}, {s(sWS,4)}, {s(sT)} offen {LD} lds", "bst")
    def rows(first):
        P.wait_tag(lambda t: t == "bst")
        for w in range(8):
            d = D + 10*(first + w); o = 32*(7 - w)
            P(f"ds_read_b128 {v(d,4)}, {v(vTP+1)} offset:{o}"); P(f"ds_read_b128 {v(d+4,4)}, {v(vTP+1)} offset:{o + 1024}")
            P(f"ds_read_b64 {v(d+8,2)}, {v(vTP+2)} offset:{o + 2048}")
    def c2():
        rows(1)
        P.wait_lds_all()
        stage(2)
        for w in range(8):
            for i in range(10):
                c = "0" if i == 0 else v(LG+w)
                P(f"v_dot2_f32_bf16 {v(LG+w)}, {v(D+i)}, {v(D+10*(1+w)+i)}, {c}")
    def c2b():
        P(f"s_mov_b32 {s(sU0)}, {fbits(20**-0.5)}"); P(f"s_mov_b32 {s(sU1)}, 0xffff0000"); P(f"s_mov_b32 {s(sU2)}, {fbits(math.log2(math.e))}")
        def round_pairs():
            for w in range(0, 8, 2): P(f"v_cvt_pk_bf16_f32 {v(PP+w//2)}, {v(LG+w)}, {v(LG+w+1)}")
            for w in range(0, 8, 2):
                P(f"v_lshlrev_b32 {v(LG+w)}, 16, {v(PP+w//2)}"); P(f"v_and_b32 {v(LG+w+1)}, {s(sU1)}, {v(PP+w//2)}")
        round_pairs()
        for w in range(8): P(f"v_mul_f32 {v(LG+w)}, {s(sU0)}, {v(LG+w)}")
        round_pairs()
        P(f"v_mov_b32 {v(T1)}, {fbits(-1e9)}")
        for w in range(1, 8):
            m = s(sM + 2*(w%2), 2)
            P(f"v_cmp_gt_u32 {m}, {2*w}, {v(vTok)}")
            P(f"v_cndmask_b32 {v(LG+w)}, {v(LG+w)}, {v(T1)}, {m}")
        P(f"v_max3_f32 {v(T0)}, {v(LG)}, {v(LG+1)}, {v(LG+2)}"); P(f"v_max3_f32 {v(T0)}, {v(T0)}, {v(LG+3)}, {v(LG+4)}")
        P(f"v_max3_f32 {v(T0)}, {v(T0)}, {v(LG+5)}, {v(LG+6)}"); P(f"v_max_f32 {v(T0)}, {v(T0)}, {v(LG+7)}")
        for w in range(8): P(f"v_sub_f32 {v(LG+w)}, {v(LG+w)}, {v(T0)}")
        for w in range(8): P(f"v_mul_f32 {v(LG+w)}, {s(sU2)}, {v(LG+w)}")
        for w in range(8): P(f"v_exp_f32 {v(LG+w)}, {v(LG+w)}")
        P(f"v_add_f32 {v(T0)}, {v(LG)}, {v(LG+1)}")
        for w in range(2, 8): P(f"v_add_f32 {v(T0)}, {v(T0)}, {v(LG+w)}")
        P(f"v_rcp_f32 {v(T0)}, {v(T0)}")
        for w in range(8): P(f"v_mul_f32 {v(LG+w)}, {v(T0)}, {v(LG+w)}")
        for w in range(0, 8, 2): P(f"v_cvt_pk_bf16_f32 {v(PP+w//2)}, {v(LG+w)}, {v(LG+w+1)}")
    def c3(wps):
        if 0 in wps: rows(9)
        P(f"s_mov_b32 {s(sU0)}, 0x05040100"); P(f"s_mov_b32 {s(sU1)}, 0x07060302")
        tq = [LG + i for i in range(8)]
        n = 0
        for wp in wps:
            for i in range(10):
                a0, a1 = D + 10*(9+2*wp) + i, D + 10*(10+2*wp) + i
                t0, t1 = tq[(2*n) % 8], tq[(2*n+1) % 8]; n += 1
                P(f"v_perm_b32 {v(t0)}, {v(a1)}, {v(a0)}, {s(sU0)}"); P(f"v_perm_b32 {v(t1)}, {v(a1)}, {v(a0)}, {s(sU1)}")
                P(f"v_dot2_f32_bf16 {v(OO+2*i)}, {v(t0)}, {v(PP+wp)}, {'0' if wp == 0 else v(OO+2*i)}")
                P(f"v_dot2_f32_bf16 {v(OO+2*i+1)}, {v(t1)}, {v(PP+wp)}, {'0' if wp == 0 else v(OO+2*i+1)}")
        if 3 not in wps: return
        R = 72
        for i in range(10): P(f"v_cvt_pk_bf16_f32 {v(R+i)}, {v(OO+2*i)}, {v(OO+2*i+1)}")
        P(f"s_mov_b32 {s(sU0)}, {BO}")
        P(f"buffer_store_dwordx4 {v(R,4)}, {v(vo)}, {s(sWS,4)}, {s(sU0)} offen {ST}", "aux")
        P(f"buffer_store_dwordx4 {v(R+4,4)}, {v(vo+1)}, {s(sWS,4)}, {s(sU0)} offen {ST}", "aux")
        P(f"buffer_store_dwordx2 {v(R+8,2)}, {v(vo+2)}, {s(sWS,4)}, {s(sU0)} offen {ST}", "aux")


    return [c0, c1, c2, c2b, lambda: c3([0, 1]), lambda: c3([2, 3])]
```

```python
from common import *
import math
ST = os.environ.get("ST", "sc1")
LD = os.environ.get("LD", "sc1")
STOP = os.environ.get("STOP", "")
FK, FQ, FA, FC, FB = 70*MB, 70*MB + 4096, 70*MB + 8192, 70*MB + 16384, 70*MB + 32768
SQK = int(os.environ.get("SQK", "3"))
STAG = int(os.environ.get("STAG", "1"))
QSPREAD = int(os.environ.get("QSPREAD", "1"))
PF1 = int(os.environ.get("PF1", "1")); PF2 = int(os.environ.get("PF2", "10"))
QSCALE = math.log2(math.e) / math.sqrt(128.0)
import struct
def fbits(x): return "0x%08x" % struct.unpack("<I", struct.pack("<f", x))[0]

sCKV, sWKV, sWS, sBX, sBW, sAX, sWQ, sWO, sBWO, sOUT, sDBG = 8, 12, 16, 20, 24, 28, 32, 36, 40, 44, 48
sX, sJ, sWV, sT, sT2, sTa, sTw, sM4, sM2 = 52, 53, 54, 55, 56, 57, 58, 59, 60
sOffA, sOffW, sOutKV, sOffBA, sOffBW, sOutB, sSt = 61, 62, 63, 4, 5, 66, 67
sOffX, sOffQW, sH, sG, sRow0, sJL, sREM, sNB = 68, 69, 70, 71, 72, 73, 74, 75
sSlot, sDOff, sDIdx, sDLim, sDBase, sTHR, sDM0 = 76, 77, 78, 79, 80, 81, 82
sNON = 84
sU0, sU1, sU2, sU3 = 86, 87, 88, 89
sM = 90
sFK, sFQ, sISV, sPF = 94, 95, 83, 6
sSTAMP = 96
vL16, vTID, vSTAMP = 240, 241, 255
T0, T1, T2, T3 = 242, 243, 244, 245

class Stamp:
    def __init__(self, P): self.P = P; self.n = 0
    def __call__(self, real=False, idx=None):
        if not PROF: return
        if idx is not None: self.n = idx
        P = self.P
        P.raw(f"{'s_memrealtime' if real else 's_memtime'} {s(sSTAMP,2)}"); P("s_waitcnt lgkmcnt(0)")
        P.raw(f"v_writelane_b32 {v(vSTAMP)}, {s(sSTAMP)}, {self.n}")
        self.n += 1
    def flush(self):
        if not PROF: return
        P = self.P
        P.raw(f"s_lshl_b32 s3, s2, 3"); P.raw(f"s_add_u32 s3, s3, {s(sWV)}"); P.raw("s_lshl_b32 s3, s3, 8")
        P.raw(f"s_add_u32 s3, s3, {PROFOFF}")
        P.raw(f"v_lshrrev_b32 {v(T0)}, 2, {v(vL16)}"); P.raw("s_nop 1")
        P.raw(f"buffer_store_dword {v(vSTAMP)}, {v(T0)}, {s(sWS,4)}, s3 offen")

def bfe(P, dst, off, n): P(f"v_bfe_u32 {v(dst)}, {v(vTID)}, {off}, {n}")

def act_voff(P, dst, i, stride):
    bfe(P, T0, 4, 2)
    if i % 2: P(f"v_xor_b32 {v(T0)}, 4, {v(T0)}")
    bfe(P, T1, 0, 3); P(f"v_xor_b32 {v(T0)}, {v(T0)}, {v(T1)}"); P(f"v_lshlrev_b32 {v(T0)}, 4, {v(T0)}")
    bfe(P, T1, 3, 3)
    P(f"v_mul_u32_u24 {v(T1)}, {stride}, {v(T1)}")
    P(f"v_add_u32 {v(T0)}, {v(T0)}, {v(T1)}")
    P(f"v_add_u32 {v(dst)}, {8*i*stride - i*1024}, {v(T0)}")
def w256_voff(P, dst, i, stride):
    bfe(P, T0, 4, 2); bfe(P, T1, 2, 2)
    P(f"v_xor_b32 {v(T1)}, {v(T1)}, {v(T0)}"); P(f"v_lshlrev_b32 {v(T1)}, 6, {v(T1)}")
    bfe(P, T2, 0, 2); P(f"v_lshl_add_u32 {v(T1)}, {v(T2)}, 4, {v(T1)}")
    P(f"v_mul_u32_u24 {v(T0)}, {stride}, {v(T0)}")
    P(f"v_add_u32 {v(T1)}, {v(T1)}, {v(T0)}")
    P(f"v_add_u32 {v(dst)}, {4*i*stride - i*1024}, {v(T1)}")
def w512_voff(P, dst, i, stride_log):
    bfe(P, T2, 5, 1)
    P(f"v_add_u32 {v(T0)}, {2*i}, {v(T2)}")
    bfe(P, T1, 2, 3); P(f"v_xor_b32 {v(T1)}, {v(T1)}, {v(T0)}"); P(f"v_lshlrev_b32 {v(T1)}, 6, {v(T1)}")
    bfe(P, T0, 0, 2); P(f"v_lshl_add_u32 {v(T1)}, {v(T0)}, 4, {v(T1)}")
    P(f"v_lshl_add_u32 {v(T1)}, {v(T2)}, {stride_log}, {v(T1)}")
    P(f"v_add_u32 {v(dst)}, {(2*i << stride_log) - i*1024}, {v(T1)}")
def act_raddr(P, dst, ks, sbase):
    bfe(P, T0, 5, 1); P(f"v_add_u32 {v(T0)}, {2*ks}, {v(T0)}"); bfe(P, T1, 1, 3)
    P(f"v_xor_b32 {v(T0)}, {v(T0)}, {v(T1)}"); P(f"v_lshlrev_b32 {v(T0)}, 4, {v(T0)}")
    bfe(P, T1, 0, 5); P(f"v_lshl_add_u32 {v(T0)}, {v(T1)}, 7, {v(T0)}")
    P(f"v_add_u32 {v(dst)}, {sbase}, {v(T0)}")
def w_raddr(P, dst, unit, rowlog, base):
    bfe(P, T0, 2, 2); P(f"v_xor_b32 {v(T1)}, {unit}, {v(T0)}"); P(f"v_lshlrev_b32 {v(T1)}, 6, {v(T1)}")
    bfe(P, T2, 5, 1); P(f"v_lshl_add_u32 {v(T0)}, {v(T2)}, 3, {v(T0)}"); P(f"v_lshl_add_u32 {v(T1)}, {v(T0)}, {rowlog}, {v(T1)}")
    bfe(P, T0, 4, 1); P(f"v_lshl_add_u32 {v(T1)}, {v(T0)}, 5, {v(T1)}")
    bfe(P, T0, 0, 2); P(f"v_lshl_add_u32 {v(T1)}, {v(T0)}, 3, {v(T1)}")
    P(f"v_add_u32 {v(dst)}, {base}, {v(T1)}")

def gen(P, name):
    kernel_start(P, name, 256)
    SP = Stamp(P)
    P(f"s_load_dwordx16 s[64:79], s[0:1], 0"); P(f"s_load_dwordx8 s[80:87], s[0:1], 64")
    P(f"v_mov_b32 {v(vTID)}, v0")
    P(f"v_lshrrev_b32 v1, 6, v0")
    P(f"s_and_b32 {s(sX)}, s2, 7"); P(f"s_lshr_b32 {s(sJ)}, s2, 3")
    P(f"v_readfirstlane_b32 {s(sWV)}, v1")
    P(f"v_and_b32 v1, 63, v0"); P(f"v_lshlrev_b32 {v(vL16)}, 4, v1")
    vA, vA2, vW, voffA, voffW, voffBA, voffBW, vBA, vBW, vBAc, vBWc = 10, 14, 18, 20, 24, 26, 28, 32, 36, 37, 41
    voffX, voffQW, vXr, vQWr, vXc = 10, 14, 16, 24, 0
    vPF = 60
    for i in range(4): act_voff(P, voffA + i, i, 1024)
    for i in range(2): w512_voff(P, voffW + i, i, 13)
    sMT, sNT, sH0 = sU2, sU3, 3
    P(f"s_and_b32 {s(sMT)}, {s(sJ)}, 7"); P(f"s_lshr_b32 {s(sNT)}, {s(sJ)}, 3")
    P(f"s_lshl_b32 {s(sM4)}, {s(sWV)}, 12"); P(f"s_lshl_b32 {s(sM2)}, {s(sWV)}, 11")
    P(f"s_and_b32 {s(sH0)}, {s(sNT)}, 1"); P(f"s_lshl_b32 {s(sH0)}, {s(sH0)}, 1"); P(f"s_lshl_b32 {s(sT2)}, {s(sX)}, 2"); P(f"s_add_u32 {s(sH0)}, {s(sH0)}, {s(sT2)}")
    P(f"s_lshl_b32 {s(sOffW)}, {s(sH0)}, 8"); P(f"s_lshl_b32 {s(sT2)}, {s(sWV)}, 15"); P(f"s_add_u32 {s(sOffW)}, {s(sOffW)}, {s(sT2)}")
    P(f"s_lshl_b32 {s(sOffA)}, {s(sMT)}, 18"); P(f"s_add_u32 {s(sOffA)}, {s(sOffA)}, {s(sT2)}")
    P("s_waitcnt lgkmcnt(0)")
    SP(True); SP()
    make_srd(P, sCKV, 66, SZ["A_ckv"])
    P(f"s_cmp_ge_u32 {s(sNT)}, 2")
    P(f"s_cselect_b32 {s(sWKV)}, s72, s70"); P(f"s_cselect_b32 {s(sWKV+1)}, s73, s71")
    P(f"s_mov_b32 {s(sWKV+2)}, {SZ['A_wuk']}"); P(f"s_mov_b32 {s(sWKV+3)}, 0x20000")

    ASLOT = [0, 32768, 65536]; WSLOT = [98304 + 16384*i for i in range(4)]
    BSLOT = [65536, 0, 98304, 32768, 131072]
    XSLOT = [65536, 0, 32768, 131072]; QSLOT = [98304, 114688]
    def dma(voff, srd, soff_reg, soff_base, soff_add, m0base, m0add, part, tag):
        P(f"s_add_u32 m0, {s(m0base)}, {m0add}")
        P(f"s_add_u32 {s(soff_reg)}, {s(soff_base)}, {soff_add}")
        for i in part: P(f"buffer_load_dwordx4 {v(voff+i)}, {s(srd,4)}, {s(soff_reg)} offen offset:{i*1024} lds", tag)
    def dma_act(st, part=range(4)): dma(voffA, sCKV, sTa, sOffA, st*128, sM4, ASLOT[st%3], part, ("A", st))
    def dma_w(h): dma(voffW, sWKV, sTw, sOffW, h*32*8192, sM2, WSLOT[h%4], range(2), ("W", h))
    def dma_b(st, half=None):
        if half != 1: dma(voffBA, sBX, sTa, sOffBA, st*128, sM2, BSLOT[st%5], range(2), ("B", st))
        if half != 0: dma(voffBW, sBW, sTw, sOffBW, st*64*3840, sM2, BSLOT[st%5]+16384, range(2), ("B", st))
    def dma_x(st, part=range(4)): dma(voffX, sAX, sTa, sOffX, st*128, sM4, XSLOT[st%4], part, ("X", st))
    def dma_qw(st, part=range(2)): dma(voffQW, sWQ, sTw, sOffQW, st*64*8192, sM2, QSLOT[st%2], part, ("Q", st))
    dma_w(0); dma_act(0)
    P("s_barrier")
    dma_w(1)
    P(f"s_and_b32 {s(sT)}, {s(sWV)}, 1"); P(f"s_lshl_b32 {s(sT2)}, {s(sT)}, 14")
    for ks in range(4): act_raddr(P, vA + ks, ks, s(sT2))
    P(f"s_and_b32 {s(sT)}, {s(sWV)}, 6")
    for cb in range(2):
        P(f"s_add_u32 {s(sT2)}, {s(sT)}, {cb}")
        w_raddr(P, vW + cb, s(sT2), 9, 98304)
    dma_act(1)
    def record(fn):
        nonlocal P
        PM = P; P = Prog(); P.auto = False
        fn()
        txt = [i.text for i in P.ins]; P = PM
        ch = []
        for x in txt:
            if x.startswith("s_cselect"): ch[-1].append(x)
            else: ch.append([x])
        return ch
    sCB, sTB = 64, 65
    def setup1():
        for ks in range(4): P(f"v_add_u32 {v(vA2+ks)}, 0x10000, {v(vA+ks)}")
        make_srd(P, sWS, 86, SZ["ws"]); make_srd(P, sBX, 76, SZ["B_x"]); make_srd(P, sBW, 78, SZ["B_wqkv"])
        make_srd(P, sAX, 64, SZ["A_x"]); make_srd(P, sWQ, 68, SZ["A_wq"]); make_srd(P, sWO, 74, SZ["A_wo"])
        make_srd(P, sBWO, 80, SZ["B_wo"]); make_srd(P, sOUT, 82, SZ["out"]); make_srd(P, sDBG, 84, SZ["dbg"])
        P.raw("; NONCE")
        P(f"s_min_u32 {s(sT)}, {s(sJ)}, 29"); P(f"s_and_b32 {s(sT2)}, {s(sX)}, 1"); P(f"s_mul_i32 {s(sT2)}, {s(sT2)}, 30"); P(f"s_add_u32 {s(sT)}, {s(sT)}, {s(sT2)}")
        P(f"s_lshr_b32 {s(sCB)}, {s(sT)}, 2"); P(f"s_and_b32 {s(sTB)}, {s(sT)}, 3")
        P(f"s_lshr_b32 {s(sT2)}, {s(sX)}, 1"); P(f"s_lshl_b32 {s(sT2)}, {s(sT2)}, 2"); P(f"s_add_u32 {s(sTB)}, {s(sTB)}, {s(sT2)}")
        P(f"s_lshl_b32 {s(sT)}, {s(sTB)}, 3"); P(f"s_add_u32 {s(sT)}, {s(sT)}, {s(sWV)}"); P(f"s_mul_i32 {s(sOffBA)}, {s(sT)}, {16*1280}")
        P(f"s_mul_i32 {s(sOffBW)}, {s(sWV)}, {8*3840}"); P(f"s_lshl_b32 {s(sT)}, {s(sCB)}, 8"); P(f"s_add_u32 {s(sOffBW)}, {s(sOffBW)}, {s(sT)}")
        P(f"s_and_b32 {s(sT2)}, {s(sWV)}, 1"); P(f"s_lshl_b32 {s(sT)}, {s(sTB)}, 1"); P(f"s_add_u32 {s(sT)}, {s(sT)}, {s(sT2)}"); P(f"s_mul_i32 {s(sOutB)}, {s(sT)}, {2*120*1024}")
        P(f"s_lshr_b32 {s(sT2)}, {s(sWV)}, 1"); P(f"s_lshl_b32 {s(sT)}, {s(sCB)}, 2"); P(f"s_add_u32 {s(sT)}, {s(sT)}, {s(sT2)}"); P(f"s_lshl_b32 {s(sT)}, {s(sT)}, 11")
        P(f"s_add_u32 {s(sOutB)}, {s(sOutB)}, {s(sT)}"); P(f"s_add_u32 {s(sOutB)}, {s(sOutB)}, {QKV}")
        P(f"s_lshl_b32 {s(sFQ)}, {s(sTB)}, 7"); P(f"s_lshl_b32 {s(sT)}, {s(sCB)}, 3"); P(f"s_add_u32 {s(sFQ)}, {s(sFQ)}, {s(sT)}"); P(f"s_add_u32 {s(sFQ)}, {s(sFQ)}, {FQ}")
        P(f"s_lshl_b32 {s(sFK)}, {s(sH0)}, 6"); P(f"s_lshr_b32 {s(sT2)}, {s(sNT)}, 1"); P(f"s_lshl_b32 {s(sT2)}, {s(sT2)}, 3"); P(f"s_add_u32 {s(sT2)}, {s(sT2)}, {s(sMT)}")
        P(f"s_lshl_b32 {s(sT2)}, {s(sT2)}, 3"); P(f"s_add_u32 {s(sFK)}, {s(sFK)}, {s(sT2)}"); P(f"s_add_u32 {s(sFK)}, {s(sFK)}, {FK}")
        P(f"s_lshr_b32 {s(sT2)}, {s(sWV)}, 2"); P(f"s_add_u32 {s(sT)}, {s(sH0)}, {s(sT2)}"); P(f"s_lshl_b32 {s(sOutKV)}, {s(sT)}, 19")
        P(f"s_lshl_b32 {s(sT)}, {s(sMT)}, 16"); P(f"s_add_u32 {s(sOutKV)}, {s(sOutKV)}, {s(sT)}")
        P(f"s_and_b32 {s(sT)}, {s(sWV)}, 1"); P(f"s_lshl_b32 {s(sT)}, {s(sT)}, 15"); P(f"s_add_u32 {s(sOutKV)}, {s(sOutKV)}, {s(sT)}")
        P(f"s_and_b32 {s(sT)}, {s(sWV)}, 2"); P(f"s_lshl_b32 {s(sT)}, {s(sT)}, 11"); P(f"s_add_u32 {s(sOutKV)}, {s(sOutKV)}, {s(sT)}")
        P(f"s_lshr_b32 {s(sT)}, {s(sNT)}, 1"); P(f"s_lshl_b32 {s(sT)}, {s(sT)}, 24"); P(f"s_add_u32 {s(sOutKV)}, {s(sOutKV)}, {s(sT)}")
        P(f"s_and_b32 {s(sH)}, {s(sJ)}, 3"); P(f"s_lshl_b32 {s(sT)}, {s(sX)}, 2"); P(f"s_add_u32 {s(sH)}, {s(sH)}, {s(sT)}")
        P(f"s_lshr_b32 {s(sG)}, {s(sJ)}, 2")
        P(f"s_lshl_b32 {s(sT)}, {s(sG)}, 2"); P(f"s_add_u32 {s(sT)}, {s(sT)}, {s(sWV)}")
        P(f"s_sub_u32 {s(sT2)}, 63, {s(sT)}"); P(f"s_sub_u32 {s(sT)}, {s(sT)}, 4")
        P(f"s_cmp_lt_u32 {s(sWV)}, 4"); P(f"s_cselect_b32 {s(sJL)}, {s(sT2)}, {s(sT)}")
        P(f"s_lshl_b32 {s(sRow0)}, {s(sJL)}, 5")
        P(f"s_mul_i32 {s(sOffX)}, {s(sRow0)}, 1280")
        P(f"s_lshl_b32 {s(sOffQW)}, {s(sH)}, 8"); P(f"s_lshl_b32 {s(sT)}, {s(sWV)}, 16"); P(f"s_add_u32 {s(sOffQW)}, {s(sOffQW)}, {s(sT)}")
        for i in range(2): act_voff(P, voffBA + i, i, 1280)
        for i in range(2): w256_voff(P, voffBW + i, i, 3840)
        P(f"s_and_b32 {s(sT)}, {s(sWV)}, 1"); P(f"s_lshl_b32 {s(sT)}, {s(sT)}, 13")
        for ks in range(4): act_raddr(P, vBA + ks, ks, s(sT))
        P(f"s_lshr_b32 {s(sT2)}, {s(sWV)}, 1")
        w_raddr(P, vBW, s(sT2), 8, 16384)
    def setup2():
        for i in range(4): act_voff(P, voffX + i, i, 1280)
        for i in range(2): w256_voff(P, voffQW + i, i, 8192)
        P(f"s_lshr_b32 {s(sT)}, {s(sWV)}, 2"); P(f"s_lshl_b32 {s(sT)}, {s(sT)}, 1")
        for cb in range(2):
            P(f"s_add_u32 {s(sT2)}, {s(sT)}, {cb}")
            w_raddr(P, vQWr + cb, s(sT2), 8, 98304)
        P(f"s_xor_b32 {s(sT)}, {s(sM4)}, 0x4000")
        for ks in range(4):
            act_raddr(P, vXr + ks, ks, s(sM4))
            P(f"v_add_u32 {v(vXr+4+ks)}, {s(sT)}, {v(T0)}")
    ch1, ch2 = record(setup1), record(setup2)
    chunks = []
    lab_id = [0]
    def nonce():
        lab_id[0] += 1; lab = f"{name}_nonon{lab_id[0]}"
        P(f"s_cmp_lg_u32 {s(sWV)}, 4"); P(f"s_cbranch_scc1 {lab}")
        P.raw(f"s_memrealtime {s(sNON,2)}"); P("s_waitcnt lgkmcnt(0)")
        P(f"v_mov_b32 v4, {s(sNON)}"); P(f"v_mov_b32 v5, {s(sNON+1)}"); P("v_mov_b32 v6, 0"); P("v_mov_b32 v7, 0"); P("v_mov_b32 v8, 0")
        P("s_mov_b64 exec, 1")
        P.raw(f"buffer_atomic_cmpswap_x2 v[4:7], v8, {s(sDBG,4)}, 0 offen")
        P("s_mov_b64 exec, -1")
        P.label(lab)
    def emit_chunks(n):
        for _ in range(n):
            if not chunks: return
            c = chunks.pop(0)
            if c[0] == "; NONCE":
                st = P.state(); nonce(); P.set_state(st)
            else:
                for x in c: P(x)
    def publish(sreg, lab):
        P(f"s_cmp_lg_u32 {s(sWV)}, 4"); P(f"s_cbranch_scc1 {lab}")
        P(f"v_mov_b32 {v(T0)}, {s(sNON)}"); P(f"v_mov_b32 {v(T1)}, {s(sNON+1)}"); P(f"v_mov_b32 {v(T2)}, 0")
        P("s_mov_b64 exec, 1")
        for r in (sreg if isinstance(sreg, list) else [sreg]):
            P.raw(f"buffer_store_dwordx2 {v(T0,2)}, {v(T2)}, {s(sWS,4)}, {s(r)} offen sc1")
        P("s_mov_b64 exec, -1")
        P.label(lab)
    def pf(srd, idx_kind, mul, add, xmul=0):
        if idx_kind == "xcd": P(f"s_lshl_b32 {s(sPF)}, {s(sJ)}, 3")
        else: P(f"s_lshl_b32 {s(sPF)}, s2, 3")
        P(f"s_add_u32 {s(sPF)}, {s(sPF)}, {s(sWV)}"); P(f"s_mul_i32 {s(sPF)}, {s(sPF)}, {mul}")
        if callable(add): add()
        elif add: P(f"s_add_u32 {s(sPF)}, {s(sPF)}, {add}")
        P.raw(f"buffer_load_dwordx4 {v(vPF,4)}, {v(vL16)}, {s(srd,4)}, {s(sPF)} offen"); P.vq.append((set(), "pf"))
    def addx(shift, mul, const):
        def f():
            if shift == "lo": P(f"s_and_b32 {s(7)}, {s(sX)}, 1")
            else: P(f"s_lshr_b32 {s(7)}, {s(sX)}, {shift}")
            P(f"s_mul_i32 {s(7)}, {s(7)}, {mul}"); P(f"s_add_u32 {s(sPF)}, {s(sPF)}, {s(7)}")
            if const: P(f"s_add_u32 {s(sPF)}, {s(sPF)}, {const}")
        return f
    pf_xm = [lambda i=i: pf(sAX, "chip", 1280, i*1024) for i in range(2)]
    pf_xl = [lambda i=i: pf(sAX, "xcd", 10240, i*1024) for i in range(10)]
    pf_wq = [lambda i=i: pf(sWQ, "xcd", 3*8192, addx(0, 1024, i*8192)) for i in range(3)]
    pf_bx = [lambda i=i: pf(sBX, "xcd", 2560, addx(1, 512*1280, i*1024)) for i in range(3)]
    pf_bw = [lambda i=i, c=c: pf(sBW, "xcd", 3*3840, addx("lo", 1792, i*3840 + c*1024)) for i in range(3) for c in range(2)]
    pf_wo = [lambda i=i: pf(sWO, "chip", 2560, i*1024) for i in range(3)] + [lambda: pf(sBWO, "chip", 1024, 0)]
    PFS = {"o": pf_wo, "m": pf_xm, "x": pf_xl, "q": pf_wq, "b": pf_bx + pf_bw}
    pf_sched = {}
    for item in os.environ.get("PFS", "o6,m10,b14,q23").split(","):
        if item:
            for i, f in enumerate(PFS[item[0]]): pf_sched.setdefault(int(item[1:]) + i, []).append(f)

    ACC = 64; FR = [192, 216]
    def fA(set_, tb): return FR[set_] + 4*tb
    def fW(set_, cb): return FR[set_] + 16 + 4*cb
    def reads(q):
        st, ks = q // 4, q % 4; h, kh = q // 2, q % 2; se = q % 2
        sl = st % 3
        def rA(tb):
            base = vA2 if sl == 2 else vA; off = (ASLOT[sl] if sl < 2 else 0) + tb*4096
            return f"ds_read_b128 {v(fA(se,tb),4)}, {v(base+ks)} offset:{off}"
        def rW(cb, i):
            return f"ds_read_b64_tr_b16 {v(fW(se,cb)+2*i,2)}, {v(vW+cb)} offset:{(h%4)*16384 + (16*kh+4*i)*512}"
        return [rW(0,0), rW(0,1), rA(0), rW(1,0), rW(1,1), rA(1), rA(2), rA(3)]
    P.wait_tag(lambda t: t in (("A", 0), ("W", 0))); P("s_barrier")
    SP()
    for r in reads(0): P(r)
    st0 = P.state()
    P(f"s_cmp_ge_u32 {s(sNT)}, 2"); P(f"s_cbranch_scc1 {name}_V")
    for isV in (0, 1):
        if isV: P.label(f"{name}_V"); P.set_state(st0)
        chunks[:] = list(ch1)
        for q in range(32):
            se = q % 2; hs = q // 2
            mf = []
            for tb in range(4):
                for cb in range(2):
                    d = v(ACC + (tb*2+cb)*16, 16); c = "0" if q == 0 else d
                    x, y = (fA(se,tb), fW(se,cb)) if isV else (fW(se,cb), fA(se,tb))
                    mf.append(f"v_mfma_f32_32x32x16_bf16 {d}, {v(x,4)}, {v(y,4)}, {c}")
            fill = []
            if q % 2 == 1 and q < 31:
                def sync(hs=hs):
                    P.wait_tag(lambda t: t == ("W", hs+1) or t == ("A", (hs+1)//2))
                    P("s_barrier")
                fill.append(sync)
            if q < 31: fill += reads(q + 1)
            if q == 0: fill.insert(2, lambda: dma_w(2)); fill.insert(6, lambda: dma_w(3))
            if q == 1: fill.insert(3, lambda: dma_act(2, [0, 1])); fill.insert(7, lambda: dma_act(2, [2, 3]))
            if q % 2 == 1:
                if 1 <= hs <= 12: fill.insert(3, lambda hs=hs: dma_w(hs + 3))
                sa = hs // 2 + 2
                if hs >= 2 and sa <= 7: fill.insert(6, lambda hs=hs, sa=sa: dma_act(sa, [0,1] if hs % 2 == 0 else [2,3]))
                if hs == 12: fill.insert(6, lambda: dma_b(0))
                if hs == 14: fill.insert(3, lambda: dma_b(1))
                if hs == 15: fill.insert(1, lambda: dma_b(2))
            if q == 12:
                def nl():
                    P(f"v_mov_b32 {v(T3)}, 0"); P(f"buffer_load_dwordx2 {v(8,2)}, {v(T3)}, {s(sDBG,4)}, 0 offen sc1")
                fill.append(nl)
            if q == 20: fill.append(lambda: (P(f"v_readfirstlane_b32 {s(sNON)}, v8"), P(f"v_readfirstlane_b32 {s(sNON+1)}, v9")))
            for f in pf_sched.get(q, []): fill.insert(2, f)
            if q < 6:
                for i in range(8): fill.insert(min(len(fill), 1 + 2*i), lambda: emit_chunks(5))
            interleave(P, mf, fill)
            if q == 5: assert not chunks, len(chunks)
        if not isV: P(f"s_branch {name}_J")
    P.label(f"{name}_J")
    SP()
    BFR = [192 + 12*i for i in range(4)]
    BACC = 128
    BPK = 44
    def baddr(st):
        return [f"v_add_u32 {v(vBAc+ks)}, {BSLOT[st%5]}, {v(vBA+ks)}" for ks in range(4)] + [f"v_add_u32 {v(vBWc)}, {BSLOT[st%5]}, {v(vBW)}"]
    def breads(q):
        ks = q % 4; se = q % 4
        return [f"ds_read_b64_tr_b16 {v(BFR[se]+8,2)}, {v(vBWc)} offset:{(16*ks)*256}",
                f"ds_read_b64_tr_b16 {v(BFR[se]+10,2)}, {v(vBWc)} offset:{(16*ks+4)*256}",
                f"ds_read_b128 {v(BFR[se],4)}, {v(vBAc+ks)} offset:0",
                f"ds_read_b128 {v(BFR[se]+4,4)}, {v(vBAc+ks)} offset:4096"]
    def kvstore(n):
        if os.environ.get("X_NOST"): return
        tb, r = n // 4, n % 4
        P(f"s_add_u32 {s(sSt)}, {s(sOutKV)}, {tb*8192}")
        P(f"buffer_store_dwordx4 {v(ACC+n*4,4)}, {v(vL16)}, {s(sWS,4)}, {s(sSt)} offen offset:{r*1024} {ST}", ("S", n))
    def bstore(n):
        tb, c = n // 2, n % 2
        P(f"s_add_u32 {s(sSt)}, {s(sOutB)}, {tb*120*1024}")
        P(f"buffer_store_dwordx4 {v(BPK+tb*8+4*c,4)}, {v(vL16)}, {s(sWS,4)}, {s(sSt)} offen offset:{c*1024} {ST}", ("S", 16+n))
    for x in baddr(0): P(x)
    P.wait_tag(lambda t: t == ("B", 0)); P("s_barrier")
    for r in breads(0) + breads(1): P(r)
    dma_b(3)
    for i in range(32): P(f"v_cvt_pk_bf16_f32 {v(ACC+i)}, {v(ACC+2*i)}, {v(ACC+2*i+1)}")
    dma_b(4)
    for i in range(32, 64): P(f"v_cvt_pk_bf16_f32 {v(ACC+i)}, {v(ACC+2*i)}, {v(ACC+2*i+1)}")
    late = [lambda n=n: kvstore(n) for n in range(16)]
    SB = [int(c) for c in os.environ.get("SB", "1111111111")]
    SQ = [int(c) for c in os.environ.get("SQ", "2222200000")]
    PUB = int(os.environ.get("PUB", "7"))
    chunks[:] = list(ch2)
    NQ = 40
    for q in range(NQ):
        st, ks = q // 4, q % 4; se = q % 4
        mf = []
        for tb in range(2):
            d = v(BACC + tb*16, 16); c = "0" if q == 0 else d
            mf.append(f"v_mfma_f32_32x32x16_bf16 {d}, {v(BFR[se]+8,4)}, {v(BFR[se]+4*tb,4)}, {c}")
        fill = []
        if ks == 2:
            def sync(st=st):
                if st < 9: P.wait_tag(lambda t: t == ("B", st+1))
                P.wait_lds_all(); P("s_barrier")
                if st < 9:
                    for x in baddr(st+1): P(x)
            fill.append(sync)
        if q + 2 < NQ: fill += breads(q + 2)
        if q < 16: fill.insert(len(fill)//2, lambda: emit_chunks(4)); fill.append(lambda: emit_chunks(4))
        def bl(st):
            if st <= 4: return [lambda: dma_b(st + 5, 0), lambda: dma_b(st + 5, 1)]
            if st == 7: return [lambda: dma_qw(0), lambda: dma_qw(1)]
            xs = {5: 0, 6: 1, 8: 2, 9: 3}[st]
            return [lambda: dma_x(xs, [0, 1]), lambda: dma_x(xs, [2, 3])]
        if ks >= 2: fill.append(bl(st)[ks - 2])
        if ks == 0:
            for _ in range(SB[st]):
                if late: fill.append(late.pop(0))
        for f in pf_sched.get(100 + q, []): fill.append(f)
        interleave(P, mf, fill)
        if q == 15: assert not chunks, len(chunks)
    SP()
    QACC = 128; QFR = [192, 208, 224]
    def xaddr(st): return [f"v_add_u32 {v(vXc+i)}, {XSLOT[st%4]}, {v(vXr+i)}" for i in range(8)]
    def qreads(q):
        st, ks = q // 4, q % 4; se = q % 3
        def w(cb, i): return f"ds_read_b64_tr_b16 {v(QFR[se]+4*cb+2*i,2)}, {v(vQWr+cb)} offset:{(st%2)*16384 + (16*ks+4*i)*256}"
        def x(r): return f"ds_read_b128 {v(QFR[se]+8+4*r,4)}, {v(vXc+4*r+ks)} offset:0"
        return [w(0,0), w(0,1), x(0), w(1,0), w(1,1), x(1)]
    for x in xaddr(0): P(x)
    P.wait_tag(lambda t: t in (("X", 0), ("Q", 0))); P("s_barrier")
    for r in qreads(0) + qreads(1): P(r)
    for tb in range(2):
        for i in range(8): P(f"v_cvt_pk_bf16_f32 {v(BPK+tb*8+i)}, {v(BACC+tb*16+2*i)}, {v(BACC+tb*16+2*i+1)}")
    for tb in range(2):
        b = BPK + tb*8
        for (x, y) in ((0,2),(1,3),(4,6),(5,7)): P(f"v_permlane32_swap_b32 {v(b+x)}, {v(b+y)}")
    late += [lambda n=n: bstore(n) for n in range(4)]
    for q in range(40):
        st, ks = q // 4, q % 4; se = q % 3
        mf = []
        for r in range(2):
            for cb in range(2):
                d = v(QACC + (r*2+cb)*16, 16); c = "0" if q == 0 else d
                mf.append(f"v_mfma_f32_32x32x16_bf16 {d}, {v(QFR[se]+4*cb,4)}, {v(QFR[se]+8+4*r,4)}, {c}")
        fill = []
        if ks == 2:
            def sync(st=st):
                if st < 9: P.wait_tag(lambda t: t in (("X", st+1), ("Q", st+1)))
                if st == PUB: P.wait_tag(lambda t: t is not None and t[0] == "S")
                P.wait_lds_all()
                if st < 9 or st == PUB: P("s_barrier")
                if st == PUB: publish([sFK, sFQ], f"{name}_pubk")
                if st < 9:
                    for x in xaddr(st+1): P(x)
            fill.append(sync)
        if q + 2 < 40: fill += qreads(q + 2)
        vm = []
        if ks == 2 and st + 2 <= 9: vm += [lambda i=i, st=st: dma_qw(st + 2, [i]) for i in range(2)]
        if ks in (3, 0):
            s0 = st if ks == 3 else st - 1
            if s0 >= 0 and s0 + 4 <= 9: vm += [lambda i=i, s0=s0: dma_x(s0 + 4, [i]) for i in ([0, 1] if ks == 3 else [2, 3])]
        if ks == SQK:
            for _ in range(SQ[st]):
                if late: vm.append(late.pop(0))
        base = 1 if ks == 2 else 0
        for i, x in enumerate(vm): fill.insert(min(len(fill), base + 1 + i * 3), x)
        interleave(P, mf, fill)
    assert not late
    SP()
    def poll(soff, nfl, lab):
        P(f"s_mov_b32 {s(sT2)}, {int(os.environ.get('POLLMAX', '0x40000'), 0)}")
        P(f"v_lshrrev_b32 {v(T3)}, 1, {v(vL16)}")
        if nfl < 64: P(f"s_mov_b64 exec, {hex((1 << nfl) - 1)}")
        P.label(lab)
        P(f"buffer_load_dwordx2 {v(246,2)}, {v(T3)}, {s(sWS,4)}, {s(soff)} offen sc1")
        P("s_waitcnt vmcnt(0)")
        for i in range(2): P(f"v_xor_b32 {v(246+i)}, {s(sNON + i)}, {v(246+i)}")
        P(f"v_or_b32 {v(246)}, {v(246)}, {v(247)}")
        P(f"v_cmp_ne_u32 vcc, 0, {v(246)}")
        P(f"s_cbranch_vccz {lab}_ok")
        P("s_sleep 4")
        P(f"s_sub_u32 {s(sT2)}, {s(sT2)}, 1"); P(f"s_cmp_lg_u32 {s(sT2)}, 0"); P(f"s_cbranch_scc1 {lab}")
        P.label(lab + "_ok")
        if nfl < 64: P("s_mov_b64 exec, -1")
    ctx = dict(P=P, SP=SP, name=name, poll=poll, publish=publish)
    import attn
    attn.gen_attn(dict(ctx, early_only=True))()
    P(f"s_mov_b32 {s(sT)}, {fbits(QSCALE)}")
    for i in list(range(32, 64)) + list(range(32)): P(f"v_mul_f32 {v(QACC+i)}, {s(sT)}, {v(QACC+i)}")
    for i in range(16): P(f"v_cvt_pk_bf16_f32 {v(32+i)}, {v(QACC+32+2*i)}, {v(QACC+32+2*i+1)}")
    P(f"s_add_u32 {s(sT)}, {s(sM4)}, {131072}"); P(f"v_add_u32 {v(T0)}, {s(sT)}, {v(vL16)}")
    for i in range(4): P(f"ds_write_b128 {v(T0)}, {v(32+4*i,4)} offset:{i*1024}")
    for i in range(16): P(f"v_cvt_pk_bf16_f32 {v(i)}, {v(QACC+2*i)}, {v(QACC+2*i+1)}")
    P(f"v_xor_b32 {v(T0)}, 0x4000, {v(T0)}")
    P("s_waitcnt lgkmcnt(0)"); P("s_barrier")
    for i in range(4): P(f"ds_read_b128 {v(16+4*i,4)}, {v(T0)} offset:{i*1024}")
    attn.gen_attn(ctx)
    SP(); SP(True); SP.flush()
    P.label(f"{name}_end"); P("s_endpgm")
    return kernel_desc(name, 256, sgpr=100)
```

```python
from fused import *

E = os.environ.get
def wof_prefetch(P):
    n = int(E("WPF", "1"))
    if not n: return
    P(f"s_lshl_b32 {s(sT)}, {s(sJ)}, 2"); P(f"s_add_u32 {s(sT)}, {s(sT)}, {s(sWV)}"); P(f"s_sub_u32 {s(sT)}, {s(sT)}, 4")
    P(f"s_mul_i32 {s(sT)}, {s(sT)}, 20480")
    P(f"s_and_b32 {s(sT2)}, {s(sX)}, 1"); P(f"s_mul_i32 {s(sT2)}, {s(sT2)}, {4*128*5120}"); P(f"s_add_u32 {s(sT)}, {s(sT)}, {s(sT2)}")
    P(f"s_add_u32 {s(sT)}, {s(sT)}, {WOF}")
    for i in range(20):
        P(f"buffer_load_dwordx4 {v(4*(i%8),4)}, {v(vL16)}, {s(sWS,4)}, {s(sT)} offen offset:{(i%4)*1024} {LD}")
        if i % 4 == 3: P(f"s_add_u32 {s(sT)}, {s(sT)}, 4096")

def gen_out_pre(ctx):
    pass

def gen_out(ctx):
    P, SP, name = ctx["P"], ctx["SP"], ctx["name"]
    NS = 4
    CS = [i*16384 for i in range(NS)]; WS_ = [65536 + i*20480 for i in range(NS)]
    ACC, FRG = 0, 32
    vRC, vRW, vOut = 64, 65, 66
    sSrc, sTile, sM0 = sU0, sU2, sU1
    sTB, sCB = sU3, sSt
    P(f"s_lshr_b32 {s(sTB)}, {s(sX)}, 1"); P(f"s_lshl_b32 {s(sTB)}, {s(sTB)}, 3"); P(f"s_and_b32 {s(sT)}, {s(sJ)}, 7"); P(f"s_add_u32 {s(sTB)}, {s(sTB)}, {s(sT)}")
    P(f"s_and_b32 {s(sCB)}, {s(sX)}, 1"); P(f"s_lshl_b32 {s(sCB)}, {s(sCB)}, 2"); P(f"s_lshr_b32 {s(sT)}, {s(sJ)}, 3"); P(f"s_add_u32 {s(sCB)}, {s(sCB)}, {s(sT)}")
    P(f"s_and_b32 {s(sT)}, {s(sWV)}, 3"); P(f"s_lshl_b32 {s(sT2)}, {s(sT)}, 10"); P(f"v_add_u32 {v(vRC)}, {s(sT2)}, {v(vL16)}")
    P(f"s_lshr_b32 {s(sT2)}, {s(sWV)}, 2"); P(f"s_mul_i32 {s(sT2)}, {s(sT2)}, 3072"); P(f"s_add_u32 {s(sT2)}, {s(sT2)}, 65536"); P(f"v_add_u32 {v(vRW)}, {s(sT2)}, {v(vL16)}")
    P(f"v_add_u32 {v(vRW+2)}, 40960, {v(vRW)}")
    bfe(P, T0, 0, 4); P(f"v_mul_u32_u24 {v(T0)}, 2560, {v(T0)}"); bfe(P, T1, 4, 2); P(f"v_lshl_add_u32 {v(vOut)}, {v(T1)}, 3, {v(T0)}")
    P(f"s_lshl_b32 {s(sTile)}, {s(sTB)}, 2"); P(f"s_add_u32 {s(sTile)}, {s(sTile)}, {s(sT)}"); P(f"s_mul_i32 {s(sTile)}, {s(sTile)}, {16*2560}")
    P(f"s_mul_i32 {s(sT)}, {s(sCB)}, 160"); P(f"s_add_u32 {s(sTile)}, {s(sTile)}, {s(sT)}")
    P(f"s_lshr_b32 {s(sT)}, {s(sWV)}, 2"); P(f"s_mul_i32 {s(sT)}, {s(sT)}, 96"); P(f"s_add_u32 {s(sTile)}, {s(sTile)}, {s(sT)}")
    NA, NB = 32, 5
    sTBs, sCBs = sTB, sCB
    if os.environ.get("P5SAME"):
        sTBs, sCBs = sDOff, sDIdx
        P(f"s_and_b32 {s(sTBs)}, {s(sTB)}, {24 if 't' in os.environ['P5SAME'] else 31}")
        P(f"s_and_b32 {s(sCBs)}, {s(sCB)}, {4 if 'c' in os.environ['P5SAME'] else 7}")
    N = NA + NB
    P(f"s_cmp_lt_u32 {s(sWV)}, 4"); P(f"s_cbranch_scc0 {name}_o_lo")
    st0 = P.state()
    for role in ("hi", "lo"):
        nm = 3 if role == "hi" else 2
        if role == "lo": P.label(f"{name}_o_lo"); P.set_state(ctx["lo_state"])
        def set_src(isB):
            if role == "hi":
                P(f"s_mul_i32 {s(sSrc)}, {s(sTBs)}, {(20 if isB else 128)*4096}"); P(f"s_add_u32 {s(sSrc)}, {s(sSrc)}, {s(sM4)}")
                P(f"s_add_u32 {s(sSrc)}, {s(sSrc)}, {BO if isB else CTX}")
            else:
                P(f"s_mul_i32 {s(sSrc)}, {s(sCBs)}, {(20 if isB else 128)*5120}"); P(f"s_add_u32 {s(sSrc)}, {s(sSrc)}, {s(sM0)}")
                P(f"s_add_u32 {s(sSrc)}, {s(sSrc)}, {BWOF if isB else WOF}")
        def dma_ops(st):
            if st >= N: return []
            def ld(i, so): P(f"buffer_load_dwordx4 {v(vL16)}, {s(sWS,4)}, {s(so)} offen offset:{i*1024} {LD} lds", st)
            def pre():
                if st == NA:
                    if role == "hi":
                        P(f"s_lshl_b32 {s(sT)}, {s(sTB)}, 8"); P(f"s_add_u32 {s(sT)}, {s(sT)}, {FB}")
                        ctx["poll"](sT, 32, f"{name}_poll4")
                    set_src(True)
                if role == "hi": P(f"s_add_u32 m0, {s(sM4)}, {CS[st%NS]}"); P("s_nop 0")
                else: P(f"s_add_u32 m0, {s(sM0)}, {WS_[st%NS]}"); P(f"s_add_u32 {s(sTa)}, {s(sSrc)}, 4096")
                ld(0, sSrc)
            ops = [pre, lambda: ld(1, sSrc), lambda: ld(2, sSrc)]
            if role == "hi": ops.append(lambda: (ld(3, sSrc), P(f"s_add_u32 {s(sSrc)}, {s(sSrc)}, 16384")))
            else: ops.append(lambda: (ld(3, sSrc), P(f"s_add_u32 m0, m0, 4096"), P(f"s_add_u32 {s(sSrc)}, {s(sSrc)}, 20480"), ld(0, sTa)))
            return ops
        def dma(st):
            for f in dma_ops(st): f()
        if role == "lo":
            P(f"s_sub_u32 {s(sM0)}, {s(sWV)}, 4"); P(f"s_mul_i32 {s(sM0)}, {s(sM0)}, 5120")
        set_src(False)
        P("s_waitcnt lgkmcnt(0)"); P("s_barrier")
        if role == "hi":
            P(f"s_lshl_b32 {s(sT)}, {s(sTB)}, 9"); P(f"s_add_u32 {s(sT)}, {s(sT)}, {FC}")
            ctx["poll"](sT, 64, f"{name}_poll3")
        SP(idx=11)
        for st in range(NS): dma(st)
        def reads(st, k):
            b = FRG + 16*(k % 2)
            out = [f"ds_read_b128 {v(b,4)}, {v(vRC)} offset:{CS[st%NS] + k*4096}"]
            sl = st % NS
            for m in range(nm): out.append(f"ds_read_b128 {v(b+4+4*m,4)}, {v(vRW + (2 if sl >= 2 else 0))} offset:{(sl%2)*20480 + k*5120 + m*1024}")
            return out
        for st in range(N):
            P.wait_tag(lambda t: t == st); P("s_barrier")
            if st == 0 and role == "lo": ctx["bflag"]()
            dq = dma_ops(st + NS - 1) if st >= 1 else []
            mode = os.environ.get("P5D", "first")
            if mode == "first" or os.environ.get("P5NOMF"):
                for f in dq: f()
                dq = []
            if os.environ.get("P5NOMF"): continue
            for r in reads(st, 0): P(r)
            a0 = ACC + (12 if st >= NA else 0)
            for k in range(4):
                if k < 3:
                    for r in reads(st, k + 1): P(r)
                b = FRG + 16*(k % 2)
                for m in range(nm):
                    d = v(a0 + 4*m, 4)
                    P(f"v_mfma_f32_16x16x32_bf16 {d}, {v(b+4+4*m,4)}, {v(b,4)}, {'0' if (st in (0, NA) and k == 0) else d}")
                if mode == "mix" and dq: dq.pop(0)()
            for f in dq: f()
            if st == NA + 1 or st == N - 1:
                a1 = ACC if st == NA + 1 else ACC + 12
                for m in range(nm):
                    r = a1 + 4*m
                    P(f"v_cvt_pk_bf16_f32 {v(r)}, {v(r)}, {v(r+1)}"); P(f"v_cvt_pk_bf16_f32 {v(r+1)}, {v(r+2)}, {v(r+3)}")
                    if not E("NOOUT"): P(f"buffer_store_dwordx2 {v(r,2)}, {v(vOut)}, {s(sOUT,4)}, {s(sTile)} offen offset:{m*32 + (0 if st == NA + 1 else 1280)} {E('OST', '')}", "out")
        SP(idx=12)
        if role == "hi": P(f"s_branch {name}_o_done")
    P.label(f"{name}_o_done")
    if PROF: P("s_waitcnt vmcnt(0)")
```

```python
from common import *
import math
ST = os.environ.get("ST", "sc1")
LD = os.environ.get("LD", "sc1")
STOP = os.environ.get("STOP", "")
FK, FQ, FA, FC, FB = 70*MB, 70*MB + 4096, 70*MB + 8192, 70*MB + 16384, 70*MB + 32768
SQK = int(os.environ.get("SQK", "3"))
STAG = int(os.environ.get("STAG", "1"))
QSPREAD = int(os.environ.get("QSPREAD", "1"))
PF1 = int(os.environ.get("PF1", "1")); PF2 = int(os.environ.get("PF2", "10"))
QSCALE = math.log2(math.e) / math.sqrt(128.0)
import struct
def fbits(x): return "0x%08x" % struct.unpack("<I", struct.pack("<f", x))[0]

sCKV, sWKV, sWS, sBX, sBW, sAX, sWQ, sWO, sBWO, sOUT, sDBG = 8, 12, 16, 20, 24, 28, 32, 36, 40, 44, 48
sX, sJ, sWV, sT, sT2, sTa, sTw, sM4, sM2 = 52, 53, 54, 55, 56, 57, 58, 59, 60
sOffA, sOffW, sOutKV, sOffBA, sOffBW, sOutB, sSt = 61, 62, 63, 4, 5, 66, 67
sOffX, sOffQW, sH, sG, sRow0, sJL, sREM, sNB = 68, 69, 70, 71, 72, 73, 74, 75
sSlot, sDOff, sDIdx, sDLim, sDBase, sTHR, sDM0 = 76, 77, 78, 79, 80, 81, 82
sNON = 84
sU0, sU1, sU2, sU3 = 86, 87, 88, 89
sM = 90
sFK, sFQ, sISV, sPF = 94, 95, 83, 6
sSTAMP = 96
vL16, vTID, vSTAMP = 240, 241, 255
T0, T1, T2, T3 = 242, 243, 244, 245

class Stamp:
    def __init__(self, P): self.P = P; self.n = 0
    def __call__(self, real=False, idx=None):
        if not PROF: return
        if idx is not None: self.n = idx
        P = self.P
        P.raw(f"{'s_memrealtime' if real else 's_memtime'} {s(sSTAMP,2)}"); P("s_waitcnt lgkmcnt(0)")
        P.raw(f"v_writelane_b32 {v(vSTAMP)}, {s(sSTAMP)}, {self.n}")
        self.n += 1
    def flush(self):
        if not PROF: return
        P = self.P
        if os.environ.get("DBGOUT"):
            P.raw(f"v_readlane_b32 s3, {v(vSTAMP)}, 0"); P.raw("s_not_b32 s3, s3"); P.raw(f"v_mov_b32 {v(T0)}, s3"); P.raw(f"v_mov_b32 {v(T1)}, s96"); P.raw(f"v_mov_b32 {v(T2)}, 0")
            P.raw("s_mov_b64 exec, 1")
            P.raw(f"buffer_atomic_umax {v(T0)}, {v(T2)}, {s(sDBG,4)}, 0 offen offset:8")
            P.raw(f"buffer_atomic_umax {v(T1)}, {v(T2)}, {s(sDBG,4)}, 0 offen offset:12")
            P.raw("s_mov_b64 exec, -1")
            P.raw(f"s_cmp_lg_u32 s2, {os.environ['DBGOUT']}"); P.raw("s_cbranch_scc1 L_nodbg"); P.raw(f"s_cmp_lg_u32 {s(sWV)}, 0"); P.raw("s_cbranch_scc1 L_nodbg")
            P.raw(f"v_readlane_b32 s3, {v(vSTAMP)}, 1"); P.raw("s_nop 3"); P.raw(f"v_subrev_u32 {v(T0)}, s3, {v(vSTAMP)}")
            P.raw(f"v_lshrrev_b32 {v(T1)}, 2, {v(vL16)}"); P.raw("s_mov_b64 exec, 0x3ffc"); P.raw("s_nop 1")
            P.raw(f"buffer_store_dword {v(T0)}, {v(T1)}, {s(sDBG,4)}, 0 offen offset:8")
            P.raw("s_mov_b64 exec, -1")
            P.raw("L_nodbg:")
            return
        P.raw(f"s_lshl_b32 s3, s2, 3"); P.raw(f"s_add_u32 s3, s3, {s(sWV)}"); P.raw("s_lshl_b32 s3, s3, 8")
        P.raw(f"s_add_u32 s3, s3, {PROFOFF}")
        P.raw(f"v_lshrrev_b32 {v(T0)}, 2, {v(vL16)}"); P.raw("s_nop 1")
        P.raw(f"buffer_store_dword {v(vSTAMP)}, {v(T0)}, {s(sWS,4)}, s3 offen")

def bfe(P, dst, off, n): P(f"v_bfe_u32 {v(dst)}, {v(vTID)}, {off}, {n}")

def act_voff(P, dst, i, stride):
    bfe(P, T0, 4, 2)
    if i % 2: P(f"v_xor_b32 {v(T0)}, 4, {v(T0)}")
    bfe(P, T1, 0, 3); P(f"v_xor_b32 {v(T0)}, {v(T0)}, {v(T1)}"); P(f"v_lshlrev_b32 {v(T0)}, 4, {v(T0)}")
    bfe(P, T1, 3, 3)
    P(f"v_mul_u32_u24 {v(T1)}, {stride}, {v(T1)}")
    P(f"v_add_u32 {v(T0)}, {v(T0)}, {v(T1)}")
    P(f"v_add_u32 {v(dst)}, {8*i*stride - i*1024}, {v(T0)}")
def w256_voff(P, dst, i, stride):
    bfe(P, T0, 4, 2); bfe(P, T1, 2, 2)
    P(f"v_xor_b32 {v(T1)}, {v(T1)}, {v(T0)}"); P(f"v_lshlrev_b32 {v(T1)}, 6, {v(T1)}")
    bfe(P, T2, 0, 2); P(f"v_lshl_add_u32 {v(T1)}, {v(T2)}, 4, {v(T1)}")
    P(f"v_mul_u32_u24 {v(T0)}, {stride}, {v(T0)}")
    P(f"v_add_u32 {v(T1)}, {v(T1)}, {v(T0)}")
    P(f"v_add_u32 {v(dst)}, {4*i*stride - i*1024}, {v(T1)}")
def w512_voff(P, dst, i, stride_log):
    bfe(P, T2, 5, 1)
    P(f"v_add_u32 {v(T0)}, {2*i}, {v(T2)}")
    bfe(P, T1, 2, 3); P(f"v_xor_b32 {v(T1)}, {v(T1)}, {v(T0)}"); P(f"v_lshlrev_b32 {v(T1)}, 6, {v(T1)}")
    bfe(P, T0, 0, 2); P(f"v_lshl_add_u32 {v(T1)}, {v(T0)}, 4, {v(T1)}")
    P(f"v_lshl_add_u32 {v(T1)}, {v(T2)}, {stride_log}, {v(T1)}")
    P(f"v_add_u32 {v(dst)}, {(2*i << stride_log) - i*1024}, {v(T1)}")
def act_raddr(P, dst, ks, sbase):
    bfe(P, T0, 5, 1); P(f"v_add_u32 {v(T0)}, {2*ks}, {v(T0)}"); bfe(P, T1, 1, 3)
    P(f"v_xor_b32 {v(T0)}, {v(T0)}, {v(T1)}"); P(f"v_lshlrev_b32 {v(T0)}, 4, {v(T0)}")
    bfe(P, T1, 0, 5); P(f"v_lshl_add_u32 {v(T0)}, {v(T1)}, 7, {v(T0)}")
    P(f"v_add_u32 {v(dst)}, {sbase}, {v(T0)}")
def w_raddr(P, dst, unit, rowlog, base):
    bfe(P, T0, 2, 2); P(f"v_xor_b32 {v(T1)}, {unit}, {v(T0)}"); P(f"v_lshlrev_b32 {v(T1)}, 6, {v(T1)}")
    bfe(P, T2, 5, 1); P(f"v_lshl_add_u32 {v(T0)}, {v(T2)}, 3, {v(T0)}"); P(f"v_lshl_add_u32 {v(T1)}, {v(T0)}, {rowlog}, {v(T1)}")
    bfe(P, T0, 4, 1); P(f"v_lshl_add_u32 {v(T1)}, {v(T0)}, 5, {v(T1)}")
    bfe(P, T0, 0, 2); P(f"v_lshl_add_u32 {v(T1)}, {v(T0)}, 3, {v(T1)}")
    P(f"v_add_u32 {v(dst)}, {base}, {v(T1)}")

def gen(P, name):
    kernel_start(P, name, 256)
    SP = Stamp(P)
    P(f"s_load_dwordx16 s[64:79], s[0:1], 0"); P(f"s_load_dwordx8 s[80:87], s[0:1], 64")
    P(f"v_mov_b32 {v(vTID)}, v0")
    P(f"v_lshrrev_b32 v1, 6, v0")
    P(f"s_and_b32 {s(sX)}, s2, 7"); P(f"s_lshr_b32 {s(sJ)}, s2, 3")
    P(f"v_readfirstlane_b32 {s(sWV)}, v1")
    P(f"v_and_b32 v1, 63, v0"); P(f"v_lshlrev_b32 {v(vL16)}, 4, v1")
    vA, vA2, vW, voffA, voffW, voffBA, voffBW, vBA, vBW, vBAc, vBWc = 10, 14, 18, 20, 24, 26, 28, 32, 36, 37, 41
    voffX, voffQW, vXr, vQWr, vXc = 10, 14, 16, 24, 0
    vPF = 60
    for i in range(4): act_voff(P, voffA + i, i, 1024)
    for i in range(2): w512_voff(P, voffW + i, i, 13)
    sMT, sNT, sH0 = sU2, sU3, 3
    P(f"s_and_b32 {s(sMT)}, {s(sJ)}, 7"); P(f"s_lshr_b32 {s(sNT)}, {s(sJ)}, 3")
    P(f"s_lshl_b32 {s(sM4)}, {s(sWV)}, 12"); P(f"s_lshl_b32 {s(sM2)}, {s(sWV)}, 11")
    P(f"s_and_b32 {s(sH0)}, {s(sNT)}, 1"); P(f"s_lshl_b32 {s(sH0)}, {s(sH0)}, 1"); P(f"s_lshl_b32 {s(sT2)}, {s(sX)}, 2"); P(f"s_add_u32 {s(sH0)}, {s(sH0)}, {s(sT2)}")
    P(f"s_lshl_b32 {s(sOffW)}, {s(sH0)}, 8"); P(f"s_lshl_b32 {s(sT2)}, {s(sWV)}, 15"); P(f"s_add_u32 {s(sOffW)}, {s(sOffW)}, {s(sT2)}")
    P(f"s_lshl_b32 {s(sOffA)}, {s(sMT)}, 18"); P(f"s_add_u32 {s(sOffA)}, {s(sOffA)}, {s(sT2)}")
    P("s_waitcnt lgkmcnt(0)")
    SP(True); SP()
    make_srd(P, sCKV, 66, SZ["A_ckv"])
    P(f"s_cmp_ge_u32 {s(sNT)}, 2")
    P(f"s_cselect_b32 {s(sWKV)}, s72, s70"); P(f"s_cselect_b32 {s(sWKV+1)}, s73, s71")
    P(f"s_mov_b32 {s(sWKV+2)}, {SZ['A_wuk']}"); P(f"s_mov_b32 {s(sWKV+3)}, 0x20000")

    ASLOT = [0, 32768, 65536]; WSLOT = [98304 + 16384*i for i in range(4)]
    BSLOT = [65536, 0, 98304, 32768, 131072]
    XSLOT = [65536, 0, 32768, 131072]; QSLOT = [98304, 114688]
    def dma(voff, srd, soff_reg, soff_base, soff_add, m0base, m0add, part, tag):
        P(f"s_add_u32 m0, {s(m0base)}, {m0add}")
        P(f"s_add_u32 {s(soff_reg)}, {s(soff_base)}, {soff_add}")
        for i in part: P(f"buffer_load_dwordx4 {v(voff+i)}, {s(srd,4)}, {s(soff_reg)} offen offset:{i*1024} lds", tag)
    def dma_act(st, part=range(4)): dma(voffA, sCKV, sTa, sOffA, st*128, sM4, ASLOT[st%3], part, ("A", st))
    def dma_w(h): dma(voffW, sWKV, sTw, sOffW, h*32*8192, sM2, WSLOT[h%4], range(2), ("W", h))
    def dma_b(st, half=None):
        if half != 1: dma(voffBA, sBX, sTa, sOffBA, st*128, sM2, BSLOT[st%5], range(2), ("B", st))
        if half != 0: dma(voffBW, sBW, sTw, sOffBW, st*64*3840, sM2, BSLOT[st%5]+16384, range(2), ("B", st))
    def dma_x(st, part=range(4)): dma(voffX, sAX, sTa, sOffX, st*128, sM4, XSLOT[st%4], part, ("X", st))
    def dma_qw(st, part=range(2)): dma(voffQW, sWQ, sTw, sOffQW, st*64*8192, sM2, QSLOT[st%2], part, ("Q", st))
    dma_w(0); dma_act(0)
    P("s_barrier")
    dma_w(1)
    P(f"s_and_b32 {s(sT)}, {s(sWV)}, 1"); P(f"s_lshl_b32 {s(sT2)}, {s(sT)}, 14")
    for ks in range(4): act_raddr(P, vA + ks, ks, s(sT2))
    P(f"s_and_b32 {s(sT)}, {s(sWV)}, 6")
    for cb in range(2):
        P(f"s_add_u32 {s(sT2)}, {s(sT)}, {cb}")
        w_raddr(P, vW + cb, s(sT2), 9, 98304)
    dma_act(1)
    def record(fn):
        nonlocal P
        PM = P; P = Prog(); P.auto = False
        fn()
        txt = [i.text for i in P.ins]; P = PM
        ch = []
        for x in txt:
            if x.startswith("s_cselect"): ch[-1].append(x)
            else: ch.append([x])
        return ch
    sCB, sTB = 64, 65
    def setup1():
        for ks in range(4): P(f"v_add_u32 {v(vA2+ks)}, 0x10000, {v(vA+ks)}")
        make_srd(P, sWS, 86, SZ["ws"]); make_srd(P, sBX, 76, SZ["B_x"]); make_srd(P, sBW, 78, SZ["B_wqkv"])
        make_srd(P, sAX, 64, SZ["A_x"]); make_srd(P, sWQ, 68, SZ["A_wq"]); make_srd(P, sWO, 74, SZ["A_wo"])
        make_srd(P, sBWO, 80, SZ["B_wo"]); make_srd(P, sOUT, 82, SZ["out"]); make_srd(P, sDBG, 84, SZ["dbg"])
        P.raw("; NONCE")
        P(f"s_min_u32 {s(sT)}, {s(sJ)}, 29"); P(f"s_and_b32 {s(sT2)}, {s(sX)}, 1"); P(f"s_mul_i32 {s(sT2)}, {s(sT2)}, 30"); P(f"s_add_u32 {s(sT)}, {s(sT)}, {s(sT2)}")
        P(f"s_lshr_b32 {s(sCB)}, {s(sT)}, 2"); P(f"s_and_b32 {s(sTB)}, {s(sT)}, 3")
        P(f"s_lshr_b32 {s(sT2)}, {s(sX)}, 1"); P(f"s_lshl_b32 {s(sT2)}, {s(sT2)}, 2"); P(f"s_add_u32 {s(sTB)}, {s(sTB)}, {s(sT2)}")
        P(f"s_lshl_b32 {s(sT)}, {s(sTB)}, 3"); P(f"s_add_u32 {s(sT)}, {s(sT)}, {s(sWV)}"); P(f"s_mul_i32 {s(sOffBA)}, {s(sT)}, {16*1280}")
        P(f"s_mul_i32 {s(sOffBW)}, {s(sWV)}, {8*3840}"); P(f"s_lshl_b32 {s(sT)}, {s(sCB)}, 8"); P(f"s_add_u32 {s(sOffBW)}, {s(sOffBW)}, {s(sT)}")
        P(f"s_and_b32 {s(sT2)}, {s(sWV)}, 1"); P(f"s_lshl_b32 {s(sT)}, {s(sTB)}, 1"); P(f"s_add_u32 {s(sT)}, {s(sT)}, {s(sT2)}"); P(f"s_mul_i32 {s(sOutB)}, {s(sT)}, {2*120*1024}")
        P(f"s_lshr_b32 {s(sT2)}, {s(sWV)}, 1"); P(f"s_lshl_b32 {s(sT)}, {s(sCB)}, 2"); P(f"s_add_u32 {s(sT)}, {s(sT)}, {s(sT2)}"); P(f"s_lshl_b32 {s(sT)}, {s(sT)}, 11")
        P(f"s_add_u32 {s(sOutB)}, {s(sOutB)}, {s(sT)}"); P(f"s_add_u32 {s(sOutB)}, {s(sOutB)}, {QKV}")
        P(f"s_lshl_b32 {s(sFQ)}, {s(sTB)}, 7"); P(f"s_lshl_b32 {s(sT)}, {s(sCB)}, 3"); P(f"s_add_u32 {s(sFQ)}, {s(sFQ)}, {s(sT)}"); P(f"s_add_u32 {s(sFQ)}, {s(sFQ)}, {FQ}")
        P(f"s_lshl_b32 {s(sFK)}, {s(sH0)}, 6"); P(f"s_lshr_b32 {s(sT2)}, {s(sNT)}, 1"); P(f"s_lshl_b32 {s(sT2)}, {s(sT2)}, 3"); P(f"s_add_u32 {s(sT2)}, {s(sT2)}, {s(sMT)}")
        P(f"s_lshl_b32 {s(sT2)}, {s(sT2)}, 3"); P(f"s_add_u32 {s(sFK)}, {s(sFK)}, {s(sT2)}"); P(f"s_add_u32 {s(sFK)}, {s(sFK)}, {FK}")
        P(f"s_lshr_b32 {s(sT2)}, {s(sWV)}, 2"); P(f"s_add_u32 {s(sT)}, {s(sH0)}, {s(sT2)}"); P(f"s_lshl_b32 {s(sOutKV)}, {s(sT)}, 19")
        P(f"s_lshl_b32 {s(sT)}, {s(sMT)}, 16"); P(f"s_add_u32 {s(sOutKV)}, {s(sOutKV)}, {s(sT)}")
        P(f"s_and_b32 {s(sT)}, {s(sWV)}, 1"); P(f"s_lshl_b32 {s(sT)}, {s(sT)}, 15"); P(f"s_add_u32 {s(sOutKV)}, {s(sOutKV)}, {s(sT)}")
        P(f"s_and_b32 {s(sT)}, {s(sWV)}, 2"); P(f"s_lshl_b32 {s(sT)}, {s(sT)}, 11"); P(f"s_add_u32 {s(sOutKV)}, {s(sOutKV)}, {s(sT)}")
        P(f"s_lshr_b32 {s(sT)}, {s(sNT)}, 1"); P(f"s_lshl_b32 {s(sT)}, {s(sT)}, 24"); P(f"s_add_u32 {s(sOutKV)}, {s(sOutKV)}, {s(sT)}")
        P(f"s_and_b32 {s(sH)}, {s(sJ)}, 3"); P(f"s_lshl_b32 {s(sT)}, {s(sX)}, 2"); P(f"s_add_u32 {s(sH)}, {s(sH)}, {s(sT)}")
        P(f"s_lshr_b32 {s(sG)}, {s(sJ)}, 2")
        P(f"s_lshl_b32 {s(sT)}, {s(sG)}, 2"); P(f"s_add_u32 {s(sT)}, {s(sT)}, {s(sWV)}")
        P(f"s_sub_u32 {s(sT2)}, 63, {s(sT)}"); P(f"s_sub_u32 {s(sT)}, {s(sT)}, 4")
        P(f"s_cmp_lt_u32 {s(sWV)}, 4"); P(f"s_cselect_b32 {s(sJL)}, {s(sT2)}, {s(sT)}")
        P(f"s_lshl_b32 {s(sRow0)}, {s(sJL)}, 5")
        P(f"s_mul_i32 {s(sOffX)}, {s(sRow0)}, 1280")
        P(f"s_lshl_b32 {s(sOffQW)}, {s(sH)}, 8"); P(f"s_lshl_b32 {s(sT)}, {s(sWV)}, 16"); P(f"s_add_u32 {s(sOffQW)}, {s(sOffQW)}, {s(sT)}")
        for i in range(2): act_voff(P, voffBA + i, i, 1280)
        for i in range(2): w256_voff(P, voffBW + i, i, 3840)
        P(f"s_and_b32 {s(sT)}, {s(sWV)}, 1"); P(f"s_lshl_b32 {s(sT)}, {s(sT)}, 13")
        for ks in range(4): act_raddr(P, vBA + ks, ks, s(sT))
        P(f"s_lshr_b32 {s(sT2)}, {s(sWV)}, 1")
        w_raddr(P, vBW, s(sT2), 8, 16384)
    def setup2():
        for i in range(4): act_voff(P, voffX + i, i, 1280)
        for i in range(2): w256_voff(P, voffQW + i, i, 8192)
        P(f"s_lshr_b32 {s(sT)}, {s(sWV)}, 2"); P(f"s_lshl_b32 {s(sT)}, {s(sT)}, 1")
        for cb in range(2):
            P(f"s_add_u32 {s(sT2)}, {s(sT)}, {cb}")
            w_raddr(P, vQWr + cb, s(sT2), 8, 98304)
        P(f"s_xor_b32 {s(sT)}, {s(sM4)}, 0x4000")
        for ks in range(4):
            act_raddr(P, vXr + ks, ks, s(sM4))
            P(f"v_add_u32 {v(vXr+4+ks)}, {s(sT)}, {v(T0)}")
    ch1, ch2 = record(setup1), record(setup2)
    chunks = []
    lab_id = [0]
    def nonce():
        lab_id[0] += 1; lab = f"{name}_nonon{lab_id[0]}"
        P(f"s_cmp_lg_u32 {s(sWV)}, 4"); P(f"s_cbranch_scc1 {lab}")
        P.raw(f"s_memrealtime {s(sNON,2)}"); P("s_waitcnt lgkmcnt(0)")
        P(f"v_mov_b32 v4, {s(sNON)}"); P(f"v_mov_b32 v5, {s(sNON+1)}"); P("v_mov_b32 v6, 0"); P("v_mov_b32 v7, 0"); P("v_mov_b32 v8, 0")
        P("s_mov_b64 exec, 1")
        P.raw(f"buffer_atomic_cmpswap_x2 v[4:7], v8, {s(sDBG,4)}, 0 offen")
        P("s_mov_b64 exec, -1")
        P.label(lab)
    def emit_chunks(n):
        for _ in range(n):
            if not chunks: return
            c = chunks.pop(0)
            if c[0] == "; NONCE":
                st = P.state(); nonce(); P.set_state(st)
            else:
                for x in c: P(x)
    def publish(sreg, lab):
        P(f"s_cmp_lg_u32 {s(sWV)}, 4"); P(f"s_cbranch_scc1 {lab}")
        P(f"v_mov_b32 {v(T0)}, {s(sNON)}"); P(f"v_mov_b32 {v(T1)}, {s(sNON+1)}"); P(f"v_mov_b32 {v(T2)}, 0")
        P("s_mov_b64 exec, 1")
        for r in (sreg if isinstance(sreg, list) else [sreg]):
            P.raw(f"buffer_store_dwordx2 {v(T0,2)}, {v(T2)}, {s(sWS,4)}, {s(r)} offen sc1")
        P("s_mov_b64 exec, -1")
        P.label(lab)
    def pf(srd, idx_kind, mul, add, xmul=0):
        if idx_kind == "xcd": P(f"s_lshl_b32 {s(sPF)}, {s(sJ)}, 3")
        else: P(f"s_lshl_b32 {s(sPF)}, s2, 3")
        P(f"s_add_u32 {s(sPF)}, {s(sPF)}, {s(sWV)}"); P(f"s_mul_i32 {s(sPF)}, {s(sPF)}, {mul}")
        if callable(add): add()
        elif add: P(f"s_add_u32 {s(sPF)}, {s(sPF)}, {add}")
        P.raw(f"buffer_load_dwordx4 {v(vPF,4)}, {v(vL16)}, {s(srd,4)}, {s(sPF)} offen"); P.vq.append((set(), "pf"))
    def addx(shift, mul, const):
        def f():
            if shift == "lo": P(f"s_and_b32 {s(7)}, {s(sX)}, 1")
            else: P(f"s_lshr_b32 {s(7)}, {s(sX)}, {shift}")
            P(f"s_mul_i32 {s(7)}, {s(7)}, {mul}"); P(f"s_add_u32 {s(sPF)}, {s(sPF)}, {s(7)}")
            if const: P(f"s_add_u32 {s(sPF)}, {s(sPF)}, {const}")
        return f
    pf_xm = [lambda i=i: pf(sAX, "chip", 1280, i*1024) for i in range(2)]
    pf_xl = [lambda i=i: pf(sAX, "xcd", 10240, i*1024) for i in range(10)]
    pf_wq = [lambda i=i: pf(sWQ, "xcd", 3*8192, addx(0, 1024, i*8192)) for i in range(3)]
    pf_bx = [lambda i=i: pf(sBX, "xcd", 2560, addx(1, 512*1280, i*1024)) for i in range(3)]
    pf_bw = [lambda i=i, c=c: pf(sBW, "xcd", 3*3840, addx("lo", 1792, i*3840 + c*1024)) for i in range(3) for c in range(2)]
    pf_wo = [lambda i=i: pf(sWO, "chip", 2560, i*1024) for i in range(3)] + [lambda: pf(sBWO, "chip", 1024, 0)]
    PFS = {"o": pf_wo, "m": pf_xm, "x": pf_xl, "q": pf_wq, "b": pf_bx + pf_bw}
    pf_sched = {}
    for item in os.environ.get("PFS", "o6,m10,b14,q23").split(","):
        if item:
            for i, f in enumerate(PFS[item[0]]): pf_sched.setdefault(int(item[1:]) + i, []).append(f)

    ACC = 64; FR = [192, 216]
    def fA(set_, tb): return FR[set_] + 4*tb
    def fW(set_, cb): return FR[set_] + 16 + 4*cb
    def reads(q):
        st, ks = q // 4, q % 4; h, kh = q // 2, q % 2; se = q % 2
        sl = st % 3
        def rA(tb):
            base = vA2 if sl == 2 else vA; off = (ASLOT[sl] if sl < 2 else 0) + tb*4096
            return f"ds_read_b128 {v(fA(se,tb),4)}, {v(base+ks)} offset:{off}"
        def rW(cb, i):
            return f"ds_read_b64_tr_b16 {v(fW(se,cb)+2*i,2)}, {v(vW+cb)} offset:{(h%4)*16384 + (16*kh+4*i)*512}"
        return [rW(0,0), rW(0,1), rA(0), rW(1,0), rW(1,1), rA(1), rA(2), rA(3)]
    P.wait_tag(lambda t: t in (("A", 0), ("W", 0))); P("s_barrier")
    SP()
    for r in reads(0): P(r)
    st0 = P.state()
    P(f"s_cmp_ge_u32 {s(sNT)}, 2"); P(f"s_cbranch_scc1 {name}_V")
    for isV in (0, 1):
        if isV: P.label(f"{name}_V"); P.set_state(st0)
        chunks[:] = list(ch1)
        for q in range(32):
            se = q % 2; hs = q // 2
            mf = []
            for tb in range(4):
                for cb in range(2):
                    d = v(ACC + (tb*2+cb)*16, 16); c = "0" if q == 0 else d
                    x, y = (fA(se,tb), fW(se,cb)) if isV else (fW(se,cb), fA(se,tb))
                    mf.append(f"v_mfma_f32_32x32x16_bf16 {d}, {v(x,4)}, {v(y,4)}, {c}")
            fill = []
            if q % 2 == 1 and q < 31:
                def sync(hs=hs):
                    P.wait_tag(lambda t: t == ("W", hs+1) or t == ("A", (hs+1)//2))
                    P("s_barrier")
                fill.append(sync)
            if q < 31: fill += reads(q + 1)
            if q == 0: fill.insert(2, lambda: dma_w(2)); fill.insert(6, lambda: dma_w(3))
            if q == 1: fill.insert(3, lambda: dma_act(2, [0, 1])); fill.insert(7, lambda: dma_act(2, [2, 3]))
            if q % 2 == 1:
                if 1 <= hs <= 12: fill.insert(3, lambda hs=hs: dma_w(hs + 3))
                sa = hs // 2 + 2
                if hs >= 2 and sa <= 7: fill.insert(6, lambda hs=hs, sa=sa: dma_act(sa, [0,1] if hs % 2 == 0 else [2,3]))
                if hs == 12: fill.insert(6, lambda: dma_b(0))
                if hs == 14: fill.insert(3, lambda: dma_b(1))
                if hs == 15: fill.insert(1, lambda: dma_b(2))
            if q == 12:
                def nl():
                    P(f"v_mov_b32 {v(T3)}, 0"); P(f"buffer_load_dwordx2 {v(8,2)}, {v(T3)}, {s(sDBG,4)}, 0 offen sc1")
                fill.append(nl)
            if q == 20: fill.append(lambda: (P(f"v_readfirstlane_b32 {s(sNON)}, v8"), P(f"v_readfirstlane_b32 {s(sNON+1)}, v9")))
            for f in pf_sched.get(q, []): fill.insert(2, f)
            if q < 6:
                for i in range(8): fill.insert(min(len(fill), 1 + 2*i), lambda: emit_chunks(5))
            interleave(P, mf, fill)
            if q == 5: assert not chunks, len(chunks)
        if not isV: P(f"s_branch {name}_J")
    P.label(f"{name}_J")
    SP()
    BFR = [192 + 12*i for i in range(4)]
    BACC = 128
    BPK = 44
    def baddr(st):
        return [f"v_add_u32 {v(vBAc+ks)}, {BSLOT[st%5]}, {v(vBA+ks)}" for ks in range(4)] + [f"v_add_u32 {v(vBWc)}, {BSLOT[st%5]}, {v(vBW)}"]
    def breads(q):
        ks = q % 4; se = q % 4
        return [f"ds_read_b64_tr_b16 {v(BFR[se]+8,2)}, {v(vBWc)} offset:{(16*ks)*256}",
                f"ds_read_b64_tr_b16 {v(BFR[se]+10,2)}, {v(vBWc)} offset:{(16*ks+4)*256}",
                f"ds_read_b128 {v(BFR[se],4)}, {v(vBAc+ks)} offset:0",
                f"ds_read_b128 {v(BFR[se]+4,4)}, {v(vBAc+ks)} offset:4096"]
    def kvstore(n):
        if os.environ.get("X_NOST"): return
        tb, r = n // 4, n % 4
        P(f"s_add_u32 {s(sSt)}, {s(sOutKV)}, {tb*8192}")
        P(f"buffer_store_dwordx4 {v(ACC+n*4,4)}, {v(vL16)}, {s(sWS,4)}, {s(sSt)} offen offset:{r*1024} {ST}", ("S", n))
    def bstore(n):
        tb, c = n // 2, n % 2
        P(f"s_add_u32 {s(sSt)}, {s(sOutB)}, {tb*120*1024}")
        P(f"buffer_store_dwordx4 {v(BPK+tb*8+4*c,4)}, {v(vL16)}, {s(sWS,4)}, {s(sSt)} offen offset:{c*1024} {ST}", ("S", 16+n))
    for x in baddr(0): P(x)
    P.wait_tag(lambda t: t == ("B", 0)); P("s_barrier")
    for r in breads(0) + breads(1): P(r)
    dma_b(3)
    for i in range(32): P(f"v_cvt_pk_bf16_f32 {v(ACC+i)}, {v(ACC+2*i)}, {v(ACC+2*i+1)}")
    dma_b(4)
    for i in range(32, 64): P(f"v_cvt_pk_bf16_f32 {v(ACC+i)}, {v(ACC+2*i)}, {v(ACC+2*i+1)}")
    late = [lambda n=n: kvstore(n) for n in range(16)]
    SB = [int(c) for c in os.environ.get("SB", "1111111111")]
    SQ = [int(c) for c in os.environ.get("SQ", "2222200000")]
    PUB = int(os.environ.get("PUB", "7"))
    chunks[:] = list(ch2)
    NQ = 40
    for q in range(NQ):
        st, ks = q // 4, q % 4; se = q % 4
        mf = []
        for tb in range(2):
            d = v(BACC + tb*16, 16); c = "0" if q == 0 else d
            mf.append(f"v_mfma_f32_32x32x16_bf16 {d}, {v(BFR[se]+8,4)}, {v(BFR[se]+4*tb,4)}, {c}")
        fill = []
        if ks == 2:
            def sync(st=st):
                if st < 9: P.wait_tag(lambda t: t == ("B", st+1))
                P.wait_lds_all(); P("s_barrier")
                if st < 9:
                    for x in baddr(st+1): P(x)
            fill.append(sync)
        if q + 2 < NQ: fill += breads(q + 2)
        if q < 16: fill.insert(len(fill)//2, lambda: emit_chunks(4)); fill.append(lambda: emit_chunks(4))
        def bl(st):
            if st <= 4: return [lambda: dma_b(st + 5, 0), lambda: dma_b(st + 5, 1)]
            if st == 7: return [lambda: dma_qw(0), lambda: dma_qw(1)]
            xs = {5: 0, 6: 1, 8: 2, 9: 3}[st]
            return [lambda: dma_x(xs, [0, 1]), lambda: dma_x(xs, [2, 3])]
        if ks >= 2: fill.append(bl(st)[ks - 2])
        if ks == 0:
            for _ in range(SB[st]):
                if late: fill.append(late.pop(0))
        for f in pf_sched.get(100 + q, []): fill.append(f)
        interleave(P, mf, fill)
        if q == 15: assert not chunks, len(chunks)
    SP()
    QACC = 128; QFR = [192, 208, 224]
    def xaddr(st): return [f"v_add_u32 {v(vXc+i)}, {XSLOT[st%4]}, {v(vXr+i)}" for i in range(8)]
    def qreads(q):
        st, ks = q // 4, q % 4; se = q % 3
        def w(cb, i): return f"ds_read_b64_tr_b16 {v(QFR[se]+4*cb+2*i,2)}, {v(vQWr+cb)} offset:{(st%2)*16384 + (16*ks+4*i)*256}"
        def x(r): return f"ds_read_b128 {v(QFR[se]+8+4*r,4)}, {v(vXc+4*r+ks)} offset:0"
        return [w(0,0), w(0,1), x(0), w(1,0), w(1,1), x(1)]
    for x in xaddr(0): P(x)
    P.wait_tag(lambda t: t in (("X", 0), ("Q", 0))); P("s_barrier")
    for r in qreads(0) + qreads(1): P(r)
    for tb in range(2):
        for i in range(8): P(f"v_cvt_pk_bf16_f32 {v(BPK+tb*8+i)}, {v(BACC+tb*16+2*i)}, {v(BACC+tb*16+2*i+1)}")
    for tb in range(2):
        b = BPK + tb*8
        for (x, y) in ((0,2),(1,3),(4,6),(5,7)): P(f"v_permlane32_swap_b32 {v(b+x)}, {v(b+y)}")
    late += [lambda n=n: bstore(n) for n in range(4)]
    for q in range(40):
        st, ks = q // 4, q % 4; se = q % 3
        mf = []
        for r in range(2):
            for cb in range(2):
                d = v(QACC + (r*2+cb)*16, 16); c = "0" if q == 0 else d
                mf.append(f"v_mfma_f32_32x32x16_bf16 {d}, {v(QFR[se]+4*cb,4)}, {v(QFR[se]+8+4*r,4)}, {c}")
        fill = []
        if ks == 2:
            def sync(st=st):
                if st < 9: P.wait_tag(lambda t: t in (("X", st+1), ("Q", st+1)))
                if st == PUB: P.wait_tag(lambda t: t is not None and t[0] == "S")
                P.wait_lds_all()
                if st < 9 or st == PUB: P("s_barrier")
                if st == PUB: publish([sFK, sFQ], f"{name}_pubk")
                if st < 9:
                    for x in xaddr(st+1): P(x)
            fill.append(sync)
        if q + 2 < 40: fill += qreads(q + 2)
        vm = []
        if ks == 2 and st + 2 <= 9: vm += [lambda i=i, st=st: dma_qw(st + 2, [i]) for i in range(2)]
        if ks in (3, 0):
            s0 = st if ks == 3 else st - 1
            if s0 >= 0 and s0 + 4 <= 9: vm += [lambda i=i, s0=s0: dma_x(s0 + 4, [i]) for i in ([0, 1] if ks == 3 else [2, 3])]
        if ks == SQK:
            for _ in range(SQ[st]):
                if late: vm.append(late.pop(0))
        base = 1 if ks == 2 else 0
        for i, x in enumerate(vm): fill.insert(min(len(fill), base + 1 + i * 3), x)
        interleave(P, mf, fill)
    assert not late
    SP()
    def poll(soff, nfl, lab):
        P(f"s_mov_b32 {s(sT2)}, {int(os.environ.get('POLLMAX', '0x40000'), 0)}")
        P(f"v_lshrrev_b32 {v(T3)}, 1, {v(vL16)}")
        if nfl < 64: P(f"s_mov_b64 exec, {hex((1 << nfl) - 1)}")
        P.label(lab)
        P(f"buffer_load_dwordx2 {v(246,2)}, {v(T3)}, {s(sWS,4)}, {s(soff)} offen sc1")
        P("s_waitcnt vmcnt(0)")
        for i in range(2): P(f"v_xor_b32 {v(246+i)}, {s(sNON + i)}, {v(246+i)}")
        P(f"v_or_b32 {v(246)}, {v(246)}, {v(247)}")
        P(f"v_cmp_ne_u32 vcc, 0, {v(246)}")
        P(f"s_cbranch_vccz {lab}_ok")
        P("s_sleep 4")
        P(f"s_sub_u32 {s(sT2)}, {s(sT2)}, 1"); P(f"s_cmp_lg_u32 {s(sT2)}, 0"); P(f"s_cbranch_scc1 {lab}")
        P.label(lab + "_ok")
        if nfl < 64: P("s_mov_b64 exec, -1")
    ctx = dict(P=P, SP=SP, name=name, poll=poll, publish=publish)
    import attn
    attn.gen_attn(dict(ctx, early_only=True))()
    P(f"s_mov_b32 {s(sT)}, {fbits(QSCALE)}")
    for i in list(range(32, 64)) + list(range(32)): P(f"v_mul_f32 {v(QACC+i)}, {s(sT)}, {v(QACC+i)}")
    for i in range(16): P(f"v_cvt_pk_bf16_f32 {v(32+i)}, {v(QACC+32+2*i)}, {v(QACC+32+2*i+1)}")
    P(f"s_add_u32 {s(sT)}, {s(sM4)}, {131072}"); P(f"v_add_u32 {v(T0)}, {s(sT)}, {v(vL16)}")
    for i in range(4): P(f"ds_write_b128 {v(T0)}, {v(32+4*i,4)} offset:{i*1024}")
    for i in range(16): P(f"v_cvt_pk_bf16_f32 {v(i)}, {v(QACC+2*i)}, {v(QACC+2*i+1)}")
    P(f"v_xor_b32 {v(T0)}, 0x4000, {v(T0)}")
    P("s_waitcnt lgkmcnt(0)"); P("s_barrier")
    for i in range(4): P(f"ds_read_b128 {v(16+4*i,4)}, {v(T0)} offset:{i*1024}")
    attn.gen_attn(ctx)
    SP(); SP(True); SP.flush()
    P.label(f"{name}_end"); P("s_endpgm")
    return kernel_desc(name, 256, sgpr=100)
```

```python
import re

def v(i, n=1): return f"v{i}" if n == 1 else f"v[{i}:{i+n-1}]"
def a(i, n=1): return f"a{i}" if n == 1 else f"a[{i}:{i+n-1}]"
def s(i, n=1): return f"s{i}" if n == 1 else f"s[{i}:{i+n-1}]"

_reg_re = re.compile(r"^(-|\|)?(abs\()?([vas])(\d+|\[(\d+):(\d+)\])\)?\|?$")
def parse_reg(tok):
    tok = tok.strip()
    if tok in ("vcc", "exec"): return [(tok, 0), (tok, 1)]
    if tok in ("vcc_lo", "exec_lo"): return [(tok[:-3], 0)]
    if tok in ("vcc_hi", "exec_hi"): return [(tok[:-3], 1)]
    if tok == "m0": return [("m0", 0)]
    m = _reg_re.match(tok)
    if not m: return []
    f = m.group(3)
    if m.group(5) is not None:
        return [(f, i) for i in range(int(m.group(5)), int(m.group(6)) + 1)]
    return [(f, int(m.group(4)))]

def split_ops(rest):
    ops, depth, cur = [], 0, ""
    for ch in rest:
        if ch in "[(": depth += 1
        if ch in "])": depth -= 1
        if ch == "," and depth == 0:
            ops.append(cur.strip()); cur = ""
        else: cur += ch
    if cur.strip(): ops.append(cur.strip())
    return ops

TRANS = ("v_exp_f32", "v_log_f32", "v_rcp_f32", "v_rsq_f32", "v_sqrt_f32", "v_sin_f32", "v_cos_f32")

class Ins:
    __slots__ = ("text", "mn", "ops", "mods", "defs", "uses", "kind", "tag", "label", "target")
    def __init__(self, text, tag=None):
        self.text = text; self.tag = tag; self.label = None; self.target = None
        t = text.split(";")[0].strip()
        if t.endswith(":"):
            self.kind = "label"; self.label = t[:-1]; self.mn = ""; self.ops = []; self.defs = []; self.uses = []; self.mods = ""
            return
        if t.startswith(".") or not t:
            self.kind = "dir"; self.mn = ""; self.ops = []; self.defs = []; self.uses = []; self.mods = ""
            return
        parts = t.split(None, 1)
        mn = parts[0]; rest = parts[1] if len(parts) > 1 else ""
        mn = re.sub(r"_(e32|e64)$", "", mn)
        self.mn = mn
        ops = split_ops(rest)
        mods = ""
        if ops:
            last = ops[-1].split(None, 1)
            if len(last) > 1 and not mn.startswith("s_waitcnt"):
                ops[-1] = last[0]; mods = last[1]
        self.ops = ops; self.mods = mods
        R = [parse_reg(o) for o in ops]
        defs, uses = [], []
        if mn.startswith("v_mfma"):
            self.kind = "mfma"; defs = R[0]; uses = R[1] + R[2] + R[3]
        elif mn.startswith("ds_read") or mn == "ds_bpermute_b32" or mn == "ds_swizzle_b32":
            self.kind = "ds"; defs = R[0]; uses = sum(R[1:], [])
        elif mn.startswith("ds_write"):
            self.kind = "ds"; uses = sum(R, [])
        elif mn.startswith("buffer_load") or mn.startswith("global_load"):
            self.kind = "vmem"
            if " lds" in " " + mods or mn.startswith("global_load_lds"):
                uses = sum(R, []) + [("m0", 0)]
            else:
                defs = R[0]; uses = sum(R[1:], [])
        elif mn.startswith("buffer_store") or mn.startswith("global_store") or mn.startswith("buffer_atomic") or mn.startswith("global_atomic"):
            self.kind = "vmem"; uses = sum(R, [])
            if "atomic" in mn and "sc0" in mods: defs = R[0]
        elif mn.startswith("buffer_wbl2") or mn.startswith("buffer_inv"):
            self.kind = "vmem"
        elif mn.startswith("s_load") or mn.startswith("s_memtime") or mn.startswith("s_memrealtime") or mn.startswith("s_buffer_load"):
            self.kind = "smem"; defs = R[0]; uses = sum(R[1:], [])
        elif mn.startswith("s_cbranch") or mn == "s_branch":
            self.kind = "branch"; self.target = ops[0]
            if "vcc" in mn: uses = [("vcc", 0), ("vcc", 1)]
            if "exec" in mn: uses = [("exec", 0), ("exec", 1)]
            if "scc" in mn: uses = [("scc", 0)]
        elif mn in ("s_waitcnt", "s_nop", "s_barrier", "s_endpgm", "s_setprio", "s_sleep"):
            self.kind = "ctl"
        elif mn.startswith("s_cmp") or mn.startswith("s_bitcmp"):
            self.kind = "salu"; uses = sum(R, []); defs = [("scc", 0)]
        elif mn.startswith("s_"):
            self.kind = "salu"; defs = R[0] + [("scc", 0)]; uses = sum(R[1:], [])
            if mn in ("s_mov_b32", "s_mov_b64", "s_mul_i32", "s_movk_i32", "s_mul_hi_u32", "s_getreg_b32"): defs = R[0]
            if mn.startswith("s_cselect"): defs = R[0]; uses += [("scc", 0)]
            if mn in ("s_addc_u32", "s_subb_u32"): uses += [("scc", 0)]
            if mn in ("s_addk_i32", "s_mulk_i32"): uses += R[0]
            if "saveexec" in mn: defs += [("exec", 0), ("exec", 1)]; uses += [("exec", 0), ("exec", 1)]
        elif mn.startswith("v_"):
            self.kind = "valu"
            if mn.startswith("v_cmp"):
                defs = R[0]; uses = sum(R[1:], [])
                if mn.startswith("v_cmpx"): defs = defs + [("exec", 0), ("exec", 1)]
            elif mn.startswith("v_permlane") and "swap" in mn:
                defs = R[0] + R[1]; uses = R[0] + R[1]
            elif mn in ("v_add_co_u32", "v_sub_co_u32", "v_addc_co_u32", "v_subb_co_u32"):
                defs = R[0] + R[1]; uses = sum(R[2:], [])
            elif mn in ("v_fmac_f32", "v_dot2c_f32_bf16", "v_writelane_b32"):
                defs = R[0]; uses = sum(R, [])
            else:
                defs = R[0]; uses = sum(R[1:], [])
                if mn == "v_cndmask_b32" and len(ops) == 3: uses += [("vcc", 0), ("vcc", 1)]
            if "_dpp" in mn or "row_" in mods or "quad_perm" in mods: uses += R[0]
        else:
            raise ValueError("unknown instruction: " + text)
        self.defs = defs; self.uses = uses
    def passes(self):
        if "32x32x16" in self.mn: return 8
        if "16x16x32" in self.mn: return 4
        raise ValueError(self.mn)
    def states(self):
        if self.kind in ("label", "dir"): return 0
        if self.mn == "s_nop": return int(self.ops[0]) + 1
        return 1

class Prog:
    def __init__(self):
        self.ins = []
        self.lq = []
        self.vq = []
        self.auto = True
    def raw(self, text, tag=None):
        i = Ins(text, tag); self.ins.append(i); return i
    def _wait(self, vm=None, lg=None):
        parts = []
        if vm is not None: parts.append(f"vmcnt({vm})"); self.vq = self.vq[len(self.vq)-vm:] if vm else []
        if lg is not None: parts.append(f"lgkmcnt({lg})"); self.lq = self.lq[len(self.lq)-lg:] if lg else []
        self.ins.append(Ins("s_waitcnt " + " ".join(parts)))
    def need(self, regs):
        regs = set(regs)
        lg = vm = None
        for k in range(len(self.lq) - 1, -1, -1):
            if self.lq[k] & regs:
                lg = min(15, len(self.lq) - 1 - k); break
        for k in range(len(self.vq) - 1, -1, -1):
            if self.vq[k][0] & regs:
                vm = min(63, len(self.vq) - 1 - k); break
        if lg is not None or vm is not None: self._wait(vm, lg)
    def needr(self, *opstrs):
        regs = []
        for o in opstrs: regs += parse_reg(o)
        self.need(regs)
    def wait_tag(self, pred):
        for k in range(len(self.vq) - 1, -1, -1):
            tg = self.vq[k][1]
            if any(pred(x) for x in tg) if isinstance(tg, list) else pred(tg):
                self._wait(vm=min(63, len(self.vq) - 1 - k)); return
    def wait_lds_all(self):
        if self.lq: self._wait(lg=0)
    def wait_all(self):
        self._wait(0, 0)
    def __call__(self, text, tag=None):
        i = Ins(text, tag)
        if self.auto and i.kind not in ("label", "dir"):
            self.need(i.uses + i.defs)
        self.ins.append(i)
        if i.kind == "ds": self.lq.append(set(i.defs))
        elif i.kind == "vmem": self.vq.append((set(i.defs), tag))
        elif i.kind == "smem": self.lq.append(set(i.defs)); self.lq.append(set(i.defs))
        elif i.mn == "s_waitcnt":
            m = re.search(r"vmcnt\((\d+)\)", text)
            if m:
                n = int(m.group(1)); self.vq = self.vq[len(self.vq)-n:] if n and len(self.vq) > n else ([] if not n else self.vq)
            m = re.search(r"lgkmcnt\((\d+)\)", text)
            if m:
                n = int(m.group(1)); self.lq = self.lq[len(self.lq)-n:] if n and len(self.lq) > n else ([] if not n else self.lq)
        return i
    def label(self, name): self.ins.append(Ins(name + ":"))
    def state(self): return ([set(x) for x in self.lq], [(set(x), t) for x, t in self.vq])
    def set_state(self, st): self.lq = [set(x) for x in st[0]]; self.vq = [(set(x), t) for x, t in st[1]]
    def text(self):
        out = []
        for i in self.ins:
            out.append(i.text if i.kind in ("label", "dir") else "    " + i.text)
        return "\n".join(out) + "\n"

def merge_states(a, b):
    def merge(qa, qb, getd, gett):
        n = max(len(qa), len(qb))
        out = [[set(), []] for _ in range(n)]
        best = {}
        for q in (qa, qb):
            for k, e in enumerate(q):
                d = len(q) - 1 - k
                keys = [("r", r) for r in getd(e)]
                tg = gett(e)
                keys += [("t", x) for x in (tg if isinstance(tg, list) else [tg]) if x is not None]
                for key in keys:
                    best.setdefault((id(q), key), d); best[(id(q), key)] = min(best[(id(q), key)], d)
        fin = {}
        for (qi, key), d in best.items(): fin[key] = min(fin.get(key, 1 << 30), d)
        for key, d in fin.items():
            if key[0] == "r": out[n - 1 - d][0].add(key[1])
            else: out[n - 1 - d][1].append(key[1])
        return out
    lq = [x[0] for x in merge(a[0], b[0], lambda e: e, lambda e: None)]
    vq = [(x[0], x[1]) for x in merge(a[1], b[1], lambda e: e[0], lambda e: e[1])]
    return (lq, vq)

def _isv(r): return r[0] in ("v", "a")
def _iss(r): return r[0] in ("s", "vcc")

def required(p, c):
    pd, pu, cd, cu = set(p.defs), set(p.uses), set(c.defs), set(c.uses)
    req = 0
    raw = pd & cu
    if p.kind == "valu":
        vraw = {r for r in raw if _isv(r)}
        sraw = {r for r in raw if _iss(r)}
        if c.kind == "mfma" and vraw: req = max(req, 2)
        if c.kind == "valu":
            if p.mn in TRANS and vraw and c.mn not in TRANS: req = max(req, 1)
            if p.mn in TRANS and vraw and c.mn in TRANS: req = max(req, 1)
            if c.mn.startswith("v_permlane") and vraw: req = max(req, 2)
            if (c.mn.startswith("v_readfirstlane") or c.mn.startswith("v_readlane")) and vraw: req = max(req, 1)
            if ("_dpp" in c.mn or "row_" in c.mods or "quad_perm" in c.mods) and vraw: req = max(req, 2)
            if sraw: req = max(req, 2)
            if (c.mn.startswith("v_readlane") or c.mn.startswith("v_writelane")) and sraw: req = max(req, 4)
        if p.mn.startswith("v_dot2"):
            if c.kind == "valu" and c.mn == p.mn:
                ab = set(parse_reg(c.ops[1])) | set(parse_reg(c.ops[2]))
                if pd & ab: req = max(req, 3)
            elif pd & (cu | cd): req = max(req, 3)
        if c.kind == "vmem" and sraw: req = max(req, 5)
        if c.kind == "salu" and sraw: req = max(req, 1)
        if ("exec", 0) in pd:
            if c.kind == "mfma": req = max(req, 4)
            if c.kind == "valu" and (c.mn.startswith("v_readfirstlane") or c.mn.startswith("v_permlane") or "_dpp" in c.mn): req = max(req, 5)
    if p.kind == "salu":
        if ("m0", 0) in pd and c.kind == "vmem" and ("m0", 0) in cu: req = max(req, 1)
    if p.kind == "vmem" and ("store_dwordx4" in p.mn or "store_dwordx3" in p.mn):
        data = set(parse_reg(p.ops[0] if p.mn.startswith("buffer") else p.ops[1]))
        if data & cd: req = max(req, 2 if c.kind == "valu" else 1)
    if p.kind == "mfma":
        n = p.passes()
        D = pd
        if c.kind == "mfma":
            cA = set(parse_reg(c.ops[1])) | set(parse_reg(c.ops[2])); cC = set(parse_reg(c.ops[3]))
            if D & cA: req = max(req, {4: 8, 8: 12}[n])
            if D & cC:
                if not (cC == D and c.passes() == n): req = max(req, {4: 6, 8: 10}[n])
            if (D & cd) and not (D & cC): req = max(req, {4: 8, 8: 12}[n])
        elif c.kind in ("valu", "vmem", "ds"):
            if D & (cu | cd): req = max(req, {4: 8, 8: 12}[n])
        pC = set(parse_reg(p.ops[3]))
        if c.kind == "valu" and (pC & cd): req = max(req, {4: 3, 8: 7}[n])
    return req

def check_hazards(ins, maxd=20):
    labels = {i.label: k for k, i in enumerate(ins) if i.kind == "label"}
    preds = {k: [] for k in range(len(ins))}
    for k, i in enumerate(ins):
        if i.kind == "branch":
            if i.target in labels: preds[labels[i.target]].append(k)
            if i.mn != "s_branch" and k + 1 < len(ins): preds[k + 1].append(k)
        elif i.mn == "s_endpgm": pass
        elif k + 1 < len(ins): preds[k + 1].append(k)
    viol = []
    for k, c in enumerate(ins):
        if c.kind in ("label", "dir", "ctl"): continue
        seen = {}
        stack = [(p, 0) for p in preds[k]]
        while stack:
            j, d = stack.pop()
            if j in seen and seen[j] <= d: continue
            seen[j] = d
            p = ins[j]
            if p.kind not in ("label", "dir", "ctl"):
                r = required(p, c)
                if r > d: viol.append((j, k, r, d))
            nd = d + p.states()
            if nd < maxd:
                for q in preds[j]: stack.append((q, nd))
    return viol

def fix_hazards(prog):
    n = 0
    while True:
        viol = check_hazards(prog.ins)
        if not viol: return n
        need = {}
        for j, k, r, d in viol: need[k] = max(need.get(k, 0), r - d)
        chosen = []
        for k in sorted(need):
            if not chosen or k - chosen[-1] > 20: chosen.append(k)
        for k in reversed(chosen):
            x = need[k]
            while x > 0:
                m = min(x, 16); prog.ins.insert(k, Ins(f"s_nop {m-1}")); x -= m; n += 1
```

```python
from aux_part import *

vO, vS, vP, vNM, vF, vT = 32, 96, 128, 144, 160, 192
vLsum, vLS, vCur, vD, vMX, vMX2, vNI = 200, 201, 202, 203, 204, 205, 206
vRdFull, vWrFree, vRdFree, vWrFull, vFV, vCV, vFullV = 248, 249, 250, 251, 252, 253, 254
sCNT, sSEC, sNeed, sLd, sU = sREM, sNB, sOffA, sOffW, sOutKV
PD = int(os.environ.get("PD", "6"))
WAIT2 = int(os.environ.get("WAIT2", "1"))
SPINMAX = int(os.environ.get("SPINMAX", "0x100000"), 0)
E = os.environ.get
X_NOVALU, X_NOLDS, X_PRIO = E("X_NOVALU"), E("X_NOLDS"), E("X_PRIO", "lo")
SLEEP = int(E("SLEEP", "1"))
DGAP = E("DGAP", "s_nop_15").replace("_", " ", 1).replace("_", " ").replace("s sleep", "s_sleep").replace("s nop", "s_nop")
RG0 = int(E("RG0", "1")); RSP = int(E("RSP", "1")); BEARLY = 0; BMID = int(E("BMID", "0"))
EPI2 = int(E("EPI2", "1")); NLF = int(E("NLF", "3"))
CAP = float(E("CAP", "24"))

def gen_attn(ctx):
    P, SP, name = ctx["P"], ctx["SP"], ctx["name"]
    def vq(role, i): return 4*i if role == "hi" else 4*((i + 4) % 8)
    def dma_ops(first=False):
        ops = []
        def pre():
            P(f"s_lshl_b32 {s(sDOff)}, {s(sDIdx)}, 13"); P(f"s_add_u32 {s(sDOff)}, {s(sDOff)}, {s(sDBase)}")
            P(f"s_cmp_le_u32 {s(sDIdx)}, {s(sDLim)}"); P(f"s_cselect_b32 {s(sDOff)}, {s(sDOff)}, {OOB}")
            if first:
                P(f"s_cmp_eq_u32 {s(sWV)}, 6"); P(f"s_cselect_b32 {s(sDOff)}, {s(sU0)}, {s(sDOff)}")
            P(f"s_add_u32 m0, {s(sSlot)}, {s(sDM0)}")
            P(f"s_add_u32 {s(sDIdx)}, {s(sDIdx)}, 2")
        def ld(i):
            if E("X_NODMA"): return
            P(f"buffer_load_dwordx4 {v(vL16)}, {s(sWS,4)}, {s(sDOff)} offen offset:{(i%4)*1024} {LD} lds", ("kv", dma_ops.n))
        def mid(): P(f"s_add_u32 m0, m0, 4096"); P(f"s_add_u32 {s(sDOff)}, {s(sDOff)}, 4096")
        def post():
            P(f"s_add_u32 {s(sSlot)}, {s(sSlot)}, 32768"); P(f"s_and_b32 {s(sSlot)}, {s(sSlot)}, {NSLOT*32768-1}")
            P(f"s_add_u32 {s(sLd)}, {s(sLd)}, 1"); dma_ops.n += 1
        ops.append(lambda: (pre(), ld(0)))
        for i in range(1, 8): ops.append((lambda i=i: (mid(), ld(i))) if i == 4 else (lambda i=i: ld(i)))
        ops.append(post)
        return ops
    dma_ops.n = 0
    def dma_stage(first=False, gap=None):
        for i, f in enumerate(dma_ops(first)):
            f()
            if gap and i < 7: P(gap)

    sOK = sAM
    vFK = 112
    def fk_off():
        P(f"s_lshr_b32 {s(sT)}, {s(sH)}, 1"); P(f"s_lshl_b32 {s(sT)}, {s(sT)}, 7"); P(f"s_add_u32 {s(sT)}, {s(sT)}, {FK}")
    def lo_only(lab, fn):
        P(f"s_cmp_lt_u32 {s(sWV)}, 4"); P(f"s_cbranch_scc1 {lab}")
        st = P.state(); fn(); P.label(lab); P.set_state(st)
    def early_req():
        def f():
            fk_off()
            P(f"v_lshrrev_b32 {v(T3)}, 1, {v(vL16)}"); P(f"v_and_b32 {v(T3)}, 0x78, {v(T3)}")
            P(f"buffer_load_dwordx2 {v(vFK,2)}, {v(T3)}, {s(sWS,4)}, {s(sT)} offen sc1")
            P(f"s_lshl_b32 {s(sDBase)}, {s(sH)}, 19")
            P(f"s_sub_u32 {s(sT)}, {s(sWV)}, 4"); P(f"s_lshl_b32 {s(sDM0)}, {s(sT)}, 13")
            P(f"s_and_b32 {s(sDIdx)}, {s(sT)}, 1"); P(f"s_add_u32 {s(sDIdx)}, {s(sDIdx)}, 1")
            P(f"s_cmp_ge_u32 {s(sT)}, 2"); P(f"s_cselect_b32 {s(sT2)}, 2, 0"); P(f"s_sub_u32 {s(sDIdx)}, {s(sDIdx)}, {s(sT2)}")
            P(f"s_cmp_ge_u32 {s(sT)}, 2"); P(f"s_cselect_b32 {s(sT2)}, {VF}, 0")
            P(f"s_mov_b32 {s(sU0)}, {s(sDBase)}")
            P(f"s_add_u32 {s(sDBase)}, {s(sDBase)}, {s(sT2)}")
            P(f"s_mov_b32 {s(sSlot)}, 32768"); P(f"s_mov_b32 {s(sLd)}, 0")
        P(f"s_lshl_b32 {s(sT)}, {s(sG)}, 2"); P(f"s_sub_u32 {s(sDLim)}, 63, {s(sT)}")
        lo_only(f"{name}_er", f)
    def early_try():
        def f():
            P("s_waitcnt vmcnt(0)")
            P(f"v_xor_b32 {v(vFK)}, {s(sNON)}, {v(vFK)}"); P(f"v_xor_b32 {v(vFK+1)}, {s(sNON+1)}, {v(vFK+1)}"); P(f"v_or_b32 {v(vFK)}, {v(vFK)}, {v(vFK+1)}")
            P(f"v_cmp_ne_u32 vcc, 0, {v(vFK)}"); P(f"s_cbranch_vccnz {name}_et")
            P(f"s_mov_b32 {s(sOK)}, 1")
        lo_only(f"{name}_et", f)
    def early_ops():
        out = []
        for k, f in enumerate(dma_ops(True) + dma_ops()):
            def g(k=k, f=f):
                P(f"s_cmp_eq_u32 {s(sOK)}, 0"); P(f"s_cbranch_scc1 {name}_eo{k}")
                st = P.state(); f(); P.label(f"{name}_eo{k}"); P.set_state(st)
            out.append(g)
        return out
    def early():
        P(f"s_lshr_b32 {s(sU)}, {s(sDLim)}, 1"); P(f"s_add_u32 {s(sU)}, {s(sU)}, 1")
        def f():
            P(f"s_cmp_lg_u32 {s(sLd)}, 0"); P(f"s_cbranch_scc1 {name}_nodma0")
            fk_off(); ctx["poll"](sT, 16, f"{name}_poll1")
            dma_stage(True); dma_stage()
        lo_only(f"{name}_nodma0", f)
    def setup(P):
        P(f"s_mov_b32 {s(sOK)}, 0")
        for i in range(64): P(f"v_mov_b32 {v(vO+i)}, 0")
        P(f"v_lshrrev_b32 {v(T0)}, 2, {v(vL16)}"); P(f"v_add_u32 {v(T0)}, {CT}, {v(T0)}")
        bfe(P, T1, 0, 2); P(f"v_lshl_add_u32 {v(vRdFull)}, {v(T1)}, 8, {v(T0)}")
        bfe(P, T1, 0, 3); P(f"v_lshl_add_u32 {v(vRdFree)}, {v(T1)}, 8, {v(T0)}"); P(f"v_add_u32 {v(vRdFree)}, 1024, {v(vRdFree)}")
        P(f"s_lshl_b32 {s(sT)}, {s(sWV)}, 8"); P(f"v_add_u32 {v(vWrFull)}, {s(sT)}, {v(T0)}")
        P(f"v_add_u32 {v(vWrFree)}, 1024, {v(vWrFull)}"); P(f"v_subrev_u32 {v(vWrFull)}, 1024, {v(vWrFull)}")
        P(f"v_mov_b32 {v(vFV)}, 0"); P(f"v_mov_b32 {v(vFullV)}, 1")
        if PROF: P("s_mov_b32 s98, 0"); P("s_mov_b32 s7, 0"); P("s_mov_b32 s99, 0")
        P(f"s_mov_b32 {s(sTHR)}, {fbits(THR)}"); P(f"s_mov_b32 {s(sNeed)}, 2")
        P(f"s_max_u32 {s(sCNT)}, {s(sJL)}, 1"); P(f"s_sub_u32 {s(sCNT)}, {s(sCNT)}, 1")
        P(f"s_cmp_eq_u32 {s(sJL)}, 0"); P(f"s_cselect_b32 {s(sSEC)}, 1, 0")
    early.req, early.try_, early.setup, early.ops = early_req, early_try, setup, early_ops
    if ctx.get("early_only"): return early

    P(f"s_cmp_lt_u32 {s(sWV)}, 4"); P(f"s_cbranch_scc1 {name}_nodma1")
    st = P.state()
    dma_stage()
    P.label(f"{name}_nodma1")
    P.set_state(st)
    for i in range(8): P(f"v_mov_b32 {v(vP+8+i)}, 0")
    P(f"v_mov_b32 {v(vLsum)}, 0"); P(f"v_add_u32 {v(vCur)}, 0x8000, {v(vL16)}"); P(f"v_mov_b32 {v(vNI)}, 0xff800000")
    bfe(P, T1, 0, 5); bfe(P, T2, 5, 1); P(f"v_lshlrev_b32 {v(T2)}, 2, {v(T2)}"); P(f"v_sub_u32 {v(vD)}, {v(T1)}, {v(T2)}")
    P(f"v_subrev_u32 {v(T0)}, {1024 + 3*256}, {v(vWrFree)}")
    P("s_waitcnt lgkmcnt(0)")
    P(f"s_cmp_lg_u32 {s(sWV)}, 3"); P(f"s_cbranch_scc1 {name}_noinit")
    for i in range(12): P(f"ds_write_b32 {v(T0)}, {v(vFullV if i < 4 else vFV)} offset:{i*256}")
    P.label(f"{name}_noinit")
    P(f"s_waitcnt vmcnt(16) lgkmcnt(0)")
    P("s_barrier")
    SP()
    P.vq = []; P.lq = []
    def mask_nm():
        for r in range(16):
            m = s(sM + 2*(r%2), 2)
            P(f"v_cmp_gt_i32 {m}, {8*(r//4) + r%4}, {v(vD)}")
            P(f"v_cndmask_b32 {v(vNM+r)}, {v(vNM+r)}, {v(vNI)}, {m}")
    for i in range(8): P(f"ds_read_b128 {v(vF+4*i,4)}, {v(vCur)} offset:{16384 + i*1024}")
    P("s_waitcnt lgkmcnt(0)")
    P(f"s_cmp_lt_u32 {s(sWV)}, 4"); P(f"s_cbranch_scc0 {name}_a0lo")
    for role in ("hi", "lo"):
        if role == "lo": P.label(f"{name}_a0lo")
        if X_PRIO == role: P("s_setprio 1")
        if role == "lo":
            P(f"s_cmp_lg_u32 {s(sJL)}, 0"); P(f"s_cbranch_scc1 {name}_nomask0")
            for i in range(16): P(f"v_mov_b32 {v(vNM+i)}, 0")
            mask_nm()
            P(f"v_mfma_f32_32x32x16_bf16 {v(vS,16)}, {v(vF,4)}, {v(vq(role,0),4)}, {v(vNM,16)}")
            P(f"s_branch {name}_mask0j")
            P.label(f"{name}_nomask0")
        for i in range(8):
            P(f"v_mfma_f32_32x32x16_bf16 {v(vS,16)}, {v(vF+4*i,4)}, {v(vq(role,i),4)}, {'0' if i == 0 else v(vS,16)}")
            if role == "lo" and i == 0: P.label(f"{name}_mask0j")
        if role == "hi": P(f"s_branch {name}_a0j")
    P.label(f"{name}_a0j")
    def frag_read(n, par):
        if X_NOLDS and frag_read.loop: return "; none"
        off = (par*8192 + n*1024) if n < 8 else (16384 + par*8192 + (n-8)*1024)
        return f"ds_read_b128 {v(vF+4*(n%8),4)}, {v(vCur)} offset:{off}"
    frag_read.loop = bool(X_NOLDS)
    def rowmax(S):
        P(f"v_max3_f32 {v(vMX)}, {v(S)}, {v(S+1)}, {v(S+2)}")
        for i in range(3, 15, 2): P(f"v_max3_f32 {v(vMX)}, {v(vMX)}, {v(S+i)}, {v(S+i+1)}")
        P(f"v_max_f32 {v(vMX)}, {v(vMX)}, {v(S+15)}")
        P(f"v_mov_b32 {v(vMX2)}, {v(vMX)}")
        P(f"v_permlane32_swap_b32 {v(vMX)}, {v(vMX2)}")
        P(f"v_max_f32 {v(vMX)}, {v(vMX)}, {v(vMX2)}")
    SP()
    for n in range(PD): P(frag_read(n, 0))
    rowmax(vS)
    for i in range(16): P(f"v_sub_f32 {v(vS+i)}, {v(vS+i)}, {v(vMX)}")
    for i in range(16): P(f"v_sub_f32 {v(vNM+i)}, 0, {v(vMX)}")
    sidx = SP.n
    entry = P.state()
    P(f"s_cmp_lt_u32 {s(sWV)}, 4"); P(f"s_cbranch_scc0 {name}_lo_E")

    def softmax_ops(par):
        S = vS + 16*par; PP = vP + 8*par
        ops = []
        for r in range(16):
            ops.append((8, f"v_exp_f32 {v(vT + r%8)}, {v(S+r)}"))
            if r >= 1:
                q = r - 1
                if q == 1: ops.append((4, f"v_add_f32 {v(vLS)}, {v(vT)}, {v(vT+1)}"))
                elif q > 1: ops.append((4, f"v_add_f32 {v(vLS)}, {v(vLS)}, {v(vT + q%8)}"))
                if q % 2 == 1: ops.append((4, f"v_cvt_pk_bf16_f32 {v(PP + q//2)}, {v(vT + (q-1)%8)}, {v(vT + q%8)}"))
        ops.append((4, f"v_cvt_pk_bf16_f32 {v(PP+7)}, {v(vT+6)}, {v(vT+7)}"))
        ops.append((4, f"v_add_f32 {v(vLS)}, {v(vLS)}, {v(vT+7)}"))
        ops.append((4, f"v_cmp_nge_f32 vcc, {s(sTHR)}, {v(vLS)}"))
        return ops
    def check(par, role, kind):
        P(f"s_cbranch_vccnz {name}_{role}_fb{kind}{par}")
        P.label(f"{name}_{role}_fbr{kind}{par}")
        P(f"v_add_f32 {v(vLsum)}, {v(vLsum)}, {v(vLS)}")
    def fallback(par, role, kind):
        S = vS + 16*par; S2 = vS + 16*(1-par)
        P.label(f"{name}_{role}_fb{kind}{par}")
        rowmax(S)
        P(f"v_max_f32 {v(vMX)}, 0, {v(vMX)}")
        P(f"v_sub_f32 {v(vMX2)}, 0, {v(vMX)}"); P(f"v_exp_f32 {v(vMX2)}, {v(vMX2)}")
        for i in range(16): P(f"v_sub_f32 {v(S+i)}, {v(S+i)}, {v(vMX)}")
        for i in range(16): P(f"v_sub_f32 {v(S2+i)}, {v(S2+i)}, {v(vMX)}")
        for i in range(16): P(f"v_sub_f32 {v(vNM+i)}, {v(vNM+i)}, {v(vMX)}")
        for i in range(64): P(f"v_mul_f32 {v(vO+i)}, {v(vMX2)}, {v(vO+i)}")
        P(f"v_mul_f32 {v(vLsum)}, {v(vMX2)}, {v(vLsum)}")
        for c, o in softmax_ops(par)[:-1]: P(o)
        P(f"s_branch {name}_{role}_fbr{kind}{par}")
    spins = []
    def ctl_cmp(sreg): P(f"v_cmp_gt_u32 vcc, {s(sreg)}, {v(vCV)}")
    def ctl_check(addr, sreg, lab, cmp=True):
        if cmp: ctl_cmp(sreg)
        P(f"s_cbranch_vccnz {lab}")
        P.label(lab + "_r")
        spins.append((addr, sreg, lab))
    def emit_spins():
        for addr, sreg, lab in spins:
            P.label(lab)
            if PROF: P.raw(f"s_add_u32 s{98 if addr == vRdFull else 7}, s{98 if addr == vRdFull else 7}, 0x10000")
            P.raw(f"s_mov_b32 {s(sT2)}, {SPINMAX}")
            P.label(lab + "_l")
            if PROF: P.raw(f"s_add_u32 s{98 if addr == vRdFull else 7}, s{98 if addr == vRdFull else 7}, 1")
            P.raw(f"ds_read_b32 {v(vCV)}, {v(addr)}"); P.raw("s_waitcnt lgkmcnt(0)")
            P.raw(f"v_cmp_gt_u32 vcc, {s(sreg)}, {v(vCV)}")
            P.raw(f"s_cbranch_vccz {lab}_r")
            P.raw(f"s_sleep {SLEEP if '_ld' in lab else 1}")
            P.raw(f"s_sub_u32 {s(sT2)}, {s(sT2)}, 1"); P.raw(f"s_cmp_lg_u32 {s(sT2)}, 0"); P.raw(f"s_cbranch_scc1 {lab}_l")
            P.raw(f"s_branch {lab}_r")
        spins.clear()
    def advance():
        P(f"v_add_u32 {v(vCur)}, 0x8000, {v(vCur)}"); P(f"v_and_b32 {v(vCur)}, {NSLOT*32768-1}, {v(vCur)}")
        P(f"s_add_u32 {s(sNeed)}, {s(sNeed)}, 1")
    def free_write():
        P(f"ds_write_b32 {v(vWrFree)}, {v(vFV)}"); P(f"v_add_u32 {v(vFV)}, 1, {v(vFV)}")
    def full_publish(cnt, delta):
        P(f"s_add_u32 {s(sT)}, {s(sLd)}, {delta & 0xffffffff}" if delta else f"s_mov_b32 {s(sT)}, {s(sLd)}")
        P(f"v_mov_b32 {v(vFullV)}, {s(sT)}")
        if callable(cnt): cnt()
        else: P(f"s_waitcnt vmcnt({cnt})")
        P(f"ds_write_b32 {v(vWrFull)}, {v(vFullV)}")
    def mfA(par, i, role):
        S = vS + 16*(1-par)
        return f"v_mfma_f32_32x32x16_bf16 {v(S,16)}, {v(vF+4*i,4)}, {v(vq(role,i),4)}, {v(vNM,16) if i == 0 else v(S,16)}"
    def mfC(par, i):
        db, t = i // 2, i % 2
        return f"v_mfma_f32_32x32x16_bf16 {v(vO+16*db,16)}, {v(vF+4*i,4)}, {v(vP+8*(1-par)+4*t,4)}, {v(vO+16*db,16)}"
    def period(par, role):
        R = f"{name}_{role}"
        ops = [] if X_NOVALU else softmax_ops(par)
        extra = {n: [] for n in range(16)}
        if par == 0:
            extra[0].append((8, free_write))
            if role == "lo":
                extra[1].append((4, lambda: P(f"ds_read_b32 {v(vCV)}, {v(vRdFree)}")))
                extra[4].append((8, lambda: (P(f"s_sub_u32 {s(sTa)}, {s(sLd)}, 3"), ctl_cmp(sTa))))
                extra[5].append((4, lambda: ctl_check(vRdFree, sTa, f"{R}_spF", False)))
                for i, f in enumerate(dma_ops()): extra[6 + i].append((4, f))
        else:
            if role == "lo": extra[0].append((16, lambda: full_publish(8, -1)))
            extra[2].append((4, lambda: P(f"ds_read_b32 {v(vCV)}, {v(vRdFull)}")))
            extra[14-PD].append((4, lambda: ctl_cmp(sNeed)))
            extra[15-PD].append((16, lambda: (ctl_check(vRdFull, sNeed, f"{R}_spU", False), advance())))
        if E("X_NOCHK"): ops = [o for o in ops if "v_cmp" not in o[1]]
        k = 0
        carry = 0.0
        for n in range(16):
            if n % 2 == 0 and WAIT2: P.needr(v(vF+4*(n%8),4), v(vF+4*((n+1)%8),4))
            P(mfA(par, n, role) if n < 8 else mfC(par, n - 8))
            used = 4 + (4 if n % 2 == 1 else 0) + sum(c for c, _ in extra[n])
            m = n + PD
            pre = [f for c, f in extra[n]]
            if par == 1 and n == 15-PD:
                P(frag_read(m, par))
                for f in pre: f()
            else:
                P(frag_read(m, par) if m < 16 else frag_read(m - 16, 1 - par))
                for f in pre: f()
            rem_cost = sum(c for c, _ in ops[k:])
            cap = CAP
            if n == 14: cap = 1e9
            while k < len(ops) and n < 15 and (used + ops[k][0] <= cap + carry or rem_cost > (14 - n) * 18):
                P(ops[k][1]); used += ops[k][0]; rem_cost -= ops[k][0]; k += 1
            carry = 0.0
        assert k == len(ops)
        if E("X_NOCHK"): P.label(f"{name}_{role}_fbrm{par}")
        else: check(par, role, "m")
    def epilogue(role, mid=None):
        P(f"v_mov_b32 {v(vFV)}, {BIG}"); P(f"ds_write_b32 {v(vWrFree)}, {v(vFV)}")
        if mid: mid()
        P(f"v_mov_b32 {v(vMX2)}, {v(vLsum)}")
        P(f"v_permlane32_swap_b32 {v(vLsum)}, {v(vMX2)}")
        P(f"v_add_f32 {v(vLsum)}, {v(vLsum)}, {v(vMX2)}"); P(f"v_rcp_f32 {v(vLsum)}, {v(vLsum)}")
        bfe(P, T0, 4, 1); bfe(P, T1, 0, 4); P(f"v_lshlrev_b32 {v(T1)}, 4, {v(T1)}"); P(f"v_lshl_add_u32 {v(T0)}, {v(T0)}, 10, {v(T1)}")
        bfe(P, T1, 5, 1); P(f"v_lshl_add_u32 {v(vD)}, {v(T1)}, 8, {v(T0)}")
        P(f"s_lshr_b32 {s(sT)}, {s(sRow0)}, 6"); P(f"s_lshl_b32 {s(sT)}, {s(sT)}, 19"); P(f"s_lshl_b32 {s(sT2)}, {s(sH)}, 14"); P(f"s_add_u32 {s(sT)}, {s(sT)}, {s(sT2)}")
        P(f"s_and_b32 {s(sT2)}, {s(sRow0)}, 32"); P(f"s_lshl_b32 {s(sT2)}, {s(sT2)}, 6"); P(f"s_add_u32 {s(sT)}, {s(sT)}, {s(sT2)}")
        P(f"s_add_u32 {s(sSt)}, {s(sT)}, {CTX}")
        for db in range(4):
            if mid and db == 2: mid()
            for i in range(16): P(f"v_mul_f32 {v(vO+16*db+i)}, {v(vLsum)}, {v(vO+16*db+i)}")
            for i in range(8): P(f"v_cvt_pk_bf16_f32 {v(vS+8*db+i)}, {v(vO+16*db+2*i)}, {v(vO+16*db+2*i+1)}")
            for u in range(2): P(f"buffer_store_dwordx4 {v(vS+8*db+4*u,4)}, {v(vD)}, {s(sWS,4)}, {s(sSt)} offen offset:{u*512} {ST}", "ctx")
            if db < 3: P(f"s_add_u32 {s(sSt)}, {s(sSt)}, 4096")
    def wave_flag(fn_off, tag):
        fn_off()
        P(f"v_mov_b32 {v(T0)}, {s(sNON)}"); P(f"v_mov_b32 {v(T1)}, {s(sNON+1)}"); P(f"v_mov_b32 {v(T2)}, 0")
        P.wait_tag(lambda t: t == tag)
        P("s_mov_b64 exec, 1")
        P(f"buffer_store_dwordx2 {v(T0,2)}, {v(T2)}, {s(sWS,4)}, {s(sT)} offen sc1", "flag")
        P("s_mov_b64 exec, -1")
    def ctx_off():
        P(f"s_lshl_b32 {s(sT)}, {s(sJL)}, 8"); P(f"s_lshl_b32 {s(sT2)}, {s(sH)}, 3"); P(f"s_add_u32 {s(sT)}, {s(sT)}, {s(sT2)}"); P(f"s_add_u32 {s(sT)}, {s(sT)}, {FC}")
    def loader_iter(lab):
        P(f"s_cmp_gt_u32 {s(sLd)}, {s(sU)}"); P(f"s_cbranch_scc1 {lab}_skip")
        st = P.state()
        P(f"ds_read_b32 {v(vCV)}, {v(vRdFree)}")
        P(f"s_sub_u32 {s(sTa)}, {s(sLd)}, 3")
        ctl_check(vRdFree, sTa, lab)
        dma_stage(gap=DGAP)
        n = dma_ops.n
        full_publish(lambda: P.wait_tag(lambda t: isinstance(t, tuple) and t[0] == "kv" and t[1] <= n - 2), -1)
        st2 = P.state()
        P.label(f"{lab}_skip")
        P.set_state(merge_states(st, st2))
    for role in ("hi", "lo"):
        R = f"{name}_{role}"
        P.set_state(entry)
        for par in (0, 1):
            P.label(f"{R}_{'EO'[par]}")
            P(f"s_sub_u32 {s(sCNT)}, {s(sCNT)}, 1"); P(f"s_cbranch_scc1 {R}_sp{par}")
            P.label(f"{R}_go{par}")
            period(par, role)
            st = P.state()
            assert X_NOLDS or [sorted(x) for x in st[0]] == [sorted(x) for x in entry[0]], (st[0], entry[0])
        P(f"s_branch {R}_E")
        for par in (0, 1):
            P.set_state(entry); fallback(par, role, "m")
        for par in (0, 1):
            P.set_state(entry)
            P.label(f"{R}_sp{par}")
            P(f"s_cmp_lg_u32 {s(sSEC)}, 0"); P(f"s_cbranch_scc1 {R}_tail{par}")
            P(f"s_mov_b32 {s(sSEC)}, 1"); P(f"s_mov_b32 {s(sCNT)}, 0")
            mask_nm()
            P(f"s_branch {R}_go{par}")
        for par in (0, 1):
            P.set_state(entry)
            P.label(f"{R}_tail{par}")
            P("s_waitcnt lgkmcnt(0)")
            if par == 0: free_write()
            for n in range(8, 16): P(frag_read(n, par))
            if par == 1: P(f"ds_read_b32 {v(vCV)}, {v(vRdFull)}")
            if role == "lo" and par == 1: full_publish(8, -1)
            interleave(P, [mfC(par, i) for i in range(8)], [o for c, o in softmax_ops(par)])
            check(par, role, "t")
            if par == 1:
                ctl_check(vRdFull, sNeed, f"{R}_spT"); advance()
            for n in range(8, 16): P(frag_read(n, 1 - par))
            for i in range(8): P(mfC(1 - par, i))
            P(f"s_branch {R}_epi")
            fallback(par, role, "t")
        emit_spins()
        P.label(f"{R}_epi")
        P.lq = []
        dma_ops.n = 10
        P.vq = [(set(), ("kv", 8))]*8 + [(set(), ("kv", 9))]*8 if role == "lo" else []
        SP(idx=sidx)
        if X_PRIO == role and E("PRIO0", "1") == "1": P("s_setprio 0")
        it = [0]
        def li(n=1):
            for _ in range(n):
                it[0] += 1; loader_iter(f"{R}_ld{it[0]}")
        epilogue(role, li if (role == "lo" and EPI2) else None)
        SP()
        if role == "hi":
            wave_flag(ctx_off, "ctx")
            P(f"s_branch {name}_att_done")
        else:
            P(f"s_sub_u32 {s(sAR)}, {s(sWV)}, 4"); P(f"s_mul_i32 {s(sAR)}, {s(sAR)}, {AREA}"); P(f"s_add_u32 {s(sAR)}, {s(sAR)}, {SCR}")
            bc = battn_chunks(ctx, 0)
            bc[0]()
            li(NLF)
            wave_flag(ctx_off, "ctx")
            P(f"s_lshl_b32 {s(sAW)}, s2, 2"); P(f"s_add_u32 {s(sAW)}, {s(sAW)}, {s(sWV)}"); P(f"s_sub_u32 {s(sAW)}, {s(sAW)}, {4 + 128*RG0}")
            def skip_if(gmin, lab, body):
                P(f"s_sub_u32 {s(sT)}, {s(sG)}, {RG0}"); P(f"s_cmp_ge_u32 {s(sT)}, {gmin}"); P(f"s_cbranch_scc1 {lab}")
                st = P.state(); n0 = dma_ops.n
                body()
                P.label(lab)
                dma_ops.n += 10
                P.vq = [(set(), ("kv", dma_ops.n - 2))]*8 + [(set(), ("kv", dma_ops.n - 1))]*8
                P.lq = []
            def do_retile():
                r = [retile_chunks(ctx, i) for i in range(3)]
                r[0][0](); li(RSP)
                r[0][1](); r[1][0](); li(RSP)
                r[1][1](); r[2][0](); li(RSP)
                r[2][1](); li(2)
                def aux_off():
                    P(f"s_lshl_b32 {s(sT)}, {s(sAW)}, 3"); P(f"s_add_u32 {s(sT)}, {s(sT)}, {FA}")
                wave_flag(aux_off, "aux")
                li(1)
            P.needr(v(0, 4))
            skip_if(AUXG, f"{R}_sk1", do_retile)
            bc[1]()
            if BMID:
                li(1); bc[2](); li(1); bc[3](); li(1); bc[4](); li(1); bc[5]()
            P(f"s_sub_u32 {s(sAM)}, {s(sU)}, {BEARLY}")
            P.label(f"{R}_rest")
            P(f"s_cmp_gt_u32 {s(sLd)}, {s(sAM)}"); P(f"s_cbranch_scc1 {R}_fin")
            P(f"ds_read_b32 {v(vCV)}, {v(vRdFree)}")
            P(f"s_sub_u32 {s(sTa)}, {s(sLd)}, 3")
            ctl_check(vRdFree, sTa, f"{R}_ldr")
            if PROF: P.raw("s_memtime s[96:97]"); P.raw("s_waitcnt lgkmcnt(0)"); P.raw("s_sub_u32 s99, s99, s96")
            dma_stage(gap=DGAP)
            if PROF and E("TDMA"): P.raw("s_memtime s[96:97]"); P.raw("s_waitcnt lgkmcnt(0)"); P.raw("s_add_u32 s99, s99, s96")
            full_publish(8, -1)
            if PROF and not E("TDMA"): P.raw("s_memtime s[96:97]"); P.raw("s_waitcnt lgkmcnt(0)"); P.raw("s_add_u32 s99, s99, s96")
            P(f"s_branch {R}_rest")
            P.label(f"{R}_fin")
            full_publish(0, 0); P.vq = []
            P(f"s_mov_b32 {s(sT)}, {FA}")
            for i in range(4): P(f"buffer_load_dwordx4 {v(16+4*i,4)}, {v(vL16)}, {s(sWS,4)}, {s(sT)} offen offset:{i*1024} sc1")
            if not BMID:
                for f in bc[2:]: f()
            P(f"s_mov_b32 {s(sT)}, {FA}"); P(f"s_mov_b32 {s(sT2)}, {int(E('POLLMAX', '0x40000'), 0)}")
            P.needr(v(16, 16))
            st = P.state()
            P(f"s_branch {name}_pollA_c")
            P.label(f"{name}_pollA")
            for i in range(4): P(f"buffer_load_dwordx4 {v(16+4*i,4)}, {v(vL16)}, {s(sWS,4)}, {s(sT)} offen offset:{i*1024} sc1")
            P("s_waitcnt vmcnt(0)")
            P.label(f"{name}_pollA_c")
            for i in range(16): P(f"v_xor_b32 {v(16+i)}, {s(sNON + i%2)}, {v(16+i)}")
            for i in range(1, 15, 2): P(f"v_or3_b32 v16, v16, {v(16+i)}, {v(17+i)}")
            P("v_or_b32 v16, v16, v31")
            P("v_cmp_ne_u32 vcc, 0, v16"); P(f"s_cbranch_vccz {name}_pollA_ok")
            P("s_sleep 4"); P(f"s_sub_u32 {s(sT2)}, {s(sT2)}, 1"); P(f"s_cmp_lg_u32 {s(sT2)}, 0"); P(f"s_cbranch_scc1 {name}_pollA")
            P.label(f"{name}_pollA_ok")
            P.set_state(st)
            ctx["lo_state"] = P.state()
            def b_off():
                P(f"s_lshl_b32 {s(sT)}, s2, 2"); P(f"s_add_u32 {s(sT)}, {s(sT)}, {s(sWV)}"); P(f"s_lshl_b32 {s(sT)}, {s(sT)}, 3"); P(f"s_add_u32 {s(sT)}, {s(sT)}, {FB - 32}")
            ctx["bflag"] = lambda: wave_flag(b_off, "aux")
            P(f"s_branch {name}_att_done")
            emit_spins()
    P.label(f"{name}_att_done")
    if PROF:
        P.raw(f"v_writelane_b32 {v(vSTAMP)}, s98, 20"); P.raw(f"v_writelane_b32 {v(vSTAMP)}, s7, 21"); P.raw(f"v_writelane_b32 {v(vSTAMP)}, s99, 22")
    P.vq = []; P.lq = []
    SP()
    import outp
    outp.gen_out(ctx)
```

```python
from common import *
import math
ST = os.environ.get("ST", "sc1")
LD = os.environ.get("LD", "sc1")
STOP = os.environ.get("STOP", "")
FK, FQ, FA, FC, FB = 70*MB, 70*MB + 4096, 70*MB + 8192, 70*MB + 16384, 70*MB + 32768
HIDMA = int(os.environ.get("HIDMA", "1"))
SQK = int(os.environ.get("SQK", "3"))
STAG = int(os.environ.get("STAG", "1"))
QSPREAD = int(os.environ.get("QSPREAD", "1"))
PF1 = int(os.environ.get("PF1", "1")); PF2 = int(os.environ.get("PF2", "10"))
QSCALE = math.log2(math.e) / math.sqrt(128.0)
import struct
def fbits(x): return "0x%08x" % struct.unpack("<I", struct.pack("<f", x))[0]

sCKV, sWKV, sWS, sBX, sBW, sAX, sWQ, sWO, sBWO, sOUT, sDBG = 8, 12, 16, 20, 24, 28, 32, 36, 40, 44, 48
sX, sJ, sWV, sT, sT2, sTa, sTw, sM4, sM2 = 52, 53, 54, 55, 56, 57, 58, 59, 60
sOffA, sOffW, sOutKV, sOffBA, sOffBW, sOutB, sSt = 61, 62, 63, 4, 5, 66, 67
sOffX, sOffQW, sH, sG, sRow0, sJL, sREM, sNB = 68, 69, 70, 71, 72, 73, 74, 75
sSlot, sDOff, sDIdx, sDLim, sDBase, sTHR, sDM0 = 76, 77, 78, 79, 80, 81, 82
sNON = 84
sU0, sU1, sU2, sU3 = 86, 87, 88, 89
sM = 90
sFK, sFQ, sISV, sPF = 94, 95, 83, 6
sSTAMP = 96
vL16, vTID, vSTAMP = 240, 241, 255
T0, T1, T2, T3 = 242, 243, 244, 245

class Stamp:
    def __init__(self, P): self.P = P; self.n = 0
    def __call__(self, real=False, idx=None):
        if not PROF: return
        if idx is not None: self.n = idx
        if os.environ.get("RT"): real = True
        P = self.P
        P.raw(f"{'s_memrealtime' if real else 's_memtime'} {s(sSTAMP,2)}"); P("s_waitcnt lgkmcnt(0)")
        P.raw(f"v_writelane_b32 {v(vSTAMP)}, {s(sSTAMP)}, {self.n}")
        if os.environ.get("STOPAT") == str(self.n): P.raw("s_waitcnt vmcnt(0)"); P.raw("s_branch L_stop")
        self.n += 1
    def flush(self):
        if not PROF: return
        P = self.P
        if os.environ.get("DBGOUT"):
            P.raw(f"s_cmp_lg_u32 s2, {os.environ['DBGOUT']}"); P.raw("s_cbranch_scc1 L_nodbg"); P.raw(f"s_cmp_lg_u32 {s(sWV)}, 0"); P.raw("s_cbranch_scc1 L_nodbg")
            P.raw(f"v_readlane_b32 s3, {v(vSTAMP)}, 0"); P.raw("s_nop 3"); P.raw(f"v_subrev_u32 {v(T0)}, s3, {v(vSTAMP)}")
            P.raw(f"v_lshrrev_b32 {v(T1)}, 2, {v(vL16)}"); P.raw("s_mov_b64 exec, 0x3ffe"); P.raw("s_nop 1")
            P.raw(f"buffer_store_dword {v(T0)}, {v(T1)}, {s(sDBG,4)}, 0 offen offset:4")
            P.raw("s_mov_b64 exec, -1")
            P.raw("L_nodbg:")
            return
        P.raw(f"s_lshl_b32 s3, s2, 3"); P.raw(f"s_add_u32 s3, s3, {s(sWV)}"); P.raw("s_lshl_b32 s3, s3, 8")
        P.raw(f"s_add_u32 s3, s3, {PROFOFF}")
        P.raw(f"v_lshrrev_b32 {v(T0)}, 2, {v(vL16)}"); P.raw("s_nop 1")
        P.raw(f"buffer_store_dword {v(vSTAMP)}, {v(T0)}, {s(sWS,4)}, s3 offen")

def bfe(P, dst, off, n): P(f"v_bfe_u32 {v(dst)}, {v(vTID)}, {off}, {n}")

def act_voff(P, dst, i, stride):
    bfe(P, T0, 4, 2)
    if i % 2: P(f"v_xor_b32 {v(T0)}, 4, {v(T0)}")
    bfe(P, T1, 0, 3); P(f"v_xor_b32 {v(T0)}, {v(T0)}, {v(T1)}"); P(f"v_lshlrev_b32 {v(T0)}, 4, {v(T0)}")
    bfe(P, T1, 3, 3)
    P(f"v_mul_u32_u24 {v(T1)}, {stride}, {v(T1)}")
    P(f"v_add_u32 {v(T0)}, {v(T0)}, {v(T1)}")
    P(f"v_add_u32 {v(dst)}, {8*i*stride - i*1024}, {v(T0)}")
def w256_voff(P, dst, i, stride):
    bfe(P, T0, 4, 2); bfe(P, T1, 2, 2)
    P(f"v_xor_b32 {v(T1)}, {v(T1)}, {v(T0)}"); P(f"v_lshlrev_b32 {v(T1)}, 6, {v(T1)}")
    bfe(P, T2, 0, 2); P(f"v_lshl_add_u32 {v(T1)}, {v(T2)}, 4, {v(T1)}")
    P(f"v_mul_u32_u24 {v(T0)}, {stride}, {v(T0)}")
    P(f"v_add_u32 {v(T1)}, {v(T1)}, {v(T0)}")
    P(f"v_add_u32 {v(dst)}, {4*i*stride - i*1024}, {v(T1)}")
def w512_voff(P, dst, i, stride_log):
    bfe(P, T2, 5, 1)
    P(f"v_add_u32 {v(T0)}, {2*i}, {v(T2)}")
    bfe(P, T1, 2, 3); P(f"v_xor_b32 {v(T1)}, {v(T1)}, {v(T0)}"); P(f"v_lshlrev_b32 {v(T1)}, 6, {v(T1)}")
    bfe(P, T0, 0, 2); P(f"v_lshl_add_u32 {v(T1)}, {v(T0)}, 4, {v(T1)}")
    P(f"v_lshl_add_u32 {v(T1)}, {v(T2)}, {stride_log}, {v(T1)}")
    P(f"v_add_u32 {v(dst)}, {(2*i << stride_log) - i*1024}, {v(T1)}")
def act_raddr(P, dst, ks, sbase):
    bfe(P, T0, 5, 1); P(f"v_add_u32 {v(T0)}, {2*ks}, {v(T0)}"); bfe(P, T1, 1, 3)
    P(f"v_xor_b32 {v(T0)}, {v(T0)}, {v(T1)}"); P(f"v_lshlrev_b32 {v(T0)}, 4, {v(T0)}")
    bfe(P, T1, 0, 5); P(f"v_lshl_add_u32 {v(T0)}, {v(T1)}, 7, {v(T0)}")
    P(f"v_add_u32 {v(dst)}, {sbase}, {v(T0)}")
def w_raddr(P, dst, unit, rowlog, base):
    bfe(P, T0, 2, 2); P(f"v_xor_b32 {v(T1)}, {unit}, {v(T0)}"); P(f"v_lshlrev_b32 {v(T1)}, 6, {v(T1)}")
    bfe(P, T2, 5, 1); P(f"v_lshl_add_u32 {v(T0)}, {v(T2)}, 3, {v(T0)}"); P(f"v_lshl_add_u32 {v(T1)}, {v(T0)}, {rowlog}, {v(T1)}")
    bfe(P, T0, 4, 1); P(f"v_lshl_add_u32 {v(T1)}, {v(T0)}, 5, {v(T1)}")
    bfe(P, T0, 0, 2); P(f"v_lshl_add_u32 {v(T1)}, {v(T0)}, 3, {v(T1)}")
    P(f"v_add_u32 {v(dst)}, {base}, {v(T1)}")

def gen(P, name):
    kernel_start(P, name, 256)
    SP = Stamp(P)
    if PROF: P.raw("s_memrealtime s[98:99]")
    P(f"s_load_dwordx16 s[64:79], s[0:1], 0"); P(f"s_load_dwordx8 s[80:87], s[0:1], 64")
    P(f"v_mov_b32 {v(vTID)}, v0")
    P(f"v_lshrrev_b32 v1, 6, v0")
    P(f"s_and_b32 {s(sX)}, s2, 7"); P(f"s_lshr_b32 {s(sJ)}, s2, 3")
    P(f"v_readfirstlane_b32 {s(sWV)}, v1")
    P(f"v_and_b32 v1, 63, v0"); P(f"v_lshlrev_b32 {v(vL16)}, 4, v1")
    vA, vA2, vW, voffA, voffW, voffBA, voffBW, vBA, vBW, vBAc, vBWc = 10, 14, 18, 20, 24, 26, 28, 32, 36, 37, 41
    voffX, voffQW, vXr, vQWr, vXc = 10, 14, 16, 24, 0
    vPF = 60
    for i in range(4): act_voff(P, voffA + i, i, 1024)
    for i in range(2): w512_voff(P, voffW + i, i, 13)
    sMT, sNT, sH0 = sU2, sU3, 3
    P(f"s_and_b32 {s(sMT)}, {s(sJ)}, 7"); P(f"s_lshr_b32 {s(sNT)}, {s(sJ)}, 3")
    P(f"s_lshl_b32 {s(sM4)}, {s(sWV)}, 12"); P(f"s_lshl_b32 {s(sM2)}, {s(sWV)}, 11")
    P(f"s_and_b32 {s(sH0)}, {s(sNT)}, 1"); P(f"s_lshl_b32 {s(sH0)}, {s(sH0)}, 1"); P(f"s_lshl_b32 {s(sT2)}, {s(sX)}, 2"); P(f"s_add_u32 {s(sH0)}, {s(sH0)}, {s(sT2)}")
    P(f"s_lshl_b32 {s(sOffW)}, {s(sH0)}, 8"); P(f"s_lshl_b32 {s(sT2)}, {s(sWV)}, 15"); P(f"s_add_u32 {s(sOffW)}, {s(sOffW)}, {s(sT2)}")
    P(f"s_lshl_b32 {s(sOffA)}, {s(sMT)}, 18"); P(f"s_add_u32 {s(sOffA)}, {s(sOffA)}, {s(sT2)}")
    P("s_waitcnt lgkmcnt(0)")
    if os.environ.get("STOPAT") in ("1", "2"): make_srd(P, sWS, 86, SZ["ws"])
    SP(True)
    if PROF: P.raw(f"v_writelane_b32 {v(vSTAMP)}, s98, 0")
    SP()
    if PROF: P.raw(f"v_writelane_b32 {v(vSTAMP)}, s98, 0")
    make_srd(P, sCKV, 66, SZ["A_ckv"])
    P(f"s_cmp_ge_u32 {s(sNT)}, 2")
    P(f"s_cselect_b32 {s(sWKV)}, s72, s70"); P(f"s_cselect_b32 {s(sWKV+1)}, s73, s71")
    P(f"s_mov_b32 {s(sWKV+2)}, {SZ['A_wuk']}"); P(f"s_mov_b32 {s(sWKV+3)}, 0x20000")

    ASLOT = [0, 32768, 65536]; WSLOT = [98304 + 16384*i for i in range(4)]
    BSLOT = [65536, 0, 98304, 32768, 131072]
    XSLOT = [65536, 0, 32768, 131072]; QSLOT = [98304, 114688]
    gid = [0]
    def guard(hi, fn, sim=True):
        gid[0] += 1; lab = f"{name}_g{gid[0]}"
        P(f"s_cmp_lt_u32 {s(sWV)}, 4"); P(f"s_cbranch_scc{0 if hi else 1} {lab}")
        st = P.state(); fn(); P.label(lab)
        if not sim: P.set_state(st)
    def dma1(voff, srd, soff_reg, soff_base, soff_add, m0base, m0add, part, tag):
        P(f"s_add_u32 m0, {s(m0base)}, {m0add}")
        P(f"s_add_u32 {s(soff_reg)}, {s(soff_base)}, {soff_add}")
        for i in part: P(f"buffer_load_dwordx4 {v(voff+i)}, {s(srd,4)}, {s(soff_reg)} offen offset:{i*1024} lds", tag)
    dup = [bool(HIDMA)]
    DUP = {sOffA: 4 << 15, sOffW: 4 << 15, sOffBA: 4*16*1280, sOffBW: 4*8*3840}
    def dma(voff, srd, soff_reg, soff_base, soff_add, m0base, m0add, part, tag):
        if not dup[0]: return dma1(voff, srd, soff_reg, soff_base, soff_add, m0base, m0add, part, tag)
        def f():
            dma1(voff, srd, soff_reg, soff_base, soff_add, m0base, m0add, part, tag)
            dma1(voff, srd, soff_reg, soff_base, soff_add + DUP[soff_base], m0base, m0add + (16384 if m0base == sM4 else 8192), part, tag)
        guard(True, f)
    def dma_act(st, part=range(4)): dma(voffA, sCKV, sTa, sOffA, st*128, sM4, ASLOT[st%3], part, ("A", st))
    def dma_w(h): dma(voffW, sWKV, sTw, sOffW, h*32*8192, sM2, WSLOT[h%4], range(2), ("W", h))
    def dma_b(st, half=None, part=range(2)):
        if half != 1: dma(voffBA, sBX, sTa, sOffBA, st*128, sM2, BSLOT[st%5], part, ("B", st))
        if half != 0: dma(voffBW, sBW, sTw, sOffBW, st*64*3840, sM2, BSLOT[st%5]+16384, part, ("B", st))
    def dma_x(st, part=range(4)): dma(voffX, sAX, sTa, sOffX, st*128, sM4, XSLOT[st%4], part, ("X", st))
    def dma_qw(st, part=range(2)): dma(voffQW, sWQ, sTw, sOffQW, st*64*8192, sM2, QSLOT[st%2], part, ("Q", st))
    dma_w(0); dma_act(0)
    P("s_barrier")
    dma_w(1)
    P(f"s_and_b32 {s(sT)}, {s(sWV)}, 1"); P(f"s_lshl_b32 {s(sT2)}, {s(sT)}, 14")
    for ks in range(4): act_raddr(P, vA + ks, ks, s(sT2))
    P(f"s_and_b32 {s(sT)}, {s(sWV)}, 6")
    for cb in range(2):
        P(f"s_add_u32 {s(sT2)}, {s(sT)}, {cb}")
        w_raddr(P, vW + cb, s(sT2), 9, 98304)
    dma_act(1)
    def record(fn):
        nonlocal P
        PM = P; P = Prog(); P.auto = False
        fn()
        txt = [i.text for i in P.ins]; P = PM
        ch = []
        for x in txt:
            if x.startswith("s_cselect"): ch[-1].append(x)
            else: ch.append([x])
        return ch
    sCB, sTB = 64, 65
    def setup1():
        for ks in range(4): P(f"v_add_u32 {v(vA2+ks)}, 0x10000, {v(vA+ks)}")
        make_srd(P, sWS, 86, SZ["ws"]); make_srd(P, sBX, 76, SZ["B_x"]); make_srd(P, sBW, 78, SZ["B_wqkv"])
        make_srd(P, sAX, 64, SZ["A_x"]); make_srd(P, sWQ, 68, SZ["A_wq"]); make_srd(P, sWO, 74, SZ["A_wo"])
        make_srd(P, sBWO, 80, SZ["B_wo"]); make_srd(P, sOUT, 82, SZ["out"]); make_srd(P, sDBG, 84, SZ["dbg"])
        P.raw("; NONCE")
        P(f"s_min_u32 {s(sT)}, {s(sJ)}, 29"); P(f"s_and_b32 {s(sT2)}, {s(sX)}, 1"); P(f"s_mul_i32 {s(sT2)}, {s(sT2)}, 30"); P(f"s_add_u32 {s(sT)}, {s(sT)}, {s(sT2)}")
        P(f"s_lshr_b32 {s(sCB)}, {s(sT)}, 2"); P(f"s_and_b32 {s(sTB)}, {s(sT)}, 3")
        P(f"s_lshr_b32 {s(sT2)}, {s(sX)}, 1"); P(f"s_lshl_b32 {s(sT2)}, {s(sT2)}, 2"); P(f"s_add_u32 {s(sTB)}, {s(sTB)}, {s(sT2)}")
        P(f"s_lshl_b32 {s(sT)}, {s(sTB)}, 3"); P(f"s_add_u32 {s(sT)}, {s(sT)}, {s(sWV)}"); P(f"s_mul_i32 {s(sOffBA)}, {s(sT)}, {16*1280}")
        P(f"s_mul_i32 {s(sOffBW)}, {s(sWV)}, {8*3840}"); P(f"s_lshl_b32 {s(sT)}, {s(sCB)}, 8"); P(f"s_add_u32 {s(sOffBW)}, {s(sOffBW)}, {s(sT)}")
        P(f"s_and_b32 {s(sT2)}, {s(sWV)}, 1"); P(f"s_lshl_b32 {s(sT)}, {s(sTB)}, 1"); P(f"s_add_u32 {s(sT)}, {s(sT)}, {s(sT2)}"); P(f"s_mul_i32 {s(sOutB)}, {s(sT)}, {2*120*1024}")
        P(f"s_lshr_b32 {s(sT2)}, {s(sWV)}, 1"); P(f"s_lshl_b32 {s(sT)}, {s(sCB)}, 2"); P(f"s_add_u32 {s(sT)}, {s(sT)}, {s(sT2)}"); P(f"s_lshl_b32 {s(sT)}, {s(sT)}, 11")
        P(f"s_add_u32 {s(sOutB)}, {s(sOutB)}, {s(sT)}"); P(f"s_add_u32 {s(sOutB)}, {s(sOutB)}, {QKV}")
        P(f"s_lshl_b32 {s(sFQ)}, {s(sTB)}, 7"); P(f"s_lshl_b32 {s(sT)}, {s(sCB)}, 3"); P(f"s_add_u32 {s(sFQ)}, {s(sFQ)}, {s(sT)}"); P(f"s_add_u32 {s(sFQ)}, {s(sFQ)}, {FQ}")
        P(f"s_lshl_b32 {s(sFK)}, {s(sH0)}, 6"); P(f"s_lshr_b32 {s(sT2)}, {s(sNT)}, 1"); P(f"s_lshl_b32 {s(sT2)}, {s(sT2)}, 3"); P(f"s_add_u32 {s(sT2)}, {s(sT2)}, {s(sMT)}")
        P(f"s_lshl_b32 {s(sT2)}, {s(sT2)}, 3"); P(f"s_add_u32 {s(sFK)}, {s(sFK)}, {s(sT2)}"); P(f"s_add_u32 {s(sFK)}, {s(sFK)}, {FK}")
        P(f"s_lshr_b32 {s(sT2)}, {s(sWV)}, 2"); P(f"s_add_u32 {s(sT)}, {s(sH0)}, {s(sT2)}"); P(f"s_lshl_b32 {s(sOutKV)}, {s(sT)}, 19")
        P(f"s_lshl_b32 {s(sT)}, {s(sMT)}, 16"); P(f"s_add_u32 {s(sOutKV)}, {s(sOutKV)}, {s(sT)}")
        P(f"s_and_b32 {s(sT)}, {s(sWV)}, 1"); P(f"s_lshl_b32 {s(sT)}, {s(sT)}, 15"); P(f"s_add_u32 {s(sOutKV)}, {s(sOutKV)}, {s(sT)}")
        P(f"s_and_b32 {s(sT)}, {s(sWV)}, 2"); P(f"s_lshl_b32 {s(sT)}, {s(sT)}, 11"); P(f"s_add_u32 {s(sOutKV)}, {s(sOutKV)}, {s(sT)}")
        P(f"s_lshr_b32 {s(sT)}, {s(sNT)}, 1"); P(f"s_lshl_b32 {s(sT)}, {s(sT)}, 24"); P(f"s_add_u32 {s(sOutKV)}, {s(sOutKV)}, {s(sT)}")
        P(f"s_and_b32 {s(sH)}, {s(sJ)}, 3"); P(f"s_lshl_b32 {s(sT)}, {s(sX)}, 2"); P(f"s_add_u32 {s(sH)}, {s(sH)}, {s(sT)}")
        P(f"s_lshr_b32 {s(sG)}, {s(sJ)}, 2")
        P(f"s_lshl_b32 {s(sT)}, {s(sG)}, 2"); P(f"s_add_u32 {s(sT)}, {s(sT)}, {s(sWV)}")
        P(f"s_sub_u32 {s(sT2)}, 63, {s(sT)}"); P(f"s_sub_u32 {s(sT)}, {s(sT)}, 4")
        P(f"s_cmp_lt_u32 {s(sWV)}, 4"); P(f"s_cselect_b32 {s(sJL)}, {s(sT2)}, {s(sT)}")
        P(f"s_lshl_b32 {s(sRow0)}, {s(sJL)}, 5")
        P(f"s_mul_i32 {s(sOffX)}, {s(sRow0)}, 1280")
        P(f"s_lshl_b32 {s(sOffQW)}, {s(sH)}, 8"); P(f"s_lshl_b32 {s(sT)}, {s(sWV)}, 16"); P(f"s_add_u32 {s(sOffQW)}, {s(sOffQW)}, {s(sT)}")
        for i in range(2): act_voff(P, voffBA + i, i, 1280)
        for i in range(2): w256_voff(P, voffBW + i, i, 3840)
        P(f"s_and_b32 {s(sT)}, {s(sWV)}, 1"); P(f"s_lshl_b32 {s(sT)}, {s(sT)}, 13")
        for ks in range(4): act_raddr(P, vBA + ks, ks, s(sT))
        P(f"s_lshr_b32 {s(sT2)}, {s(sWV)}, 1")
        w_raddr(P, vBW, s(sT2), 8, 16384)
    def setup2():
        for i in range(4): act_voff(P, voffX + i, i, 1280)
        for i in range(2): w256_voff(P, voffQW + i, i, 8192)
        P(f"s_lshr_b32 {s(sT)}, {s(sWV)}, 2"); P(f"s_lshl_b32 {s(sT)}, {s(sT)}, 1")
        for cb in range(2):
            P(f"s_add_u32 {s(sT2)}, {s(sT)}, {cb}")
            w_raddr(P, vQWr + cb, s(sT2), 8, 98304)
        P(f"s_xor_b32 {s(sT)}, {s(sM4)}, 0x4000")
        for ks in range(4):
            act_raddr(P, vXr + ks, ks, s(sM4))
            P(f"v_add_u32 {v(vXr+4+ks)}, {s(sT)}, {v(T0)}")
    ch1, ch2 = record(setup1), record(setup2)
    chunks = []
    lab_id = [0]
    def nonce():
        lab_id[0] += 1; lab = f"{name}_nonon{lab_id[0]}"
        P(f"s_lshl_b32 {s(sT)}, s2, 3"); P(f"s_add_u32 {s(sT)}, {s(sT)}, {s(sWV)}")
        P(f"s_cmp_lg_u32 {s(sT)}, 4"); P(f"s_cbranch_scc1 {lab}")
        P.raw(f"s_memrealtime {s(sNON,2)}"); P("s_waitcnt lgkmcnt(0)")
        P(f"s_or_b32 {s(sNON)}, {s(sNON)}, 1")
        P(f"v_mov_b32 v4, {s(sNON)}"); P(f"v_mov_b32 v5, {s(sNON+1)}"); P("v_mov_b32 v8, 0")
        P("s_mov_b64 exec, 1")
        P.raw(f"buffer_store_dwordx2 v[4:5], v8, {s(sDBG,4)}, 0 offen sc1")
        P("s_mov_b64 exec, -1")
        P.label(lab)
    def nonce_get():
        lab_id[0] += 1; lab = f"{name}_nget{lab_id[0]}"
        P(f"v_readfirstlane_b32 {s(sNON)}, v8"); P(f"v_readfirstlane_b32 {s(sNON+1)}, v9")
        P(f"s_cmp_lg_u32 {s(sNON)}, 0"); P(f"s_cbranch_scc1 {lab}_ok")
        P.raw(f"s_mov_b32 {s(sT2)}, {int(os.environ.get('POLLMAX', '0x40000'), 0)}")
        P.label(lab)
        P.raw(f"buffer_load_dwordx2 {v(8,2)}, {v(T3)}, {s(sDBG,4)}, 0 offen sc1"); P.raw("s_waitcnt vmcnt(0)")
        P.raw(f"v_readfirstlane_b32 {s(sNON)}, v8"); P.raw(f"v_readfirstlane_b32 {s(sNON+1)}, v9")
        P.raw(f"s_sub_u32 {s(sT2)}, {s(sT2)}, 1"); P.raw(f"s_cbranch_scc1 {lab}_ok")
        P.raw(f"s_cmp_eq_u32 {s(sNON)}, 0"); P.raw(f"s_cbranch_scc1 {lab}")
        P.label(lab + "_ok")
    def emit_chunks(n):
        for _ in range(n):
            if not chunks: return
            c = chunks.pop(0)
            if c[0] == "; NONCE":
                st = P.state(); nonce(); P.set_state(st)
            else:
                for x in c: P(x)
    def publish(sreg, lab):
        P(f"s_cmp_lg_u32 {s(sWV)}, 4"); P(f"s_cbranch_scc1 {lab}")
        P(f"v_mov_b32 v114, {s(sNON)}"); P(f"v_mov_b32 v115, {s(sNON+1)}"); P(f"v_mov_b32 v116, 0")
        P("s_mov_b64 exec, 1")
        for r in (sreg if isinstance(sreg, list) else [sreg]):
            P.raw(f"buffer_store_dwordx2 v[114:115], v116, {s(sWS,4)}, {s(r)} offen sc1")
        P("s_mov_b64 exec, -1")
        P.label(lab)
    def pf(srd, idx_kind, mul, add, xmul=0):
        def one(delta):
            if idx_kind == "xcd": P(f"s_lshl_b32 {s(sPF)}, {s(sJ)}, 3")
            else: P(f"s_lshl_b32 {s(sPF)}, s2, 3")
            P(f"s_add_u32 {s(sPF)}, {s(sPF)}, {s(sWV)}")
            if delta: P(f"s_sub_u32 {s(sPF)}, {s(sPF)}, {delta}")
            P(f"s_mul_i32 {s(sPF)}, {s(sPF)}, {mul}")
            if callable(add): add()
            elif add: P(f"s_add_u32 {s(sPF)}, {s(sPF)}, {add}")
            P.raw(f"buffer_load_dwordx4 {v(vPF,4)}, {v(vL16)}, {s(srd,4)}, {s(sPF)} offen")
        if HIDMA: guard(False, lambda: (one(0), one(4)), sim=False)
        else: one(0); P.vq.append((set(), "pf"))
    def addx(shift, mul, const):
        def f():
            if shift == "lo": P(f"s_and_b32 {s(7)}, {s(sX)}, 1")
            else: P(f"s_lshr_b32 {s(7)}, {s(sX)}, {shift}")
            P(f"s_mul_i32 {s(7)}, {s(7)}, {mul}"); P(f"s_add_u32 {s(sPF)}, {s(sPF)}, {s(7)}")
            if const: P(f"s_add_u32 {s(sPF)}, {s(sPF)}, {const}")
        return f
    pf_xm = [lambda i=i: pf(sAX, "chip", 1280, i*1024) for i in range(2)]
    pf_xl = [lambda i=i: pf(sAX, "xcd", 10240, i*1024) for i in range(10)]
    pf_wq = [lambda i=i: pf(sWQ, "xcd", 3*8192, addx(0, 1024, i*8192)) for i in range(3)]
    pf_bx = [lambda i=i: pf(sBX, "xcd", 2560, addx(1, 512*1280, i*1024)) for i in range(3)]
    pf_bw = [lambda i=i, c=c: pf(sBW, "xcd", 3*3840, addx("lo", 1792, i*3840 + c*1024)) for i in range(3) for c in range(2)]
    pf_wo = [lambda i=i: pf(sWO, "chip", 2560, i*1024) for i in range(3)] + [lambda: pf(sBWO, "chip", 1024, 0)]
    PFS = {"o": pf_wo, "m": pf_xm, "x": pf_xl, "q": pf_wq, "b": pf_bx + pf_bw}
    pf_sched = {}
    for item in os.environ.get("PFS", "o6,m10,b14,q23").split(","):
        if item:
            for i, f in enumerate(PFS[item[0]]): pf_sched.setdefault(int(item[1:]) + i, []).append(f)

    ACC = 64; FR = [192, 216]
    def fA(set_, tb): return FR[set_] + 4*tb
    def fW(set_, cb): return FR[set_] + 16 + 4*cb
    def reads(q):
        st, ks = q // 4, q % 4; h, kh = q // 2, q % 2; se = q % 2
        sl = st % 3
        def rA(tb):
            base = vA2 if sl == 2 else vA; off = (ASLOT[sl] if sl < 2 else 0) + tb*4096
            return f"ds_read_b128 {v(fA(se,tb),4)}, {v(base+ks)} offset:{off}"
        def rW(cb, i):
            return f"ds_read_b64_tr_b16 {v(fW(se,cb)+2*i,2)}, {v(vW+cb)} offset:{(h%4)*16384 + (16*kh+4*i)*512}"
        return [rW(0,0), rW(0,1), rA(0), rW(1,0), rW(1,1), rA(1), rA(2), rA(3)]
    P.wait_tag(lambda t: t in (("A", 0), ("W", 0))); P("s_barrier")
    SP()
    for r in reads(0): P(r)
    st0 = P.state()
    P(f"s_cmp_ge_u32 {s(sNT)}, 2"); P(f"s_cbranch_scc1 {name}_V")
    for isV in (0, 1):
        if isV: P.label(f"{name}_V"); P.set_state(st0)
        chunks[:] = list(ch1)
        for q in range(32):
            se = q % 2; hs = q // 2
            mf = []
            for tb in range(4):
                for cb in range(2):
                    d = v(ACC + (tb*2+cb)*16, 16); c = "0" if q == 0 else d
                    x, y = (fA(se,tb), fW(se,cb)) if isV else (fW(se,cb), fA(se,tb))
                    mf.append(f"v_mfma_f32_32x32x16_bf16 {d}, {v(x,4)}, {v(y,4)}, {c}")
            fill = []
            if q % 2 == 1 and q < 31:
                def sync(hs=hs):
                    P.wait_tag(lambda t: t == ("W", hs+1) or t == ("A", (hs+1)//2))
                    P("s_barrier")
                fill.append(sync)
            if q < 31: fill += reads(q + 1)
            if q == 0: fill.insert(2, lambda: dma_w(2)); fill.insert(6, lambda: dma_w(3))
            if q == 1: fill.insert(3, lambda: dma_act(2, [0, 1])); fill.insert(7, lambda: dma_act(2, [2, 3]))
            if q % 2 == 1:
                if 1 <= hs <= 12: fill.insert(3, lambda hs=hs: dma_w(hs + 3))
                sa = hs // 2 + 2
                if hs >= 2 and sa <= 7: fill.insert(6, lambda hs=hs, sa=sa: dma_act(sa, [0,1] if hs % 2 == 0 else [2,3]))
                if hs == 12: fill.insert(6, lambda: dma_b(0))
                if hs == 14: fill.insert(3, lambda: dma_b(1))
                if hs == 15: fill.insert(1, lambda: dma_b(2))
            for f in pf_sched.get(q, []): fill.insert(2, f)
            if q < 6:
                for i in range(8): fill.insert(min(len(fill), 1 + 2*i), lambda: emit_chunks(5))
            interleave(P, mf, fill)
            if q == 5: assert not chunks, len(chunks)
        if not isV: P(f"s_branch {name}_J")
    P.label(f"{name}_J")
    dup[0] = False
    SP()
    BFR = [192 + 12*i for i in range(4)]
    BACC = 160
    BPK = 44
    def baddr(st):
        return [f"v_add_u32 {v(vBAc+ks)}, {BSLOT[st%5]}, {v(vBA+ks)}" for ks in range(4)] + [f"v_add_u32 {v(vBWc)}, {BSLOT[st%5]}, {v(vBW)}"]
    def breads(q):
        ks = q % 4; se = q % 4
        return [f"ds_read_b64_tr_b16 {v(BFR[se]+8,2)}, {v(vBWc)} offset:{(16*ks)*256}",
                f"ds_read_b64_tr_b16 {v(BFR[se]+10,2)}, {v(vBWc)} offset:{(16*ks+4)*256}",
                f"ds_read_b128 {v(BFR[se],4)}, {v(vBAc+ks)} offset:0",
                f"ds_read_b128 {v(BFR[se]+4,4)}, {v(vBAc+ks)} offset:4096"]
    def PKB(tile): return ACC + 16*tile if tile < 6 else 44 + 8*(tile - 6)
    def kvcvt(tile): return [f"v_cvt_pk_bf16_f32 {v(PKB(tile)+i)}, {v(ACC+16*tile+2*i)}, {v(ACC+16*tile+2*i+1)}" for i in range(8)]
    def kvstore(n):
        if os.environ.get("X_NOST"): return
        tb, r = n // 4, n % 4
        P(f"s_add_u32 {s(sSt)}, {s(sOutKV)}, {tb*8192}")
        P(f"buffer_store_dwordx4 {v(PKB(n//2) + 4*(n%2),4)}, {v(vL16)}, {s(sWS,4)}, {s(sSt)} offen offset:{r*1024} {ST}", ("S", n))
    def bstore(n):
        tb, c = n // 2, n % 2
        P(f"s_add_u32 {s(sSt)}, {s(sOutB)}, {tb*120*1024}")
        P(f"buffer_store_dwordx4 {v(BPK+tb*8+4*c,4)}, {v(vL16)}, {s(sWS,4)}, {s(sSt)} offen offset:{c*1024} {ST}", ("S", 16+n))
    for x in baddr(0): P(x)
    P.wait_tag(lambda t: t == ("B", 0)); P("s_barrier")
    for r in breads(0) + breads(1): P(r)
    for x in kvcvt(6) + kvcvt(7): P(x)
    order = [6, 7, 4, 5, 0, 1, 2, 3]
    late = [lambda n=2*tl+h: kvstore(n) for tl in order for h in range(2)]
    cvts = sum([kvcvt(tl) for tl in order[2:]], [])
    SB = [int(c) for c in os.environ.get("SB", "1111111111")]
    SQ = [int(c) for c in os.environ.get("SQ", "2222200000")]
    PUB = int(os.environ.get("PUB", "5"))
    chunks[:] = list(ch2)
    NQ = 40
    for q in range(NQ):
        st, ks = q // 4, q % 4; se = q % 4
        mf = []
        for tb in range(2):
            d = v(BACC + tb*16, 16); c = "0" if q == 0 else d
            mf.append(f"v_mfma_f32_32x32x16_bf16 {d}, {v(BFR[se]+8,4)}, {v(BFR[se]+4*tb,4)}, {c}")
        fill = []
        if ks == 2:
            def sync(st=st):
                if st < 9: P.wait_tag(lambda t: t == ("B", st+1))
                P.wait_lds_all(); P("s_barrier")
                if st < 9:
                    for x in baddr(st+1): P(x)
            fill.append(sync)
        if q + 2 < NQ: fill += breads(q + 2)
        if q == 0: fill.insert(1, lambda: dma_b(3))
        if q == 1: fill.insert(1, lambda: dma_b(4))
        if q < 16:
            for i in range(3): fill.insert(1 + i, cvts.pop(0))
        if q < 16: fill.insert(len(fill)//2, lambda: emit_chunks(4)); fill.append(lambda: emit_chunks(4))
        def bl(st):
            if st <= 4: return [lambda: dma_b(st + 5, 0), lambda: dma_b(st + 5, 1)]
            if st == 7: return [lambda: dma_qw(0), lambda: dma_qw(1)]
            xs = {5: 0, 6: 1, 8: 2, 9: 3}[st]
            return [lambda: dma_x(xs, [0, 1]), lambda: dma_x(xs, [2, 3])]
        def bl1(st):
            if st <= 4: return [lambda h=h, i=i: dma_b(st + 5, h, [i]) for h in range(2) for i in range(2)]
            if st == 7: return [lambda a=a, i=i: dma_qw(a, [i]) for a in range(2) for i in range(2)]
            xs = {5: 0, 6: 1, 8: 2, 9: 3}[st]
            return [lambda i=i: dma_x(xs, [i]) for i in range(4)]
        BSP = os.environ.get("BSP", "0")
        if BSP == "0":
            if ks >= 2: fill.append(bl(st)[ks - 2])
        elif BSP == "1":
            if ks >= 2: fill.insert(2, bl1(st)[ks - 2])
            elif st >= 1: fill.insert(2, bl1(st - 1)[ks + 2])
            if st == 9 and ks == 3: fill += bl1(9)[2:]
        elif BSP == "2":
            if ks == 2:
                for i, f in enumerate(bl1(st)): fill.insert(1 + i, f)
        if ks == int(os.environ.get("BSK", "0")):
            for _ in range(SB[st]):
                if late: fill.append(late.pop(0))
        if q == 5: fill.append(lambda: (P(f"v_mov_b32 {v(T3)}, 0"), P(f"buffer_load_dwordx2 {v(8,2)}, {v(T3)}, {s(sDBG,4)}, 0 offen sc1")))
        if q == 29: fill.append(nonce_get)
        for f in pf_sched.get(100 + q, []): fill.append(f)
        interleave(P, mf, fill)
        if q == 15: assert not chunks, len(chunks)
    SP()
    QACC = 128; QFR = [192, 208, 224]
    def xaddr(st): return [f"v_add_u32 {v(vXc+i)}, {XSLOT[st%4]}, {v(vXr+i)}" for i in range(8)]
    def qreads(q):
        st, ks = q // 4, q % 4; se = q % 3
        def w(cb, i): return f"ds_read_b64_tr_b16 {v(QFR[se]+4*cb+2*i,2)}, {v(vQWr+cb)} offset:{(st%2)*16384 + (16*ks+4*i)*256}"
        def x(r): return f"ds_read_b128 {v(QFR[se]+8+4*r,4)}, {v(vXc+4*r+ks)} offset:0"
        return [w(0,0), w(0,1), x(0), w(1,0), w(1,1), x(1)]
    for x in xaddr(0): P(x)
    P.wait_tag(lambda t: t in (("X", 0), ("Q", 0))); P("s_barrier")
    for r in qreads(0) + qreads(1): P(r)
    for tb in range(2):
        for i in range(8): P(f"v_cvt_pk_bf16_f32 {v(BPK+tb*8+i)}, {v(BACC+tb*16+2*i)}, {v(BACC+tb*16+2*i+1)}")
    for tb in range(2):
        b = BPK + tb*8
        for (x, y) in ((0,2),(1,3),(4,6),(5,7)): P(f"v_permlane32_swap_b32 {v(b+x)}, {v(b+y)}")
    late += [lambda n=n: bstore(n) for n in range(4)]
    def poll(soff, nfl, lab):
        P(f"s_mov_b32 {s(sT2)}, {int(os.environ.get('POLLMAX', '0x40000'), 0)}")
        P(f"v_lshrrev_b32 {v(T3)}, 1, {v(vL16)}")
        if nfl < 64: P(f"s_mov_b64 exec, {hex((1 << nfl) - 1)}")
        P.label(lab)
        P(f"buffer_load_dwordx2 {v(246,2)}, {v(T3)}, {s(sWS,4)}, {s(soff)} offen sc1")
        P("s_waitcnt vmcnt(0)")
        for i in range(2): P(f"v_xor_b32 {v(246+i)}, {s(sNON + i)}, {v(246+i)}")
        P(f"v_or_b32 {v(246)}, {v(246)}, {v(247)}")
        P(f"v_cmp_ne_u32 vcc, 0, {v(246)}")
        P(f"s_cbranch_vccz {lab}_ok")
        P("s_sleep 4")
        P(f"s_sub_u32 {s(sT2)}, {s(sT2)}, 1"); P(f"s_cmp_lg_u32 {s(sT2)}, 0"); P(f"s_cbranch_scc1 {lab}")
        P.label(lab + "_ok")
        if nfl < 64: P("s_mov_b64 exec, -1")
    ctx = dict(P=P, SP=SP, name=name, poll=poll, publish=publish)
    import attn
    early = attn.gen_attn(dict(ctx, early_only=True))
    vEX, sQS = 9, 92
    def setup3():
        P(f"s_mov_b32 {s(sQS)}, {fbits(QSCALE)}"); P(f"s_mov_b32 {s(sQS+1)}, {fbits(QSCALE)}")
        P(f"s_add_u32 {s(sT)}, {s(sM4)}, {131072}"); P(f"v_add_u32 {v(vEX)}, {s(sT)}, {v(vL16)}")
        early.setup(P)
    chunks[:] = record(setup3)
    EREQ = int(os.environ.get('EREQ', '30')); ETRY = int(os.environ.get('ETRY', '35'))
    for q in range(40):
        st, ks = q // 4, q % 4; se = q % 3
        mf = []
        for r in range(2):
            for cb in range(2):
                d = v(QACC + (r*2+cb)*16, 16); c = "0" if q == 0 else d
                mf.append(f"v_mfma_f32_32x32x16_bf16 {d}, {v(QFR[se]+4*cb,4)}, {v(QFR[se]+8+4*r,4)}, {c}")
        fill = []
        if ks == 2:
            def sync(st=st):
                if st < 9: P.wait_tag(lambda t: t in (("X", st+1), ("Q", st+1)))
                if st == PUB: P.wait_tag(lambda t: t is not None and t[0] == "S")
                P.wait_lds_all()
                if st < 9 or st == PUB: P("s_barrier")
                if st == PUB: publish([sFK, sFQ], f"{name}_pubk")
                if st < 9:
                    for x in xaddr(st+1): P(x)
            fill.append(sync)
        if q + 2 < 40: fill += qreads(q + 2)
        vm = []
        if ks == 2 and st + 2 <= 9: vm += [lambda i=i, st=st: dma_qw(st + 2, [i]) for i in range(2)]
        if ks in (3, 0):
            s0 = st if ks == 3 else st - 1
            if s0 >= 0 and s0 + 4 <= 9: vm += [lambda i=i, s0=s0: dma_x(s0 + 4, [i]) for i in ([0, 1] if ks == 3 else [2, 3])]
        if ks == SQK:
            for _ in range(SQ[st]):
                if late: vm.append(late.pop(0))
        if 22 <= q < 34: fill.insert(2, lambda: emit_chunks(5)); fill.append(lambda: emit_chunks(5))
        if q == 34: assert not chunks, len(chunks)
        if q == EREQ: vm.append(early.req)
        if q == ETRY: vm.append(early.try_); eops = early.ops()
        if q > ETRY:
            n = -(-len(eops) // (40 - q))
            vm += eops[:n]; eops = eops[n:]
        base = 1 if ks == 2 else 0
        stp = 3 if len(vm) <= 3 else 2
        for i, x in enumerate(vm): fill.insert(min(len(fill), base + 1 + i * stp), x)
        interleave(P, mf, fill)
    assert not late
    SP()
    early()
    SND = 96
    for i in range(32, 64, 2): P(f"v_pk_mul_f32 {v(QACC+i,2)}, {v(QACC+i,2)}, {s(sQS,2)}")
    for i in range(16): P(f"v_cvt_pk_bf16_f32 {v(SND+i)}, {v(QACC+32+2*i)}, {v(QACC+32+2*i+1)}")
    for i in range(4): P(f"ds_write_b128 {v(vEX)}, {v(SND+4*i,4)} offset:{i*1024}")
    for i in range(0, 32, 2): P(f"v_pk_mul_f32 {v(QACC+i,2)}, {v(QACC+i,2)}, {s(sQS,2)}")
    P(f"v_xor_b32 {v(vEX)}, 0x4000, {v(vEX)}")
    P("s_waitcnt lgkmcnt(0)"); P("s_barrier")
    for i in range(4): P(f"ds_read_b128 {v(16+4*i,4)}, {v(vEX)} offset:{i*1024}")
    for i in range(16): P(f"v_cvt_pk_bf16_f32 {v(i)}, {v(QACC+2*i)}, {v(QACC+2*i+1)}")
    attn.gen_attn(ctx)
    P.label("L_stop")
    SP(idx=13); SP(True); SP.flush()
    P.label(f"{name}_end"); P("s_endpgm")
    return kernel_desc(name, 256, sgpr=100)
```

```python
from aux_part import *

vO, vS, vP, vNM, vF, vT = 32, 96, 128, 144, 160, 192
vLsum, vLS, vCur, vD, vMX, vMX2, vNI = 200, 201, 202, 203, 204, 205, 206
vRdFull, vWrFree, vRdFree, vWrFull, vFV, vCV, vFullV = 248, 249, 250, 251, 252, 253, 254
sCNT, sSEC, sNeed, sLd, sU = sREM, sNB, sOffA, sOffW, sOutKV
PD = int(os.environ.get("PD", "6"))
WAIT2 = int(os.environ.get("WAIT2", "1"))
SPINMAX = int(os.environ.get("SPINMAX", "0x100000"), 0)
E = os.environ.get
X_NOVALU, X_NOLDS, X_PRIO = E("X_NOVALU"), E("X_NOLDS"), E("X_PRIO", "lo")
SLEEP = int(E("SLEEP", "1"))
DGAP = E("DGAP", "s_nop_15").replace("_", " ", 1).replace("_", " ").replace("s sleep", "s_sleep").replace("s nop", "s_nop")
RG0 = int(E("RG0", "1")); RSP = int(E("RSP", "1")); BEARLY = 0; BMID = int(E("BMID", "0"))
EPI2 = int(E("EPI2", "1")); NLF = int(E("NLF", "3"))
CAP = float(E("CAP", "24"))

def gen_attn(ctx):
    P, SP, name = ctx["P"], ctx["SP"], ctx["name"]
    def vq(role, i): return 4*i if role == "hi" else 4*((i + 4) % 8)
    def dma_ops(first=False):
        ops = []
        def pre():
            P(f"s_lshl_b32 {s(sDOff)}, {s(sDIdx)}, 13"); P(f"s_add_u32 {s(sDOff)}, {s(sDOff)}, {s(sDBase)}")
            P(f"s_cmp_le_u32 {s(sDIdx)}, {s(sDLim)}"); P(f"s_cselect_b32 {s(sDOff)}, {s(sDOff)}, {OOB}")
            if first:
                P(f"s_cmp_eq_u32 {s(sWV)}, 6"); P(f"s_cselect_b32 {s(sDOff)}, {s(sU0)}, {s(sDOff)}")
            P(f"s_add_u32 m0, {s(sSlot)}, {s(sDM0)}")
            P(f"s_add_u32 {s(sDIdx)}, {s(sDIdx)}, 2")
        def ld(i):
            if E("X_NODMA"): return
            P(f"buffer_load_dwordx4 {v(vL16)}, {s(sWS,4)}, {s(sDOff)} offen offset:{(i%4)*1024} {LD} lds", ("kv", dma_ops.n))
        def mid(): P(f"s_add_u32 m0, m0, 4096"); P(f"s_add_u32 {s(sDOff)}, {s(sDOff)}, 4096")
        def post():
            P(f"s_add_u32 {s(sSlot)}, {s(sSlot)}, 32768"); P(f"s_and_b32 {s(sSlot)}, {s(sSlot)}, {NSLOT*32768-1}")
            P(f"s_add_u32 {s(sLd)}, {s(sLd)}, 1"); dma_ops.n += 1
        ops.append(lambda: (pre(), ld(0)))
        for i in range(1, 8): ops.append((lambda i=i: (mid(), ld(i))) if i == 4 else (lambda i=i: ld(i)))
        ops.append(post)
        return ops
    dma_ops.n = 0
    def dma_stage(first=False, gap=None):
        for i, f in enumerate(dma_ops(first)):
            f()
            if gap and i < 7: P(gap)

    sOK = sAM
    vFK = 112
    def fk_off():
        P(f"s_lshr_b32 {s(sT)}, {s(sH)}, 1"); P(f"s_lshl_b32 {s(sT)}, {s(sT)}, 7"); P(f"s_add_u32 {s(sT)}, {s(sT)}, {FK}")
    def lo_only(lab, fn):
        P(f"s_cmp_lt_u32 {s(sWV)}, 4"); P(f"s_cbranch_scc1 {lab}")
        st = P.state(); fn(); P.label(lab); P.set_state(st)
    def early_req():
        def f():
            fk_off()
            P(f"v_lshrrev_b32 {v(T3)}, 1, {v(vL16)}"); P(f"v_and_b32 {v(T3)}, 0x78, {v(T3)}")
            P(f"buffer_load_dwordx2 {v(vFK,2)}, {v(T3)}, {s(sWS,4)}, {s(sT)} offen sc1")
            P(f"s_lshl_b32 {s(sDBase)}, {s(sH)}, 19")
            P(f"s_sub_u32 {s(sT)}, {s(sWV)}, 4"); P(f"s_lshl_b32 {s(sDM0)}, {s(sT)}, 13")
            P(f"s_and_b32 {s(sDIdx)}, {s(sT)}, 1"); P(f"s_add_u32 {s(sDIdx)}, {s(sDIdx)}, 1")
            P(f"s_cmp_ge_u32 {s(sT)}, 2"); P(f"s_cselect_b32 {s(sT2)}, 2, 0"); P(f"s_sub_u32 {s(sDIdx)}, {s(sDIdx)}, {s(sT2)}")
            P(f"s_cmp_ge_u32 {s(sT)}, 2"); P(f"s_cselect_b32 {s(sT2)}, {VF}, 0")
            P(f"s_mov_b32 {s(sU0)}, {s(sDBase)}")
            P(f"s_add_u32 {s(sDBase)}, {s(sDBase)}, {s(sT2)}")
            P(f"s_mov_b32 {s(sSlot)}, 32768"); P(f"s_mov_b32 {s(sLd)}, 0")
        P(f"s_lshl_b32 {s(sT)}, {s(sG)}, 2"); P(f"s_sub_u32 {s(sDLim)}, 63, {s(sT)}")
        lo_only(f"{name}_er", f)
    def early_try():
        def f():
            P("s_waitcnt vmcnt(0)")
            P(f"v_xor_b32 {v(vFK)}, {s(sNON)}, {v(vFK)}"); P(f"v_xor_b32 {v(vFK+1)}, {s(sNON+1)}, {v(vFK+1)}"); P(f"v_or_b32 {v(vFK)}, {v(vFK)}, {v(vFK+1)}")
            P(f"v_cmp_ne_u32 vcc, 0, {v(vFK)}"); P(f"s_cbranch_vccnz {name}_et")
            P(f"s_mov_b32 {s(sOK)}, 1")
        lo_only(f"{name}_et", f)
    def early_ops():
        out = []
        for k, f in enumerate(dma_ops(True) + dma_ops()):
            def g(k=k, f=f):
                P(f"s_cmp_eq_u32 {s(sOK)}, 0"); P(f"s_cbranch_scc1 {name}_eo{k}")
                st = P.state(); f(); P.label(f"{name}_eo{k}"); P.set_state(st)
            out.append(g)
        return out
    def early():
        P(f"s_lshr_b32 {s(sU)}, {s(sDLim)}, 1"); P(f"s_add_u32 {s(sU)}, {s(sU)}, 1")
        def f():
            P(f"s_cmp_lg_u32 {s(sLd)}, 0"); P(f"s_cbranch_scc1 {name}_nodma0")
            fk_off(); ctx["poll"](sT, 16, f"{name}_poll1")
            dma_stage(True); dma_stage()
        lo_only(f"{name}_nodma0", f)
    def setup(P):
        P(f"s_mov_b32 {s(sOK)}, 0")
        for i in range(64): P(f"v_mov_b32 {v(vO+i)}, 0")
        P(f"v_lshrrev_b32 {v(T0)}, 2, {v(vL16)}"); P(f"v_add_u32 {v(T0)}, {CT}, {v(T0)}")
        bfe(P, T1, 0, 2); P(f"v_lshl_add_u32 {v(vRdFull)}, {v(T1)}, 8, {v(T0)}")
        bfe(P, T1, 0, 3); P(f"v_lshl_add_u32 {v(vRdFree)}, {v(T1)}, 8, {v(T0)}"); P(f"v_add_u32 {v(vRdFree)}, 1024, {v(vRdFree)}")
        P(f"s_lshl_b32 {s(sT)}, {s(sWV)}, 8"); P(f"v_add_u32 {v(vWrFull)}, {s(sT)}, {v(T0)}")
        P(f"v_add_u32 {v(vWrFree)}, 1024, {v(vWrFull)}"); P(f"v_subrev_u32 {v(vWrFull)}, 1024, {v(vWrFull)}")
        P(f"v_mov_b32 {v(vFV)}, 0"); P(f"v_mov_b32 {v(vFullV)}, 1")
        if PROF: P("s_mov_b32 s98, 0"); P("s_mov_b32 s7, 0"); P("s_mov_b32 s3, 0")
        P(f"s_mov_b32 {s(sTHR)}, {fbits(THR)}"); P(f"s_mov_b32 {s(sNeed)}, 2")
        P(f"s_max_u32 {s(sCNT)}, {s(sJL)}, 1"); P(f"s_sub_u32 {s(sCNT)}, {s(sCNT)}, 1")
        P(f"s_cmp_eq_u32 {s(sJL)}, 0"); P(f"s_cselect_b32 {s(sSEC)}, 1, 0")
    early.req, early.try_, early.setup, early.ops = early_req, early_try, setup, early_ops
    if ctx.get("early_only"): return early

    P(f"s_cmp_lt_u32 {s(sWV)}, 4"); P(f"s_cbranch_scc1 {name}_nodma1")
    st = P.state()
    dma_stage()
    P.label(f"{name}_nodma1")
    P.set_state(st)
    for i in range(8): P(f"v_mov_b32 {v(vP+8+i)}, 0")
    P(f"v_mov_b32 {v(vLsum)}, 0"); P(f"v_add_u32 {v(vCur)}, 0x8000, {v(vL16)}"); P(f"v_mov_b32 {v(vNI)}, 0xff800000")
    bfe(P, T1, 0, 5); bfe(P, T2, 5, 1); P(f"v_lshlrev_b32 {v(T2)}, 2, {v(T2)}"); P(f"v_sub_u32 {v(vD)}, {v(T1)}, {v(T2)}")
    P(f"v_subrev_u32 {v(T0)}, {1024 + 3*256}, {v(vWrFree)}")
    P("s_waitcnt lgkmcnt(0)")
    P(f"s_cmp_lg_u32 {s(sWV)}, 3"); P(f"s_cbranch_scc1 {name}_noinit")
    for i in range(12): P(f"ds_write_b32 {v(T0)}, {v(vFullV if i < 4 else vFV)} offset:{i*256}")
    P.label(f"{name}_noinit")
    P(f"s_waitcnt vmcnt(16) lgkmcnt(0)")
    P("s_barrier")
    SP()
    P.vq = []; P.lq = []
    def mask_nm():
        for r in range(16):
            m = s(sM + 2*(r%2), 2)
            P(f"v_cmp_gt_i32 {m}, {8*(r//4) + r%4}, {v(vD)}")
            P(f"v_cndmask_b32 {v(vNM+r)}, {v(vNM+r)}, {v(vNI)}, {m}")
    for i in range(8): P(f"ds_read_b128 {v(vF+4*i,4)}, {v(vCur)} offset:{16384 + i*1024}")
    P("s_waitcnt lgkmcnt(0)")
    P(f"s_cmp_lt_u32 {s(sWV)}, 4"); P(f"s_cbranch_scc0 {name}_a0lo")
    for role in ("hi", "lo"):
        if role == "lo": P.label(f"{name}_a0lo")
        if X_PRIO == role: P("s_setprio 1")
        if role == "lo":
            P(f"s_cmp_lg_u32 {s(sJL)}, 0"); P(f"s_cbranch_scc1 {name}_nomask0")
            for i in range(16): P(f"v_mov_b32 {v(vNM+i)}, 0")
            mask_nm()
            P(f"v_mfma_f32_32x32x16_bf16 {v(vS,16)}, {v(vF,4)}, {v(vq(role,0),4)}, {v(vNM,16)}")
            P(f"s_branch {name}_mask0j")
            P.label(f"{name}_nomask0")
        for i in range(8):
            P(f"v_mfma_f32_32x32x16_bf16 {v(vS,16)}, {v(vF+4*i,4)}, {v(vq(role,i),4)}, {'0' if i == 0 else v(vS,16)}")
            if role == "lo" and i == 0: P.label(f"{name}_mask0j")
        if role == "hi": P(f"s_branch {name}_a0j")
    P.label(f"{name}_a0j")
    def frag_read(n, par):
        if X_NOLDS and frag_read.loop: return "; none"
        off = (par*8192 + n*1024) if n < 8 else (16384 + par*8192 + (n-8)*1024)
        return f"ds_read_b128 {v(vF+4*(n%8),4)}, {v(vCur)} offset:{off}"
    frag_read.loop = bool(X_NOLDS)
    def rowmax(S):
        P(f"v_max3_f32 {v(vMX)}, {v(S)}, {v(S+1)}, {v(S+2)}")
        for i in range(3, 15, 2): P(f"v_max3_f32 {v(vMX)}, {v(vMX)}, {v(S+i)}, {v(S+i+1)}")
        P(f"v_max_f32 {v(vMX)}, {v(vMX)}, {v(S+15)}")
        P(f"v_mov_b32 {v(vMX2)}, {v(vMX)}")
        P(f"v_permlane32_swap_b32 {v(vMX)}, {v(vMX2)}")
        P(f"v_max_f32 {v(vMX)}, {v(vMX)}, {v(vMX2)}")
    SP()
    for n in range(PD): P(frag_read(n, 0))
    rowmax(vS)
    for i in range(16): P(f"v_sub_f32 {v(vS+i)}, {v(vS+i)}, {v(vMX)}")
    for i in range(16): P(f"v_sub_f32 {v(vNM+i)}, 0, {v(vMX)}")
    sidx = SP.n
    entry = P.state()
    P(f"s_cmp_lt_u32 {s(sWV)}, 4"); P(f"s_cbranch_scc0 {name}_lo_E")

    def softmax_ops(par):
        S = vS + 16*par; PP = vP + 8*par
        ops = []
        for r in range(16):
            ops.append((8, f"v_exp_f32 {v(vT + r%8)}, {v(S+r)}"))
            if r >= 1:
                q = r - 1
                if q == 1: ops.append((4, f"v_add_f32 {v(vLS)}, {v(vT)}, {v(vT+1)}"))
                elif q > 1: ops.append((4, f"v_add_f32 {v(vLS)}, {v(vLS)}, {v(vT + q%8)}"))
                if q % 2 == 1: ops.append((4, f"v_cvt_pk_bf16_f32 {v(PP + q//2)}, {v(vT + (q-1)%8)}, {v(vT + q%8)}"))
        ops.append((4, f"v_cvt_pk_bf16_f32 {v(PP+7)}, {v(vT+6)}, {v(vT+7)}"))
        ops.append((4, f"v_add_f32 {v(vLS)}, {v(vLS)}, {v(vT+7)}"))
        ops.append((4, f"v_cmp_nge_f32 vcc, {s(sTHR)}, {v(vLS)}"))
        return ops
    def check(par, role, kind):
        P(f"s_cbranch_vccnz {name}_{role}_fb{kind}{par}")
        P.label(f"{name}_{role}_fbr{kind}{par}")
        P(f"v_add_f32 {v(vLsum)}, {v(vLsum)}, {v(vLS)}")
    def fallback(par, role, kind):
        S = vS + 16*par; S2 = vS + 16*(1-par)
        P.label(f"{name}_{role}_fb{kind}{par}")
        rowmax(S)
        P(f"v_max_f32 {v(vMX)}, 0, {v(vMX)}")
        P(f"v_sub_f32 {v(vMX2)}, 0, {v(vMX)}"); P(f"v_exp_f32 {v(vMX2)}, {v(vMX2)}")
        for i in range(16): P(f"v_sub_f32 {v(S+i)}, {v(S+i)}, {v(vMX)}")
        for i in range(16): P(f"v_sub_f32 {v(S2+i)}, {v(S2+i)}, {v(vMX)}")
        for i in range(16): P(f"v_sub_f32 {v(vNM+i)}, {v(vNM+i)}, {v(vMX)}")
        for i in range(64): P(f"v_mul_f32 {v(vO+i)}, {v(vMX2)}, {v(vO+i)}")
        P(f"v_mul_f32 {v(vLsum)}, {v(vMX2)}, {v(vLsum)}")
        for c, o in softmax_ops(par)[:-1]: P(o)
        P(f"s_branch {name}_{role}_fbr{kind}{par}")
    spins = []
    def ctl_cmp(sreg): P(f"v_cmp_gt_u32 vcc, {s(sreg)}, {v(vCV)}")
    def ctl_check(addr, sreg, lab, cmp=True):
        if cmp: ctl_cmp(sreg)
        P(f"s_cbranch_vccnz {lab}")
        P.label(lab + "_r")
        spins.append((addr, sreg, lab))
    def emit_spins():
        for addr, sreg, lab in spins:
            P.label(lab)
            if PROF: P.raw(f"s_add_u32 s{98 if addr == vRdFull else 7}, s{98 if addr == vRdFull else 7}, 0x10000")
            P.raw(f"s_mov_b32 {s(sT2)}, {SPINMAX}")
            P.label(lab + "_l")
            if PROF: P.raw(f"s_add_u32 s{98 if addr == vRdFull else 7}, s{98 if addr == vRdFull else 7}, 1")
            P.raw(f"ds_read_b32 {v(vCV)}, {v(addr)}"); P.raw("s_waitcnt lgkmcnt(0)")
            P.raw(f"v_cmp_gt_u32 vcc, {s(sreg)}, {v(vCV)}")
            P.raw(f"s_cbranch_vccz {lab}_r")
            P.raw(f"s_sleep {SLEEP if '_ld' in lab else 1}")
            P.raw(f"s_sub_u32 {s(sT2)}, {s(sT2)}, 1"); P.raw(f"s_cmp_lg_u32 {s(sT2)}, 0"); P.raw(f"s_cbranch_scc1 {lab}_l")
            P.raw(f"s_branch {lab}_r")
        spins.clear()
    def advance():
        P(f"v_add_u32 {v(vCur)}, 0x8000, {v(vCur)}"); P(f"v_and_b32 {v(vCur)}, {NSLOT*32768-1}, {v(vCur)}")
        P(f"s_add_u32 {s(sNeed)}, {s(sNeed)}, 1")
    def free_write():
        P(f"ds_write_b32 {v(vWrFree)}, {v(vFV)}"); P(f"v_add_u32 {v(vFV)}, 1, {v(vFV)}")
    def full_publish(cnt, delta):
        P(f"s_add_u32 {s(sT)}, {s(sLd)}, {delta & 0xffffffff}" if delta else f"s_mov_b32 {s(sT)}, {s(sLd)}")
        P(f"v_mov_b32 {v(vFullV)}, {s(sT)}")
        if callable(cnt): cnt()
        else: P(f"s_waitcnt vmcnt({cnt})")
        P(f"ds_write_b32 {v(vWrFull)}, {v(vFullV)}")
    def mfA(par, i, role):
        S = vS + 16*(1-par)
        return f"v_mfma_f32_32x32x16_bf16 {v(S,16)}, {v(vF+4*i,4)}, {v(vq(role,i),4)}, {v(vNM,16) if i == 0 else v(S,16)}"
    def mfC(par, i):
        db, t = i // 2, i % 2
        return f"v_mfma_f32_32x32x16_bf16 {v(vO+16*db,16)}, {v(vF+4*i,4)}, {v(vP+8*(1-par)+4*t,4)}, {v(vO+16*db,16)}"
    def period(par, role):
        R = f"{name}_{role}"
        ops = [] if X_NOVALU else softmax_ops(par)
        extra = {n: [] for n in range(16)}
        if par == 0:
            extra[0].append((8, free_write))
            if role == "lo":
                extra[1].append((4, lambda: P(f"ds_read_b32 {v(vCV)}, {v(vRdFree)}")))
                extra[4].append((8, lambda: (P(f"s_sub_u32 {s(sTa)}, {s(sLd)}, 3"), ctl_cmp(sTa))))
                extra[5].append((4, lambda: ctl_check(vRdFree, sTa, f"{R}_spF", False)))
                for i, f in enumerate(dma_ops()): extra[6 + i].append((4, f))
        else:
            if role == "lo": extra[0].append((16, lambda: full_publish(8, -1)))
            extra[2].append((4, lambda: P(f"ds_read_b32 {v(vCV)}, {v(vRdFull)}")))
            extra[14-PD].append((4, lambda: ctl_cmp(sNeed)))
            extra[15-PD].append((16, lambda: (ctl_check(vRdFull, sNeed, f"{R}_spU", False), advance())))
        if E("X_NOCHK"): ops = [o for o in ops if "v_cmp" not in o[1]]
        k = 0
        carry = 0.0
        for n in range(16):
            if n % 2 == 0 and WAIT2: P.needr(v(vF+4*(n%8),4), v(vF+4*((n+1)%8),4))
            P(mfA(par, n, role) if n < 8 else mfC(par, n - 8))
            used = 4 + (4 if n % 2 == 1 else 0) + sum(c for c, _ in extra[n])
            m = n + PD
            pre = [f for c, f in extra[n]]
            if par == 1 and n == 15-PD:
                P(frag_read(m, par))
                for f in pre: f()
            else:
                P(frag_read(m, par) if m < 16 else frag_read(m - 16, 1 - par))
                for f in pre: f()
            rem_cost = sum(c for c, _ in ops[k:])
            cap = CAP
            if n == 14: cap = 1e9
            while k < len(ops) and n < 15 and (used + ops[k][0] <= cap + carry or rem_cost > (14 - n) * 18):
                P(ops[k][1]); used += ops[k][0]; rem_cost -= ops[k][0]; k += 1
            carry = 0.0
        assert k == len(ops)
        if E("X_NOCHK"): P.label(f"{name}_{role}_fbrm{par}")
        else: check(par, role, "m")
    def epilogue(role, mid=None):
        P(f"v_mov_b32 {v(vFV)}, {BIG}"); P(f"ds_write_b32 {v(vWrFree)}, {v(vFV)}")
        if mid: mid()
        P(f"v_mov_b32 {v(vMX2)}, {v(vLsum)}")
        P(f"v_permlane32_swap_b32 {v(vLsum)}, {v(vMX2)}")
        P(f"v_add_f32 {v(vLsum)}, {v(vLsum)}, {v(vMX2)}"); P(f"v_rcp_f32 {v(vLsum)}, {v(vLsum)}")
        bfe(P, T0, 4, 1); bfe(P, T1, 0, 4); P(f"v_lshlrev_b32 {v(T1)}, 4, {v(T1)}"); P(f"v_lshl_add_u32 {v(T0)}, {v(T0)}, 10, {v(T1)}")
        bfe(P, T1, 5, 1); P(f"v_lshl_add_u32 {v(vD)}, {v(T1)}, 8, {v(T0)}")
        P(f"s_lshr_b32 {s(sT)}, {s(sRow0)}, 6"); P(f"s_lshl_b32 {s(sT)}, {s(sT)}, 19"); P(f"s_lshl_b32 {s(sT2)}, {s(sH)}, 14"); P(f"s_add_u32 {s(sT)}, {s(sT)}, {s(sT2)}")
        P(f"s_and_b32 {s(sT2)}, {s(sRow0)}, 32"); P(f"s_lshl_b32 {s(sT2)}, {s(sT2)}, 6"); P(f"s_add_u32 {s(sT)}, {s(sT)}, {s(sT2)}")
        P(f"s_add_u32 {s(sSt)}, {s(sT)}, {CTX}")
        for db in range(4):
            if mid and db == 2: mid()
            for i in range(16): P(f"v_mul_f32 {v(vO+16*db+i)}, {v(vLsum)}, {v(vO+16*db+i)}")
            for i in range(8): P(f"v_cvt_pk_bf16_f32 {v(vS+8*db+i)}, {v(vO+16*db+2*i)}, {v(vO+16*db+2*i+1)}")
            for u in range(2): P(f"buffer_store_dwordx4 {v(vS+8*db+4*u,4)}, {v(vD)}, {s(sWS,4)}, {s(sSt)} offen offset:{u*512} {ST}", "ctx")
            if db < 3: P(f"s_add_u32 {s(sSt)}, {s(sSt)}, 4096")
    def wave_flag(fn_off, tag):
        fn_off()
        P(f"v_mov_b32 {v(T0)}, {s(sNON)}"); P(f"v_mov_b32 {v(T1)}, {s(sNON+1)}"); P(f"v_mov_b32 {v(T2)}, 0")
        P.wait_tag(lambda t: t == tag)
        P("s_mov_b64 exec, 1")
        P(f"buffer_store_dwordx2 {v(T0,2)}, {v(T2)}, {s(sWS,4)}, {s(sT)} offen sc1", "flag")
        P("s_mov_b64 exec, -1")
    def ctx_off():
        P(f"s_lshl_b32 {s(sT)}, {s(sJL)}, 8"); P(f"s_lshl_b32 {s(sT2)}, {s(sH)}, 3"); P(f"s_add_u32 {s(sT)}, {s(sT)}, {s(sT2)}"); P(f"s_add_u32 {s(sT)}, {s(sT)}, {FC}")
    def loader_iter(lab):
        P(f"s_cmp_gt_u32 {s(sLd)}, {s(sU)}"); P(f"s_cbranch_scc1 {lab}_skip")
        st = P.state()
        P(f"ds_read_b32 {v(vCV)}, {v(vRdFree)}")
        P(f"s_sub_u32 {s(sTa)}, {s(sLd)}, 3")
        ctl_check(vRdFree, sTa, lab)
        dma_stage(gap=DGAP)
        n = dma_ops.n
        full_publish(lambda: P.wait_tag(lambda t: isinstance(t, tuple) and t[0] == "kv" and t[1] <= n - 2), -1)
        st2 = P.state()
        P.label(f"{lab}_skip")
        P.set_state(merge_states(st, st2))
    for role in ("hi", "lo"):
        R = f"{name}_{role}"
        P.set_state(entry)
        for par in (0, 1):
            P.label(f"{R}_{'EO'[par]}")
            P(f"s_sub_u32 {s(sCNT)}, {s(sCNT)}, 1"); P(f"s_cbranch_scc1 {R}_sp{par}")
            P.label(f"{R}_go{par}")
            period(par, role)
            st = P.state()
            assert X_NOLDS or [sorted(x) for x in st[0]] == [sorted(x) for x in entry[0]], (st[0], entry[0])
        P(f"s_branch {R}_E")
        for par in (0, 1):
            P.set_state(entry); fallback(par, role, "m")
        for par in (0, 1):
            P.set_state(entry)
            P.label(f"{R}_sp{par}")
            P(f"s_cmp_lg_u32 {s(sSEC)}, 0"); P(f"s_cbranch_scc1 {R}_tail{par}")
            P(f"s_mov_b32 {s(sSEC)}, 1"); P(f"s_mov_b32 {s(sCNT)}, 0")
            mask_nm()
            P(f"s_branch {R}_go{par}")
        for par in (0, 1):
            P.set_state(entry)
            P.label(f"{R}_tail{par}")
            P("s_waitcnt lgkmcnt(0)")
            if par == 0: free_write()
            for n in range(8, 16): P(frag_read(n, par))
            if par == 1: P(f"ds_read_b32 {v(vCV)}, {v(vRdFull)}")
            if role == "lo" and par == 1: full_publish(8, -1)
            interleave(P, [mfC(par, i) for i in range(8)], [o for c, o in softmax_ops(par)])
            check(par, role, "t")
            if par == 1:
                ctl_check(vRdFull, sNeed, f"{R}_spT"); advance()
            for n in range(8, 16): P(frag_read(n, 1 - par))
            for i in range(8): P(mfC(1 - par, i))
            P(f"s_branch {R}_epi")
            fallback(par, role, "t")
        emit_spins()
        P.label(f"{R}_epi")
        P.lq = []
        dma_ops.n = 10
        P.vq = [(set(), ("kv", 8))]*8 + [(set(), ("kv", 9))]*8 if role == "lo" else []
        SP(idx=sidx)
        if X_PRIO == role and E("PRIO0", "1") == "1": P("s_setprio 0")
        it = [0]
        def li(n=1):
            for _ in range(n):
                it[0] += 1; loader_iter(f"{R}_ld{it[0]}")
        epilogue(role, li if (role == "lo" and EPI2) else None)
        SP()
        if role == "hi":
            wave_flag(ctx_off, "ctx")
            P(f"s_branch {name}_att_done")
        else:
            P(f"s_sub_u32 {s(sAR)}, {s(sWV)}, 4"); P(f"s_mul_i32 {s(sAR)}, {s(sAR)}, {AREA}"); P(f"s_add_u32 {s(sAR)}, {s(sAR)}, {SCR}")
            bc = battn_chunks(ctx, 0)
            bc[0]()
            P(f"s_lshl_b32 {s(sAW)}, s2, 2"); P(f"s_add_u32 {s(sAW)}, {s(sAW)}, {s(sWV)}"); P(f"s_sub_u32 {s(sAW)}, {s(sAW)}, {4 + 128*RG0}")
            P(f"s_sub_u32 {s(sT)}, {s(sG)}, {RG0}"); P(f"s_cmp_ge_u32 {s(sT)}, {AUXG}"); P(f"s_cbranch_scc1 {R}_nort")
            stx = P.state(); nx = dma_ops.n
            r = [retile_chunks(ctx, i) for i in range(3)]
            r[0][0](); li(RSP)
            r[0][1](); r[1][0](); li(RSP)
            r[1][1](); r[2][0](); li(RSP)
            wave_flag(ctx_off, "ctx")
            r[2][1](); li(2)
            def aux_off():
                P(f"s_lshl_b32 {s(sT)}, {s(sAW)}, 3"); P(f"s_add_u32 {s(sT)}, {s(sT)}, {FA}")
            wave_flag(aux_off, "aux")
            P.needr(v(0, 4))
            P(f"s_branch {R}_rtj")
            P.label(f"{R}_nort"); P.set_state(stx); dma_ops.n = nx
            li(NLF)
            wave_flag(ctx_off, "ctx")
            P.needr(v(0, 4))
            P.label(f"{R}_rtj")
            dma_ops.n += 20
            P.vq = [(set(), ("kv", dma_ops.n - 1))]; P.lq = []
            bc[1]()
            if BMID:
                li(1); bc[2](); li(1); bc[3](); li(1); bc[4](); li(1); bc[5]()
            P(f"s_sub_u32 {s(sAM)}, {s(sU)}, {BEARLY}")
            P.label(f"{R}_rest")
            P(f"s_cmp_gt_u32 {s(sLd)}, {s(sAM)}"); P(f"s_cbranch_scc1 {R}_fin")
            P(f"ds_read_b32 {v(vCV)}, {v(vRdFree)}")
            P(f"s_sub_u32 {s(sTa)}, {s(sLd)}, 3")
            ctl_check(vRdFree, sTa, f"{R}_ldr")
            if PROF: P.raw("s_memtime s[96:97]"); P.raw("s_waitcnt lgkmcnt(0)"); P.raw("s_sub_u32 s3, s3, s96")
            dma_stage(gap=DGAP)
            if PROF and E("TDMA"): P.raw("s_memtime s[96:97]"); P.raw("s_waitcnt lgkmcnt(0)"); P.raw("s_add_u32 s3, s3, s96")
            full_publish(8, -1)
            if PROF and not E("TDMA"): P.raw("s_memtime s[96:97]"); P.raw("s_waitcnt lgkmcnt(0)"); P.raw("s_add_u32 s3, s3, s96")
            P(f"s_branch {R}_rest")
            P.label(f"{R}_fin")
            full_publish(0, 0); P.vq = []
            P(f"s_mov_b32 {s(sT)}, {FA}")
            for i in range(4): P(f"buffer_load_dwordx4 {v(16+4*i,4)}, {v(vL16)}, {s(sWS,4)}, {s(sT)} offen offset:{i*1024} sc1")
            if not BMID:
                for f in bc[2:]: f()
            P(f"s_mov_b32 {s(sT)}, {FA}"); P(f"s_mov_b32 {s(sT2)}, {int(E('POLLMAX', '0x40000'), 0)}")
            P.needr(v(16, 16))
            st = P.state()
            P(f"s_branch {name}_pollA_c")
            P.label(f"{name}_pollA")
            for i in range(4): P(f"buffer_load_dwordx4 {v(16+4*i,4)}, {v(vL16)}, {s(sWS,4)}, {s(sT)} offen offset:{i*1024} sc1")
            P("s_waitcnt vmcnt(0)")
            P.label(f"{name}_pollA_c")
            for i in range(16): P(f"v_xor_b32 {v(16+i)}, {s(sNON + i%2)}, {v(16+i)}")
            for i in range(1, 15, 2): P(f"v_or3_b32 v16, v16, {v(16+i)}, {v(17+i)}")
            P("v_or_b32 v16, v16, v31")
            P("v_cmp_ne_u32 vcc, 0, v16"); P(f"s_cbranch_vccz {name}_pollA_ok")
            P("s_sleep 4"); P(f"s_sub_u32 {s(sT2)}, {s(sT2)}, 1"); P(f"s_cmp_lg_u32 {s(sT2)}, 0"); P(f"s_cbranch_scc1 {name}_pollA")
            P.label(f"{name}_pollA_ok")
            P.set_state(st)
            import outp
            outp.wof_prefetch(P)
            ctx["lo_state"] = P.state()
            def b_off():
                P(f"s_lshl_b32 {s(sT)}, s2, 2"); P(f"s_add_u32 {s(sT)}, {s(sT)}, {s(sWV)}"); P(f"s_lshl_b32 {s(sT)}, {s(sT)}, 3"); P(f"s_add_u32 {s(sT)}, {s(sT)}, {FB - 32}")
            ctx["bflag"] = lambda: wave_flag(b_off, "aux")
            P(f"s_branch {name}_att_done")
            emit_spins()
    P.label(f"{name}_att_done")
    if PROF:
        P.raw(f"v_writelane_b32 {v(vSTAMP)}, s98, 20"); P.raw(f"v_writelane_b32 {v(vSTAMP)}, s7, 21"); P.raw(f"v_writelane_b32 {v(vSTAMP)}, s3, 22")
    P.vq = []; P.lq = []
    SP()
    import outp
    outp.gen_out(ctx)
```

```python
from common import *
import math
ST = os.environ.get("ST", "sc1")
LD = os.environ.get("LD", "sc1")
STOP = os.environ.get("STOP", "")
FK, FQ, FA, FC, FB = 70*MB, 70*MB + 4096, 70*MB + 8192, 70*MB + 16384, 70*MB + 32768
KVP = int(os.environ.get("KVP", "0"))
HIDMA = int(os.environ.get("HIDMA", "1"))
SQK = int(os.environ.get("SQK", "3"))
STAG = int(os.environ.get("STAG", "1"))
QSPREAD = int(os.environ.get("QSPREAD", "1"))
PF1 = int(os.environ.get("PF1", "1")); PF2 = int(os.environ.get("PF2", "10"))
QSCALE = math.log2(math.e) / math.sqrt(128.0)
import struct
def fbits(x): return "0x%08x" % struct.unpack("<I", struct.pack("<f", x))[0]

sCKV, sWKV, sWS, sBX, sBW, sAX, sWQ, sWO, sBWO, sOUT, sDBG = 8, 12, 16, 20, 24, 28, 32, 36, 40, 44, 48
sX, sJ, sWV, sT, sT2, sTa, sTw, sM4, sM2 = 52, 53, 54, 55, 56, 57, 58, 59, 60
sOffA, sOffW, sOutKV, sOffBA, sOffBW, sOutB, sSt = 61, 62, 63, 4, 5, 66, 67
sOffX, sOffQW, sH, sG, sRow0, sJL, sREM, sNB = 68, 69, 70, 71, 72, 73, 74, 75
sSlot, sDOff, sDIdx, sDLim, sDBase, sTHR, sDM0 = 76, 77, 78, 79, 80, 81, 82
sNON = 84
sU0, sU1, sU2, sU3 = 86, 87, 88, 89
sM = 90
sFK, sFQ, sISV, sPF, sOffX2 = 94, 95, 83, 6, 99
sSTAMP = 96
vL16, vTID, vSTAMP = 240, 241, 255
T0, T1, T2, T3 = 242, 243, 244, 245

class Stamp:
    def __init__(self, P): self.P = P; self.n = 0
    def __call__(self, real=False, idx=None):
        if not PROF: return
        if idx is not None: self.n = idx
        if os.environ.get("RT"): real = True
        P = self.P
        P.raw(f"{'s_memrealtime' if real else 's_memtime'} {s(sSTAMP,2)}"); P("s_waitcnt lgkmcnt(0)")
        P.raw(f"v_writelane_b32 {v(vSTAMP)}, {s(sSTAMP)}, {self.n}")
        if os.environ.get("STOPAT") == str(self.n): P.raw("s_waitcnt vmcnt(0)"); P.raw("s_branch L_stop")
        self.n += 1
    def flush(self):
        if not PROF: return
        P = self.P
        if os.environ.get("DBGOUT"):
            P.raw(f"s_cmp_lg_u32 s2, {os.environ['DBGOUT']}"); P.raw("s_cbranch_scc1 L_nodbg"); P.raw(f"s_cmp_lg_u32 {s(sWV)}, 0"); P.raw("s_cbranch_scc1 L_nodbg")
            P.raw(f"v_readlane_b32 s3, {v(vSTAMP)}, 0"); P.raw("s_nop 3"); P.raw(f"v_subrev_u32 {v(T0)}, s3, {v(vSTAMP)}")
            P.raw(f"v_lshrrev_b32 {v(T1)}, 2, {v(vL16)}"); P.raw("s_mov_b64 exec, 0x3ffe"); P.raw("s_nop 1")
            P.raw(f"buffer_store_dword {v(T0)}, {v(T1)}, {s(sDBG,4)}, 0 offen offset:4")
            P.raw("s_mov_b64 exec, -1")
            P.raw("L_nodbg:")
            return
        P.raw(f"s_lshl_b32 s3, s2, 3"); P.raw(f"s_add_u32 s3, s3, {s(sWV)}"); P.raw("s_lshl_b32 s3, s3, 8")
        P.raw(f"s_add_u32 s3, s3, {PROFOFF}")
        P.raw(f"v_lshrrev_b32 {v(T0)}, 2, {v(vL16)}"); P.raw("s_nop 1")
        P.raw(f"buffer_store_dword {v(vSTAMP)}, {v(T0)}, {s(sWS,4)}, s3 offen")

def bfe(P, dst, off, n): P(f"v_bfe_u32 {v(dst)}, {v(vTID)}, {off}, {n}")

def act_voff(P, dst, i, stride):
    bfe(P, T0, 4, 2)
    if i % 2: P(f"v_xor_b32 {v(T0)}, 4, {v(T0)}")
    bfe(P, T1, 0, 3); P(f"v_xor_b32 {v(T0)}, {v(T0)}, {v(T1)}"); P(f"v_lshlrev_b32 {v(T0)}, 4, {v(T0)}")
    bfe(P, T1, 3, 3)
    P(f"v_mul_u32_u24 {v(T1)}, {stride}, {v(T1)}")
    P(f"v_add_u32 {v(T0)}, {v(T0)}, {v(T1)}")
    P(f"v_add_u32 {v(dst)}, {8*i*stride - i*1024}, {v(T0)}")
def w256_voff(P, dst, i, stride):
    bfe(P, T0, 4, 2); bfe(P, T1, 2, 2)
    P(f"v_xor_b32 {v(T1)}, {v(T1)}, {v(T0)}"); P(f"v_lshlrev_b32 {v(T1)}, 6, {v(T1)}")
    bfe(P, T2, 0, 2); P(f"v_lshl_add_u32 {v(T1)}, {v(T2)}, 4, {v(T1)}")
    P(f"v_mul_u32_u24 {v(T0)}, {stride}, {v(T0)}")
    P(f"v_add_u32 {v(T1)}, {v(T1)}, {v(T0)}")
    P(f"v_add_u32 {v(dst)}, {4*i*stride - i*1024}, {v(T1)}")
def w512_voff(P, dst, i, stride_log):
    bfe(P, T2, 5, 1)
    P(f"v_add_u32 {v(T0)}, {2*i}, {v(T2)}")
    bfe(P, T1, 2, 3); P(f"v_xor_b32 {v(T1)}, {v(T1)}, {v(T0)}"); P(f"v_lshlrev_b32 {v(T1)}, 6, {v(T1)}")
    bfe(P, T0, 0, 2); P(f"v_lshl_add_u32 {v(T1)}, {v(T0)}, 4, {v(T1)}")
    P(f"v_lshl_add_u32 {v(T1)}, {v(T2)}, {stride_log}, {v(T1)}")
    P(f"v_add_u32 {v(dst)}, {(2*i << stride_log) - i*1024}, {v(T1)}")
def act_raddr(P, dst, ks, sbase):
    bfe(P, T0, 5, 1); P(f"v_add_u32 {v(T0)}, {2*ks}, {v(T0)}"); bfe(P, T1, 1, 3)
    P(f"v_xor_b32 {v(T0)}, {v(T0)}, {v(T1)}"); P(f"v_lshlrev_b32 {v(T0)}, 4, {v(T0)}")
    bfe(P, T1, 0, 5); P(f"v_lshl_add_u32 {v(T0)}, {v(T1)}, 7, {v(T0)}")
    P(f"v_add_u32 {v(dst)}, {sbase}, {v(T0)}")
def w_raddr(P, dst, unit, rowlog, base):
    bfe(P, T0, 2, 2); P(f"v_xor_b32 {v(T1)}, {unit}, {v(T0)}"); P(f"v_lshlrev_b32 {v(T1)}, 6, {v(T1)}")
    bfe(P, T2, 5, 1); P(f"v_lshl_add_u32 {v(T0)}, {v(T2)}, 3, {v(T0)}"); P(f"v_lshl_add_u32 {v(T1)}, {v(T0)}, {rowlog}, {v(T1)}")
    bfe(P, T0, 4, 1); P(f"v_lshl_add_u32 {v(T1)}, {v(T0)}, 5, {v(T1)}")
    bfe(P, T0, 0, 2); P(f"v_lshl_add_u32 {v(T1)}, {v(T0)}, 3, {v(T1)}")
    P(f"v_add_u32 {v(dst)}, {base}, {v(T1)}")

def gen(P, name):
    kernel_start(P, name, 256)
    SP = Stamp(P)
    if PROF: P.raw("s_memrealtime s[98:99]")
    P(f"s_load_dwordx16 s[64:79], s[0:1], 0"); P(f"s_load_dwordx8 s[80:87], s[0:1], 64")
    P(f"v_mov_b32 {v(vTID)}, v0")
    P(f"v_lshrrev_b32 v1, 6, v0")
    P(f"s_and_b32 {s(sX)}, s2, 7"); P(f"s_lshr_b32 {s(sJ)}, s2, 3")
    P(f"v_readfirstlane_b32 {s(sWV)}, v1")
    P(f"v_and_b32 v1, 63, v0"); P(f"v_lshlrev_b32 {v(vL16)}, 4, v1")
    vA, vA2, vW, voffA, voffW, voffBA, voffBW, vBA, vBW, vBAc, vBWc = 10, 14, 18, 20, 24, 26, 28, 32, 36, 37, 41
    voffX, voffQW, vXr, vQWr, vXc = 10, 14, 16, 24, 0
    vPF = 60
    for i in range(4): act_voff(P, voffA + i, i, 1024)
    for i in range(2): w512_voff(P, voffW + i, i, 13)
    sMT, sNT, sH0 = sU2, sU3, 3
    P(f"s_and_b32 {s(sMT)}, {s(sJ)}, 7"); P(f"s_lshr_b32 {s(sNT)}, {s(sJ)}, 3")
    P(f"s_lshl_b32 {s(sM4)}, {s(sWV)}, 12"); P(f"s_lshl_b32 {s(sM2)}, {s(sWV)}, 11")
    P(f"s_and_b32 {s(sH0)}, {s(sNT)}, 1"); P(f"s_lshl_b32 {s(sH0)}, {s(sH0)}, 1"); P(f"s_lshl_b32 {s(sT2)}, {s(sX)}, 2"); P(f"s_add_u32 {s(sH0)}, {s(sH0)}, {s(sT2)}")
    P(f"s_lshl_b32 {s(sOffW)}, {s(sH0)}, 8"); P(f"s_lshl_b32 {s(sT2)}, {s(sWV)}, 15"); P(f"s_add_u32 {s(sOffW)}, {s(sOffW)}, {s(sT2)}")
    P(f"s_lshl_b32 {s(sOffA)}, {s(sMT)}, 18"); P(f"s_add_u32 {s(sOffA)}, {s(sOffA)}, {s(sT2)}")
    P("s_waitcnt lgkmcnt(0)")
    if os.environ.get("STOPAT") in ("1", "2"): make_srd(P, sWS, 86, SZ["ws"])
    SP(True)
    if PROF: P.raw(f"v_writelane_b32 {v(vSTAMP)}, s98, 0")
    SP()
    if PROF: P.raw(f"v_writelane_b32 {v(vSTAMP)}, s98, 0")
    make_srd(P, sCKV, 66, SZ["A_ckv"])
    P(f"s_cmp_ge_u32 {s(sNT)}, 2")
    P(f"s_cselect_b32 {s(sWKV)}, s72, s70"); P(f"s_cselect_b32 {s(sWKV+1)}, s73, s71")
    P(f"s_mov_b32 {s(sWKV+2)}, {SZ['A_wuk']}"); P(f"s_mov_b32 {s(sWKV+3)}, 0x20000")

    ASLOT = [0, 32768, 65536]; WSLOT = [98304 + 16384*i for i in range(4)]
    BSLOT = [65536, 0, 98304, 32768, 131072]
    XSLOT = [65536, 0, 32768, 131072]; QSLOT = [98304, 114688]
    gid = [0]
    def guard(hi, fn, sim=True):
        gid[0] += 1; lab = f"{name}_g{gid[0]}"
        P(f"s_cmp_lt_u32 {s(sWV)}, 4"); P(f"s_cbranch_scc{0 if hi else 1} {lab}")
        st = P.state(); fn(); P.label(lab)
        if not sim: P.set_state(st)
    def dma1(voff, srd, soff_reg, soff_base, soff_add, m0base, m0add, part, tag):
        P(f"s_add_u32 m0, {s(m0base)}, {m0add}")
        P(f"s_add_u32 {s(soff_reg)}, {s(soff_base)}, {soff_add}")
        for i in part: P(f"buffer_load_dwordx4 {v(voff+i)}, {s(srd,4)}, {s(soff_reg)} offen offset:{i*1024} lds", tag)
    dup = [bool(HIDMA)]
    DUP = {sOffA: 4 << 15, sOffW: 4 << 15, sOffBA: 4*16*1280, sOffBW: 4*8*3840, sOffQW: 4 << 16}
    def dma(voff, srd, soff_reg, soff_base, soff_add, m0base, m0add, part, tag):
        if not dup[0]: return dma1(voff, srd, soff_reg, soff_base, soff_add, m0base, m0add, part, tag)
        def f():
            dma1(voff, srd, soff_reg, soff_base, soff_add, m0base, m0add, part, tag)
            if soff_base == sOffX: return dma1(voff, srd, soff_reg, sOffX2, soff_add, m0base, m0add + 16384, part, tag)
            dma1(voff, srd, soff_reg, soff_base, soff_add + DUP[soff_base], m0base, m0add + (16384 if m0base == sM4 else 8192), part, tag)
        guard(True, f)
    def dma_act(st, part=range(4)): dma(voffA, sCKV, sTa, sOffA, st*128, sM4, ASLOT[st%3], part, ("A", st))
    def dma_w(h): dma(voffW, sWKV, sTw, sOffW, h*32*8192, sM2, WSLOT[h%4], range(2), ("W", h))
    def dma_b(st, half=None, part=range(2)):
        if half != 1: dma(voffBA, sBX, sTa, sOffBA, st*128, sM2, BSLOT[st%5], part, ("B", st))
        if half != 0: dma(voffBW, sBW, sTw, sOffBW, st*64*3840, sM2, BSLOT[st%5]+16384, part, ("B", st))
    def dma_x(st, part=range(4)): dma(voffX, sAX, sTa, sOffX, st*128, sM4, XSLOT[st%4], part, ("X", st))
    def dma_qw(st, part=range(2)): dma(voffQW, sWQ, sTw, sOffQW, st*64*8192, sM2, QSLOT[st%2], part, ("Q", st))
    dma_w(0); dma_act(0)
    P("s_barrier")
    dma_w(1)
    P(f"s_and_b32 {s(sT)}, {s(sWV)}, 1"); P(f"s_lshl_b32 {s(sT2)}, {s(sT)}, 14")
    for ks in range(4): act_raddr(P, vA + ks, ks, s(sT2))
    P(f"s_and_b32 {s(sT)}, {s(sWV)}, 6")
    for cb in range(2):
        P(f"s_add_u32 {s(sT2)}, {s(sT)}, {cb}")
        w_raddr(P, vW + cb, s(sT2), 9, 98304)
    dma_act(1)
    def record(fn):
        nonlocal P
        PM = P; P = Prog(); P.auto = False
        fn()
        txt = [i.text for i in P.ins]; P = PM
        ch = []
        for x in txt:
            if x.startswith("s_cselect"): ch[-1].append(x)
            else: ch.append([x])
        return ch
    sCB, sTB = 64, 65
    def setup1():
        for ks in range(4): P(f"v_add_u32 {v(vA2+ks)}, 0x10000, {v(vA+ks)}")
        make_srd(P, sWS, 86, SZ["ws"]); make_srd(P, sBX, 76, SZ["B_x"]); make_srd(P, sBW, 78, SZ["B_wqkv"])
        make_srd(P, sAX, 64, SZ["A_x"]); make_srd(P, sWQ, 68, SZ["A_wq"]); make_srd(P, sWO, 74, SZ["A_wo"])
        make_srd(P, sBWO, 80, SZ["B_wo"]); make_srd(P, sOUT, 82, SZ["out"]); make_srd(P, sDBG, 84, SZ["dbg"])
        P.raw("; NONCE")
        P(f"s_min_u32 {s(sT)}, {s(sJ)}, 29"); P(f"s_and_b32 {s(sT2)}, {s(sX)}, 1"); P(f"s_mul_i32 {s(sT2)}, {s(sT2)}, 30"); P(f"s_add_u32 {s(sT)}, {s(sT)}, {s(sT2)}")
        P(f"s_lshr_b32 {s(sCB)}, {s(sT)}, 2"); P(f"s_and_b32 {s(sTB)}, {s(sT)}, 3")
        P(f"s_lshr_b32 {s(sT2)}, {s(sX)}, 1"); P(f"s_lshl_b32 {s(sT2)}, {s(sT2)}, 2"); P(f"s_add_u32 {s(sTB)}, {s(sTB)}, {s(sT2)}")
        P(f"s_lshl_b32 {s(sT)}, {s(sTB)}, 3"); P(f"s_add_u32 {s(sT)}, {s(sT)}, {s(sWV)}"); P(f"s_mul_i32 {s(sOffBA)}, {s(sT)}, {16*1280}")
        P(f"s_mul_i32 {s(sOffBW)}, {s(sWV)}, {8*3840}"); P(f"s_lshl_b32 {s(sT)}, {s(sCB)}, 8"); P(f"s_add_u32 {s(sOffBW)}, {s(sOffBW)}, {s(sT)}")
        P(f"s_and_b32 {s(sT2)}, {s(sWV)}, 1"); P(f"s_lshl_b32 {s(sT)}, {s(sTB)}, 1"); P(f"s_add_u32 {s(sT)}, {s(sT)}, {s(sT2)}"); P(f"s_mul_i32 {s(sOutB)}, {s(sT)}, {2*120*1024}")
        P(f"s_lshr_b32 {s(sT2)}, {s(sWV)}, 1"); P(f"s_lshl_b32 {s(sT)}, {s(sCB)}, 2"); P(f"s_add_u32 {s(sT)}, {s(sT)}, {s(sT2)}"); P(f"s_lshl_b32 {s(sT)}, {s(sT)}, 11")
        P(f"s_add_u32 {s(sOutB)}, {s(sOutB)}, {s(sT)}"); P(f"s_add_u32 {s(sOutB)}, {s(sOutB)}, {QKV}")
        P(f"s_lshl_b32 {s(sFQ)}, {s(sTB)}, 7"); P(f"s_lshl_b32 {s(sT)}, {s(sCB)}, 3"); P(f"s_add_u32 {s(sFQ)}, {s(sFQ)}, {s(sT)}"); P(f"s_add_u32 {s(sFQ)}, {s(sFQ)}, {FQ}")
        P(f"s_lshl_b32 {s(sFK)}, {s(sH0)}, 6"); P(f"s_lshr_b32 {s(sT2)}, {s(sNT)}, 1"); P(f"s_lshl_b32 {s(sT2)}, {s(sT2)}, 3"); P(f"s_add_u32 {s(sT2)}, {s(sT2)}, {s(sMT)}")
        P(f"s_lshl_b32 {s(sT2)}, {s(sT2)}, 3"); P(f"s_add_u32 {s(sFK)}, {s(sFK)}, {s(sT2)}"); P(f"s_add_u32 {s(sFK)}, {s(sFK)}, {FK}")
        P(f"s_lshr_b32 {s(sT2)}, {s(sWV)}, 2"); P(f"s_add_u32 {s(sT)}, {s(sH0)}, {s(sT2)}"); P(f"s_lshl_b32 {s(sOutKV)}, {s(sT)}, 19")
        P(f"s_lshl_b32 {s(sT)}, {s(sMT)}, 16"); P(f"s_add_u32 {s(sOutKV)}, {s(sOutKV)}, {s(sT)}")
        P(f"s_and_b32 {s(sT)}, {s(sWV)}, 1"); P(f"s_lshl_b32 {s(sT)}, {s(sT)}, 15"); P(f"s_add_u32 {s(sOutKV)}, {s(sOutKV)}, {s(sT)}")
        P(f"s_and_b32 {s(sT)}, {s(sWV)}, 2"); P(f"s_lshl_b32 {s(sT)}, {s(sT)}, 11"); P(f"s_add_u32 {s(sOutKV)}, {s(sOutKV)}, {s(sT)}")
        P(f"s_lshr_b32 {s(sT)}, {s(sNT)}, 1"); P(f"s_lshl_b32 {s(sT)}, {s(sT)}, 24"); P(f"s_add_u32 {s(sOutKV)}, {s(sOutKV)}, {s(sT)}")
        P(f"s_and_b32 {s(sH)}, {s(sJ)}, 3"); P(f"s_lshl_b32 {s(sT)}, {s(sX)}, 2"); P(f"s_add_u32 {s(sH)}, {s(sH)}, {s(sT)}")
        P(f"s_lshr_b32 {s(sG)}, {s(sJ)}, 2")
        P(f"s_lshl_b32 {s(sT)}, {s(sG)}, 2"); P(f"s_add_u32 {s(sT)}, {s(sT)}, {s(sWV)}")
        P(f"s_sub_u32 {s(sT2)}, 63, {s(sT)}"); P(f"s_sub_u32 {s(sT)}, {s(sT)}, 4")
        P(f"s_cmp_lt_u32 {s(sWV)}, 4"); P(f"s_cselect_b32 {s(sJL)}, {s(sT2)}, {s(sT)}")
        P(f"s_lshl_b32 {s(sRow0)}, {s(sJL)}, 5")
        P(f"s_mul_i32 {s(sOffX)}, {s(sRow0)}, 1280")
        P(f"s_mul_i32 {s(sOffX2)}, {s(sT)}, {32*1280}"); P(f"s_add_u32 {s(sOffX2)}, {s(sOffX2)}, {4*32*1280}")
        P(f"s_lshl_b32 {s(sOffQW)}, {s(sH)}, 8"); P(f"s_lshl_b32 {s(sT)}, {s(sWV)}, 16"); P(f"s_add_u32 {s(sOffQW)}, {s(sOffQW)}, {s(sT)}")
        for i in range(2): act_voff(P, voffBA + i, i, 1280)
        for i in range(2): w256_voff(P, voffBW + i, i, 3840)
        P(f"s_and_b32 {s(sT)}, {s(sWV)}, 1"); P(f"s_lshl_b32 {s(sT)}, {s(sT)}, 13")
        for ks in range(4): act_raddr(P, vBA + ks, ks, s(sT))
        P(f"s_lshr_b32 {s(sT2)}, {s(sWV)}, 1")
        w_raddr(P, vBW, s(sT2), 8, 16384)
    def setup2():
        for i in range(4): act_voff(P, voffX + i, i, 1280)
        for i in range(2): w256_voff(P, voffQW + i, i, 8192)
        P(f"s_lshr_b32 {s(sT)}, {s(sWV)}, 2"); P(f"s_lshl_b32 {s(sT)}, {s(sT)}, 1")
        for cb in range(2):
            P(f"s_add_u32 {s(sT2)}, {s(sT)}, {cb}")
            w_raddr(P, vQWr + cb, s(sT2), 8, 98304)
        P(f"s_xor_b32 {s(sT)}, {s(sM4)}, 0x4000")
        for ks in range(4):
            act_raddr(P, vXr + ks, ks, s(sM4))
            P(f"v_add_u32 {v(vXr+4+ks)}, {s(sT)}, {v(T0)}")
    ch1, ch2 = record(setup1), record(setup2)
    chunks = []
    lab_id = [0]
    def nonce():
        lab_id[0] += 1; lab = f"{name}_nonon{lab_id[0]}"
        P(f"s_lshl_b32 {s(sT)}, s2, 3"); P(f"s_add_u32 {s(sT)}, {s(sT)}, {s(sWV)}")
        P(f"s_cmp_lg_u32 {s(sT)}, 4"); P(f"s_cbranch_scc1 {lab}")
        P.raw(f"s_memrealtime {s(sNON,2)}"); P("s_waitcnt lgkmcnt(0)")
        P(f"s_or_b32 {s(sNON)}, {s(sNON)}, 1")
        P(f"v_mov_b32 v4, {s(sNON)}"); P(f"v_mov_b32 v5, {s(sNON+1)}"); P("v_mov_b32 v8, 0")
        P("s_mov_b64 exec, 1")
        P.raw(f"buffer_store_dwordx2 v[4:5], v8, {s(sDBG,4)}, 0 offen sc1")
        P("s_mov_b64 exec, -1")
        P.label(lab)
    def nonce_get():
        lab_id[0] += 1; lab = f"{name}_nget{lab_id[0]}"
        P(f"v_readfirstlane_b32 {s(sNON)}, v8"); P(f"v_readfirstlane_b32 {s(sNON+1)}, v9")
        P(f"s_cmp_lg_u32 {s(sNON)}, 0"); P(f"s_cbranch_scc1 {lab}_ok")
        P.raw(f"s_mov_b32 {s(sT2)}, {int(os.environ.get('POLLMAX', '0x40000'), 0)}")
        P.label(lab)
        P.raw(f"buffer_load_dwordx2 {v(8,2)}, {v(T3)}, {s(sDBG,4)}, 0 offen sc1"); P.raw("s_waitcnt vmcnt(0)")
        P.raw(f"v_readfirstlane_b32 {s(sNON)}, v8"); P.raw(f"v_readfirstlane_b32 {s(sNON+1)}, v9")
        P.raw(f"s_sub_u32 {s(sT2)}, {s(sT2)}, 1"); P.raw(f"s_cbranch_scc1 {lab}_ok")
        P.raw(f"s_cmp_eq_u32 {s(sNON)}, 0"); P.raw(f"s_cbranch_scc1 {lab}")
        P.label(lab + "_ok")
    def emit_chunks(n):
        for _ in range(n):
            if not chunks: return
            c = chunks.pop(0)
            if c[0] == "; NONCE":
                st = P.state(); nonce(); P.set_state(st)
            else:
                for x in c: P(x)
    def publish(sreg, lab):
        P(f"s_cmp_lg_u32 {s(sWV)}, 4"); P(f"s_cbranch_scc1 {lab}")
        P(f"v_mov_b32 v114, {s(sNON)}"); P(f"v_mov_b32 v115, {s(sNON+1)}"); P(f"v_mov_b32 v116, 0")
        P("s_mov_b64 exec, 1")
        for r in (sreg if isinstance(sreg, list) else [sreg]):
            P.raw(f"buffer_store_dwordx2 v[114:115], v116, {s(sWS,4)}, {s(r)} offen sc1")
        P("s_mov_b64 exec, -1")
        P.label(lab)
    def pf(srd, idx_kind, mul, add, xmul=0):
        def one(delta):
            if idx_kind == "xcd": P(f"s_lshl_b32 {s(sPF)}, {s(sJ)}, 3")
            else: P(f"s_lshl_b32 {s(sPF)}, s2, 3")
            P(f"s_add_u32 {s(sPF)}, {s(sPF)}, {s(sWV)}")
            if delta: P(f"s_sub_u32 {s(sPF)}, {s(sPF)}, {delta}")
            P(f"s_mul_i32 {s(sPF)}, {s(sPF)}, {mul}")
            if callable(add): add()
            elif add: P(f"s_add_u32 {s(sPF)}, {s(sPF)}, {add}")
            P.raw(f"buffer_load_dwordx4 {v(vPF,4)}, {v(vL16)}, {s(srd,4)}, {s(sPF)} offen")
        if HIDMA: guard(False, lambda: (one(0), one(4)), sim=False)
        else: one(0); P.vq.append((set(), "pf"))
    def addx(shift, mul, const):
        def f():
            if shift == "lo": P(f"s_and_b32 {s(7)}, {s(sX)}, 1")
            else: P(f"s_lshr_b32 {s(7)}, {s(sX)}, {shift}")
            P(f"s_mul_i32 {s(7)}, {s(7)}, {mul}"); P(f"s_add_u32 {s(sPF)}, {s(sPF)}, {s(7)}")
            if const: P(f"s_add_u32 {s(sPF)}, {s(sPF)}, {const}")
        return f
    pf_xm = [lambda i=i: pf(sAX, "chip", 1280, i*1024) for i in range(2)]
    pf_xl = [lambda i=i: pf(sAX, "xcd", 10240, i*1024) for i in range(10)]
    pf_wq = [lambda i=i: pf(sWQ, "xcd", 3*8192, addx(0, 1024, i*8192)) for i in range(3)]
    pf_bx = [lambda i=i: pf(sBX, "xcd", 2560, addx(1, 512*1280, i*1024)) for i in range(3)]
    pf_bw = [lambda i=i, c=c: pf(sBW, "xcd", 3*3840, addx("lo", 1792, i*3840 + c*1024)) for i in range(3) for c in range(2)]
    pf_wo = [lambda i=i: pf(sWO, "chip", 2560, i*1024) for i in range(3)] + [lambda: pf(sBWO, "chip", 1024, 0)]
    def pf_tlb():
        def f():
            P(f"v_lshrrev_b32 {v(vPF)}, 4, {v(vL16)}"); P(f"v_mul_u32_u24 {v(vPF+1)}, {int(os.environ.get('TLBS', '0x180000'), 0)}, {v(vPF)}")
            P.raw(f"buffer_load_dword {v(vPF+2)}, {v(vPF+1)}, {s(sWS,4)}, 0 offen")
            P(f"v_lshlrev_b32 {v(vPF+1)}, 17, {v(vPF)}")
            P.raw(f"buffer_load_dword {v(vPF+2)}, {v(vPF+1)}, {s(sOUT,4)}, 0 offen")
        gid[0] += 1; lab = f"{name}_g{gid[0]}"
        P(f"s_cmp_lg_u32 {s(sWV)}, 7"); P(f"s_cbranch_scc1 {lab}"); f(); P.label(lab)
    PFS = {"t": [pf_tlb], "o": pf_wo, "m": pf_xm, "x": pf_xl, "q": pf_wq, "b": pf_bx + pf_bw}
    pf_sched = {}
    for item in os.environ.get("PFS", "o6,m10,b14,q23").split(","):
        if item:
            for i, f in enumerate(PFS[item[0]]): pf_sched.setdefault(int(item[1:]) + i, []).append(f)

    ACC = 64; FR = [192, 216]
    def fA(set_, tb): return FR[set_] + 4*tb
    def fW(set_, cb): return FR[set_] + 16 + 4*cb
    def reads(q):
        st, ks = q // 4, q % 4; h, kh = q // 2, q % 2; se = q % 2
        sl = st % 3
        def rA(tb):
            base = vA2 if sl == 2 else vA; off = (ASLOT[sl] if sl < 2 else 0) + tb*4096
            return f"ds_read_b128 {v(fA(se,tb),4)}, {v(base+ks)} offset:{off}"
        def rW(cb, i):
            return f"ds_read_b64_tr_b16 {v(fW(se,cb)+2*i,2)}, {v(vW+cb)} offset:{(h%4)*16384 + (16*kh+4*i)*512}"
        return [rW(0,0), rW(0,1), rA(0), rW(1,0), rW(1,1), rA(1), rA(2), rA(3)]
    P.wait_tag(lambda t: t in (("A", 0), ("W", 0))); P("s_barrier")
    SP()
    for r in reads(0): P(r)
    st0 = P.state()
    P(f"s_cmp_ge_u32 {s(sNT)}, 2"); P(f"s_cbranch_scc1 {name}_V")
    for isV in (0, 1):
        if isV: P.label(f"{name}_V"); P.set_state(st0)
        chunks[:] = list(ch1)
        for q in range(32):
            se = q % 2; hs = q // 2
            mf = []
            for tb in range(4):
                for cb in range(2):
                    d = v(ACC + (tb*2+cb)*16, 16); c = "0" if q == 0 else d
                    x, y = (fA(se,tb), fW(se,cb)) if isV else (fW(se,cb), fA(se,tb))
                    mf.append(f"v_mfma_f32_32x32x16_bf16 {d}, {v(x,4)}, {v(y,4)}, {c}")
            fill = []
            if q % 2 == 1 and q < 31:
                def sync(hs=hs):
                    P.wait_tag(lambda t: t == ("W", hs+1) or t == ("A", (hs+1)//2))
                    P("s_barrier")
                fill.append(sync)
            if q < 31: fill += reads(q + 1)
            if q == 0: fill.insert(2, lambda: dma_w(2)); fill.insert(6, lambda: dma_w(3))
            if q == 1: fill.insert(3, lambda: dma_act(2, [0, 1])); fill.insert(7, lambda: dma_act(2, [2, 3]))
            if q % 2 == 1:
                if 1 <= hs <= 12: fill.insert(3, lambda hs=hs: dma_w(hs + 3))
                sa = hs // 2 + 2
                if hs >= 2 and sa <= 7: fill.insert(6, lambda hs=hs, sa=sa: dma_act(sa, [0,1] if hs % 2 == 0 else [2,3]))
                if hs == 12: fill.insert(6, lambda: dma_b(0))
                if hs == 14: fill.insert(3, lambda: dma_b(1))
                if hs == 15: fill.insert(1, lambda: dma_b(2))
            for f in pf_sched.get(q, []): fill.insert(2, f)
            if q < 6:
                for i in range(8): fill.insert(min(len(fill), 1 + 2*i), lambda: emit_chunks(5))
            interleave(P, mf, fill)
            if q == 5: assert not chunks, len(chunks)
        if not isV: P(f"s_branch {name}_J")
    P.label(f"{name}_J")
    dup[0] = False
    SP()
    BFR = [192 + 12*i for i in range(4)]
    BACC = 160
    BPK = 44
    def baddr(st):
        return [f"v_add_u32 {v(vBAc+ks)}, {BSLOT[st%5]}, {v(vBA+ks)}" for ks in range(4)] + [f"v_add_u32 {v(vBWc)}, {BSLOT[st%5]}, {v(vBW)}"]
    def breads(q):
        ks = q % 4; se = q % 4
        return [f"ds_read_b64_tr_b16 {v(BFR[se]+8,2)}, {v(vBWc)} offset:{(16*ks)*256}",
                f"ds_read_b64_tr_b16 {v(BFR[se]+10,2)}, {v(vBWc)} offset:{(16*ks+4)*256}",
                f"ds_read_b128 {v(BFR[se],4)}, {v(vBAc+ks)} offset:0",
                f"ds_read_b128 {v(BFR[se]+4,4)}, {v(vBAc+ks)} offset:4096"]
    def PKB(tile): return ACC + 16*tile if tile < 6 else 44 + 8*(tile - 6)
    def kvcvt(tile): return [f"v_cvt_pk_bf16_f32 {v(PKB(tile)+i)}, {v(ACC+16*tile+2*i)}, {v(ACC+16*tile+2*i+1)}" for i in range(8)]
    def kvstore(n):
        if os.environ.get("X_NOST"): return
        tb, r = n // 4, n % 4
        P(f"s_add_u32 {s(sSt)}, {s(sOutKV)}, {tb*8192}")
        P(f"buffer_store_dwordx4 {v(PKB(n//2) + 4*(n%2),4)}, {v(vL16)}, {s(sWS,4)}, {s(sSt)} offen offset:{r*1024} {'' if KVP else ST}", ("S", n))
    def bstore(n):
        tb, c = n // 2, n % 2
        P(f"s_add_u32 {s(sSt)}, {s(sOutB)}, {tb*120*1024}")
        P(f"buffer_store_dwordx4 {v(BPK+tb*8+4*c,4)}, {v(vL16)}, {s(sWS,4)}, {s(sSt)} offen offset:{c*1024} {ST}", ("S", 16+n))
    for x in baddr(0): P(x)
    P.wait_tag(lambda t: t == ("B", 0)); P("s_barrier")
    for r in breads(0) + breads(1): P(r)
    for x in kvcvt(6) + kvcvt(7): P(x)
    order = [6, 7, 4, 5, 0, 1, 2, 3]
    late = [lambda n=2*tl+h: kvstore(n) for tl in order for h in range(2)]
    cvts = sum([kvcvt(tl) for tl in order[2:]], [])
    SB = [int(c) for c in os.environ.get("SB", "2222222200" if KVP else "1111111111")]
    SQ = [int(c) for c in os.environ.get("SQ", "2200000000" if KVP else "2222200000")]
    PUB = int(os.environ.get("PUB", "5"))
    chunks[:] = list(ch2)
    NQ = 40
    for q in range(NQ):
        st, ks = q // 4, q % 4; se = q % 4
        mf = []
        for tb in range(2):
            d = v(BACC + tb*16, 16); c = "0" if q == 0 else d
            mf.append(f"v_mfma_f32_32x32x16_bf16 {d}, {v(BFR[se]+8,4)}, {v(BFR[se]+4*tb,4)}, {c}")
        fill = []
        if ks == 2:
            def sync(st=st):
                if st < 9: P.wait_tag(lambda t: t == ("B", st+1))
                P.wait_lds_all(); P("s_barrier")
                if st < 9:
                    for x in baddr(st+1): P(x)
            fill.append(sync)
        if q + 2 < NQ: fill += breads(q + 2)
        if q == 0: fill.insert(1, lambda: dma_b(3))
        if q == 1: fill.insert(1, lambda: dma_b(4))
        if q < 16:
            for i in range(3): fill.insert(1 + i, cvts.pop(0))
        if q < 16: fill.insert(len(fill)//2, lambda: emit_chunks(4)); fill.append(lambda: emit_chunks(4))
        def bl(st):
            if st <= 4: return [lambda: dma_b(st + 5, 0), lambda: dma_b(st + 5, 1)]
            if st == 7: return [lambda: dma_qw(0), lambda: dma_qw(1)]
            xs = {5: 0, 6: 1, 8: 2, 9: 3}[st]
            return [lambda: dma_x(xs, [0, 1]), lambda: dma_x(xs, [2, 3])]
        def bl1(st):
            if st <= 4: return [lambda h=h, i=i: dma_b(st + 5, h, [i]) for h in range(2) for i in range(2)]
            if st == 7: return [lambda a=a, i=i: dma_qw(a, [i]) for a in range(2) for i in range(2)]
            xs = {5: 0, 6: 1, 8: 2, 9: 3}[st]
            return [lambda i=i: dma_x(xs, [i]) for i in range(4)]
        BSP = os.environ.get("BSP", "0")
        if BSP == "0":
            if ks >= 2: fill.append(bl(st)[ks - 2])
        elif BSP == "1":
            if ks >= 2: fill.insert(2, bl1(st)[ks - 2])
            elif st >= 1: fill.insert(2, bl1(st - 1)[ks + 2])
            if st == 9 and ks == 3: fill += bl1(9)[2:]
        elif BSP == "2":
            if ks == 2:
                for i, f in enumerate(bl1(st)): fill.insert(1 + i, f)
        if ks == int(os.environ.get("BSK", "0")):
            for _ in range(SB[st]):
                if late: fill.append(late.pop(0))
        if q == 5: fill.append(lambda: (P(f"v_mov_b32 {v(T3)}, 0"), P(f"buffer_load_dwordx2 {v(8,2)}, {v(T3)}, {s(sDBG,4)}, 0 offen sc1")))
        if q == 29: fill.append(nonce_get)
        for f in pf_sched.get(100 + q, []): fill.append(f)
        interleave(P, mf, fill)
        if q == 15: assert not chunks, len(chunks)
    SP()
    QACC = 128; QFR = [192, 208, 224]
    def xaddr(st): return [f"v_add_u32 {v(vXc+i)}, {XSLOT[st%4]}, {v(vXr+i)}" for i in range(8)]
    def qreads(q):
        st, ks = q // 4, q % 4; se = q % 3
        def w(cb, i): return f"ds_read_b64_tr_b16 {v(QFR[se]+4*cb+2*i,2)}, {v(vQWr+cb)} offset:{(st%2)*16384 + (16*ks+4*i)*256}"
        def x(r): return f"ds_read_b128 {v(QFR[se]+8+4*r,4)}, {v(vXc+4*r+ks)} offset:0"
        return [w(0,0), w(0,1), x(0), w(1,0), w(1,1), x(1)]
    for x in xaddr(0): P(x)
    if KVP: P("s_waitcnt vmcnt(0)")
    P.wait_tag(lambda t: t in (("X", 0), ("Q", 0))); P("s_barrier")
    if KVP:
        dup[0] = True
        P(f"s_cmp_lg_u32 {s(sWV)}, 4"); P(f"s_cbranch_scc1 {name}_nowb")
        P.raw("buffer_wbl2 sc1")
        if PROF and os.environ.get("WBT"): P.raw("s_memtime s[96:97]"); P.raw("s_waitcnt vmcnt(0) lgkmcnt(0)"); P.raw("s_mov_b32 s3, s96"); P.raw("s_memtime s[96:97]"); P.raw("s_waitcnt lgkmcnt(0)"); P.raw("s_sub_u32 s3, s96, s3"); P.raw(f"v_writelane_b32 {v(vSTAMP)}, s3, 23")
        P.label(f"{name}_nowb")
    for r in qreads(0) + qreads(1): P(r)
    for tb in range(2):
        for i in range(8): P(f"v_cvt_pk_bf16_f32 {v(BPK+tb*8+i)}, {v(BACC+tb*16+2*i)}, {v(BACC+tb*16+2*i+1)}")
    for tb in range(2):
        b = BPK + tb*8
        for (x, y) in ((0,2),(1,3),(4,6),(5,7)): P(f"v_permlane32_swap_b32 {v(b+x)}, {v(b+y)}")
    late += [lambda n=n: bstore(n) for n in range(4)]
    def poll(soff, nfl, lab, own_off=False):
        P(f"s_mov_b32 {s(sT2)}, {int(os.environ.get('POLLMAX', '0x40000'), 0)}")
        if not own_off: P(f"v_lshrrev_b32 {v(T3)}, 1, {v(vL16)}")
        if nfl < 64: P(f"s_mov_b64 exec, {hex((1 << nfl) - 1)}")
        P.label(lab)
        P(f"buffer_load_dwordx2 {v(246,2)}, {v(T3)}, {s(sWS,4)}, {s(soff)} offen sc1")
        P("s_waitcnt vmcnt(0)")
        for i in range(2): P(f"v_xor_b32 {v(246+i)}, {s(sNON + i)}, {v(246+i)}")
        P(f"v_or_b32 {v(246)}, {v(246)}, {v(247)}")
        P(f"v_cmp_ne_u32 vcc, 0, {v(246)}")
        P(f"s_cbranch_vccz {lab}_ok")
        P("s_sleep 4")
        P(f"s_sub_u32 {s(sT2)}, {s(sT2)}, 1"); P(f"s_cmp_lg_u32 {s(sT2)}, 0"); P(f"s_cbranch_scc1 {lab}")
        P.label(lab + "_ok")
        if nfl < 64: P("s_mov_b64 exec, -1")
    ctx = dict(P=P, SP=SP, name=name, poll=poll, publish=publish)
    import attn
    early = attn.gen_attn(dict(ctx, early_only=True))
    vEX, sQS = 9, 92
    def setup3():
        P(f"s_mov_b32 {s(sQS)}, {fbits(QSCALE)}"); P(f"s_mov_b32 {s(sQS+1)}, {fbits(QSCALE)}")
        P(f"s_add_u32 {s(sT)}, {s(sM4)}, {131072}"); P(f"v_add_u32 {v(vEX)}, {s(sT)}, {v(vL16)}")
        early.setup(P)
    chunks[:] = record(setup3)
    EREQ = int(os.environ.get('EREQ', '30')); ETRY = int(os.environ.get('ETRY', '35'))
    for q in range(40):
        st, ks = q // 4, q % 4; se = q % 3
        mf = []
        for r in range(2):
            for cb in range(2):
                d = v(QACC + (r*2+cb)*16, 16); c = "0" if q == 0 else d
                mf.append(f"v_mfma_f32_32x32x16_bf16 {d}, {v(QFR[se]+4*cb,4)}, {v(QFR[se]+8+4*r,4)}, {c}")
        fill = []
        if ks == 2:
            def sync(st=st):
                if st < 9: P.wait_tag(lambda t: t in (("X", st+1), ("Q", st+1)))
                if st == PUB and KVP: guard(False, lambda: P.raw("s_waitcnt vmcnt(0)"))
                if st == PUB: P.wait_tag(lambda t: t is not None and t[0] == "S")
                P.wait_lds_all()
                if st < 9 or st == PUB: P("s_barrier")
                if st == PUB: publish([sFK, sFQ], f"{name}_pubk")
                if st < 9:
                    for x in xaddr(st+1): P(x)
            fill.append(sync)
        if q + 2 < 40: fill += qreads(q + 2)
        vm = []
        if ks == 2 and st + 2 <= 9: vm += [lambda i=i, st=st: dma_qw(st + 2, [i]) for i in range(2)]
        if ks in (3, 0):
            s0 = st if ks == 3 else st - 1
            if s0 >= 0 and s0 + 4 <= 9: vm += [lambda i=i, s0=s0: dma_x(s0 + 4, [i]) for i in ([0, 1] if ks == 3 else [2, 3])]
        if ks == SQK:
            for _ in range(SQ[st]):
                if late: vm.append(late.pop(0))
        if 22 <= q < 34: fill.insert(2, lambda: emit_chunks(5)); fill.append(lambda: emit_chunks(5))
        if q == 34: assert not chunks, len(chunks)
        if q == EREQ: vm.append(early.req)
        if q == ETRY: vm.append(early.try_); eops = early.ops()
        if q > ETRY:
            n = -(-len(eops) // (40 - q))
            vm += eops[:n]; eops = eops[n:]
        base = 1 if ks == 2 else 0
        stp = 3 if len(vm) <= 3 else 2
        for i, x in enumerate(vm): fill.insert(min(len(fill), base + 1 + i * stp), x)
        interleave(P, mf, fill)
    assert not late
    SP()
    early()
    SND = 96
    for i in range(32, 64, 2): P(f"v_pk_mul_f32 {v(QACC+i,2)}, {v(QACC+i,2)}, {s(sQS,2)}")
    for i in range(16): P(f"v_cvt_pk_bf16_f32 {v(SND+i)}, {v(QACC+32+2*i)}, {v(QACC+32+2*i+1)}")
    for i in range(4): P(f"ds_write_b128 {v(vEX)}, {v(SND+4*i,4)} offset:{i*1024}")
    for i in range(0, 32, 2): P(f"v_pk_mul_f32 {v(QACC+i,2)}, {v(QACC+i,2)}, {s(sQS,2)}")
    P(f"v_xor_b32 {v(vEX)}, 0x4000, {v(vEX)}")
    P("s_waitcnt lgkmcnt(0)"); P("s_barrier")
    for i in range(4): P(f"ds_read_b128 {v(16+4*i,4)}, {v(vEX)} offset:{i*1024}")
    for i in range(16): P(f"v_cvt_pk_bf16_f32 {v(i)}, {v(QACC+2*i)}, {v(QACC+2*i+1)}")
    attn.gen_attn(ctx)
    P.label("L_stop")
    SP(idx=13); SP(True); SP.flush()
    P.label(f"{name}_end"); P("s_endpgm")
    return kernel_desc(name, 256, sgpr=100)
```

```python
from fused import *
E = os.environ.get
XBF = int(E('XBF', '1')); NX = 5 if XBF else 10
XB = 72*MB
FX = 70*MB + 49152

def wof_prefetch(P):
    if E("WPF", "0") == "0": return
    P(f"s_lshl_b32 {s(sT)}, {s(sJ)}, 2"); P(f"s_add_u32 {s(sT)}, {s(sT)}, {s(sWV)}"); P(f"s_sub_u32 {s(sT)}, {s(sT)}, 4")
    P(f"s_lshr_b32 {s(sT2)}, {s(sT)}, 4"); P(f"s_mul_i32 {s(sT2)}, {s(sT2)}, {128*5120}")
    P(f"s_and_b32 {s(sT)}, {s(sT)}, 15"); P(f"s_mul_i32 {s(sT)}, {s(sT)}, 10240"); P(f"s_add_u32 {s(sT)}, {s(sT)}, {s(sT2)}")
    P(f"s_lshr_b32 {s(sT2)}, {s(sX)}, 1"); P(f"s_mul_i32 {s(sT2)}, {s(sT2)}, {32*5120}"); P(f"s_add_u32 {s(sT)}, {s(sT)}, {s(sT2)}")
    P(f"s_add_u32 {s(sT)}, {s(sT)}, {WOF}")
    for i in range(10):
        P.raw(f"buffer_load_dwordx4 v[16:19], {v(vL16)}, {s(sWS,4)}, {s(sT)} offen offset:{(i%4)*1024} {LD}"); P.vq.append((set(parse_reg("v[16:19]")), "pf"))
        if i % 4 == 3: P(f"s_add_u32 {s(sT)}, {s(sT)}, 4096")

def gen_out(ctx):
    P, SP, name = ctx["P"], ctx["SP"], ctx["name"]
    NS = 4
    CS = [i*16384 for i in range(NS)]; WS_ = [65536 + i*20480 for i in range(NS)]
    ACC, ACB, FRG, RCV = 0, 40, 52, 112
    vRC, vRW, vOut, vRCb, vRWb = 232, 233, 235, 236, 237
    sSrc, sTile, sM0 = sU0, sU2, sU1
    sQB, sCK, sR, sGrp, sSrcB, sTileB, sXo = sDOff, sDIdx, sDLim, sDBase, sSlot, sDM0, sSt
    NA, NB = 16, 5
    N = NA + NB
    P(f"s_lshr_b32 {s(sR)}, {s(sX)}, 1")
    if E("QMAP", "1") == "1":
        P(f"s_and_b32 {s(sQB)}, {s(sX)}, 1"); P(f"s_lshl_b32 {s(sT)}, {s(sG)}, 1"); P(f"s_add_u32 {s(sQB)}, {s(sQB)}, {s(sT)}")
        P(f"s_and_b32 {s(sCK)}, {s(sJ)}, 3")
    else:
        P(f"s_and_b32 {s(sQB)}, {s(sX)}, 1"); P(f"s_lshl_b32 {s(sQB)}, {s(sQB)}, 3"); P(f"s_and_b32 {s(sT)}, {s(sJ)}, 7"); P(f"s_add_u32 {s(sQB)}, {s(sQB)}, {s(sT)}")
        P(f"s_lshr_b32 {s(sCK)}, {s(sJ)}, 3")
    P(f"s_lshl_b32 {s(sGrp)}, {s(sQB)}, 2"); P(f"s_add_u32 {s(sGrp)}, {s(sGrp)}, {s(sCK)}")
    P(f"s_and_b32 {s(sT)}, {s(sWV)}, 2"); P(f"s_lshl_b32 {s(sT)}, {s(sT)}, 12"); P(f"s_and_b32 {s(sT2)}, {s(sWV)}, 1"); P(f"s_lshl_b32 {s(sT2)}, {s(sT2)}, 11")
    P(f"s_add_u32 {s(sT)}, {s(sT)}, {s(sT2)}"); P(f"v_add_u32 {v(vRC)}, {s(sT)}, {v(vL16)}")
    P(f"s_lshr_b32 {s(sT2)}, {s(sWV)}, 2"); P(f"s_mul_i32 {s(sT)}, {s(sT2)}, 10240"); P(f"s_add_u32 {s(sT)}, {s(sT)}, 65536"); P(f"v_add_u32 {v(vRW)}, {s(sT)}, {v(vL16)}")
    P(f"v_add_u32 {v(vRW+1)}, 40960, {v(vRW)}")
    P(f"s_mul_i32 {s(sT)}, {s(sT2)}, 3072"); P(f"s_add_u32 {s(sT)}, {s(sT)}, 65536"); P(f"v_add_u32 {v(vRWb)}, {s(sT)}, {v(vL16)}")
    P(f"v_add_u32 {v(vRWb+1)}, 40960, {v(vRWb)}")
    P(f"s_and_b32 {s(sT)}, {s(sWV)}, 3"); P(f"s_lshl_b32 {s(sT2)}, {s(sT)}, 10"); P(f"v_add_u32 {v(vRCb)}, {s(sT2)}, {v(vL16)}")
    bfe(P, T0, 0, 4); P(f"v_mul_u32_u24 {v(T0)}, 2560, {v(T0)}"); bfe(P, T1, 4, 2); P(f"v_lshl_add_u32 {v(vOut)}, {v(T1)}, 3, {v(T0)}")
    P(f"s_lshl_b32 {s(sTile)}, {s(sQB)}, 2"); P(f"s_add_u32 {s(sTile)}, {s(sTile)}, {s(sR)}"); P(f"s_mul_i32 {s(sTile)}, {s(sTile)}, {32*2560}")
    P(f"s_lshl_b32 {s(sT)}, {s(sCK)}, 1"); P(f"s_lshr_b32 {s(sT2)}, {s(sWV)}, 2"); P(f"s_add_u32 {s(sT)}, {s(sT)}, {s(sT2)}"); P(f"s_mul_i32 {s(sT)}, {s(sT)}, 160")
    P(f"s_add_u32 {s(sTile)}, {s(sTile)}, {s(sT)}")
    sTBb, sCBb = sOffA, sOffW
    P(f"s_lshl_b32 {s(sTBb)}, {s(sQB)}, 1"); P(f"s_lshr_b32 {s(sT)}, {s(sR)}, 1"); P(f"s_add_u32 {s(sTBb)}, {s(sTBb)}, {s(sT)}")
    P(f"s_lshl_b32 {s(sCBb)}, {s(sCK)}, 1"); P(f"s_and_b32 {s(sT)}, {s(sR)}, 1"); P(f"s_add_u32 {s(sCBb)}, {s(sCBb)}, {s(sT)}")
    P(f"s_lshl_b32 {s(sTileB)}, {s(sTBb)}, 2"); P(f"s_and_b32 {s(sT)}, {s(sWV)}, 3"); P(f"s_add_u32 {s(sTileB)}, {s(sTileB)}, {s(sT)}"); P(f"s_mul_i32 {s(sTileB)}, {s(sTileB)}, {16*2560}")
    P(f"s_mul_i32 {s(sT)}, {s(sCBb)}, 160"); P(f"s_add_u32 {s(sTileB)}, {s(sTileB)}, {s(sT)}")
    P(f"s_lshr_b32 {s(sT)}, {s(sWV)}, 2"); P(f"s_mul_i32 {s(sT)}, {s(sT)}, 96"); P(f"s_add_u32 {s(sTileB)}, {s(sTileB)}, {s(sT)}")
    P(f"s_cmp_lt_u32 {s(sWV)}, 4"); P(f"s_cbranch_scc0 {name}_o_lo")
    st0 = P.state()
    for role in ("hi", "lo"):
        nm = 3 if role == "hi" else 2
        unit = 4096 if role == "hi" else 5120
        if role == "lo": P.label(f"{name}_o_lo"); P.set_state(ctx["lo_state"])
        P(f"s_and_b32 {s(sT)}, {s(sWV)}, 3"); P(f"s_mul_i32 {s(sM0)}, {s(sT)}, {unit}")
        blk = sQB if role == "hi" else sCK
        P(f"s_lshl_b32 {s(sSrc)}, {s(blk)}, 1"); P(f"s_bfe_u32 {s(sT2)}, {s(sWV)}, 0x10001"); P(f"s_add_u32 {s(sSrc)}, {s(sSrc)}, {s(sT2)}")
        P(f"s_lshl_b32 {s(sSrc)}, {s(sSrc)}, 7"); P(f"s_lshl_b32 {s(sT2)}, {s(sR)}, 5"); P(f"s_add_u32 {s(sSrc)}, {s(sSrc)}, {s(sT2)}")
        P(f"s_and_b32 {s(sT2)}, {s(sWV)}, 1"); P(f"s_add_u32 {s(sSrc)}, {s(sSrc)}, {s(sT2)}")
        P(f"s_mul_i32 {s(sSrc)}, {s(sSrc)}, {unit}"); P(f"s_add_u32 {s(sSrc)}, {s(sSrc)}, {CTX if role == 'hi' else WOF}")
        P(f"s_mul_i32 {s(sSrcB)}, {s(sTBb if role == 'hi' else sCBb)}, {20*unit}"); P(f"s_add_u32 {s(sSrcB)}, {s(sSrcB)}, {s(sM0)}")
        P(f"s_add_u32 {s(sSrcB)}, {s(sSrcB)}, {BO if role == 'hi' else BWOF}")
        def dma_ops(st):
            if st >= N: return []
            src = sSrc if st < NA else sSrcB
            def ld(i, so): P(f"buffer_load_dwordx4 {v(vL16)}, {s(sWS,4)}, {s(so)} offen offset:{i*1024} {LD} lds", st)
            def pre():
                if st == NA and role == "hi": fb_check()
                P(f"s_add_u32 m0, {s(sM0)}, {(CS if role == 'hi' else WS_)[st%NS]}"); P(f"s_add_u32 {s(sTa)}, {s(src)}, 4096")
                ld(0, src)
            def last():
                if role == "lo":
                    P(f"s_add_u32 m0, m0, 4096"); P(f"s_add_u32 {s(src)}, {s(src)}, {(2 if st < NA else 4)*unit}"); ld(0, sTa)
                else: P(f"s_add_u32 {s(src)}, {s(src)}, {(2 if st < NA else 4)*unit}")
            return [pre, lambda: ld(1, src), lambda: ld(2, src), lambda: ld(3, src), last]
        def dma(st):
            for f in dma_ops(st): f()
        vFB = RCV
        def fb_off(): P(f"s_lshl_b32 {s(sT)}, {s(sTBb)}, 8"); P(f"s_add_u32 {s(sT)}, {s(sT)}, {FB}")
        def fb_req():
            fb_off(); P(f"v_lshrrev_b32 {v(T3)}, 1, {v(vL16)}"); P(f"v_and_b32 {v(T3)}, 0xf8, {v(T3)}")
            P(f"buffer_load_dwordx2 {v(vFB,2)}, {v(T3)}, {s(sWS,4)}, {s(sT)} offen sc1")
        def fb_check():
            P(f"v_xor_b32 {v(vFB)}, {s(sNON)}, {v(vFB)}"); P(f"v_xor_b32 {v(vFB+1)}, {s(sNON+1)}, {v(vFB+1)}"); P(f"v_or_b32 {v(vFB)}, {v(vFB)}, {v(vFB+1)}")
            P(f"v_cmp_ne_u32 vcc, 0, {v(vFB)}"); P(f"s_cbranch_vccz {name}_fbok")
            st = P.state(); fb_off(); ctx["poll"](sT, 32, f"{name}_poll4")
            P.label(f"{name}_fbok"); P.set_state(st)
        P("s_waitcnt lgkmcnt(0)"); P("s_barrier")
        if role == "hi":
            P(f"s_lshl_b32 {s(sT)}, {s(sQB)}, 10"); P(f"s_lshl_b32 {s(sT2)}, {s(sR)}, 6"); P(f"s_add_u32 {s(sT)}, {s(sT)}, {s(sT2)}"); P(f"s_add_u32 {s(sT)}, {s(sT)}, {FC}")
            bfe(P, T0, 3, 2); bfe(P, T1, 0, 3); P(f"v_lshlrev_b32 {v(T1)}, 3, {v(T1)}"); P(f"v_lshl_add_u32 {v(T3)}, {v(T0)}, 8, {v(T1)}")
            ctx["poll"](sT, 64, f"{name}_poll3", own_off=True)
        SP(idx=11)
        for st in range(NS): dma(st)
        def readsA(st, k, i):
            b = FRG + 28*(i % 2); sl = st % NS
            out = [f"ds_read_b128 {v(b+4*ii,4)}, {v(vRC)} offset:{CS[sl] + k*4096 + ii*1024}" for ii in range(2)]
            out += [f"ds_read_b128 {v(b+8+4*m,4)}, {v(vRW + sl//2)} offset:{(sl%2)*20480 + k*5120 + m*1024}" for m in range(5)]
            return [out[0], out[2], out[1]] + out[3:]
        def readsB(st, k, i):
            b = FRG + 28*(i % 2); sl = st % NS
            out = [f"ds_read_b128 {v(b,4)}, {v(vRCb)} offset:{CS[sl] + k*4096}"]
            out += [f"ds_read_b128 {v(b+4+4*m,4)}, {v(vRWb + sl//2)} offset:{(sl%2)*20480 + k*5120 + m*1024}" for m in range(nm)]
            return out
        def is_owner(lab, want):
            P(f"s_and_b32 {s(sT)}, {s(sWV)}, 3"); P(f"s_cmp_eq_u32 {s(sT)}, {s(sR)}"); P(f"s_cbranch_scc{0 if want else 1} {lab}")
        def send():
            lab = f"{name}_snd{role}"
            is_owner(lab, False)
            P(f"s_lshl_b32 {s(sXo)}, {s(sGrp)}, 2"); P(f"s_add_u32 {s(sXo)}, {s(sXo)}, {s(sT)}"); P(f"s_lshl_b32 {s(sXo)}, {s(sXo)}, 2"); P(f"s_add_u32 {s(sXo)}, {s(sXo)}, {s(sR)}")
            P(f"s_mul_i32 {s(sXo)}, {s(sXo)}, 20480"); P(f"s_add_u32 {s(sXo)}, {s(sXo)}, {XB + (0 if role == 'hi' else 10240)}")
            st = P.state()
            if XBF:
                for e in range(20): P(f"v_cvt_pk_bf16_f32 {v(ACC+e)}, {v(ACC+2*e)}, {v(ACC+2*e+1)}")
            for t in range(NX):
                P(f"buffer_store_dwordx4 {v(ACC+4*t,4)}, {v(vL16)}, {s(sWS,4)}, {s(sXo)} offen offset:{(t%4)*1024} {ST}", "x")
                if t % 4 == 3: P(f"s_add_u32 {s(sXo)}, {s(sXo)}, 4096")
            s2_ = P.state()
            P.label(lab); P.set_state(merge_states(st, s2_))
        def send_flag():
            lab = f"{name}_sfl{role}"
            is_owner(lab, False)
            st = P.state()
            P(f"s_lshl_b32 {s(sT2)}, {s(sGrp)}, 2"); P(f"s_add_u32 {s(sT)}, {s(sT)}, {s(sT2)}"); P(f"s_lshl_b32 {s(sT)}, {s(sT)}, 6")
            P(f"s_lshl_b32 {s(sT2)}, {s(sR)}, 3"); P(f"s_add_u32 {s(sT)}, {s(sT)}, {s(sT2)}"); P(f"s_add_u32 {s(sT)}, {s(sT)}, {FX + (0 if role == 'hi' else 32)}")
            P(f"v_mov_b32 {v(T0)}, {s(sNON)}"); P(f"v_mov_b32 {v(T1)}, {s(sNON+1)}"); P(f"v_mov_b32 {v(T2)}, 0")
            P.wait_tag(lambda t: t == "x")
            P("s_mov_b64 exec, 1")
            P(f"buffer_store_dwordx2 {v(T0,2)}, {v(T2)}, {s(sWS,4)}, {s(sT)} offen sc1")
            P("s_mov_b64 exec, -1")
            P.label(lab); P.set_state(st)
        sGot = sU3
        P(f"s_mov_b32 {s(sGot)}, 0")
        vFX = 238
        def fx_addr():
            P(f"s_lshl_b32 {s(sXo)}, {s(sGrp)}, 2"); P(f"s_add_u32 {s(sXo)}, {s(sXo)}, {s(sR)}")
            P(f"s_lshl_b32 {s(sT)}, {s(sXo)}, 6"); P(f"s_add_u32 {s(sT)}, {s(sT)}, {FX + (0 if role == 'hi' else 32)}")
            bfe(P, T0, 0, 2); P(f"v_min_u32 {v(T0)}, 2, {v(T0)}")
            P(f"v_add_u32 {v(T0)}, {s(sR)}, {v(T0)}"); P(f"v_add_u32 {v(T0)}, 1, {v(T0)}"); P(f"v_and_b32 {v(T0)}, 3, {v(T0)}"); P(f"v_lshlrev_b32 {v(T3)}, 3, {v(T0)}")
        def recv_loads():
            P(f"s_mul_i32 {s(sXo)}, {s(sXo)}, {4*20480}"); P(f"s_add_u32 {s(sXo)}, {s(sXo)}, {XB + (0 if role == 'hi' else 10240)}")
            for j in range(3):
                P(f"s_add_u32 {s(sT)}, {s(sR)}, {j+1}"); P(f"s_and_b32 {s(sT)}, {s(sT)}, 3"); P(f"s_mul_i32 {s(sT)}, {s(sT)}, 20480"); P(f"s_add_u32 {s(sT)}, {s(sT)}, {s(sXo)}")
                for tt in range(NX):
                    P(f"buffer_load_dwordx4 {v(RCV+40*j+4*tt,4)}, {v(vL16)}, {s(sWS,4)}, {s(sT)} offen offset:{(tt%4)*1024} {LD}")
                    if tt % 4 == 3: P(f"s_add_u32 {s(sT)}, {s(sT)}, 4096")
        def fx_req():
            lab = f"{name}_fxr{role}"; is_owner(lab, True); st = P.state()
            fx_addr(); P(f"buffer_load_dwordx2 {v(vFX,2)}, {v(T3)}, {s(sWS,4)}, {s(sT)} offen sc1")
            P.label(lab); P.set_state(st)
        def fx_try():
            lab = f"{name}_fxt{role}"; is_owner(lab, True); st = P.state()
            P("s_waitcnt vmcnt(0)")
            P(f"v_xor_b32 {v(vFX)}, {s(sNON)}, {v(vFX)}"); P(f"v_xor_b32 {v(vFX+1)}, {s(sNON+1)}, {v(vFX+1)}"); P(f"v_or_b32 {v(vFX)}, {v(vFX)}, {v(vFX+1)}")
            P(f"v_cmp_ne_u32 vcc, 0, {v(vFX)}"); P(f"s_cbranch_vccnz {lab}")
            P(f"s_mov_b32 {s(sGot)}, 1"); recv_loads()
            P.label(lab); P.set_state(st)
        XRQ, XTR = [tuple(int(c) for c in E(k_, d_)) for k_, d_ in (("XRQ", "33"), ("XTR", "41"))]
        steps = [(st, k) for st in range(NA) for k in range(2)] + [(st, k) for st in range(NA, N) for k in range(4)]
        def rd(i):
            st, k = steps[i]
            r = readsA(st, k, i) if st < NA else readsB(st, k, i)
            return r
        P.wait_tag(lambda t: t == 0); P("s_barrier")
        SP(idx=24)
        if role == "lo": ctx["bflag"]()
        for r in rd(0): P(r)
        pend = []
        for i, (st, k) in enumerate(steps):
            b = FRG + 28*(i % 2)
            mf = []
            if st < NA:
                for m in range(5):
                    for ii in range(2):
                        d = v(ACC + 4*(ii*5 + m), 4)
                        mf.append(f"v_mfma_f32_16x16x32_bf16 {d}, {v(b+8+4*m,4)}, {v(b+4*ii,4)}, {'0' if i == 0 else d}")
            else:
                for m in range(nm):
                    d = v(ACB + 4*m, 4)
                    mf.append(f"v_mfma_f32_16x16x32_bf16 {d}, {v(b+4+4*m,4)}, {v(b,4)}, {'0' if (st == NA and k == 0) else d}")
            fill = []
            lastk = (k == (1 if st < NA else 3))
            if lastk and st + 1 < N:
                def sync(st=st):
                    P.wait_tag(lambda t: t == st + 1); P.wait_lds_all(); P("s_barrier")
                fill.append(sync)
                pend = dma_ops(st + NS)
            if i + 1 < len(steps): fill += rd(i + 1)
            ntake = len(pend) if st >= NA and not lastk and k == 2 else (3 if st < NA else 2)
            take, pend = pend[:ntake], pend[ntake:]
            for j, f in enumerate(take): fill.insert(min(len(fill), (2 if lastk else 1) + 3*j), f)
            if role == "hi" and st == NA - NS - 3 and k == 0: fill.append(fb_req)
            if st == NA and k == 1: fill.append(send)
            if st == NA + int(E("SFL", "2")) and k == 2: fill.append(send_flag)
            if (st - NA, k) == XRQ: fill.append(fx_req)
            if (st - NA, k) == XTR: fill.append(fx_try)
            if E("P5NOMF"): mf = ["s_nop 0"] * len(mf)
            if E("P5NOLDS"): fill = [f for f in fill if callable(f)]
            interleave(P, mf, fill)
            if k == 0 and st in (4, 8, 12, NA): SP(idx={4: 25, 8: 26, 12: 27, NA: 28}[st])
        assert not pend
        SP(idx=12)
        for m in range(nm):
            r = ACB + 4*m
            P(f"v_cvt_pk_bf16_f32 {v(r)}, {v(r)}, {v(r+1)}"); P(f"v_cvt_pk_bf16_f32 {v(r+1)}, {v(r+2)}, {v(r+3)}")
            P(f"buffer_store_dwordx2 {v(r,2)}, {v(vOut)}, {s(sOUT,4)}, {s(sTileB)} offen offset:{m*32 + 1280}")
        is_owner(f"{name}_o_done", True)
        P(f"s_cmp_lg_u32 {s(sGot)}, 0"); P(f"s_cbranch_scc1 {name}_got{role}")
        fx_addr()
        ctx["poll"](sT, 3, f"{name}_poll5{role}", own_off=True)
        recv_loads()
        P.label(f"{name}_got{role}")
        SP(idx=29)
        P("s_waitcnt vmcnt(0)")
        if XBF:
            P(f"s_mov_b32 {s(sT)}, 0x3f80"); P(f"s_mov_b32 {s(sT2)}, 0x3f800000")
            for j in range(3):
                for e in range(20):
                    P(f"v_dot2_f32_bf16 {v(ACC+2*e)}, {v(RCV+40*j+e)}, {s(sT)}, {v(ACC+2*e)}")
                    P(f"v_dot2_f32_bf16 {v(ACC+2*e+1)}, {v(RCV+40*j+e)}, {s(sT2)}, {v(ACC+2*e+1)}")
        else:
            for j in range(3):
                for e in range(0, 40, 2): P(f"v_pk_add_f32 {v(ACC+e,2)}, {v(ACC+e,2)}, {v(RCV+40*j+e,2)}")
        P(f"s_add_u32 {s(sT)}, {s(sTile)}, {16*2560}")
        for t in range(10):
            i, m = t // 5, t % 5; r = ACC + 4*t
            P(f"v_cvt_pk_bf16_f32 {v(r)}, {v(r)}, {v(r+1)}"); P(f"v_cvt_pk_bf16_f32 {v(r+1)}, {v(r+2)}, {v(r+3)}")
            P(f"buffer_store_dwordx2 {v(r,2)}, {v(vOut)}, {s(sOUT,4)}, {s(sTile if i == 0 else sT)} offen offset:{m*32}")
        if role == "hi": P(f"s_branch {name}_o_done")
    P.label(f"{name}_o_done")
    if PROF: P("s_waitcnt vmcnt(0)")
```

```python
from common import *
import math
ST = os.environ.get("ST", "sc1")
LD = os.environ.get("LD", "sc1")
STOP = os.environ.get("STOP", "")
FK, FQ, FA, FC, FB = 70*MB, 70*MB + 4096, 70*MB + 8192, 70*MB + 16384, 70*MB + 32768
KVT = int(os.environ.get("KVT", "1"))
K16 = int(os.environ.get("K16", "1"))
KVP = int(os.environ.get("KVP", "0"))
HIDMA = int(os.environ.get("HIDMA", "0"))
SQK = int(os.environ.get("SQK", "3"))
STAG = int(os.environ.get("STAG", "1"))
QSPREAD = int(os.environ.get("QSPREAD", "1"))
PF1 = int(os.environ.get("PF1", "1")); PF2 = int(os.environ.get("PF2", "10"))
QSCALE = math.log2(math.e) / math.sqrt(128.0)
import struct
def fbits(x): return "0x%08x" % struct.unpack("<I", struct.pack("<f", x))[0]

sCKV, sWKV, sWS, sBX, sBW, sAX, sWQ, sWO, sBWO, sOUT, sDBG = 8, 12, 16, 20, 24, 28, 32, 36, 40, 44, 48
sX, sJ, sWV, sT, sT2, sTa, sTw, sM4, sM2 = 52, 53, 54, 55, 56, 57, 58, 59, 60
sOffA, sOffW, sOutKV, sOffBA, sOffBW, sOutB, sSt = 61, 62, 63, 4, 5, 66, 67
sOffX, sOffQW, sH, sG, sRow0, sJL, sREM, sNB = 68, 69, 70, 71, 72, 73, 74, 75
sSlot, sDOff, sDIdx, sDLim, sDBase, sTHR, sDM0 = 76, 77, 78, 79, 80, 81, 82
sNON = 84
sU0, sU1, sU2, sU3 = 86, 87, 88, 89
sM = 90
sFK, sFQ, sISV, sPF, sOffX2 = 94, 95, 83, 6, 99
sSTAMP = 96
vL16, vTID, vSTAMP = 240, 241, 255
T0, T1, T2, T3 = 242, 243, 244, 245

class Stamp:
    def __init__(self, P): self.P = P; self.n = 0
    def __call__(self, real=False, idx=None):
        if not PROF: return
        if idx is not None: self.n = idx
        if os.environ.get("RT"): real = True
        P = self.P
        P.raw(f"{'s_memrealtime' if real else 's_memtime'} {s(sSTAMP,2)}"); P("s_waitcnt lgkmcnt(0)")
        P.raw(f"v_writelane_b32 {v(vSTAMP)}, {s(sSTAMP)}, {self.n}")
        if os.environ.get("STOPAT") == str(self.n): P.raw("s_waitcnt vmcnt(0)"); P.raw("s_branch L_stop")
        self.n += 1
    def flush(self):
        if not PROF: return
        P = self.P
        if os.environ.get("DBGOUT"):
            P.raw(f"s_cmp_lg_u32 s2, {os.environ['DBGOUT']}"); P.raw("s_cbranch_scc1 L_nodbg"); P.raw(f"s_cmp_lg_u32 {s(sWV)}, 0"); P.raw("s_cbranch_scc1 L_nodbg")
            P.raw(f"v_readlane_b32 s3, {v(vSTAMP)}, 0"); P.raw("s_nop 3"); P.raw(f"v_subrev_u32 {v(T0)}, s3, {v(vSTAMP)}")
            P.raw(f"v_lshrrev_b32 {v(T1)}, 2, {v(vL16)}"); P.raw("s_mov_b64 exec, 0x3ffe"); P.raw("s_nop 1")
            P.raw(f"buffer_store_dword {v(T0)}, {v(T1)}, {s(sDBG,4)}, 0 offen offset:4")
            P.raw("s_mov_b64 exec, -1")
            P.raw("L_nodbg:")
            return
        P.raw(f"s_lshl_b32 s3, s2, 3"); P.raw(f"s_add_u32 s3, s3, {s(sWV)}"); P.raw("s_lshl_b32 s3, s3, 8")
        P.raw(f"s_add_u32 s3, s3, {PROFOFF}")
        P.raw(f"v_lshrrev_b32 {v(T0)}, 2, {v(vL16)}"); P.raw("s_nop 1")
        P.raw(f"buffer_store_dword {v(vSTAMP)}, {v(T0)}, {s(sWS,4)}, s3 offen")

def bfe(P, dst, off, n): P(f"v_bfe_u32 {v(dst)}, {v(vTID)}, {off}, {n}")

def act_voff(P, dst, i, stride):
    bfe(P, T0, 4, 2)
    if i % 2: P(f"v_xor_b32 {v(T0)}, 4, {v(T0)}")
    bfe(P, T1, 0, 3); P(f"v_xor_b32 {v(T0)}, {v(T0)}, {v(T1)}"); P(f"v_lshlrev_b32 {v(T0)}, 4, {v(T0)}")
    bfe(P, T1, 3, 3)
    P(f"v_mul_u32_u24 {v(T1)}, {stride}, {v(T1)}")
    P(f"v_add_u32 {v(T0)}, {v(T0)}, {v(T1)}")
    P(f"v_add_u32 {v(dst)}, {8*i*stride - i*1024}, {v(T0)}")
def w256_voff(P, dst, i, stride):
    bfe(P, T0, 4, 2); bfe(P, T1, 2, 2)
    P(f"v_xor_b32 {v(T1)}, {v(T1)}, {v(T0)}"); P(f"v_lshlrev_b32 {v(T1)}, 6, {v(T1)}")
    bfe(P, T2, 0, 2); P(f"v_lshl_add_u32 {v(T1)}, {v(T2)}, 4, {v(T1)}")
    P(f"v_mul_u32_u24 {v(T0)}, {stride}, {v(T0)}")
    P(f"v_add_u32 {v(T1)}, {v(T1)}, {v(T0)}")
    P(f"v_add_u32 {v(dst)}, {4*i*stride - i*1024}, {v(T1)}")
def w512_voff(P, dst, i, stride_log):
    bfe(P, T2, 5, 1)
    P(f"v_add_u32 {v(T0)}, {2*i}, {v(T2)}")
    bfe(P, T1, 2, 3); P(f"v_xor_b32 {v(T1)}, {v(T1)}, {v(T0)}"); P(f"v_lshlrev_b32 {v(T1)}, 6, {v(T1)}")
    bfe(P, T0, 0, 2); P(f"v_lshl_add_u32 {v(T1)}, {v(T0)}, 4, {v(T1)}")
    P(f"v_lshl_add_u32 {v(T1)}, {v(T2)}, {stride_log}, {v(T1)}")
    P(f"v_add_u32 {v(dst)}, {(2*i << stride_log) - i*1024}, {v(T1)}")
def w512_voff16(P, dst, i, stride_log, sb3):
    bfe(P, T2, 5, 1)
    P(f"v_add_u32 {v(T0)}, {2*i}, {v(T2)}"); P(f"v_lshl_add_u32 {v(T0)}, {v(T0)}, 2, {sb3}")
    bfe(P, T1, 0, 5); P(f"v_xor_b32 {v(T1)}, {v(T1)}, {v(T0)}"); P(f"v_lshlrev_b32 {v(T1)}, 4, {v(T1)}")
    P(f"v_lshl_add_u32 {v(T1)}, {v(T2)}, {stride_log}, {v(T1)}")
    P(f"v_add_u32 {v(dst)}, {(2*i << stride_log) - i*1024}, {v(T1)}")
def act_raddr16(P, dst, ks, sbase):
    bfe(P, T0, 4, 2); P(f"v_add_u32 {v(T0)}, {4*ks}, {v(T0)}"); bfe(P, T1, 1, 3)
    P(f"v_xor_b32 {v(T0)}, {v(T0)}, {v(T1)}"); P(f"v_lshlrev_b32 {v(T0)}, 4, {v(T0)}")
    bfe(P, T1, 0, 4); P(f"v_lshl_add_u32 {v(T0)}, {v(T1)}, 7, {v(T0)}")
    P(f"v_add_u32 {v(dst)}, {sbase}, {v(T0)}")
def w_raddr16(P, dst, blk, rowlog, base):
    bfe(P, T0, 2, 2); bfe(P, T2, 4, 1); P(f"v_lshl_add_u32 {v(T1)}, {v(T0)}, 1, {v(T2)}")
    P(f"v_xor_b32 {v(T1)}, {blk}, {v(T1)}"); P(f"v_lshlrev_b32 {v(T1)}, 5, {v(T1)}")
    bfe(P, T2, 4, 2); P(f"v_lshl_add_u32 {v(T0)}, {v(T2)}, 3, {v(T0)}"); P(f"v_lshl_add_u32 {v(T1)}, {v(T0)}, {rowlog}, {v(T1)}")
    bfe(P, T0, 0, 2); P(f"v_lshl_add_u32 {v(T1)}, {v(T0)}, 3, {v(T1)}")
    P(f"v_add_u32 {v(dst)}, {base}, {v(T1)}")
def act_raddr(P, dst, ks, sbase):
    bfe(P, T0, 5, 1); P(f"v_add_u32 {v(T0)}, {2*ks}, {v(T0)}"); bfe(P, T1, 1, 3)
    P(f"v_xor_b32 {v(T0)}, {v(T0)}, {v(T1)}"); P(f"v_lshlrev_b32 {v(T0)}, 4, {v(T0)}")
    bfe(P, T1, 0, 5); P(f"v_lshl_add_u32 {v(T0)}, {v(T1)}, 7, {v(T0)}")
    P(f"v_add_u32 {v(dst)}, {sbase}, {v(T0)}")
def w_raddr(P, dst, unit, rowlog, base):
    bfe(P, T0, 2, 2); P(f"v_xor_b32 {v(T1)}, {unit}, {v(T0)}"); P(f"v_lshlrev_b32 {v(T1)}, 6, {v(T1)}")
    bfe(P, T2, 5, 1); P(f"v_lshl_add_u32 {v(T0)}, {v(T2)}, 3, {v(T0)}"); P(f"v_lshl_add_u32 {v(T1)}, {v(T0)}, {rowlog}, {v(T1)}")
    bfe(P, T0, 4, 1); P(f"v_lshl_add_u32 {v(T1)}, {v(T0)}, 5, {v(T1)}")
    bfe(P, T0, 0, 2); P(f"v_lshl_add_u32 {v(T1)}, {v(T0)}, 3, {v(T1)}")
    P(f"v_add_u32 {v(dst)}, {base}, {v(T1)}")

def gen(P, name):
    kernel_start(P, name, 256)
    SP = Stamp(P)
    if PROF: P.raw("s_memrealtime s[98:99]")
    P(f"s_load_dwordx16 s[64:79], s[0:1], 0"); P(f"s_load_dwordx8 s[80:87], s[0:1], 64")
    P(f"v_mov_b32 {v(vTID)}, v0")
    P(f"v_lshrrev_b32 v1, 6, v0")
    P(f"s_and_b32 {s(sX)}, s2, 7"); P(f"s_lshr_b32 {s(sJ)}, s2, 3")
    P(f"v_readfirstlane_b32 {s(sWV)}, v1")
    P(f"v_and_b32 v1, 63, v0"); P(f"v_lshlrev_b32 {v(vL16)}, 4, v1")
    vA, vA2, vW, voffA, voffW, voffBA, voffBW, vBA, vBW, vBAc, vBWc = 10, 14, 18, 20, 24, 26, 28, 32, 36, 37, 41
    voffX, voffQW, vXr, vQWr, vXc = 10, 14, 16, 24, 0
    vPF = 60
    for i in range(4): act_voff(P, voffA + i, i, 1024)
    if K16:
        P(f"s_and_b32 {s(sT)}, {s(sWV)}, 2")
        for i in range(2): w512_voff16(P, voffW + i, i, 13, s(sT))
    else:
        for i in range(2): w512_voff(P, voffW + i, i, 13)
    sMT, sNT, sH0 = sU2, sU3, 3
    P(f"s_and_b32 {s(sMT)}, {s(sJ)}, 7"); P(f"s_lshr_b32 {s(sNT)}, {s(sJ)}, 3")
    P(f"s_lshl_b32 {s(sM4)}, {s(sWV)}, 12"); P(f"s_lshl_b32 {s(sM2)}, {s(sWV)}, 11")
    P(f"s_and_b32 {s(sH0)}, {s(sNT)}, 1"); P(f"s_lshl_b32 {s(sH0)}, {s(sH0)}, 1"); P(f"s_lshl_b32 {s(sT2)}, {s(sX)}, 2"); P(f"s_add_u32 {s(sH0)}, {s(sH0)}, {s(sT2)}")
    P(f"s_lshl_b32 {s(sOffW)}, {s(sH0)}, 8"); P(f"s_lshl_b32 {s(sT2)}, {s(sWV)}, 15"); P(f"s_add_u32 {s(sOffW)}, {s(sOffW)}, {s(sT2)}")
    P(f"s_lshl_b32 {s(sOffA)}, {s(sMT)}, 18"); P(f"s_add_u32 {s(sOffA)}, {s(sOffA)}, {s(sT2)}")
    P("s_waitcnt lgkmcnt(0)")
    if os.environ.get("STOPAT") in ("1", "2"): make_srd(P, sWS, 86, SZ["ws"])
    SP(True)
    if PROF: P.raw(f"v_writelane_b32 {v(vSTAMP)}, s98, 0")
    SP()
    if PROF: P.raw(f"v_writelane_b32 {v(vSTAMP)}, s98, 0")
    make_srd(P, sCKV, 66, SZ["A_ckv"])
    P(f"s_cmp_ge_u32 {s(sNT)}, 2")
    P(f"s_cselect_b32 {s(sWKV)}, s72, s70"); P(f"s_cselect_b32 {s(sWKV+1)}, s73, s71")
    P(f"s_mov_b32 {s(sWKV+2)}, {SZ['A_wuk']}"); P(f"s_mov_b32 {s(sWKV+3)}, 0x20000")

    ASLOT = [0, 32768, 65536]; WSLOT = [98304 + 16384*i for i in range(4)]
    BSLOT = [65536, 0, 98304, 32768, 131072]
    XSLOT = [65536, 0, 32768, 131072]; QSLOT = [98304, 114688]
    gid = [0]
    def guard(hi, fn, sim=True):
        gid[0] += 1; lab = f"{name}_g{gid[0]}"
        P(f"s_cmp_lt_u32 {s(sWV)}, 4"); P(f"s_cbranch_scc{0 if hi else 1} {lab}")
        st = P.state(); fn(); P.label(lab)
        if not sim: P.set_state(st)
    def dma1(voff, srd, soff_reg, soff_base, soff_add, m0base, m0add, part, tag):
        P(f"s_add_u32 m0, {s(m0base)}, {m0add}")
        P(f"s_add_u32 {s(soff_reg)}, {s(soff_base)}, {soff_add}")
        for i in part: P(f"buffer_load_dwordx4 {v(voff+i)}, {s(srd,4)}, {s(soff_reg)} offen offset:{i*1024} lds", tag)
    dup = [bool(HIDMA)]
    DUP = {sOffA: 4 << 15, sOffW: 4 << 15, sOffBA: 4*16*1280, sOffBW: 4*8*3840, sOffQW: 4 << 16}
    def dma(voff, srd, soff_reg, soff_base, soff_add, m0base, m0add, part, tag):
        if not dup[0]: return dma1(voff, srd, soff_reg, soff_base, soff_add, m0base, m0add, part, tag)
        def f():
            dma1(voff, srd, soff_reg, soff_base, soff_add, m0base, m0add, part, tag)
            if soff_base == sOffX: return dma1(voff, srd, soff_reg, sOffX2, soff_add, m0base, m0add + 16384, part, tag)
            dma1(voff, srd, soff_reg, soff_base, soff_add + DUP[soff_base], m0base, m0add + (16384 if m0base == sM4 else 8192), part, tag)
        guard(True, f)
    def dma_act(st, part=range(4)): dma(voffA, sCKV, sTa, sOffA, st*128, sM4, ASLOT[st%3], part, ("A", st))
    def dma_w(h): dma(voffW, sWKV, sTw, sOffW, h*32*8192, sM2, WSLOT[h%4], range(2), ("W", h))
    def dma_b(st, half=None, part=range(2)):
        if half != 1: dma(voffBA, sBX, sTa, sOffBA, st*128, sM2, BSLOT[st%5], part, ("B", st))
        if half != 0: dma(voffBW, sBW, sTw, sOffBW, st*64*3840, sM2, BSLOT[st%5]+16384, part, ("B", st))
    def dma_x(st, part=range(4)): dma(voffX, sAX, sTa, sOffX, st*128, sM4, XSLOT[st%4], part, ("X", st))
    def dma_qw(st, part=range(2)): dma(voffQW, sWQ, sTw, sOffQW, st*64*8192, sM2, QSLOT[st%2], part, ("Q", st))
    dma_w(0); dma_act(0)
    P("s_barrier")
    dma_w(1)
    P(f"s_and_b32 {s(sT)}, {s(sWV)}, 1"); P(f"s_lshl_b32 {s(sT2)}, {s(sT)}, 14")
    vW16, vKVo = 16, 43
    if K16:
        for ks in range(2): act_raddr16(P, vA + ks, ks, s(sT2))
        P(f"s_and_b32 {s(sT)}, {s(sWV)}, 6"); P(f"s_lshl_b32 {s(sT)}, {s(sT)}, 1")
        for cb in range(4):
            P(f"s_add_u32 {s(sT2)}, {s(sT)}, {cb}")
            w_raddr16(P, vW16 + cb, s(sT2), 9, 98304)
    else:
        for ks in range(4): act_raddr(P, vA + ks, ks, s(sT2))
        P(f"s_and_b32 {s(sT)}, {s(sWV)}, 6")
        for cb in range(2):
            P(f"s_add_u32 {s(sT2)}, {s(sT)}, {cb}")
            w_raddr(P, vW + cb, s(sT2), 9, 98304)
    dma_act(1)
    def record(fn):
        nonlocal P
        PM = P; P = Prog(); P.auto = False
        fn()
        txt = [i.text for i in P.ins]; P = PM
        ch = []
        for x in txt:
            if x.startswith("s_cselect"): ch[-1].append(x)
            else: ch.append([x])
        return ch
    sCB, sTB = 64, 65
    def setup1():
        for ks in range(2 if K16 else 4): P(f"v_add_u32 {v(vA2+ks)}, 0x10000, {v(vA+ks)}")
        if K16:
            bfe(P, T0, 5, 1); bfe(P, T1, 4, 1); P(f"v_lshlrev_b32 {v(T1)}, 9, {v(T1)}"); P(f"v_lshl_add_u32 {v(T0)}, {v(T0)}, 10, {v(T1)}")
            bfe(P, T1, 0, 4); P(f"v_lshl_add_u32 {v(vKVo)}, {v(T1)}, 4, {v(T0)}")
        make_srd(P, sWS, 86, SZ["ws"]); make_srd(P, sBX, 76, SZ["B_x"]); make_srd(P, sBW, 78, SZ["B_wqkv"])
        make_srd(P, sAX, 64, SZ["A_x"]); make_srd(P, sWQ, 68, SZ["A_wq"]); make_srd(P, sWO, 74, SZ["A_wo"])
        make_srd(P, sBWO, 80, SZ["B_wo"]); make_srd(P, sOUT, 82, SZ["out"]); make_srd(P, sDBG, 84, SZ["dbg"])
        P.raw("; NONCE")
        P(f"s_min_u32 {s(sT)}, {s(sJ)}, 29"); P(f"s_and_b32 {s(sT2)}, {s(sX)}, 1"); P(f"s_mul_i32 {s(sT2)}, {s(sT2)}, 30"); P(f"s_add_u32 {s(sT)}, {s(sT)}, {s(sT2)}")
        P(f"s_lshr_b32 {s(sCB)}, {s(sT)}, 2"); P(f"s_and_b32 {s(sTB)}, {s(sT)}, 3")
        P(f"s_lshr_b32 {s(sT2)}, {s(sX)}, 1"); P(f"s_lshl_b32 {s(sT2)}, {s(sT2)}, 2"); P(f"s_add_u32 {s(sTB)}, {s(sTB)}, {s(sT2)}")
        P(f"s_lshl_b32 {s(sT)}, {s(sTB)}, 3"); P(f"s_add_u32 {s(sT)}, {s(sT)}, {s(sWV)}"); P(f"s_mul_i32 {s(sOffBA)}, {s(sT)}, {16*1280}")
        P(f"s_mul_i32 {s(sOffBW)}, {s(sWV)}, {8*3840}"); P(f"s_lshl_b32 {s(sT)}, {s(sCB)}, 8"); P(f"s_add_u32 {s(sOffBW)}, {s(sOffBW)}, {s(sT)}")
        P(f"s_and_b32 {s(sT2)}, {s(sWV)}, 1"); P(f"s_lshl_b32 {s(sT)}, {s(sTB)}, 1"); P(f"s_add_u32 {s(sT)}, {s(sT)}, {s(sT2)}"); P(f"s_mul_i32 {s(sOutB)}, {s(sT)}, {2*120*1024}")
        P(f"s_lshr_b32 {s(sT2)}, {s(sWV)}, 1"); P(f"s_lshl_b32 {s(sT)}, {s(sCB)}, 2"); P(f"s_add_u32 {s(sT)}, {s(sT)}, {s(sT2)}"); P(f"s_lshl_b32 {s(sT)}, {s(sT)}, 11")
        P(f"s_add_u32 {s(sOutB)}, {s(sOutB)}, {s(sT)}"); P(f"s_add_u32 {s(sOutB)}, {s(sOutB)}, {QKV}")
        P(f"s_lshl_b32 {s(sFQ)}, {s(sTB)}, 7"); P(f"s_lshl_b32 {s(sT)}, {s(sCB)}, 3"); P(f"s_add_u32 {s(sFQ)}, {s(sFQ)}, {s(sT)}"); P(f"s_add_u32 {s(sFQ)}, {s(sFQ)}, {FQ}")
        P(f"s_lshl_b32 {s(sFK)}, {s(sH0)}, 6"); P(f"s_lshr_b32 {s(sT2)}, {s(sNT)}, 1"); P(f"s_lshl_b32 {s(sT2)}, {s(sT2)}, 3"); P(f"s_add_u32 {s(sT2)}, {s(sT2)}, {s(sMT)}")
        P(f"s_lshl_b32 {s(sT2)}, {s(sT2)}, 3"); P(f"s_add_u32 {s(sFK)}, {s(sFK)}, {s(sT2)}"); P(f"s_add_u32 {s(sFK)}, {s(sFK)}, {FK}")
        P(f"s_lshr_b32 {s(sT2)}, {s(sWV)}, 2"); P(f"s_add_u32 {s(sT)}, {s(sH0)}, {s(sT2)}"); P(f"s_lshl_b32 {s(sOutKV)}, {s(sT)}, 19")
        P(f"s_lshl_b32 {s(sT)}, {s(sMT)}, 16"); P(f"s_add_u32 {s(sOutKV)}, {s(sOutKV)}, {s(sT)}")
        P(f"s_and_b32 {s(sT)}, {s(sWV)}, 1"); P(f"s_lshl_b32 {s(sT)}, {s(sT)}, 15"); P(f"s_add_u32 {s(sOutKV)}, {s(sOutKV)}, {s(sT)}")
        P(f"s_and_b32 {s(sT)}, {s(sWV)}, 2"); P(f"s_lshl_b32 {s(sT)}, {s(sT)}, 11"); P(f"s_add_u32 {s(sOutKV)}, {s(sOutKV)}, {s(sT)}")
        P(f"s_lshr_b32 {s(sT)}, {s(sNT)}, 1"); P(f"s_lshl_b32 {s(sT)}, {s(sT)}, 24"); P(f"s_add_u32 {s(sOutKV)}, {s(sOutKV)}, {s(sT)}")
        P(f"s_and_b32 {s(sH)}, {s(sJ)}, 3"); P(f"s_lshl_b32 {s(sT)}, {s(sX)}, 2"); P(f"s_add_u32 {s(sH)}, {s(sH)}, {s(sT)}")
        P(f"s_lshr_b32 {s(sG)}, {s(sJ)}, 2")
        P(f"s_lshl_b32 {s(sT)}, {s(sG)}, 2"); P(f"s_add_u32 {s(sT)}, {s(sT)}, {s(sWV)}")
        P(f"s_sub_u32 {s(sT2)}, 63, {s(sT)}"); P(f"s_sub_u32 {s(sT)}, {s(sT)}, 4")
        P(f"s_cmp_lt_u32 {s(sWV)}, 4"); P(f"s_cselect_b32 {s(sJL)}, {s(sT2)}, {s(sT)}")
        P(f"s_lshl_b32 {s(sRow0)}, {s(sJL)}, 5")
        P(f"s_mul_i32 {s(sOffX)}, {s(sRow0)}, 1280")
        P(f"s_mul_i32 {s(sOffX2)}, {s(sT)}, {32*1280}"); P(f"s_add_u32 {s(sOffX2)}, {s(sOffX2)}, {4*32*1280}")
        P(f"s_lshl_b32 {s(sOffQW)}, {s(sH)}, 8"); P(f"s_lshl_b32 {s(sT)}, {s(sWV)}, 16"); P(f"s_add_u32 {s(sOffQW)}, {s(sOffQW)}, {s(sT)}")
        for i in range(2): act_voff(P, voffBA + i, i, 1280)
        for i in range(2): w256_voff(P, voffBW + i, i, 3840)
        P(f"s_and_b32 {s(sT)}, {s(sWV)}, 1"); P(f"s_lshl_b32 {s(sT)}, {s(sT)}, 13")
        for ks in range(4): act_raddr(P, vBA + ks, ks, s(sT))
        P(f"s_lshr_b32 {s(sT2)}, {s(sWV)}, 1")
        w_raddr(P, vBW, s(sT2), 8, 16384)
    def setup2():
        for i in range(4): act_voff(P, voffX + i, i, 1280)
        for i in range(2): w256_voff(P, voffQW + i, i, 8192)
        P(f"s_lshr_b32 {s(sT)}, {s(sWV)}, 2"); P(f"s_lshl_b32 {s(sT)}, {s(sT)}, 1")
        for cb in range(2):
            P(f"s_add_u32 {s(sT2)}, {s(sT)}, {cb}")
            w_raddr(P, vQWr + cb, s(sT2), 8, 98304)
        P(f"s_xor_b32 {s(sT)}, {s(sM4)}, 0x4000")
        for ks in range(4):
            act_raddr(P, vXr + ks, ks, s(sM4))
            P(f"v_add_u32 {v(vXr+4+ks)}, {s(sT)}, {v(T0)}")
    ch1, ch2 = record(setup1), record(setup2)
    chunks = []
    lab_id = [0]
    def nonce():
        lab_id[0] += 1; lab = f"{name}_nonon{lab_id[0]}"
        P(f"s_lshl_b32 {s(sT)}, s2, 3"); P(f"s_add_u32 {s(sT)}, {s(sT)}, {s(sWV)}")
        P(f"s_cmp_lg_u32 {s(sT)}, 4"); P(f"s_cbranch_scc1 {lab}")
        P.raw(f"s_memrealtime {s(sNON,2)}"); P("s_waitcnt lgkmcnt(0)")
        P(f"s_or_b32 {s(sNON)}, {s(sNON)}, 1")
        P(f"v_mov_b32 v4, {s(sNON)}"); P(f"v_mov_b32 v5, {s(sNON+1)}"); P("v_mov_b32 v8, 0")
        P("s_mov_b64 exec, 1")
        P.raw(f"buffer_store_dwordx2 v[4:5], v8, {s(sDBG,4)}, 0 offen sc1")
        P("s_mov_b64 exec, -1")
        P.label(lab)
    def nonce_get():
        lab_id[0] += 1; lab = f"{name}_nget{lab_id[0]}"
        P(f"v_readfirstlane_b32 {s(sNON)}, v8"); P(f"v_readfirstlane_b32 {s(sNON+1)}, v9")
        P(f"s_cmp_lg_u32 {s(sNON)}, 0"); P(f"s_cbranch_scc1 {lab}_ok")
        P.raw(f"s_mov_b32 {s(sT2)}, {int(os.environ.get('POLLMAX', '0x40000'), 0)}")
        P.label(lab)
        P.raw(f"buffer_load_dwordx2 {v(8,2)}, {v(T3)}, {s(sDBG,4)}, 0 offen sc1"); P.raw("s_waitcnt vmcnt(0)")
        P.raw(f"v_readfirstlane_b32 {s(sNON)}, v8"); P.raw(f"v_readfirstlane_b32 {s(sNON+1)}, v9")
        P.raw(f"s_sub_u32 {s(sT2)}, {s(sT2)}, 1"); P.raw(f"s_cbranch_scc1 {lab}_ok")
        P.raw(f"s_cmp_eq_u32 {s(sNON)}, 0"); P.raw(f"s_cbranch_scc1 {lab}")
        P.label(lab + "_ok")
    def emit_chunks(n):
        for _ in range(n):
            if not chunks: return
            c = chunks.pop(0)
            if c[0] == "; NONCE":
                st = P.state(); nonce(); P.set_state(st)
            else:
                for x in c: P(x)
    def publish(sreg, lab):
        P(f"s_cmp_lg_u32 {s(sWV)}, 4"); P(f"s_cbranch_scc1 {lab}")
        P(f"v_mov_b32 v114, {s(sNON)}"); P(f"v_mov_b32 v115, {s(sNON+1)}"); P(f"v_mov_b32 v116, 0")
        P("s_mov_b64 exec, 1")
        for r in (sreg if isinstance(sreg, list) else [sreg]):
            P.raw(f"buffer_store_dwordx2 v[114:115], v116, {s(sWS,4)}, {s(r)} offen sc1")
        P("s_mov_b64 exec, -1")
        P.label(lab)
    def pf(srd, idx_kind, mul, add, xmul=0):
        def one(delta):
            if idx_kind == "xcd": P(f"s_lshl_b32 {s(sPF)}, {s(sJ)}, 3")
            else: P(f"s_lshl_b32 {s(sPF)}, s2, 3")
            P(f"s_add_u32 {s(sPF)}, {s(sPF)}, {s(sWV)}")
            if delta: P(f"s_sub_u32 {s(sPF)}, {s(sPF)}, {delta}")
            P(f"s_mul_i32 {s(sPF)}, {s(sPF)}, {mul}")
            if callable(add): add()
            elif add: P(f"s_add_u32 {s(sPF)}, {s(sPF)}, {add}")
            P.raw(f"buffer_load_dwordx4 {v(vPF,4)}, {v(vL16)}, {s(srd,4)}, {s(sPF)} offen")
        if HIDMA: guard(False, lambda: (one(0), one(4)), sim=False)
        else: one(0); P.vq.append((set(), "pf"))
    def addx(shift, mul, const):
        def f():
            if shift == "lo": P(f"s_and_b32 {s(7)}, {s(sX)}, 1")
            else: P(f"s_lshr_b32 {s(7)}, {s(sX)}, {shift}")
            P(f"s_mul_i32 {s(7)}, {s(7)}, {mul}"); P(f"s_add_u32 {s(sPF)}, {s(sPF)}, {s(7)}")
            if const: P(f"s_add_u32 {s(sPF)}, {s(sPF)}, {const}")
        return f
    pf_xm = [lambda i=i: pf(sAX, "chip", 1280, i*1024) for i in range(2)]
    pf_xl = [lambda i=i: pf(sAX, "xcd", 10240, i*1024) for i in range(10)]
    pf_wq = [lambda i=i: pf(sWQ, "xcd", 3*8192, addx(0, 1024, i*8192)) for i in range(3)]
    pf_bx = [lambda i=i: pf(sBX, "xcd", 2560, addx(1, 512*1280, i*1024)) for i in range(3)]
    pf_bw = [lambda i=i, c=c: pf(sBW, "xcd", 3*3840, addx("lo", 1792, i*3840 + c*1024)) for i in range(3) for c in range(2)]
    pf_wo = [lambda i=i: pf(sWO, "chip", 2560, i*1024) for i in range(3)] + [lambda: pf(sBWO, "chip", 1024, 0)]
    def pf_tlb():
        def f():
            P(f"v_lshrrev_b32 {v(vPF)}, 4, {v(vL16)}"); P(f"v_mul_u32_u24 {v(vPF+1)}, {int(os.environ.get('TLBS', '0x180000'), 0)}, {v(vPF)}")
            P.raw(f"buffer_load_dword {v(vPF+2)}, {v(vPF+1)}, {s(sWS,4)}, 0 offen")
            P(f"v_lshlrev_b32 {v(vPF+1)}, 17, {v(vPF)}")
            P.raw(f"buffer_load_dword {v(vPF+2)}, {v(vPF+1)}, {s(sOUT,4)}, 0 offen")
        gid[0] += 1; lab = f"{name}_g{gid[0]}"
        P(f"s_cmp_lg_u32 {s(sWV)}, 7"); P(f"s_cbranch_scc1 {lab}"); f(); P.label(lab)
    PFS = {"t": [pf_tlb], "o": pf_wo, "m": pf_xm, "x": pf_xl, "q": pf_wq, "b": pf_bx + pf_bw}
    pf_sched = {}
    for item in os.environ.get("PFS", "o6,m10,b14,q23").split(","):
        if item:
            for i, f in enumerate(PFS[item[0]]): pf_sched.setdefault(int(item[1:]) + i, []).append(f)

    ACC = 64; FR = [192, 216]
    def fA(set_, tb): return FR[set_] + 4*tb
    def fW(set_, cb): return FR[set_] + 16 + 4*cb
    def reads(q):
        st, ks = q // 4, q % 4; h, kh = q // 2, q % 2; se = q % 2
        sl = st % 3
        def rA(tb):
            base = vA2 if sl == 2 else vA; off = (ASLOT[sl] if sl < 2 else 0) + tb*4096
            return f"ds_read_b128 {v(fA(se,tb),4)}, {v(base+ks)} offset:{off}"
        def rW(cb, i):
            return f"ds_read_b64_tr_b16 {v(fW(se,cb)+2*i,2)}, {v(vW+cb)} offset:{(h%4)*16384 + (16*kh+4*i)*512}"
        return [rW(0,0), rW(0,1), rA(0), rW(1,0), rW(1,1), rA(1), rA(2), rA(3)]
    def kv16():
        WF = [192, 208]; AF = 224
        def rA(h, tb):
            st = h // 2; sl = st % 3
            base = vA2 if sl == 2 else vA; off = (ASLOT[sl] if sl < 2 else 0) + tb*2048
            return f"ds_read_b128 {v(AF + 4*(tb%4),4)}, {v(base + h%2)} offset:{off}"
        def rW(h, cb, i): return f"ds_read_b64_tr_b16 {v(WF[h%2]+4*cb+2*i,2)}, {v(vW16+cb)} offset:{(h%4)*16384 + 4*i*512}"
        P.wait_tag(lambda t: t in (("A", 0), ("W", 0))); P("s_barrier")
        SP()
        for cb in range(4):
            for i in range(2): P(rW(0, cb, i))
            if cb < 3: P(rA(0, cb))
        st0 = P.state()
        P(f"s_cmp_ge_u32 {s(sNT)}, 2"); P(f"s_cbranch_scc1 {name}_V")
        for isV in (0, 1):
            if isV: P.label(f"{name}_V"); P.set_state(st0)
            chunks[:] = list(ch1)
            for h in range(16):
                for tb in range(8):
                    mf = []
                    for cb in range(4):
                        n = (tb//2)*4 + cb if isV else (tb//2)*4 + (cb//2)*2 + tb%2
                        d = v(ACC + 8*n + 4*(tb%2 if isV else cb%2), 4)
                        x, y = (AF + 4*(tb%4), WF[h%2] + 4*cb) if isV else (WF[h%2] + 4*cb, AF + 4*(tb%4))
                        mf.append(f"v_mfma_f32_16x16x32_bf16 {d}, {v(x,4)}, {v(y,4)}, {'0' if h == 0 else d}")
                    fill = []
                    if tb == 5:
                        def sync(h=h):
                            if h < 15: P.wait_tag(lambda t: t == ("W", h+1) or t == ("A", (h+1)//2))
                            else: P.wait_tag(lambda t: t == ("B", 0))
                            P.wait_lds_all(); P("s_barrier")
                        for _ in range(int(os.environ.get("SYP", "0"))): fill.append(lambda: None)
                        fill.append(sync)
                    if tb + 3 < 8: fill.append(rA(h, tb + 3))
                    elif h < 15: fill.append(rA(h + 1, tb + 3 - 8))
                    if h < 15 and tb >= 5:
                        allw = [(cb, i) for cb in range(4) for i in range(2)]
                        cut = [int(c) for c in os.environ.get("WCUT", "36")]
                        for cb, i in [allw[:cut[0]], allw[cut[0]:cut[1]], allw[cut[1]:]][tb - 5]: fill.append(rW(h + 1, cb, i))
                    hp = h if tb >= 5 else h - 1
                    if h == 0 and tb == 0: fill.append(lambda: dma_w(2))
                    if h == 0 and tb == 2: fill.append(lambda: dma_w(3))
                    if h == 0 and tb in (3, 4): fill.append(lambda tb=tb: dma_act(2, [0, 1] if tb == 3 else [2, 3]))
                    if tb == 6 and h + 4 <= 15: fill.append(lambda h=h: dma_w(h + 4))
                    if tb == 1 and hp >= 1:
                        sa = (hp + 1) // 2 + 2
                        if sa <= 7: fill.append(lambda hp=hp, sa=sa: dma_act(sa, [0, 1] if hp % 2 == 1 else [2, 3]))
                        if hp == 11: fill.append(lambda: dma_b(0, 0))
                        if hp == 13: fill.append(lambda: dma_b(1, 0))
                        if hp == 14: fill.append(lambda: dma_b(2, 1))
                    if tb == 6 and h == 12: fill.append(lambda: dma_b(0, 1))
                    if tb == 6 and h == 13: pass
                    if tb == 3 and h == 14: fill.append(lambda: dma_b(1, 1))
                    if tb == 6 and h == 14: fill.append(lambda: dma_b(2, 0))
                    if h == 15 and tb >= 6: fill.append(lambda tb=tb: dma_b(tb - 3))
                    if tb in (2, 4):
                        for f in pf_sched.get(2*h + (tb == 4), []): fill.append(f)
                    if h < 3: fill.insert(0 if tb != 5 else 1, lambda: emit_chunks(5)); fill.append(lambda: emit_chunks(5))
                    interleave(P, mf, fill)
                if h == 2: assert not chunks, len(chunks)
            if not isV: P(f"s_branch {name}_J")
    if K16: kv16()
    else:
        P.wait_tag(lambda t: t in (("A", 0), ("W", 0))); P("s_barrier")
        SP()
        for r in reads(0): P(r)
        st0 = P.state()
        P(f"s_cmp_ge_u32 {s(sNT)}, 2"); P(f"s_cbranch_scc1 {name}_V")
        for isV in (0, 1):
            if isV: P.label(f"{name}_V"); P.set_state(st0)
            chunks[:] = list(ch1)
            for q in range(32):
                se = q % 2; hs = q // 2
                mf = []
                for tb in range(4):
                    for cb in range(2):
                        d = v(ACC + (tb*2+cb)*16, 16); c = "0" if q == 0 else d
                        x, y = (fA(se,tb), fW(se,cb)) if isV else (fW(se,cb), fA(se,tb))
                        if os.environ.get("KV16"):
                            for hh in range(2):
                                dd = v(ACC + (tb*2+cb)*16 + 8*(q%2) + 4*hh, 4)
                                mf.append(f"v_mfma_f32_16x16x32_bf16 {dd}, {v(x,4)}, {v(y,4)}, {'0' if q < 2 else dd}")
                        else: mf.append(f"v_mfma_f32_32x32x16_bf16 {d}, {v(x,4)}, {v(y,4)}, {c}")
                fill = []
                if KVT:
                    if q % 2 == 1:
                        def sync(hs=hs):
                            if hs < 15: P.wait_tag(lambda t: t == ("W", hs+1) or t == ("A", (hs+1)//2))
                            else: P.wait_tag(lambda t: t == ("B", 0))
                            P.wait_lds_all(); P("s_barrier")
                        fill.append(sync)
                    if q < 31: fill += reads(q + 1)
                    if q == 0: fill.insert(2, lambda: dma_w(2)); fill.insert(6, lambda: dma_w(3))
                    if q == 1: fill.insert(5, lambda: dma_act(2, [0, 1])); fill.insert(9, lambda: dma_act(2, [2, 3]))
                    if q % 2 == 1:
                        if hs + 4 <= 15: fill.insert(3, lambda hs=hs: dma_w(hs + 4))
                        sa = (hs + 1) // 2 + 2
                        if hs >= 1 and sa <= 7: fill.insert(6, lambda hs=hs, sa=sa: dma_act(sa, [0,1] if hs % 2 == 1 else [2,3]))
                        if hs == 11: fill.insert(6, lambda: dma_b(0, 0))
                        if hs == 12: fill.insert(3, lambda: dma_b(0, 1))
                        if hs == 13: fill.insert(3, lambda: dma_b(1))
                        if hs == 14: fill.insert(3, lambda: dma_b(2))
                        if hs == 15: fill.append(lambda: dma_b(3)); fill.append(lambda: dma_b(4))
                else:
                    if q % 2 == 1 and q < 31:
                        def sync(hs=hs):
                            P.wait_tag(lambda t: t == ("W", hs+1) or t == ("A", (hs+1)//2))
                            P("s_barrier")
                        fill.append(sync)
                    if q < 31: fill += reads(q + 1)
                    if q == 0: fill.insert(2, lambda: dma_w(2)); fill.insert(6, lambda: dma_w(3))
                    if q == 1: fill.insert(3, lambda: dma_act(2, [0, 1])); fill.insert(7, lambda: dma_act(2, [2, 3]))
                    if q % 2 == 1:
                        if 1 <= hs <= 12: fill.insert(3, lambda hs=hs: dma_w(hs + 3))
                        sa = hs // 2 + 2
                        if hs >= 2 and sa <= 7: fill.insert(6, lambda hs=hs, sa=sa: dma_act(sa, [0,1] if hs % 2 == 0 else [2,3]))
                        if hs == 12: fill.insert(6, lambda: dma_b(0))
                        if hs == 14: fill.insert(3, lambda: dma_b(1))
                        if hs == 15: fill.insert(1, lambda: dma_b(2))
                for f in pf_sched.get(q, []): fill.insert(2, f)
                if q < 6:
                    for i in range(8): fill.insert(min(len(fill), 1 + 2*i), lambda: emit_chunks(5))
                interleave(P, mf, fill)
                if q == 5: assert not chunks, len(chunks)
            if not isV: P(f"s_branch {name}_J")
    P.label(f"{name}_J")
    dup[0] = False
    SP()
    BFR = [192 + 12*i for i in range(4)]
    BACC = 160
    BPK = 44
    def baddr(st):
        return [f"v_add_u32 {v(vBAc+ks)}, {BSLOT[st%5]}, {v(vBA+ks)}" for ks in range(4)] + [f"v_add_u32 {v(vBWc)}, {BSLOT[st%5]}, {v(vBW)}"]
    def breads(q):
        ks = q % 4; se = q % 4
        return [f"ds_read_b64_tr_b16 {v(BFR[se]+8,2)}, {v(vBWc)} offset:{(16*ks)*256}",
                f"ds_read_b64_tr_b16 {v(BFR[se]+10,2)}, {v(vBWc)} offset:{(16*ks+4)*256}",
                f"ds_read_b128 {v(BFR[se],4)}, {v(vBAc+ks)} offset:0",
                f"ds_read_b128 {v(BFR[se]+4,4)}, {v(vBAc+ks)} offset:4096"]
    def PKB(tile): return ACC + 16*tile if tile < 6 else 44 + 8*(tile - 6)
    def kvcvt(tile):
        out = [f"v_cvt_pk_bf16_f32 {v(PKB(tile)+i)}, {v(ACC+16*tile+2*i)}, {v(ACC+16*tile+2*i+1)}" for i in range(8)]
        if K16: out += [f"v_permlane32_swap_b32 {v(PKB(tile)+x)}, {v(PKB(tile)+y)}" for x, y in ((0,2),(1,3),(4,6),(5,7))]
        return out
    def kvstore(n):
        if os.environ.get("X_NOST"): return
        tb, r = n // 4, n % 4
        P(f"s_add_u32 {s(sSt)}, {s(sOutKV)}, {tb*8192}")
        P(f"buffer_store_dwordx4 {v(PKB(n//2) + 4*(n%2),4)}, {v(vKVo if K16 else vL16)}, {s(sWS,4)}, {s(sSt)} offen offset:{(r//2)*2048 + (r%2)*256 if K16 else r*1024} {'' if KVP else ST}", ("S", n))
    def bstore(n):
        tb, c = n // 2, n % 2
        P(f"s_add_u32 {s(sSt)}, {s(sOutB)}, {tb*120*1024}")
        P(f"buffer_store_dwordx4 {v(BPK+tb*8+4*c,4)}, {v(vL16)}, {s(sWS,4)}, {s(sSt)} offen offset:{c*1024} {ST}", ("S", 16+n))
    for x in baddr(0): P(x)
    if not KVT: P.wait_tag(lambda t: t == ("B", 0)); P("s_barrier")
    for r in breads(0) + breads(1): P(r)
    for x in kvcvt(6) + kvcvt(7): P(x)
    order = [6, 7, 4, 5, 0, 1, 2, 3]
    late = [lambda n=2*tl+h: kvstore(n) for tl in order for h in range(2)]
    cvts = sum([kvcvt(tl) for tl in order[2:]], [])
    SB = [int(c) for c in os.environ.get("SB", "2222222200" if KVP else "1111111111")]
    SQ = [int(c) for c in os.environ.get("SQ", "2200000000" if KVP else "2222200000")]
    PUB = int(os.environ.get("PUB", "5"))
    chunks[:] = list(ch2)
    NQ = 40
    for q in range(NQ):
        st, ks = q // 4, q % 4; se = q % 4
        mf = []
        for tb in range(2):
            d = v(BACC + tb*16, 16); c = "0" if q == 0 else d
            mf.append(f"v_mfma_f32_32x32x16_bf16 {d}, {v(BFR[se]+8,4)}, {v(BFR[se]+4*tb,4)}, {c}")
        fill = []
        if ks == 2:
            def sync(st=st):
                if st < 9: P.wait_tag(lambda t: t == ("B", st+1))
                P.wait_lds_all(); P("s_barrier")
                if st < 9:
                    for x in baddr(st+1): P(x)
            fill.append(sync)
        if q + 2 < NQ: fill += breads(q + 2)
        if q == 0 and not KVT: fill.insert(1, lambda: dma_b(3))
        if q == 1 and not KVT: fill.insert(1, lambda: dma_b(4))
        for i in range(3):
            if cvts: fill.insert(1 + i, cvts.pop(0))
        if q < 16: fill.insert(len(fill)//2, lambda: emit_chunks(4)); fill.append(lambda: emit_chunks(4))
        def bl(st):
            if st <= 4: return [lambda: dma_b(st + 5, 0), lambda: dma_b(st + 5, 1)]
            if st == 7: return [lambda: dma_qw(0), lambda: dma_qw(1)]
            xs = {5: 0, 6: 1, 8: 2, 9: 3}[st]
            return [lambda: dma_x(xs, [0, 1]), lambda: dma_x(xs, [2, 3])]
        def bl1(st):
            if st <= 4: return [lambda h=h, i=i: dma_b(st + 5, h, [i]) for h in range(2) for i in range(2)]
            if st == 7: return [lambda a=a, i=i: dma_qw(a, [i]) for a in range(2) for i in range(2)]
            xs = {5: 0, 6: 1, 8: 2, 9: 3}[st]
            return [lambda i=i: dma_x(xs, [i]) for i in range(4)]
        BSP = os.environ.get("BSP", "0")
        if BSP == "0":
            if ks >= 2: fill.append(bl(st)[ks - 2])
        elif BSP == "1":
            if ks >= 2: fill.insert(2, bl1(st)[ks - 2])
            elif st >= 1: fill.insert(2, bl1(st - 1)[ks + 2])
            if st == 9 and ks == 3: fill += bl1(9)[2:]
        elif BSP == "2":
            if ks == 2:
                for i, f in enumerate(bl1(st)): fill.insert(1 + i, f)
        if ks == int(os.environ.get("BSK", "0")):
            for _ in range(SB[st]):
                if late: fill.append(late.pop(0))
        if q == 5: fill.append(lambda: (P(f"v_mov_b32 {v(T3)}, 0"), P(f"buffer_load_dwordx2 {v(8,2)}, {v(T3)}, {s(sDBG,4)}, 0 offen sc1")))
        if q == 29: fill.append(nonce_get)
        for f in pf_sched.get(100 + q, []): fill.append(f)
        interleave(P, mf, fill)
        if q == 15: assert not chunks, len(chunks)
    SP()
    QACC = 128; QFR = [192, 208, 224]
    def xaddr(st): return [f"v_add_u32 {v(vXc+i)}, {XSLOT[st%4]}, {v(vXr+i)}" for i in range(8)]
    def qreads(q):
        st, ks = q // 4, q % 4; se = q % 3
        def w(cb, i): return f"ds_read_b64_tr_b16 {v(QFR[se]+4*cb+2*i,2)}, {v(vQWr+cb)} offset:{(st%2)*16384 + (16*ks+4*i)*256}"
        def x(r): return f"ds_read_b128 {v(QFR[se]+8+4*r,4)}, {v(vXc+4*r+ks)} offset:0"
        return [w(0,0), w(0,1), x(0), w(1,0), w(1,1), x(1)]
    for x in xaddr(0): P(x)
    if KVP: P("s_waitcnt vmcnt(0)")
    P.wait_tag(lambda t: t in (("X", 0), ("Q", 0))); P("s_barrier")
    if KVP:
        dup[0] = True
        P(f"s_cmp_lg_u32 {s(sWV)}, 4"); P(f"s_cbranch_scc1 {name}_nowb")
        P.raw("buffer_wbl2 sc1")
        if PROF and os.environ.get("WBT"): P.raw("s_memtime s[96:97]"); P.raw("s_waitcnt vmcnt(0) lgkmcnt(0)"); P.raw("s_mov_b32 s3, s96"); P.raw("s_memtime s[96:97]"); P.raw("s_waitcnt lgkmcnt(0)"); P.raw("s_sub_u32 s3, s96, s3"); P.raw(f"v_writelane_b32 {v(vSTAMP)}, s3, 23")
        P.label(f"{name}_nowb")
    for r in qreads(0) + qreads(1): P(r)
    for tb in range(2):
        for i in range(8): P(f"v_cvt_pk_bf16_f32 {v(BPK+tb*8+i)}, {v(BACC+tb*16+2*i)}, {v(BACC+tb*16+2*i+1)}")
    for tb in range(2):
        b = BPK + tb*8
        for (x, y) in ((0,2),(1,3),(4,6),(5,7)): P(f"v_permlane32_swap_b32 {v(b+x)}, {v(b+y)}")
    late += [lambda n=n: bstore(n) for n in range(4)]
    def poll(soff, nfl, lab, own_off=False):
        P(f"s_mov_b32 {s(sT2)}, {int(os.environ.get('POLLMAX', '0x40000'), 0)}")
        if not own_off: P(f"v_lshrrev_b32 {v(T3)}, 1, {v(vL16)}")
        if nfl < 64: P(f"s_mov_b64 exec, {hex((1 << nfl) - 1)}")
        P.label(lab)
        P(f"buffer_load_dwordx2 {v(246,2)}, {v(T3)}, {s(sWS,4)}, {s(soff)} offen sc1")
        P("s_waitcnt vmcnt(0)")
        for i in range(2): P(f"v_xor_b32 {v(246+i)}, {s(sNON + i)}, {v(246+i)}")
        P(f"v_or_b32 {v(246)}, {v(246)}, {v(247)}")
        P(f"v_cmp_ne_u32 vcc, 0, {v(246)}")
        P(f"s_cbranch_vccz {lab}_ok")
        P("s_sleep 4")
        P(f"s_sub_u32 {s(sT2)}, {s(sT2)}, 1"); P(f"s_cmp_lg_u32 {s(sT2)}, 0"); P(f"s_cbranch_scc1 {lab}")
        P.label(lab + "_ok")
        if nfl < 64: P("s_mov_b64 exec, -1")
    ctx = dict(P=P, SP=SP, name=name, poll=poll, publish=publish)
    import attn
    early = attn.gen_attn(dict(ctx, early_only=True))
    vEX, sQS = 9, 92
    def setup3():
        P(f"s_mov_b32 {s(sQS)}, {fbits(QSCALE)}"); P(f"s_mov_b32 {s(sQS+1)}, {fbits(QSCALE)}")
        P(f"s_add_u32 {s(sT)}, {s(sM4)}, {131072}"); P(f"v_add_u32 {v(vEX)}, {s(sT)}, {v(vL16)}")
        early.setup(P)
    chunks[:] = record(setup3)
    EREQ = int(os.environ.get('EREQ', '30')); ETRY = int(os.environ.get('ETRY', '35'))
    for q in range(40):
        st, ks = q // 4, q % 4; se = q % 3
        mf = []
        for r in range(2):
            for cb in range(2):
                d = v(QACC + (r*2+cb)*16, 16); c = "0" if q == 0 else d
                mf.append(f"v_mfma_f32_32x32x16_bf16 {d}, {v(QFR[se]+4*cb,4)}, {v(QFR[se]+8+4*r,4)}, {c}")
        fill = []
        if ks == 2:
            def sync(st=st):
                if st < 9: P.wait_tag(lambda t: t in (("X", st+1), ("Q", st+1)))
                if st == PUB and KVP: guard(False, lambda: P.raw("s_waitcnt vmcnt(0)"))
                if st == PUB: P.wait_tag(lambda t: t is not None and t[0] == "S")
                P.wait_lds_all()
                if st < 9 or st == PUB: P("s_barrier")
                if st == PUB: publish([sFK, sFQ], f"{name}_pubk")
                if st < 9:
                    for x in xaddr(st+1): P(x)
            fill.append(sync)
        if q + 2 < 40: fill += qreads(q + 2)
        vm = []
        if ks == 2 and st + 2 <= 9: vm += [lambda i=i, st=st: dma_qw(st + 2, [i]) for i in range(2)]
        if ks in (3, 0):
            s0 = st if ks == 3 else st - 1
            if s0 >= 0 and s0 + 4 <= 9: vm += [lambda i=i, s0=s0: dma_x(s0 + 4, [i]) for i in ([0, 1] if ks == 3 else [2, 3])]
        if ks == SQK:
            for _ in range(SQ[st]):
                if late: vm.append(late.pop(0))
        if 22 <= q < 34: fill.insert(2, lambda: emit_chunks(5)); fill.append(lambda: emit_chunks(5))
        if q == 34: assert not chunks, len(chunks)
        if q == EREQ: vm.append(early.req)
        if q == ETRY: vm.append(early.try_); eops = early.ops()
        if q > ETRY:
            n = -(-len(eops) // (40 - q))
            vm += eops[:n]; eops = eops[n:]
        base = 1 if ks == 2 else 0
        stp = 3 if len(vm) <= 3 else 2
        for i, x in enumerate(vm): fill.insert(min(len(fill), base + 1 + i * stp), x)
        interleave(P, mf, fill)
    assert not late
    SP()
    early()
    SND = 96
    for i in range(32, 64, 2): P(f"v_pk_mul_f32 {v(QACC+i,2)}, {v(QACC+i,2)}, {s(sQS,2)}")
    for i in range(16): P(f"v_cvt_pk_bf16_f32 {v(SND+i)}, {v(QACC+32+2*i)}, {v(QACC+32+2*i+1)}")
    for i in range(4): P(f"ds_write_b128 {v(vEX)}, {v(SND+4*i,4)} offset:{i*1024}")
    for i in range(0, 32, 2): P(f"v_pk_mul_f32 {v(QACC+i,2)}, {v(QACC+i,2)}, {s(sQS,2)}")
    P(f"v_xor_b32 {v(vEX)}, 0x4000, {v(vEX)}")
    P("s_waitcnt lgkmcnt(0)"); P("s_barrier")
    for i in range(4): P(f"ds_read_b128 {v(16+4*i,4)}, {v(vEX)} offset:{i*1024}")
    for i in range(16): P(f"v_cvt_pk_bf16_f32 {v(i)}, {v(QACC+2*i)}, {v(QACC+2*i+1)}")
    attn.gen_attn(ctx)
    P.label("L_stop")
    SP(idx=13); SP(True); SP.flush()
    P.label(f"{name}_end"); P("s_endpgm")
    return kernel_desc(name, 256, sgpr=100)
```

```python
from fused import *
E = os.environ.get
XBF = int(E('XBF', '1')); NX = 5 if XBF else 10
XB = 72*MB
FX = 70*MB + 49152

def wof_prefetch(P):
    if E("WPF", "0") == "0": return
    P(f"s_lshl_b32 {s(sT)}, {s(sJ)}, 2"); P(f"s_add_u32 {s(sT)}, {s(sT)}, {s(sWV)}"); P(f"s_sub_u32 {s(sT)}, {s(sT)}, 4")
    P(f"s_lshr_b32 {s(sT2)}, {s(sT)}, 4"); P(f"s_mul_i32 {s(sT2)}, {s(sT2)}, {128*5120}")
    P(f"s_and_b32 {s(sT)}, {s(sT)}, 15"); P(f"s_mul_i32 {s(sT)}, {s(sT)}, 10240"); P(f"s_add_u32 {s(sT)}, {s(sT)}, {s(sT2)}")
    P(f"s_lshr_b32 {s(sT2)}, {s(sX)}, 1"); P(f"s_mul_i32 {s(sT2)}, {s(sT2)}, {32*5120}"); P(f"s_add_u32 {s(sT)}, {s(sT)}, {s(sT2)}")
    P(f"s_add_u32 {s(sT)}, {s(sT)}, {WOF}")
    for i in range(10):
        P.raw(f"buffer_load_dwordx4 v[16:19], {v(vL16)}, {s(sWS,4)}, {s(sT)} offen offset:{(i%4)*1024} {LD}"); P.vq.append((set(parse_reg("v[16:19]")), "pf"))
        if i % 4 == 3: P(f"s_add_u32 {s(sT)}, {s(sT)}, 4096")

def gen_out(ctx):
    P, SP, name = ctx["P"], ctx["SP"], ctx["name"]
    NS = 4
    CS = [i*16384 for i in range(NS)]; WS_ = [65536 + i*20480 for i in range(NS)]
    ACC, ACB, FRG, RCV = 0, 40, 52, 112
    vRC, vRW, vOut, vRCb, vRWb = 232, 233, 235, 236, 237
    sSrc, sTile, sM0 = sU0, sU2, sU1
    sQB, sCK, sR, sGrp, sSrcB, sTileB, sXo = sDOff, sDIdx, sDLim, sDBase, sSlot, sDM0, sSt
    NA, NB = 16, 5
    N = NA + NB
    P(f"s_lshr_b32 {s(sR)}, {s(sX)}, 1")
    if E("QMAP", "1") == "1":
        P(f"s_and_b32 {s(sQB)}, {s(sX)}, 1"); P(f"s_lshl_b32 {s(sT)}, {s(sG)}, 1"); P(f"s_add_u32 {s(sQB)}, {s(sQB)}, {s(sT)}")
        P(f"s_and_b32 {s(sCK)}, {s(sJ)}, 3")
    else:
        P(f"s_and_b32 {s(sQB)}, {s(sX)}, 1"); P(f"s_lshl_b32 {s(sQB)}, {s(sQB)}, 3"); P(f"s_and_b32 {s(sT)}, {s(sJ)}, 7"); P(f"s_add_u32 {s(sQB)}, {s(sQB)}, {s(sT)}")
        P(f"s_lshr_b32 {s(sCK)}, {s(sJ)}, 3")
    P(f"s_lshl_b32 {s(sGrp)}, {s(sQB)}, 2"); P(f"s_add_u32 {s(sGrp)}, {s(sGrp)}, {s(sCK)}")
    P(f"s_and_b32 {s(sT)}, {s(sWV)}, 2"); P(f"s_lshl_b32 {s(sT)}, {s(sT)}, 12"); P(f"s_and_b32 {s(sT2)}, {s(sWV)}, 1"); P(f"s_lshl_b32 {s(sT2)}, {s(sT2)}, 11")
    P(f"s_add_u32 {s(sT)}, {s(sT)}, {s(sT2)}"); P(f"v_add_u32 {v(vRC)}, {s(sT)}, {v(vL16)}")
    P(f"s_lshr_b32 {s(sT2)}, {s(sWV)}, 2"); P(f"s_mul_i32 {s(sT)}, {s(sT2)}, 10240"); P(f"s_add_u32 {s(sT)}, {s(sT)}, 65536"); P(f"v_add_u32 {v(vRW)}, {s(sT)}, {v(vL16)}")
    P(f"v_add_u32 {v(vRW+1)}, 40960, {v(vRW)}")
    P(f"s_mul_i32 {s(sT)}, {s(sT2)}, 3072"); P(f"s_add_u32 {s(sT)}, {s(sT)}, 65536"); P(f"v_add_u32 {v(vRWb)}, {s(sT)}, {v(vL16)}")
    P(f"v_add_u32 {v(vRWb+1)}, 40960, {v(vRWb)}")
    P(f"s_and_b32 {s(sT)}, {s(sWV)}, 3"); P(f"s_lshl_b32 {s(sT2)}, {s(sT)}, 10"); P(f"v_add_u32 {v(vRCb)}, {s(sT2)}, {v(vL16)}")
    bfe(P, T0, 0, 4); P(f"v_mul_u32_u24 {v(T0)}, 2560, {v(T0)}"); bfe(P, T1, 4, 2); P(f"v_lshl_add_u32 {v(vOut)}, {v(T1)}, 3, {v(T0)}")
    P(f"s_lshl_b32 {s(sTile)}, {s(sQB)}, 2"); P(f"s_add_u32 {s(sTile)}, {s(sTile)}, {s(sR)}"); P(f"s_mul_i32 {s(sTile)}, {s(sTile)}, {32*2560}")
    P(f"s_lshl_b32 {s(sT)}, {s(sCK)}, 1"); P(f"s_lshr_b32 {s(sT2)}, {s(sWV)}, 2"); P(f"s_add_u32 {s(sT)}, {s(sT)}, {s(sT2)}"); P(f"s_mul_i32 {s(sT)}, {s(sT)}, 160")
    P(f"s_add_u32 {s(sTile)}, {s(sTile)}, {s(sT)}")
    sTBb, sCBb = sOffA, sOffW
    P(f"s_lshl_b32 {s(sTBb)}, {s(sQB)}, 1"); P(f"s_lshr_b32 {s(sT)}, {s(sR)}, 1"); P(f"s_add_u32 {s(sTBb)}, {s(sTBb)}, {s(sT)}")
    P(f"s_lshl_b32 {s(sCBb)}, {s(sCK)}, 1"); P(f"s_and_b32 {s(sT)}, {s(sR)}, 1"); P(f"s_add_u32 {s(sCBb)}, {s(sCBb)}, {s(sT)}")
    P(f"s_lshl_b32 {s(sTileB)}, {s(sTBb)}, 2"); P(f"s_and_b32 {s(sT)}, {s(sWV)}, 3"); P(f"s_add_u32 {s(sTileB)}, {s(sTileB)}, {s(sT)}"); P(f"s_mul_i32 {s(sTileB)}, {s(sTileB)}, {16*2560}")
    P(f"s_mul_i32 {s(sT)}, {s(sCBb)}, 160"); P(f"s_add_u32 {s(sTileB)}, {s(sTileB)}, {s(sT)}")
    P(f"s_lshr_b32 {s(sT)}, {s(sWV)}, 2"); P(f"s_mul_i32 {s(sT)}, {s(sT)}, 96"); P(f"s_add_u32 {s(sTileB)}, {s(sTileB)}, {s(sT)}")
    P(f"s_cmp_lt_u32 {s(sWV)}, 4"); P(f"s_cbranch_scc0 {name}_o_lo")
    st0 = P.state()
    for role in ("hi", "lo"):
        nm = 3 if role == "hi" else 2
        unit = 4096 if role == "hi" else 5120
        if role == "lo": P.label(f"{name}_o_lo"); P.set_state(ctx["lo_state"])
        P(f"s_and_b32 {s(sT)}, {s(sWV)}, 3"); P(f"s_mul_i32 {s(sM0)}, {s(sT)}, {unit}")
        blk = sQB if role == "hi" else sCK
        P(f"s_lshl_b32 {s(sSrc)}, {s(blk)}, 1"); P(f"s_bfe_u32 {s(sT2)}, {s(sWV)}, 0x10001"); P(f"s_add_u32 {s(sSrc)}, {s(sSrc)}, {s(sT2)}")
        P(f"s_lshl_b32 {s(sSrc)}, {s(sSrc)}, 7"); P(f"s_lshl_b32 {s(sT2)}, {s(sR)}, 5"); P(f"s_add_u32 {s(sSrc)}, {s(sSrc)}, {s(sT2)}")
        P(f"s_and_b32 {s(sT2)}, {s(sWV)}, 1"); P(f"s_add_u32 {s(sSrc)}, {s(sSrc)}, {s(sT2)}")
        P(f"s_mul_i32 {s(sSrc)}, {s(sSrc)}, {unit}"); P(f"s_add_u32 {s(sSrc)}, {s(sSrc)}, {CTX if role == 'hi' else WOF}")
        P(f"s_mul_i32 {s(sSrcB)}, {s(sTBb if role == 'hi' else sCBb)}, {20*unit}"); P(f"s_add_u32 {s(sSrcB)}, {s(sSrcB)}, {s(sM0)}")
        P(f"s_add_u32 {s(sSrcB)}, {s(sSrcB)}, {BO if role == 'hi' else BWOF}")
        def dma_ops(st):
            if st >= N: return []
            src = sSrc if st < NA else sSrcB
            def ld(i, so): P(f"buffer_load_dwordx4 {v(vL16)}, {s(sWS,4)}, {s(so)} offen offset:{i*1024} {LD} lds", st)
            def pre():
                if st == NA and role == "hi": fb_check()
                P(f"s_add_u32 m0, {s(sM0)}, {(CS if role == 'hi' else WS_)[st%NS]}"); P(f"s_add_u32 {s(sTa)}, {s(src)}, 4096")
                ld(0, src)
            def last():
                if role == "lo":
                    P(f"s_add_u32 m0, m0, 4096"); P(f"s_add_u32 {s(src)}, {s(src)}, {(2 if st < NA else 4)*unit}"); ld(0, sTa)
                else: P(f"s_add_u32 {s(src)}, {s(src)}, {(2 if st < NA else 4)*unit}")
            return [pre, lambda: ld(1, src), lambda: ld(2, src), lambda: ld(3, src), last]
        def dma(st):
            for f in dma_ops(st): f()
        vFB = RCV
        def fb_off(): P(f"s_lshl_b32 {s(sT)}, {s(sTBb)}, 8"); P(f"s_add_u32 {s(sT)}, {s(sT)}, {FB}")
        def fb_req():
            fb_off(); P(f"v_lshrrev_b32 {v(T3)}, 1, {v(vL16)}"); P(f"v_and_b32 {v(T3)}, 0xf8, {v(T3)}")
            P(f"buffer_load_dwordx2 {v(vFB,2)}, {v(T3)}, {s(sWS,4)}, {s(sT)} offen sc1")
        def fb_check():
            P(f"v_xor_b32 {v(vFB)}, {s(sNON)}, {v(vFB)}"); P(f"v_xor_b32 {v(vFB+1)}, {s(sNON+1)}, {v(vFB+1)}"); P(f"v_or_b32 {v(vFB)}, {v(vFB)}, {v(vFB+1)}")
            P(f"v_cmp_ne_u32 vcc, 0, {v(vFB)}"); P(f"s_cbranch_vccz {name}_fbok")
            st = P.state(); fb_off(); ctx["poll"](sT, 32, f"{name}_poll4")
            P.label(f"{name}_fbok"); P.set_state(st)
        P("s_waitcnt lgkmcnt(0)"); P("s_barrier")
        if role == "hi":
            P(f"s_lshl_b32 {s(sT)}, {s(sQB)}, 10"); P(f"s_lshl_b32 {s(sT2)}, {s(sR)}, 6"); P(f"s_add_u32 {s(sT)}, {s(sT)}, {s(sT2)}"); P(f"s_add_u32 {s(sT)}, {s(sT)}, {FC}")
            bfe(P, T0, 3, 2); bfe(P, T1, 0, 3); P(f"v_lshlrev_b32 {v(T1)}, 3, {v(T1)}"); P(f"v_lshl_add_u32 {v(T3)}, {v(T0)}, 8, {v(T1)}")
            ctx["poll"](sT, 64, f"{name}_poll3", own_off=True)
        SP(idx=11)
        for st in range(NS): dma(st)
        def readsA(st, k, i):
            b = FRG + 28*(i % 2); sl = st % NS
            out = [f"ds_read_b128 {v(b+4*ii,4)}, {v(vRC)} offset:{CS[sl] + k*4096 + ii*1024}" for ii in range(2)]
            out += [f"ds_read_b128 {v(b+8+4*m,4)}, {v(vRW + sl//2)} offset:{(sl%2)*20480 + k*5120 + m*1024}" for m in range(5)]
            return [out[0], out[2], out[1]] + out[3:]
        def readsB(st, k, i):
            b = FRG + 28*(i % 2); sl = st % NS
            out = [f"ds_read_b128 {v(b,4)}, {v(vRCb)} offset:{CS[sl] + k*4096}"]
            out += [f"ds_read_b128 {v(b+4+4*m,4)}, {v(vRWb + sl//2)} offset:{(sl%2)*20480 + k*5120 + m*1024}" for m in range(nm)]
            return out
        def is_owner(lab, want):
            P(f"s_and_b32 {s(sT)}, {s(sWV)}, 3"); P(f"s_cmp_eq_u32 {s(sT)}, {s(sR)}"); P(f"s_cbranch_scc{0 if want else 1} {lab}")
        def send():
            lab = f"{name}_snd{role}"
            is_owner(lab, False)
            P(f"s_lshl_b32 {s(sXo)}, {s(sGrp)}, 2"); P(f"s_add_u32 {s(sXo)}, {s(sXo)}, {s(sT)}"); P(f"s_lshl_b32 {s(sXo)}, {s(sXo)}, 2"); P(f"s_add_u32 {s(sXo)}, {s(sXo)}, {s(sR)}")
            P(f"s_mul_i32 {s(sXo)}, {s(sXo)}, 20480"); P(f"s_add_u32 {s(sXo)}, {s(sXo)}, {XB + (0 if role == 'hi' else 10240)}")
            st = P.state()
            if XBF:
                for e in range(20): P(f"v_cvt_pk_bf16_f32 {v(ACC+e)}, {v(ACC+2*e)}, {v(ACC+2*e+1)}")
            for t in range(NX):
                P(f"buffer_store_dwordx4 {v(ACC+4*t,4)}, {v(vL16)}, {s(sWS,4)}, {s(sXo)} offen offset:{(t%4)*1024} {ST}", "x")
                if t % 4 == 3: P(f"s_add_u32 {s(sXo)}, {s(sXo)}, 4096")
            s2_ = P.state()
            P.label(lab); P.set_state(merge_states(st, s2_))
        def send_flag():
            lab = f"{name}_sfl{role}"
            is_owner(lab, False)
            st = P.state()
            P(f"s_lshl_b32 {s(sT2)}, {s(sGrp)}, 2"); P(f"s_add_u32 {s(sT)}, {s(sT)}, {s(sT2)}"); P(f"s_lshl_b32 {s(sT)}, {s(sT)}, 6")
            P(f"s_lshl_b32 {s(sT2)}, {s(sR)}, 3"); P(f"s_add_u32 {s(sT)}, {s(sT)}, {s(sT2)}"); P(f"s_add_u32 {s(sT)}, {s(sT)}, {FX + (0 if role == 'hi' else 32)}")
            P(f"v_mov_b32 {v(T0)}, {s(sNON)}"); P(f"v_mov_b32 {v(T1)}, {s(sNON+1)}"); P(f"v_mov_b32 {v(T2)}, 0")
            P.wait_tag(lambda t: t == "x")
            SP(idx=30)
            P("s_mov_b64 exec, 1")
            P(f"buffer_store_dwordx2 {v(T0,2)}, {v(T2)}, {s(sWS,4)}, {s(sT)} offen sc1")
            P("s_mov_b64 exec, -1")
            P.label(lab); P.set_state(st)
        sGot = sU3
        P(f"s_mov_b32 {s(sGot)}, 0")
        vFX = 238
        def fx_addr():
            P(f"s_lshl_b32 {s(sXo)}, {s(sGrp)}, 2"); P(f"s_add_u32 {s(sXo)}, {s(sXo)}, {s(sR)}")
            P(f"s_lshl_b32 {s(sT)}, {s(sXo)}, 6"); P(f"s_add_u32 {s(sT)}, {s(sT)}, {FX + (0 if role == 'hi' else 32)}")
            bfe(P, T0, 0, 2); P(f"v_min_u32 {v(T0)}, 2, {v(T0)}")
            P(f"v_add_u32 {v(T0)}, {s(sR)}, {v(T0)}"); P(f"v_add_u32 {v(T0)}, 1, {v(T0)}"); P(f"v_and_b32 {v(T0)}, 3, {v(T0)}"); P(f"v_lshlrev_b32 {v(T3)}, 3, {v(T0)}")
        def recv_loads():
            P(f"s_mul_i32 {s(sXo)}, {s(sXo)}, {4*20480}"); P(f"s_add_u32 {s(sXo)}, {s(sXo)}, {XB + (0 if role == 'hi' else 10240)}")
            for j in range(3):
                P(f"s_add_u32 {s(sT)}, {s(sR)}, {j+1}"); P(f"s_and_b32 {s(sT)}, {s(sT)}, 3"); P(f"s_mul_i32 {s(sT)}, {s(sT)}, 20480"); P(f"s_add_u32 {s(sT)}, {s(sT)}, {s(sXo)}")
                for tt in range(NX):
                    P(f"buffer_load_dwordx4 {v(RCV+40*j+4*tt,4)}, {v(vL16)}, {s(sWS,4)}, {s(sT)} offen offset:{(tt%4)*1024} {LD}")
                    if tt % 4 == 3: P(f"s_add_u32 {s(sT)}, {s(sT)}, 4096")
        def fx_req():
            lab = f"{name}_fxr{role}"; is_owner(lab, True); st = P.state()
            fx_addr(); P(f"buffer_load_dwordx2 {v(vFX,2)}, {v(T3)}, {s(sWS,4)}, {s(sT)} offen sc1")
            P.label(lab); P.set_state(st)
        def fx_try():
            lab = f"{name}_fxt{role}"; is_owner(lab, True); st = P.state()
            P("s_waitcnt vmcnt(0)")
            P(f"v_xor_b32 {v(vFX)}, {s(sNON)}, {v(vFX)}"); P(f"v_xor_b32 {v(vFX+1)}, {s(sNON+1)}, {v(vFX+1)}"); P(f"v_or_b32 {v(vFX)}, {v(vFX)}, {v(vFX+1)}")
            P(f"v_cmp_ne_u32 vcc, 0, {v(vFX)}"); P(f"s_cbranch_vccnz {lab}")
            P(f"s_mov_b32 {s(sGot)}, 1"); recv_loads()
            P.label(lab); P.set_state(st)
        XRQ, XTR = [tuple(int(c) for c in E(k_, d_)) for k_, d_ in (("XRQ", "33"), ("XTR", "41"))]
        steps = [(st, k) for st in range(NA) for k in range(2)] + [(st, k) for st in range(NA, N) for k in range(4)]
        def rd(i):
            st, k = steps[i]
            r = readsA(st, k, i) if st < NA else readsB(st, k, i)
            return r
        P.wait_tag(lambda t: t == 0); P("s_barrier")
        SP(idx=24)
        if role == "lo": ctx["bflag"]()
        for r in rd(0): P(r)
        pend = []
        for i, (st, k) in enumerate(steps):
            b = FRG + 28*(i % 2)
            mf = []
            if st < NA:
                for m in range(5):
                    for ii in range(2):
                        d = v(ACC + 4*(ii*5 + m), 4)
                        mf.append(f"v_mfma_f32_16x16x32_bf16 {d}, {v(b+8+4*m,4)}, {v(b+4*ii,4)}, {'0' if i == 0 else d}")
            else:
                for m in range(nm):
                    d = v(ACB + 4*m, 4)
                    mf.append(f"v_mfma_f32_16x16x32_bf16 {d}, {v(b+4+4*m,4)}, {v(b,4)}, {'0' if (st == NA and k == 0) else d}")
            fill = []
            lastk = (k == (1 if st < NA else 3))
            if lastk and st + 1 < N:
                def sync(st=st):
                    P.wait_tag(lambda t: t == st + 1); P.wait_lds_all(); P("s_barrier")
                fill.append(sync)
                pend = dma_ops(st + NS)
            if i + 1 < len(steps): fill += rd(i + 1)
            ntake = len(pend) if st >= NA and not lastk and k == 2 else (3 if st < NA else 2)
            take, pend = pend[:ntake], pend[ntake:]
            for j, f in enumerate(take): fill.insert(min(len(fill), (2 if lastk else 1) + 3*j), f)
            if role == "hi" and st == NA - NS - 3 and k == 0: fill.append(fb_req)
            if st == NA and k == int(E('SNDK', '1')): fill.append(send)
            if (st - NA, k) == tuple(int(c) for c in E("SFL", "22")): fill.append(send_flag)
            if (st - NA, k) == XRQ: fill.append(fx_req)
            if (st - NA, k) == XTR: fill.append(fx_try)
            if E("P5NOMF"): mf = ["s_nop 0"] * len(mf)
            if E("P5NOLDS"): fill = [f for f in fill if callable(f)]
            interleave(P, mf, fill)
            if k == 0 and st in (4, 8, 12, NA): SP(idx={4: 25, 8: 26, 12: 27, NA: 28}[st])
        assert not pend
        SP(idx=12)
        for m in range(nm):
            r = ACB + 4*m
            P(f"v_cvt_pk_bf16_f32 {v(r)}, {v(r)}, {v(r+1)}"); P(f"v_cvt_pk_bf16_f32 {v(r+1)}, {v(r+2)}, {v(r+3)}")
            P(f"buffer_store_dwordx2 {v(r,2)}, {v(vOut)}, {s(sOUT,4)}, {s(sTileB)} offen offset:{m*32 + 1280}")
        is_owner(f"{name}_o_done", True)
        P(f"s_cmp_lg_u32 {s(sGot)}, 0"); P(f"s_cbranch_scc1 {name}_got{role}")
        fx_addr()
        ctx["poll"](sT, 3, f"{name}_poll5{role}", own_off=True)
        recv_loads()
        P.label(f"{name}_got{role}")
        SP(idx=29)
        if PROF: P.raw(f"v_writelane_b32 {v(vSTAMP)}, {s(sGot)}, 31")
        P("s_waitcnt vmcnt(0)")
        SP(idx=32)
        if XBF:
            P(f"s_mov_b32 {s(sT)}, 0x3f80"); P(f"s_mov_b32 {s(sT2)}, 0x3f800000")
            for j in range(3):
                for e in range(20):
                    P(f"v_dot2_f32_bf16 {v(ACC+2*e)}, {v(RCV+40*j+e)}, {s(sT)}, {v(ACC+2*e)}")
                    P(f"v_dot2_f32_bf16 {v(ACC+2*e+1)}, {v(RCV+40*j+e)}, {s(sT2)}, {v(ACC+2*e+1)}")
        else:
            for j in range(3):
                for e in range(0, 40, 2): P(f"v_pk_add_f32 {v(ACC+e,2)}, {v(ACC+e,2)}, {v(RCV+40*j+e,2)}")
        P(f"s_add_u32 {s(sT)}, {s(sTile)}, {16*2560}")
        for t in range(10):
            i, m = t // 5, t % 5; r = ACC + 4*t
            P(f"v_cvt_pk_bf16_f32 {v(r)}, {v(r)}, {v(r+1)}"); P(f"v_cvt_pk_bf16_f32 {v(r+1)}, {v(r+2)}, {v(r+3)}")
            P(f"buffer_store_dwordx2 {v(r,2)}, {v(vOut)}, {s(sOUT,4)}, {s(sTile if i == 0 else sT)} offen offset:{m*32}")
        if role == "hi": P(f"s_branch {name}_o_done")
    P.label(f"{name}_o_done")
    if PROF: P("s_waitcnt vmcnt(0)")
```

```python
from aux_part import *

vO, vS, vP, vNM, vF, vT = 32, 96, 128, 144, 160, 192
vLsum, vLS, vCur, vD, vMX, vMX2, vNI = 200, 201, 202, 203, 204, 205, 206
vRdFull, vWrFree, vRdFree, vWrFull, vFV, vCV, vFullV = 248, 249, 250, 251, 252, 253, 254
sCNT, sSEC, sNeed, sLd, sU = sREM, sNB, sOffA, sOffW, sOutKV
PD = int(os.environ.get("PD", "6"))
WAIT2 = int(os.environ.get("WAIT2", "1"))
SPINMAX = int(os.environ.get("SPINMAX", "0x100000"), 0)
E = os.environ.get
X_NOVALU, X_NOLDS, X_PRIO = E("X_NOVALU"), E("X_NOLDS"), E("X_PRIO", "lo")
SLEEP = int(E("SLEEP", "1"))
DGAP = E("DGAP", "s_nop_15").replace("_", " ", 1).replace("_", " ").replace("s sleep", "s_sleep").replace("s nop", "s_nop")
RG0 = int(E("RG0", "1")); RSP = int(E("RSP", "1")); BEARLY = 0; BMID = int(E("BMID", "0"))
EPI2 = int(E("EPI2", "1")); NLF = int(E("NLF", "3"))
WOPF = int(E("WOPF", "3"))
CAP = float(E("CAP", "24"))

def gen_attn(ctx):
    P, SP, name = ctx["P"], ctx["SP"], ctx["name"]
    def vq(role, i): return 4*i if role == "hi" else 4*((i + 4) % 8)
    def dma_ops(first=False):
        ops = []
        def pre():
            P(f"s_lshl_b32 {s(sDOff)}, {s(sDIdx)}, 13"); P(f"s_add_u32 {s(sDOff)}, {s(sDOff)}, {s(sDBase)}")
            P(f"s_cmp_le_u32 {s(sDIdx)}, {s(sDLim)}"); P(f"s_cselect_b32 {s(sDOff)}, {s(sDOff)}, {OOB}")
            if first:
                P(f"s_cmp_eq_u32 {s(sWV)}, 6"); P(f"s_cselect_b32 {s(sDOff)}, {s(sU0)}, {s(sDOff)}")
            P(f"s_add_u32 m0, {s(sSlot)}, {s(sDM0)}")
            P(f"s_add_u32 {s(sDIdx)}, {s(sDIdx)}, 2")
        def ld(i):
            if E("X_NODMA"): return
            P(f"buffer_load_dwordx4 {v(vL16)}, {s(sWS,4)}, {s(sDOff)} offen offset:{(i%4)*1024} {LD} lds", ("kv", dma_ops.n))
        def mid(): P(f"s_add_u32 m0, m0, 4096"); P(f"s_add_u32 {s(sDOff)}, {s(sDOff)}, 4096")
        def post():
            P(f"s_add_u32 {s(sSlot)}, {s(sSlot)}, 32768"); P(f"s_and_b32 {s(sSlot)}, {s(sSlot)}, {NSLOT*32768-1}")
            P(f"s_add_u32 {s(sLd)}, {s(sLd)}, 1"); dma_ops.n += 1
        ops.append(lambda: (pre(), ld(0)))
        for i in range(1, 8): ops.append((lambda i=i: (mid(), ld(i))) if i == 4 else (lambda i=i: ld(i)))
        ops.append(post)
        return ops
    dma_ops.n = 0
    def dma_stage(first=False, gap=None):
        for i, f in enumerate(dma_ops(first)):
            f()
            if gap and i < 7: P(gap)

    sOK = sAM
    vFK = 112
    def fk_off():
        P(f"s_lshr_b32 {s(sT)}, {s(sH)}, 1"); P(f"s_lshl_b32 {s(sT)}, {s(sT)}, 7"); P(f"s_add_u32 {s(sT)}, {s(sT)}, {FK}")
    def lo_only(lab, fn):
        P(f"s_cmp_lt_u32 {s(sWV)}, 4"); P(f"s_cbranch_scc1 {lab}")
        st = P.state(); fn(); P.label(lab); P.set_state(st)
    def early_req():
        def f():
            fk_off()
            P(f"v_lshrrev_b32 {v(T3)}, 1, {v(vL16)}"); P(f"v_and_b32 {v(T3)}, 0x78, {v(T3)}")
            P(f"buffer_load_dwordx2 {v(vFK,2)}, {v(T3)}, {s(sWS,4)}, {s(sT)} offen sc1")
            P(f"s_lshl_b32 {s(sDBase)}, {s(sH)}, 19")
            P(f"s_sub_u32 {s(sT)}, {s(sWV)}, 4"); P(f"s_lshl_b32 {s(sDM0)}, {s(sT)}, 13")
            P(f"s_and_b32 {s(sDIdx)}, {s(sT)}, 1"); P(f"s_add_u32 {s(sDIdx)}, {s(sDIdx)}, 1")
            P(f"s_cmp_ge_u32 {s(sT)}, 2"); P(f"s_cselect_b32 {s(sT2)}, 2, 0"); P(f"s_sub_u32 {s(sDIdx)}, {s(sDIdx)}, {s(sT2)}")
            P(f"s_cmp_ge_u32 {s(sT)}, 2"); P(f"s_cselect_b32 {s(sT2)}, {VF}, 0")
            P(f"s_mov_b32 {s(sU0)}, {s(sDBase)}")
            P(f"s_add_u32 {s(sDBase)}, {s(sDBase)}, {s(sT2)}")
            P(f"s_mov_b32 {s(sSlot)}, 32768"); P(f"s_mov_b32 {s(sLd)}, 0")
        P(f"s_lshl_b32 {s(sT)}, {s(sG)}, 2"); P(f"s_sub_u32 {s(sDLim)}, 63, {s(sT)}")
        lo_only(f"{name}_er", f)
    def early_try():
        def f():
            P("s_waitcnt vmcnt(0)")
            P(f"v_xor_b32 {v(vFK)}, {s(sNON)}, {v(vFK)}"); P(f"v_xor_b32 {v(vFK+1)}, {s(sNON+1)}, {v(vFK+1)}"); P(f"v_or_b32 {v(vFK)}, {v(vFK)}, {v(vFK+1)}")
            P(f"v_cmp_ne_u32 vcc, 0, {v(vFK)}"); P(f"s_cbranch_vccnz {name}_et")
            P(f"s_mov_b32 {s(sOK)}, 1")
        lo_only(f"{name}_et", f)
    def early_ops():
        out = []
        for k, f in enumerate(dma_ops(True) + dma_ops()):
            def g(k=k, f=f):
                P(f"s_cmp_eq_u32 {s(sOK)}, 0"); P(f"s_cbranch_scc1 {name}_eo{k}")
                st = P.state(); f(); P.label(f"{name}_eo{k}"); P.set_state(st)
            out.append(g)
        return out
    def early():
        P(f"s_lshr_b32 {s(sU)}, {s(sDLim)}, 1"); P(f"s_add_u32 {s(sU)}, {s(sU)}, 1")
        def f():
            P(f"s_cmp_lg_u32 {s(sLd)}, 0"); P(f"s_cbranch_scc1 {name}_nodma0")
            fk_off(); ctx["poll"](sT, 16, f"{name}_poll1")
            dma_stage(True); dma_stage()
        lo_only(f"{name}_nodma0", f)
    def setup(P):
        P(f"s_mov_b32 {s(sOK)}, 0")
        for i in range(64): P(f"v_mov_b32 {v(vO+i)}, 0")
        P(f"v_lshrrev_b32 {v(T0)}, 2, {v(vL16)}"); P(f"v_add_u32 {v(T0)}, {CT}, {v(T0)}")
        bfe(P, T1, 0, 2); P(f"v_lshl_add_u32 {v(vRdFull)}, {v(T1)}, 8, {v(T0)}")
        bfe(P, T1, 0, 3); P(f"v_lshl_add_u32 {v(vRdFree)}, {v(T1)}, 8, {v(T0)}"); P(f"v_add_u32 {v(vRdFree)}, 1024, {v(vRdFree)}")
        P(f"s_lshl_b32 {s(sT)}, {s(sWV)}, 8"); P(f"v_add_u32 {v(vWrFull)}, {s(sT)}, {v(T0)}")
        P(f"v_add_u32 {v(vWrFree)}, 1024, {v(vWrFull)}"); P(f"v_subrev_u32 {v(vWrFull)}, 1024, {v(vWrFull)}")
        P(f"v_mov_b32 {v(vFV)}, 0"); P(f"v_mov_b32 {v(vFullV)}, 1")
        if PROF: P("s_mov_b32 s98, 0"); P("s_mov_b32 s7, 0"); P("s_mov_b32 s3, 0")
        P(f"s_mov_b32 {s(sTHR)}, {fbits(THR)}"); P(f"s_mov_b32 {s(sNeed)}, 2")
        P(f"s_max_u32 {s(sCNT)}, {s(sJL)}, 1"); P(f"s_sub_u32 {s(sCNT)}, {s(sCNT)}, 1")
        P(f"s_cmp_eq_u32 {s(sJL)}, 0"); P(f"s_cselect_b32 {s(sSEC)}, 1, 0")
    early.req, early.try_, early.setup, early.ops = early_req, early_try, setup, early_ops
    if ctx.get("early_only"): return early

    P(f"s_cmp_lt_u32 {s(sWV)}, 4"); P(f"s_cbranch_scc1 {name}_nodma1")
    st = P.state()
    dma_stage()
    P.label(f"{name}_nodma1")
    P.set_state(st)
    for i in range(8): P(f"v_mov_b32 {v(vP+8+i)}, 0")
    P(f"v_mov_b32 {v(vLsum)}, 0"); P(f"v_add_u32 {v(vCur)}, 0x8000, {v(vL16)}"); P(f"v_mov_b32 {v(vNI)}, 0xff800000")
    bfe(P, T1, 0, 5); bfe(P, T2, 5, 1); P(f"v_lshlrev_b32 {v(T2)}, 2, {v(T2)}"); P(f"v_sub_u32 {v(vD)}, {v(T1)}, {v(T2)}")
    P(f"v_subrev_u32 {v(T0)}, {1024 + 3*256}, {v(vWrFree)}")
    P("s_waitcnt lgkmcnt(0)")
    P(f"s_cmp_lg_u32 {s(sWV)}, 3"); P(f"s_cbranch_scc1 {name}_noinit")
    for i in range(12): P(f"ds_write_b32 {v(T0)}, {v(vFullV if i < 4 else vFV)} offset:{i*256}")
    P.label(f"{name}_noinit")
    P(f"s_waitcnt vmcnt(16) lgkmcnt(0)")
    P("s_barrier")
    SP()
    P.vq = []; P.lq = []
    def mask_nm():
        for r in range(16):
            m = s(sM + 2*(r%2), 2)
            P(f"v_cmp_gt_i32 {m}, {8*(r//4) + r%4}, {v(vD)}")
            P(f"v_cndmask_b32 {v(vNM+r)}, {v(vNM+r)}, {v(vNI)}, {m}")
    for i in range(8): P(f"ds_read_b128 {v(vF+4*i,4)}, {v(vCur)} offset:{16384 + i*1024}")
    P("s_waitcnt lgkmcnt(0)")
    P(f"s_cmp_lt_u32 {s(sWV)}, 4"); P(f"s_cbranch_scc0 {name}_a0lo")
    for role in ("hi", "lo"):
        if role == "lo": P.label(f"{name}_a0lo")
        if X_PRIO == role: P("s_setprio 1")
        if role == "hi" and WOPF >= 0:
            P(f"s_mov_b32 {s(sCNT)}, {WOPF}"); P(f"s_mov_b32 {s(sSEC)}, 2")
        if role == "lo":
            P(f"s_cmp_lg_u32 {s(sJL)}, 0"); P(f"s_cbranch_scc1 {name}_nomask0")
            for i in range(16): P(f"v_mov_b32 {v(vNM+i)}, 0")
            mask_nm()
            P(f"v_mfma_f32_32x32x16_bf16 {v(vS,16)}, {v(vF,4)}, {v(vq(role,0),4)}, {v(vNM,16)}")
            P(f"s_branch {name}_mask0j")
            P.label(f"{name}_nomask0")
        for i in range(8):
            P(f"v_mfma_f32_32x32x16_bf16 {v(vS,16)}, {v(vF+4*i,4)}, {v(vq(role,i),4)}, {'0' if i == 0 else v(vS,16)}")
            if role == "lo" and i == 0: P.label(f"{name}_mask0j")
        if role == "hi": P(f"s_branch {name}_a0j")
    P.label(f"{name}_a0j")
    def frag_read(n, par):
        if X_NOLDS and frag_read.loop: return "; none"
        off = (par*8192 + n*1024) if n < 8 else (16384 + par*8192 + (n-8)*1024)
        return f"ds_read_b128 {v(vF+4*(n%8),4)}, {v(vCur)} offset:{off}"
    frag_read.loop = bool(X_NOLDS)
    def rowmax(S):
        P(f"v_max3_f32 {v(vMX)}, {v(S)}, {v(S+1)}, {v(S+2)}")
        for i in range(3, 15, 2): P(f"v_max3_f32 {v(vMX)}, {v(vMX)}, {v(S+i)}, {v(S+i+1)}")
        P(f"v_max_f32 {v(vMX)}, {v(vMX)}, {v(S+15)}")
        P(f"v_mov_b32 {v(vMX2)}, {v(vMX)}")
        P(f"v_permlane32_swap_b32 {v(vMX)}, {v(vMX2)}")
        P(f"v_max_f32 {v(vMX)}, {v(vMX)}, {v(vMX2)}")
    SP()
    for n in range(PD): P(frag_read(n, 0))
    rowmax(vS)
    for i in range(16): P(f"v_sub_f32 {v(vS+i)}, {v(vS+i)}, {v(vMX)}")
    for i in range(16): P(f"v_sub_f32 {v(vNM+i)}, 0, {v(vMX)}")
    sidx = SP.n
    entry = P.state()
    P(f"s_cmp_lt_u32 {s(sWV)}, 4"); P(f"s_cbranch_scc0 {name}_lo_E")

    def softmax_ops(par):
        S = vS + 16*par; PP = vP + 8*par
        ops = []
        for r in range(16):
            ops.append((8, f"v_exp_f32 {v(vT + r%8)}, {v(S+r)}"))
            if r >= 1:
                q = r - 1
                if q == 1: ops.append((4, f"v_add_f32 {v(vLS)}, {v(vT)}, {v(vT+1)}"))
                elif q > 1: ops.append((4, f"v_add_f32 {v(vLS)}, {v(vLS)}, {v(vT + q%8)}"))
                if q % 2 == 1: ops.append((4, f"v_cvt_pk_bf16_f32 {v(PP + q//2)}, {v(vT + (q-1)%8)}, {v(vT + q%8)}"))
        ops.append((4, f"v_cvt_pk_bf16_f32 {v(PP+7)}, {v(vT+6)}, {v(vT+7)}"))
        ops.append((4, f"v_add_f32 {v(vLS)}, {v(vLS)}, {v(vT+7)}"))
        ops.append((4, f"v_cmp_nge_f32 vcc, {s(sTHR)}, {v(vLS)}"))
        return ops
    def check(par, role, kind):
        P(f"s_cbranch_vccnz {name}_{role}_fb{kind}{par}")
        P.label(f"{name}_{role}_fbr{kind}{par}")
        P(f"v_add_f32 {v(vLsum)}, {v(vLsum)}, {v(vLS)}")
    def fallback(par, role, kind):
        S = vS + 16*par; S2 = vS + 16*(1-par)
        P.label(f"{name}_{role}_fb{kind}{par}")
        rowmax(S)
        P(f"v_max_f32 {v(vMX)}, 0, {v(vMX)}")
        P(f"v_sub_f32 {v(vMX2)}, 0, {v(vMX)}"); P(f"v_exp_f32 {v(vMX2)}, {v(vMX2)}")
        for i in range(16): P(f"v_sub_f32 {v(S+i)}, {v(S+i)}, {v(vMX)}")
        for i in range(16): P(f"v_sub_f32 {v(S2+i)}, {v(S2+i)}, {v(vMX)}")
        for i in range(16): P(f"v_sub_f32 {v(vNM+i)}, {v(vNM+i)}, {v(vMX)}")
        for i in range(64): P(f"v_mul_f32 {v(vO+i)}, {v(vMX2)}, {v(vO+i)}")
        P(f"v_mul_f32 {v(vLsum)}, {v(vMX2)}, {v(vLsum)}")
        for c, o in softmax_ops(par)[:-1]: P(o)
        P(f"s_branch {name}_{role}_fbr{kind}{par}")
    spins = []
    def ctl_cmp(sreg): P(f"v_cmp_gt_u32 vcc, {s(sreg)}, {v(vCV)}")
    def ctl_check(addr, sreg, lab, cmp=True):
        if cmp: ctl_cmp(sreg)
        P(f"s_cbranch_vccnz {lab}")
        P.label(lab + "_r")
        spins.append((addr, sreg, lab))
    def emit_spins():
        for addr, sreg, lab in spins:
            P.label(lab)
            if PROF: P.raw(f"s_add_u32 s{98 if addr == vRdFull else 7}, s{98 if addr == vRdFull else 7}, 0x10000")
            P.raw(f"s_mov_b32 {s(sT2)}, {SPINMAX}")
            P.label(lab + "_l")
            if PROF: P.raw(f"s_add_u32 s{98 if addr == vRdFull else 7}, s{98 if addr == vRdFull else 7}, 1")
            P.raw(f"ds_read_b32 {v(vCV)}, {v(addr)}"); P.raw("s_waitcnt lgkmcnt(0)")
            P.raw(f"v_cmp_gt_u32 vcc, {s(sreg)}, {v(vCV)}")
            P.raw(f"s_cbranch_vccz {lab}_r")
            P.raw(f"s_sleep {SLEEP if '_ld' in lab else 1}")
            P.raw(f"s_sub_u32 {s(sT2)}, {s(sT2)}, 1"); P.raw(f"s_cmp_lg_u32 {s(sT2)}, 0"); P.raw(f"s_cbranch_scc1 {lab}_l")
            P.raw(f"s_branch {lab}_r")
        spins.clear()
    def advance():
        P(f"v_add_u32 {v(vCur)}, 0x8000, {v(vCur)}"); P(f"v_and_b32 {v(vCur)}, {NSLOT*32768-1}, {v(vCur)}")
        P(f"s_add_u32 {s(sNeed)}, {s(sNeed)}, 1")
    def free_write():
        P(f"ds_write_b32 {v(vWrFree)}, {v(vFV)}"); P(f"v_add_u32 {v(vFV)}, 1, {v(vFV)}")
    def full_publish(cnt, delta):
        P(f"s_add_u32 {s(sT)}, {s(sLd)}, {delta & 0xffffffff}" if delta else f"s_mov_b32 {s(sT)}, {s(sLd)}")
        P(f"v_mov_b32 {v(vFullV)}, {s(sT)}")
        if callable(cnt): cnt()
        else: P(f"s_waitcnt vmcnt({cnt})")
        P(f"ds_write_b32 {v(vWrFull)}, {v(vFullV)}")
    def mfA(par, i, role):
        S = vS + 16*(1-par)
        return f"v_mfma_f32_32x32x16_bf16 {v(S,16)}, {v(vF+4*i,4)}, {v(vq(role,i),4)}, {v(vNM,16) if i == 0 else v(S,16)}"
    def mfC(par, i):
        db, t = i // 2, i % 2
        return f"v_mfma_f32_32x32x16_bf16 {v(vO+16*db,16)}, {v(vF+4*i,4)}, {v(vP+8*(1-par)+4*t,4)}, {v(vO+16*db,16)}"
    def period(par, role):
        R = f"{name}_{role}"
        ops = [] if X_NOVALU else softmax_ops(par)
        extra = {n: [] for n in range(16)}
        if par == 0:
            extra[0].append((8, free_write))
            if role == "lo":
                extra[1].append((4, lambda: P(f"ds_read_b32 {v(vCV)}, {v(vRdFree)}")))
                extra[4].append((8, lambda: (P(f"s_sub_u32 {s(sTa)}, {s(sLd)}, 3"), ctl_cmp(sTa))))
                extra[5].append((4, lambda: ctl_check(vRdFree, sTa, f"{R}_spF", False)))
                for i, f in enumerate(dma_ops()): extra[6 + i].append((4, f))
        else:
            if role == "lo": extra[0].append((16, lambda: full_publish(8, -1)))
            extra[2].append((4, lambda: P(f"ds_read_b32 {v(vCV)}, {v(vRdFull)}")))
            extra[14-PD].append((4, lambda: ctl_cmp(sNeed)))
            extra[15-PD].append((16, lambda: (ctl_check(vRdFull, sNeed, f"{R}_spU", False), advance())))
        if E("X_NOCHK"): ops = [o for o in ops if "v_cmp" not in o[1]]
        k = 0
        carry = 0.0
        for n in range(16):
            if n % 2 == 0 and WAIT2: P.needr(v(vF+4*(n%8),4), v(vF+4*((n+1)%8),4))
            P(mfA(par, n, role) if n < 8 else mfC(par, n - 8))
            used = 4 + (4 if n % 2 == 1 else 0) + sum(c for c, _ in extra[n])
            m = n + PD
            pre = [f for c, f in extra[n]]
            if par == 1 and n == 15-PD:
                P(frag_read(m, par))
                for f in pre: f()
            else:
                P(frag_read(m, par) if m < 16 else frag_read(m - 16, 1 - par))
                for f in pre: f()
            rem_cost = sum(c for c, _ in ops[k:])
            cap = CAP
            if n == 14: cap = 1e9
            while k < len(ops) and n < 15 and (used + ops[k][0] <= cap + carry or rem_cost > (14 - n) * 18):
                P(ops[k][1]); used += ops[k][0]; rem_cost -= ops[k][0]; k += 1
            carry = 0.0
        assert k == len(ops)
        if E("X_NOCHK"): P.label(f"{name}_{role}_fbrm{par}")
        else: check(par, role, "m")
    def epilogue(role, mid=None):
        P(f"v_mov_b32 {v(vFV)}, {BIG}"); P(f"ds_write_b32 {v(vWrFree)}, {v(vFV)}")
        if mid: mid()
        P(f"v_mov_b32 {v(vMX2)}, {v(vLsum)}")
        P(f"v_permlane32_swap_b32 {v(vLsum)}, {v(vMX2)}")
        P(f"v_add_f32 {v(vLsum)}, {v(vLsum)}, {v(vMX2)}"); P(f"v_rcp_f32 {v(vLsum)}, {v(vLsum)}")
        bfe(P, T0, 4, 1); bfe(P, T1, 0, 4); P(f"v_lshlrev_b32 {v(T1)}, 4, {v(T1)}"); P(f"v_lshl_add_u32 {v(T0)}, {v(T0)}, 10, {v(T1)}")
        bfe(P, T1, 5, 1); P(f"v_lshl_add_u32 {v(vD)}, {v(T1)}, 8, {v(T0)}")
        P(f"s_lshr_b32 {s(sT)}, {s(sRow0)}, 6"); P(f"s_lshl_b32 {s(sT)}, {s(sT)}, 19"); P(f"s_lshl_b32 {s(sT2)}, {s(sH)}, 14"); P(f"s_add_u32 {s(sT)}, {s(sT)}, {s(sT2)}")
        P(f"s_and_b32 {s(sT2)}, {s(sRow0)}, 32"); P(f"s_lshl_b32 {s(sT2)}, {s(sT2)}, 6"); P(f"s_add_u32 {s(sT)}, {s(sT)}, {s(sT2)}")
        P(f"s_add_u32 {s(sSt)}, {s(sT)}, {CTX}")
        for db in range(4):
            if mid and db == 2: mid()
            for i in range(16): P(f"v_mul_f32 {v(vO+16*db+i)}, {v(vLsum)}, {v(vO+16*db+i)}")
            for i in range(8): P(f"v_cvt_pk_bf16_f32 {v(vS+8*db+i)}, {v(vO+16*db+2*i)}, {v(vO+16*db+2*i+1)}")
            for u in range(2): P(f"buffer_store_dwordx4 {v(vS+8*db+4*u,4)}, {v(vD)}, {s(sWS,4)}, {s(sSt)} offen offset:{u*512} {ST}", "ctx")
            if db < 3: P(f"s_add_u32 {s(sSt)}, {s(sSt)}, 4096")
    def wave_flag(fn_off, tag):
        fn_off()
        P(f"v_mov_b32 {v(T0)}, {s(sNON)}"); P(f"v_mov_b32 {v(T1)}, {s(sNON+1)}"); P(f"v_mov_b32 {v(T2)}, 0")
        P.wait_tag(lambda t: t == tag)
        P("s_mov_b64 exec, 1")
        P(f"buffer_store_dwordx2 {v(T0,2)}, {v(T2)}, {s(sWS,4)}, {s(sT)} offen sc1", "flag")
        P("s_mov_b64 exec, -1")
    def ctx_off():
        P(f"s_lshl_b32 {s(sT)}, {s(sJL)}, 8"); P(f"s_lshl_b32 {s(sT2)}, {s(sH)}, 3"); P(f"s_add_u32 {s(sT)}, {s(sT)}, {s(sT2)}"); P(f"s_add_u32 {s(sT)}, {s(sT)}, {FC}")
    def loader_iter(lab):
        P(f"s_cmp_gt_u32 {s(sLd)}, {s(sU)}"); P(f"s_cbranch_scc1 {lab}_skip")
        st = P.state()
        P(f"ds_read_b32 {v(vCV)}, {v(vRdFree)}")
        P(f"s_sub_u32 {s(sTa)}, {s(sLd)}, 3")
        ctl_check(vRdFree, sTa, lab)
        dma_stage(gap=DGAP)
        n = dma_ops.n
        full_publish(lambda: P.wait_tag(lambda t: isinstance(t, tuple) and t[0] == "kv" and t[1] <= n - 2), -1)
        st2 = P.state()
        P.label(f"{lab}_skip")
        P.set_state(merge_states(st, st2))
    for role in ("hi", "lo"):
        R = f"{name}_{role}"
        P.set_state(entry)
        for par in (0, 1):
            P.label(f"{R}_{'EO'[par]}")
            P(f"s_sub_u32 {s(sCNT)}, {s(sCNT)}, 1"); P(f"s_cbranch_scc1 {R}_sp{par}")
            P.label(f"{R}_go{par}")
            period(par, role)
            st = P.state()
            assert X_NOLDS or [sorted(x) for x in st[0]] == [sorted(x) for x in entry[0]], (st[0], entry[0])
        P(f"s_branch {R}_E")
        for par in (0, 1):
            P.set_state(entry); fallback(par, role, "m")
        for par in (0, 1):
            P.set_state(entry)
            P.label(f"{R}_sp{par}")
            if role == "hi" and WOPF >= 0 and par == WOPF % 2:
                P(f"s_cmp_lg_u32 {s(sSEC)}, 2"); P(f"s_cbranch_scc1 {R}_spn")
                P(f"s_mov_b32 {s(sSEC)}, 0"); P(f"s_sub_u32 {s(sCNT)}, {s(sJL)}, {WOPF + 2}")
                P(f"s_lshl_b32 {s(sT)}, s2, 2"); P(f"s_add_u32 {s(sT)}, {s(sT)}, {s(sWV)}"); P(f"s_mul_i32 {s(sT2)}, {s(sT)}, 5120")
                for i in range(5):
                    if i == 4: P(f"s_add_u32 {s(sT2)}, {s(sT2)}, 4096")
                    P.raw(f"buffer_load_dwordx4 v[208:211], {v(vL16)}, {s(sWO,4)}, {s(sT2)} offen offset:{(i%4)*1024}")
                P(f"s_lshl_b32 {s(sT2)}, {s(sT)}, 10")
                P.raw(f"buffer_load_dwordx4 v[208:211], {v(vL16)}, {s(sBWO,4)}, {s(sT2)} offen")
                P(f"s_branch {R}_go{par}")
                P.label(f"{R}_spn")
            P(f"s_cmp_lg_u32 {s(sSEC)}, 0"); P(f"s_cbranch_scc1 {R}_tail{par}")
            P(f"s_mov_b32 {s(sSEC)}, 1"); P(f"s_mov_b32 {s(sCNT)}, 0")
            mask_nm()
            P(f"s_branch {R}_go{par}")
        for par in (0, 1):
            P.set_state(entry)
            P.label(f"{R}_tail{par}")
            P("s_waitcnt lgkmcnt(0)")
            if par == 0: free_write()
            for n in range(8, 16): P(frag_read(n, par))
            if par == 1: P(f"ds_read_b32 {v(vCV)}, {v(vRdFull)}")
            if role == "lo" and par == 1: full_publish(8, -1)
            interleave(P, [mfC(par, i) for i in range(8)], [o for c, o in softmax_ops(par)])
            check(par, role, "t")
            if par == 1:
                ctl_check(vRdFull, sNeed, f"{R}_spT"); advance()
            for n in range(8, 16): P(frag_read(n, 1 - par))
            for i in range(8): P(mfC(1 - par, i))
            P(f"s_branch {R}_epi")
            fallback(par, role, "t")
        emit_spins()
        P.label(f"{R}_epi")
        P.lq = []
        dma_ops.n = 10
        P.vq = [(set(), ("kv", 8))]*8 + [(set(), ("kv", 9))]*8 if role == "lo" else []
        SP(idx=sidx)
        if X_PRIO == role and E("PRIO0", "1") == "1": P("s_setprio 0")
        it = [0]
        def li(n=1):
            for _ in range(n):
                it[0] += 1; loader_iter(f"{R}_ld{it[0]}")
        epilogue(role, li if (role == "lo" and EPI2) else None)
        SP()
        if role == "hi":
            wave_flag(ctx_off, "ctx")
            P(f"s_branch {name}_att_done")
        else:
            P(f"s_sub_u32 {s(sAR)}, {s(sWV)}, 4"); P(f"s_mul_i32 {s(sAR)}, {s(sAR)}, {AREA}"); P(f"s_add_u32 {s(sAR)}, {s(sAR)}, {SCR}")
            bc = battn_chunks(ctx, 0)
            bc[0]()
            P(f"s_lshl_b32 {s(sAW)}, s2, 2"); P(f"s_add_u32 {s(sAW)}, {s(sAW)}, {s(sWV)}"); P(f"s_sub_u32 {s(sAW)}, {s(sAW)}, {4 + 128*RG0}")
            P(f"s_sub_u32 {s(sT)}, {s(sG)}, {RG0}"); P(f"s_cmp_ge_u32 {s(sT)}, {AUXG}"); P(f"s_cbranch_scc1 {R}_nort")
            stx = P.state(); nx = dma_ops.n
            r = [retile_chunks(ctx, i) for i in range(3)]
            r[0][0](); li(RSP)
            r[0][1](); r[1][0](); li(RSP)
            r[1][1](); r[2][0](); li(RSP)
            wave_flag(ctx_off, "ctx")
            r[2][1](); li(2)
            def aux_off():
                P(f"s_lshl_b32 {s(sT)}, {s(sAW)}, 3"); P(f"s_add_u32 {s(sT)}, {s(sT)}, {FA}")
            wave_flag(aux_off, "aux")
            P.needr(v(0, 4))
            P(f"s_branch {R}_rtj")
            P.label(f"{R}_nort"); P.set_state(stx); dma_ops.n = nx
            li(NLF)
            wave_flag(ctx_off, "ctx")
            P.needr(v(0, 4))
            P.label(f"{R}_rtj")
            dma_ops.n += 20
            P.vq = [(set(), ("kv", dma_ops.n - 1))]; P.lq = []
            bc[1]()
            if BMID:
                li(1); bc[2](); li(1); bc[3](); li(1); bc[4](); li(1); bc[5]()
            P(f"s_sub_u32 {s(sAM)}, {s(sU)}, {BEARLY}")
            P.label(f"{R}_rest")
            P(f"s_cmp_gt_u32 {s(sLd)}, {s(sAM)}"); P(f"s_cbranch_scc1 {R}_fin")
            P(f"ds_read_b32 {v(vCV)}, {v(vRdFree)}")
            P(f"s_sub_u32 {s(sTa)}, {s(sLd)}, 3")
            ctl_check(vRdFree, sTa, f"{R}_ldr")
            if PROF: P.raw("s_memtime s[96:97]"); P.raw("s_waitcnt lgkmcnt(0)"); P.raw("s_sub_u32 s3, s3, s96")
            dma_stage(gap=DGAP)
            if PROF and E("TDMA"): P.raw("s_memtime s[96:97]"); P.raw("s_waitcnt lgkmcnt(0)"); P.raw("s_add_u32 s3, s3, s96")
            full_publish(8, -1)
            if PROF and not E("TDMA"): P.raw("s_memtime s[96:97]"); P.raw("s_waitcnt lgkmcnt(0)"); P.raw("s_add_u32 s3, s3, s96")
            P(f"s_branch {R}_rest")
            P.label(f"{R}_fin")
            full_publish(0, 0); P.vq = []
            P(f"s_mov_b32 {s(sT)}, {FA}")
            for i in range(4): P(f"buffer_load_dwordx4 {v(16+4*i,4)}, {v(vL16)}, {s(sWS,4)}, {s(sT)} offen offset:{i*1024} sc1")
            if not BMID:
                for f in bc[2:]: f()
            P(f"s_mov_b32 {s(sT)}, {FA}"); P(f"s_mov_b32 {s(sT2)}, {int(E('POLLMAX', '0x40000'), 0)}")
            P.needr(v(16, 16))
            st = P.state()
            P(f"s_branch {name}_pollA_c")
            P.label(f"{name}_pollA")
            for i in range(4): P(f"buffer_load_dwordx4 {v(16+4*i,4)}, {v(vL16)}, {s(sWS,4)}, {s(sT)} offen offset:{i*1024} sc1")
            P("s_waitcnt vmcnt(0)")
            P.label(f"{name}_pollA_c")
            for i in range(16): P(f"v_xor_b32 {v(16+i)}, {s(sNON + i%2)}, {v(16+i)}")
            for i in range(1, 15, 2): P(f"v_or3_b32 v16, v16, {v(16+i)}, {v(17+i)}")
            P("v_or_b32 v16, v16, v31")
            P("v_cmp_ne_u32 vcc, 0, v16"); P(f"s_cbranch_vccz {name}_pollA_ok")
            P("s_sleep 4"); P(f"s_sub_u32 {s(sT2)}, {s(sT2)}, 1"); P(f"s_cmp_lg_u32 {s(sT2)}, 0"); P(f"s_cbranch_scc1 {name}_pollA")
            P.label(f"{name}_pollA_ok")
            P.set_state(st)
            import outp
            outp.wof_prefetch(P)
            ctx["lo_state"] = P.state()
            def b_off():
                P(f"s_lshl_b32 {s(sT)}, s2, 2"); P(f"s_add_u32 {s(sT)}, {s(sT)}, {s(sWV)}"); P(f"s_lshl_b32 {s(sT)}, {s(sT)}, 3"); P(f"s_add_u32 {s(sT)}, {s(sT)}, {FB - 32}")
            ctx["bflag"] = lambda: wave_flag(b_off, "aux")
            P(f"s_branch {name}_att_done")
            emit_spins()
    P.label(f"{name}_att_done")
    if PROF:
        P.raw(f"v_writelane_b32 {v(vSTAMP)}, s98, 20"); P.raw(f"v_writelane_b32 {v(vSTAMP)}, s7, 21"); P.raw(f"v_writelane_b32 {v(vSTAMP)}, s3, 22")
    P.vq = []; P.lq = []
    SP()
    import outp
    outp.gen_out(ctx)
```

```python
from common import *
import math
ST = os.environ.get("ST", "sc1")
LD = os.environ.get("LD", "sc1")
STOP = os.environ.get("STOP", "")
FK, FQ, FA, FC, FB = 70*MB, 70*MB + 4096, 70*MB + 8192, 70*MB + 16384, 70*MB + 32768
KVT = int(os.environ.get("KVT", "1"))
K16 = int(os.environ.get("K16", "1"))
KVP = int(os.environ.get("KVP", "0"))
HIDMA = int(os.environ.get("HIDMA", "0"))
SQK = int(os.environ.get("SQK", "3"))
STAG = int(os.environ.get("STAG", "1"))
QSPREAD = int(os.environ.get("QSPREAD", "1"))
PF1 = int(os.environ.get("PF1", "1")); PF2 = int(os.environ.get("PF2", "10"))
QSCALE = math.log2(math.e) / math.sqrt(128.0)
import struct
def fbits(x): return "0x%08x" % struct.unpack("<I", struct.pack("<f", x))[0]

sCKV, sWKV, sWS, sBX, sBW, sAX, sWQ, sWO, sBWO, sOUT, sDBG = 8, 12, 16, 20, 24, 28, 32, 36, 40, 44, 48
sX, sJ, sWV, sT, sT2, sTa, sTw, sM4, sM2 = 52, 53, 54, 55, 56, 57, 58, 59, 60
sOffA, sOffW, sOutKV, sOffBA, sOffBW, sOutB, sSt = 61, 62, 63, 4, 5, 66, 67
sOffX, sOffQW, sH, sG, sRow0, sJL, sREM, sNB = 68, 69, 70, 71, 72, 73, 74, 75
sSlot, sDOff, sDIdx, sDLim, sDBase, sTHR, sDM0 = 76, 77, 78, 79, 80, 81, 82
sNON = 84
sU0, sU1, sU2, sU3 = 86, 87, 88, 89
sM = 90
sFK, sFQ, sISV, sPF, sOffX2 = 94, 95, 83, 6, 99
sSTAMP = 96
vL16, vTID, vSTAMP = 240, 241, 255
T0, T1, T2, T3 = 242, 243, 244, 245

class Stamp:
    def __init__(self, P): self.P = P; self.n = 0
    def __call__(self, real=False, idx=None):
        if not PROF: return
        if idx is not None: self.n = idx
        if os.environ.get("RT"): real = True
        P = self.P
        P.raw(f"{'s_memrealtime' if real else 's_memtime'} {s(sSTAMP,2)}"); P("s_waitcnt lgkmcnt(0)")
        P.raw(f"v_writelane_b32 {v(vSTAMP)}, {s(sSTAMP)}, {self.n}")
        if os.environ.get("STOPAT") == str(self.n): P.raw("s_waitcnt vmcnt(0)"); P.raw("s_branch L_stop")
        self.n += 1
    def flush(self):
        if not PROF: return
        P = self.P
        if os.environ.get("DBGOUT"):
            P.raw(f"s_cmp_lg_u32 s2, {os.environ['DBGOUT']}"); P.raw("s_cbranch_scc1 L_nodbg"); P.raw(f"s_cmp_lg_u32 {s(sWV)}, 0"); P.raw("s_cbranch_scc1 L_nodbg")
            P.raw(f"v_readlane_b32 s3, {v(vSTAMP)}, 0"); P.raw("s_nop 3"); P.raw(f"v_subrev_u32 {v(T0)}, s3, {v(vSTAMP)}")
            P.raw(f"v_lshrrev_b32 {v(T1)}, 2, {v(vL16)}"); P.raw("s_mov_b64 exec, 0x3ffe"); P.raw("s_nop 1")
            P.raw(f"buffer_store_dword {v(T0)}, {v(T1)}, {s(sDBG,4)}, 0 offen offset:4")
            P.raw("s_mov_b64 exec, -1")
            P.raw("L_nodbg:")
            return
        P.raw(f"s_lshl_b32 s3, s2, 3"); P.raw(f"s_add_u32 s3, s3, {s(sWV)}"); P.raw("s_lshl_b32 s3, s3, 8")
        P.raw(f"s_add_u32 s3, s3, {PROFOFF}")
        P.raw(f"v_lshrrev_b32 {v(T0)}, 2, {v(vL16)}"); P.raw("s_nop 1")
        P.raw(f"buffer_store_dword {v(vSTAMP)}, {v(T0)}, {s(sWS,4)}, s3 offen")

_m = {"c": sCKV, "w": sWKV, "x": sAX, "q": sWQ, "b": sBX, "v": sBW, "o": sWO}
NT = {_m[c]: "nt" for c in os.environ.get("NT", "w")}
NTP = {_m[c]: "nt" for c in os.environ.get("NTP", "")}
def bfe(P, dst, off, n): P(f"v_bfe_u32 {v(dst)}, {v(vTID)}, {off}, {n}")

def act_voff(P, dst, i, stride):
    bfe(P, T0, 4, 2)
    if i % 2: P(f"v_xor_b32 {v(T0)}, 4, {v(T0)}")
    bfe(P, T1, 0, 3); P(f"v_xor_b32 {v(T0)}, {v(T0)}, {v(T1)}"); P(f"v_lshlrev_b32 {v(T0)}, 4, {v(T0)}")
    bfe(P, T1, 3, 3)
    P(f"v_mul_u32_u24 {v(T1)}, {stride}, {v(T1)}")
    P(f"v_add_u32 {v(T0)}, {v(T0)}, {v(T1)}")
    P(f"v_add_u32 {v(dst)}, {8*i*stride - i*1024}, {v(T0)}")
def w256_voff(P, dst, i, stride):
    bfe(P, T0, 4, 2); bfe(P, T1, 2, 2)
    P(f"v_xor_b32 {v(T1)}, {v(T1)}, {v(T0)}"); P(f"v_lshlrev_b32 {v(T1)}, 6, {v(T1)}")
    bfe(P, T2, 0, 2); P(f"v_lshl_add_u32 {v(T1)}, {v(T2)}, 4, {v(T1)}")
    P(f"v_mul_u32_u24 {v(T0)}, {stride}, {v(T0)}")
    P(f"v_add_u32 {v(T1)}, {v(T1)}, {v(T0)}")
    P(f"v_add_u32 {v(dst)}, {4*i*stride - i*1024}, {v(T1)}")
def w512_voff(P, dst, i, stride_log):
    bfe(P, T2, 5, 1)
    P(f"v_add_u32 {v(T0)}, {2*i}, {v(T2)}")
    bfe(P, T1, 2, 3); P(f"v_xor_b32 {v(T1)}, {v(T1)}, {v(T0)}"); P(f"v_lshlrev_b32 {v(T1)}, 6, {v(T1)}")
    bfe(P, T0, 0, 2); P(f"v_lshl_add_u32 {v(T1)}, {v(T0)}, 4, {v(T1)}")
    P(f"v_lshl_add_u32 {v(T1)}, {v(T2)}, {stride_log}, {v(T1)}")
    P(f"v_add_u32 {v(dst)}, {(2*i << stride_log) - i*1024}, {v(T1)}")
def w512_voff16(P, dst, i, stride_log, sb3):
    bfe(P, T2, 5, 1)
    P(f"v_add_u32 {v(T0)}, {2*i}, {v(T2)}"); P(f"v_lshl_add_u32 {v(T0)}, {v(T0)}, 2, {sb3}")
    bfe(P, T1, 0, 5); P(f"v_xor_b32 {v(T1)}, {v(T1)}, {v(T0)}"); P(f"v_lshlrev_b32 {v(T1)}, 4, {v(T1)}")
    P(f"v_lshl_add_u32 {v(T1)}, {v(T2)}, {stride_log}, {v(T1)}")
    P(f"v_add_u32 {v(dst)}, {(2*i << stride_log) - i*1024}, {v(T1)}")
def act_raddr16(P, dst, ks, sbase):
    bfe(P, T0, 4, 2); P(f"v_add_u32 {v(T0)}, {4*ks}, {v(T0)}"); bfe(P, T1, 1, 3)
    P(f"v_xor_b32 {v(T0)}, {v(T0)}, {v(T1)}"); P(f"v_lshlrev_b32 {v(T0)}, 4, {v(T0)}")
    bfe(P, T1, 0, 4); P(f"v_lshl_add_u32 {v(T0)}, {v(T1)}, 7, {v(T0)}")
    P(f"v_add_u32 {v(dst)}, {sbase}, {v(T0)}")
def w_raddr16(P, dst, blk, rowlog, base):
    bfe(P, T0, 2, 2); bfe(P, T2, 4, 1); P(f"v_lshl_add_u32 {v(T1)}, {v(T0)}, 1, {v(T2)}")
    P(f"v_xor_b32 {v(T1)}, {blk}, {v(T1)}"); P(f"v_lshlrev_b32 {v(T1)}, 5, {v(T1)}")
    bfe(P, T2, 4, 2); P(f"v_lshl_add_u32 {v(T0)}, {v(T2)}, 3, {v(T0)}"); P(f"v_lshl_add_u32 {v(T1)}, {v(T0)}, {rowlog}, {v(T1)}")
    bfe(P, T0, 0, 2); P(f"v_lshl_add_u32 {v(T1)}, {v(T0)}, 3, {v(T1)}")
    P(f"v_add_u32 {v(dst)}, {base}, {v(T1)}")
def act_raddr(P, dst, ks, sbase):
    bfe(P, T0, 5, 1); P(f"v_add_u32 {v(T0)}, {2*ks}, {v(T0)}"); bfe(P, T1, 1, 3)
    P(f"v_xor_b32 {v(T0)}, {v(T0)}, {v(T1)}"); P(f"v_lshlrev_b32 {v(T0)}, 4, {v(T0)}")
    bfe(P, T1, 0, 5); P(f"v_lshl_add_u32 {v(T0)}, {v(T1)}, 7, {v(T0)}")
    P(f"v_add_u32 {v(dst)}, {sbase}, {v(T0)}")
def w_raddr(P, dst, unit, rowlog, base):
    bfe(P, T0, 2, 2); P(f"v_xor_b32 {v(T1)}, {unit}, {v(T0)}"); P(f"v_lshlrev_b32 {v(T1)}, 6, {v(T1)}")
    bfe(P, T2, 5, 1); P(f"v_lshl_add_u32 {v(T0)}, {v(T2)}, 3, {v(T0)}"); P(f"v_lshl_add_u32 {v(T1)}, {v(T0)}, {rowlog}, {v(T1)}")
    bfe(P, T0, 4, 1); P(f"v_lshl_add_u32 {v(T1)}, {v(T0)}, 5, {v(T1)}")
    bfe(P, T0, 0, 2); P(f"v_lshl_add_u32 {v(T1)}, {v(T0)}, 3, {v(T1)}")
    P(f"v_add_u32 {v(dst)}, {base}, {v(T1)}")

def gen(P, name):
    kernel_start(P, name, 256)
    SP = Stamp(P)
    if PROF: P.raw("s_memrealtime s[98:99]")
    P(f"s_load_dwordx16 s[64:79], s[0:1], 0"); P(f"s_load_dwordx8 s[80:87], s[0:1], 64")
    P(f"v_mov_b32 {v(vTID)}, v0")
    P(f"v_lshrrev_b32 v1, 6, v0")
    P(f"s_and_b32 {s(sX)}, s2, 7"); P(f"s_lshr_b32 {s(sJ)}, s2, 3")
    P(f"v_readfirstlane_b32 {s(sWV)}, v1")
    P(f"v_and_b32 v1, 63, v0"); P(f"v_lshlrev_b32 {v(vL16)}, 4, v1")
    vA, vA2, vW, voffA, voffW, voffBA, voffBW, vBA, vBW, vBAc, vBWc = 10, 14, 18, 20, 24, 26, 28, 32, 36, 37, 41
    voffX, voffQW, vXr, vQWr, vXc = 10, 14, 16, 24, 0
    vPF = 60
    for i in range(4): act_voff(P, voffA + i, i, 1024)
    if K16:
        P(f"s_and_b32 {s(sT)}, {s(sWV)}, 2")
        for i in range(2): w512_voff16(P, voffW + i, i, 13, s(sT))
    else:
        for i in range(2): w512_voff(P, voffW + i, i, 13)
    sMT, sNT, sH0 = sU2, sU3, 3
    P(f"s_and_b32 {s(sMT)}, {s(sJ)}, 7"); P(f"s_lshr_b32 {s(sNT)}, {s(sJ)}, 3")
    P(f"s_lshl_b32 {s(sM4)}, {s(sWV)}, 12"); P(f"s_lshl_b32 {s(sM2)}, {s(sWV)}, 11")
    P(f"s_and_b32 {s(sH0)}, {s(sNT)}, 1"); P(f"s_lshl_b32 {s(sH0)}, {s(sH0)}, 1"); P(f"s_lshl_b32 {s(sT2)}, {s(sX)}, 2"); P(f"s_add_u32 {s(sH0)}, {s(sH0)}, {s(sT2)}")
    P(f"s_lshl_b32 {s(sOffW)}, {s(sH0)}, 8"); P(f"s_lshl_b32 {s(sT2)}, {s(sWV)}, 15"); P(f"s_add_u32 {s(sOffW)}, {s(sOffW)}, {s(sT2)}")
    P(f"s_lshl_b32 {s(sOffA)}, {s(sMT)}, 18"); P(f"s_add_u32 {s(sOffA)}, {s(sOffA)}, {s(sT2)}")
    P("s_waitcnt lgkmcnt(0)")
    if os.environ.get("STOPAT") in ("1", "2"): make_srd(P, sWS, 86, SZ["ws"])
    SP(True)
    if PROF: P.raw(f"v_writelane_b32 {v(vSTAMP)}, s98, 0")
    SP()
    if PROF: P.raw(f"v_writelane_b32 {v(vSTAMP)}, s98, 0")
    make_srd(P, sCKV, 66, SZ["A_ckv"])
    P(f"s_cmp_ge_u32 {s(sNT)}, 2")
    P(f"s_cselect_b32 {s(sWKV)}, s72, s70"); P(f"s_cselect_b32 {s(sWKV+1)}, s73, s71")
    P(f"s_mov_b32 {s(sWKV+2)}, {SZ['A_wuk']}"); P(f"s_mov_b32 {s(sWKV+3)}, 0x20000")

    ASLOT = [0, 32768, 65536]; WSLOT = [98304 + 16384*i for i in range(4)]
    BSLOT = [65536, 0, 98304, 32768, 131072]
    XSLOT = [65536, 0, 32768, 131072]; QSLOT = [98304, 114688]
    gid = [0]
    def guard(hi, fn, sim=True):
        gid[0] += 1; lab = f"{name}_g{gid[0]}"
        P(f"s_cmp_lt_u32 {s(sWV)}, 4"); P(f"s_cbranch_scc{0 if hi else 1} {lab}")
        st = P.state(); fn(); P.label(lab)
        if not sim: P.set_state(st)
    def dma1(voff, srd, soff_reg, soff_base, soff_add, m0base, m0add, part, tag):
        P(f"s_add_u32 m0, {s(m0base)}, {m0add}")
        P(f"s_add_u32 {s(soff_reg)}, {s(soff_base)}, {soff_add}")
        for i in part: P(f"buffer_load_dwordx4 {v(voff+i)}, {s(srd,4)}, {s(soff_reg)} offen offset:{i*1024} {NT.get(srd, '')} lds", tag)
    dup = [bool(HIDMA)]
    DUP = {sOffA: 4 << 15, sOffW: 4 << 15, sOffBA: 4*16*1280, sOffBW: 4*8*3840, sOffQW: 4 << 16}
    def dma(voff, srd, soff_reg, soff_base, soff_add, m0base, m0add, part, tag):
        if not dup[0]: return dma1(voff, srd, soff_reg, soff_base, soff_add, m0base, m0add, part, tag)
        def f():
            dma1(voff, srd, soff_reg, soff_base, soff_add, m0base, m0add, part, tag)
            if soff_base == sOffX: return dma1(voff, srd, soff_reg, sOffX2, soff_add, m0base, m0add + 16384, part, tag)
            dma1(voff, srd, soff_reg, soff_base, soff_add + DUP[soff_base], m0base, m0add + (16384 if m0base == sM4 else 8192), part, tag)
        guard(True, f)
    def dma_act(st, part=range(4)): dma(voffA, sCKV, sTa, sOffA, st*128, sM4, ASLOT[st%3], part, ("A", st))
    def dma_w(h): dma(voffW, sWKV, sTw, sOffW, h*32*8192, sM2, WSLOT[h%4], range(2), ("W", h))
    def dma_b(st, half=None, part=range(2)):
        if half != 1: dma(voffBA, sBX, sTa, sOffBA, st*128, sM2, BSLOT[st%5], part, ("B", st))
        if half != 0: dma(voffBW, sBW, sTw, sOffBW, st*64*3840, sM2, BSLOT[st%5]+16384, part, ("B", st))
    def dma_x(st, part=range(4)): dma(voffX, sAX, sTa, sOffX, st*128, sM4, XSLOT[st%4], part, ("X", st))
    def dma_qw(st, part=range(2)): dma(voffQW, sWQ, sTw, sOffQW, st*64*8192, sM2, QSLOT[st%2], part, ("Q", st))
    dma_w(0); dma_act(0)
    P("s_barrier")
    dma_w(1)
    P(f"s_and_b32 {s(sT)}, {s(sWV)}, 1"); P(f"s_lshl_b32 {s(sT2)}, {s(sT)}, 14")
    vW16, vKVo = 16, 43
    if K16:
        for ks in range(2): act_raddr16(P, vA + ks, ks, s(sT2))
        P(f"s_and_b32 {s(sT)}, {s(sWV)}, 6"); P(f"s_lshl_b32 {s(sT)}, {s(sT)}, 1")
        for cb in range(4):
            P(f"s_add_u32 {s(sT2)}, {s(sT)}, {cb}")
            w_raddr16(P, vW16 + cb, s(sT2), 9, 98304)
    else:
        for ks in range(4): act_raddr(P, vA + ks, ks, s(sT2))
        P(f"s_and_b32 {s(sT)}, {s(sWV)}, 6")
        for cb in range(2):
            P(f"s_add_u32 {s(sT2)}, {s(sT)}, {cb}")
            w_raddr(P, vW + cb, s(sT2), 9, 98304)
    dma_act(1)
    def record(fn):
        nonlocal P
        PM = P; P = Prog(); P.auto = False
        fn()
        txt = [i.text for i in P.ins]; P = PM
        ch = []
        for x in txt:
            if x.startswith("s_cselect"): ch[-1].append(x)
            else: ch.append([x])
        return ch
    sCB, sTB = 64, 65
    def setup1():
        for ks in range(2 if K16 else 4): P(f"v_add_u32 {v(vA2+ks)}, 0x10000, {v(vA+ks)}")
        if K16:
            bfe(P, T0, 5, 1); bfe(P, T1, 4, 1); P(f"v_lshlrev_b32 {v(T1)}, 9, {v(T1)}"); P(f"v_lshl_add_u32 {v(T0)}, {v(T0)}, 10, {v(T1)}")
            bfe(P, T1, 0, 4); P(f"v_lshl_add_u32 {v(vKVo)}, {v(T1)}, 4, {v(T0)}")
        make_srd(P, sWS, 86, SZ["ws"]); make_srd(P, sBX, 76, SZ["B_x"]); make_srd(P, sBW, 78, SZ["B_wqkv"])
        make_srd(P, sAX, 64, SZ["A_x"]); make_srd(P, sWQ, 68, SZ["A_wq"]); make_srd(P, sWO, 74, SZ["A_wo"])
        make_srd(P, sBWO, 80, SZ["B_wo"]); make_srd(P, sOUT, 82, SZ["out"]); make_srd(P, sDBG, 84, SZ["dbg"])
        P.raw("; NONCE")
        P(f"s_min_u32 {s(sT)}, {s(sJ)}, 29"); P(f"s_and_b32 {s(sT2)}, {s(sX)}, 1"); P(f"s_mul_i32 {s(sT2)}, {s(sT2)}, 30"); P(f"s_add_u32 {s(sT)}, {s(sT)}, {s(sT2)}")
        P(f"s_lshr_b32 {s(sCB)}, {s(sT)}, 2"); P(f"s_and_b32 {s(sTB)}, {s(sT)}, 3")
        P(f"s_lshr_b32 {s(sT2)}, {s(sX)}, 1"); P(f"s_lshl_b32 {s(sT2)}, {s(sT2)}, 2"); P(f"s_add_u32 {s(sTB)}, {s(sTB)}, {s(sT2)}")
        P(f"s_lshl_b32 {s(sT)}, {s(sTB)}, 3"); P(f"s_add_u32 {s(sT)}, {s(sT)}, {s(sWV)}"); P(f"s_mul_i32 {s(sOffBA)}, {s(sT)}, {16*1280}")
        P(f"s_mul_i32 {s(sOffBW)}, {s(sWV)}, {8*3840}"); P(f"s_lshl_b32 {s(sT)}, {s(sCB)}, 8"); P(f"s_add_u32 {s(sOffBW)}, {s(sOffBW)}, {s(sT)}")
        P(f"s_and_b32 {s(sT2)}, {s(sWV)}, 1"); P(f"s_lshl_b32 {s(sT)}, {s(sTB)}, 1"); P(f"s_add_u32 {s(sT)}, {s(sT)}, {s(sT2)}"); P(f"s_mul_i32 {s(sOutB)}, {s(sT)}, {2*120*1024}")
        P(f"s_lshr_b32 {s(sT2)}, {s(sWV)}, 1"); P(f"s_lshl_b32 {s(sT)}, {s(sCB)}, 2"); P(f"s_add_u32 {s(sT)}, {s(sT)}, {s(sT2)}"); P(f"s_lshl_b32 {s(sT)}, {s(sT)}, 11")
        P(f"s_add_u32 {s(sOutB)}, {s(sOutB)}, {s(sT)}"); P(f"s_add_u32 {s(sOutB)}, {s(sOutB)}, {QKV}")
        P(f"s_lshl_b32 {s(sFQ)}, {s(sTB)}, 7"); P(f"s_lshl_b32 {s(sT)}, {s(sCB)}, 3"); P(f"s_add_u32 {s(sFQ)}, {s(sFQ)}, {s(sT)}"); P(f"s_add_u32 {s(sFQ)}, {s(sFQ)}, {FQ}")
        P(f"s_lshl_b32 {s(sFK)}, {s(sH0)}, 6"); P(f"s_lshr_b32 {s(sT2)}, {s(sNT)}, 1"); P(f"s_lshl_b32 {s(sT2)}, {s(sT2)}, 3"); P(f"s_add_u32 {s(sT2)}, {s(sT2)}, {s(sMT)}")
        P(f"s_lshl_b32 {s(sT2)}, {s(sT2)}, 3"); P(f"s_add_u32 {s(sFK)}, {s(sFK)}, {s(sT2)}"); P(f"s_add_u32 {s(sFK)}, {s(sFK)}, {FK}")
        P(f"s_lshr_b32 {s(sT2)}, {s(sWV)}, 2"); P(f"s_add_u32 {s(sT)}, {s(sH0)}, {s(sT2)}"); P(f"s_lshl_b32 {s(sOutKV)}, {s(sT)}, 19")
        P(f"s_lshl_b32 {s(sT)}, {s(sMT)}, 16"); P(f"s_add_u32 {s(sOutKV)}, {s(sOutKV)}, {s(sT)}")
        P(f"s_and_b32 {s(sT)}, {s(sWV)}, 1"); P(f"s_lshl_b32 {s(sT)}, {s(sT)}, 15"); P(f"s_add_u32 {s(sOutKV)}, {s(sOutKV)}, {s(sT)}")
        P(f"s_and_b32 {s(sT)}, {s(sWV)}, 2"); P(f"s_lshl_b32 {s(sT)}, {s(sT)}, 11"); P(f"s_add_u32 {s(sOutKV)}, {s(sOutKV)}, {s(sT)}")
        P(f"s_lshr_b32 {s(sT)}, {s(sNT)}, 1"); P(f"s_lshl_b32 {s(sT)}, {s(sT)}, 24"); P(f"s_add_u32 {s(sOutKV)}, {s(sOutKV)}, {s(sT)}")
        P(f"s_and_b32 {s(sH)}, {s(sJ)}, 3"); P(f"s_lshl_b32 {s(sT)}, {s(sX)}, 2"); P(f"s_add_u32 {s(sH)}, {s(sH)}, {s(sT)}")
        P(f"s_lshr_b32 {s(sG)}, {s(sJ)}, 2")
        P(f"s_lshl_b32 {s(sT)}, {s(sG)}, 2"); P(f"s_add_u32 {s(sT)}, {s(sT)}, {s(sWV)}")
        P(f"s_sub_u32 {s(sT2)}, 63, {s(sT)}"); P(f"s_sub_u32 {s(sT)}, {s(sT)}, 4")
        P(f"s_cmp_lt_u32 {s(sWV)}, 4"); P(f"s_cselect_b32 {s(sJL)}, {s(sT2)}, {s(sT)}")
        P(f"s_lshl_b32 {s(sRow0)}, {s(sJL)}, 5")
        P(f"s_mul_i32 {s(sOffX)}, {s(sRow0)}, 1280")
        P(f"s_mul_i32 {s(sOffX2)}, {s(sT)}, {32*1280}"); P(f"s_add_u32 {s(sOffX2)}, {s(sOffX2)}, {4*32*1280}")
        P(f"s_lshl_b32 {s(sOffQW)}, {s(sH)}, 8"); P(f"s_lshl_b32 {s(sT)}, {s(sWV)}, 16"); P(f"s_add_u32 {s(sOffQW)}, {s(sOffQW)}, {s(sT)}")
        for i in range(2): act_voff(P, voffBA + i, i, 1280)
        for i in range(2): w256_voff(P, voffBW + i, i, 3840)
        P(f"s_and_b32 {s(sT)}, {s(sWV)}, 1"); P(f"s_lshl_b32 {s(sT)}, {s(sT)}, 13")
        for ks in range(4): act_raddr(P, vBA + ks, ks, s(sT))
        P(f"s_lshr_b32 {s(sT2)}, {s(sWV)}, 1")
        w_raddr(P, vBW, s(sT2), 8, 16384)
    def setup2():
        for i in range(4): act_voff(P, voffX + i, i, 1280)
        for i in range(2): w256_voff(P, voffQW + i, i, 8192)
        P(f"s_lshr_b32 {s(sT)}, {s(sWV)}, 2"); P(f"s_lshl_b32 {s(sT)}, {s(sT)}, 1")
        for cb in range(2):
            P(f"s_add_u32 {s(sT2)}, {s(sT)}, {cb}")
            w_raddr(P, vQWr + cb, s(sT2), 8, 98304)
        P(f"s_xor_b32 {s(sT)}, {s(sM4)}, 0x4000")
        for ks in range(4):
            act_raddr(P, vXr + ks, ks, s(sM4))
            P(f"v_add_u32 {v(vXr+4+ks)}, {s(sT)}, {v(T0)}")
    ch1, ch2 = record(setup1), record(setup2)
    chunks = []
    lab_id = [0]
    def nonce():
        lab_id[0] += 1; lab = f"{name}_nonon{lab_id[0]}"
        P(f"s_lshl_b32 {s(sT)}, s2, 3"); P(f"s_add_u32 {s(sT)}, {s(sT)}, {s(sWV)}")
        P(f"s_cmp_lg_u32 {s(sT)}, 4"); P(f"s_cbranch_scc1 {lab}")
        P.raw(f"s_memrealtime {s(sNON,2)}"); P("s_waitcnt lgkmcnt(0)")
        P(f"s_or_b32 {s(sNON)}, {s(sNON)}, 1")
        P(f"v_mov_b32 v4, {s(sNON)}"); P(f"v_mov_b32 v5, {s(sNON+1)}"); P("v_mov_b32 v8, 0")
        P("s_mov_b64 exec, 1")
        P.raw(f"buffer_store_dwordx2 v[4:5], v8, {s(sDBG,4)}, 0 offen sc1")
        P("s_mov_b64 exec, -1")
        P.label(lab)
    def nonce_get():
        lab_id[0] += 1; lab = f"{name}_nget{lab_id[0]}"
        P(f"v_readfirstlane_b32 {s(sNON)}, v8"); P(f"v_readfirstlane_b32 {s(sNON+1)}, v9")
        P(f"s_cmp_lg_u32 {s(sNON)}, 0"); P(f"s_cbranch_scc1 {lab}_ok")
        P.raw(f"s_mov_b32 {s(sT2)}, {int(os.environ.get('POLLMAX', '0x40000'), 0)}")
        P.label(lab)
        P.raw(f"buffer_load_dwordx2 {v(8,2)}, {v(T3)}, {s(sDBG,4)}, 0 offen sc1"); P.raw("s_waitcnt vmcnt(0)")
        P.raw(f"v_readfirstlane_b32 {s(sNON)}, v8"); P.raw(f"v_readfirstlane_b32 {s(sNON+1)}, v9")
        P.raw(f"s_sub_u32 {s(sT2)}, {s(sT2)}, 1"); P.raw(f"s_cbranch_scc1 {lab}_ok")
        P.raw(f"s_cmp_eq_u32 {s(sNON)}, 0"); P.raw(f"s_cbranch_scc1 {lab}")
        P.label(lab + "_ok")
    def emit_chunks(n):
        for _ in range(n):
            if not chunks: return
            c = chunks.pop(0)
            if c[0] == "; NONCE":
                st = P.state(); nonce(); P.set_state(st)
            else:
                for x in c: P(x)
    def publish(sreg, lab):
        P(f"s_cmp_lg_u32 {s(sWV)}, 4"); P(f"s_cbranch_scc1 {lab}")
        P(f"v_mov_b32 v114, {s(sNON)}"); P(f"v_mov_b32 v115, {s(sNON+1)}"); P(f"v_mov_b32 v116, 0")
        P("s_mov_b64 exec, 1")
        for r in (sreg if isinstance(sreg, list) else [sreg]):
            P.raw(f"buffer_store_dwordx2 v[114:115], v116, {s(sWS,4)}, {s(r)} offen sc1")
        P("s_mov_b64 exec, -1")
        P.label(lab)
    def pf(srd, idx_kind, mul, add, xmul=0):
        def one(delta):
            if idx_kind == "xcd": P(f"s_lshl_b32 {s(sPF)}, {s(sJ)}, 3")
            else: P(f"s_lshl_b32 {s(sPF)}, s2, 3")
            P(f"s_add_u32 {s(sPF)}, {s(sPF)}, {s(sWV)}")
            if delta: P(f"s_sub_u32 {s(sPF)}, {s(sPF)}, {delta}")
            P(f"s_mul_i32 {s(sPF)}, {s(sPF)}, {mul}")
            if callable(add): add()
            elif add: P(f"s_add_u32 {s(sPF)}, {s(sPF)}, {add}")
            P.raw(f"buffer_load_dwordx4 {v(vPF,4)}, {v(vL16)}, {s(srd,4)}, {s(sPF)} offen {NTP.get(srd, '')}")
        if HIDMA: guard(False, lambda: (one(0), one(4)), sim=False)
        else: one(0); P.vq.append((set(), "pf"))
    def addx(shift, mul, const):
        def f():
            if shift == "lo": P(f"s_and_b32 {s(7)}, {s(sX)}, 1")
            else: P(f"s_lshr_b32 {s(7)}, {s(sX)}, {shift}")
            P(f"s_mul_i32 {s(7)}, {s(7)}, {mul}"); P(f"s_add_u32 {s(sPF)}, {s(sPF)}, {s(7)}")
            if const: P(f"s_add_u32 {s(sPF)}, {s(sPF)}, {const}")
        return f
    pf_xm = [lambda i=i: pf(sAX, "chip", 1280, i*1024) for i in range(2)]
    pf_xl = [lambda i=i: pf(sAX, "xcd", 10240, i*1024) for i in range(10)]
    pf_wq = [lambda i=i: pf(sWQ, "xcd", 3*8192, addx(0, 1024, i*8192)) for i in range(3)]
    pf_bx = [lambda i=i: pf(sBX, "xcd", 2560, addx(1, 512*1280, i*1024)) for i in range(3)]
    pf_bw = [lambda i=i, c=c: pf(sBW, "xcd", 3*3840, addx("lo", 1792, i*3840 + c*1024)) for i in range(3) for c in range(2)]
    pf_wo = [lambda i=i: pf(sWO, "chip", 2560, i*1024) for i in range(3)] + [lambda: pf(sBWO, "chip", 1024, 0)]
    def pf_tlb():
        def f():
            P(f"v_lshrrev_b32 {v(vPF)}, 4, {v(vL16)}"); P(f"v_mul_u32_u24 {v(vPF+1)}, {int(os.environ.get('TLBS', '0x180000'), 0)}, {v(vPF)}")
            P.raw(f"buffer_load_dword {v(vPF+2)}, {v(vPF+1)}, {s(sWS,4)}, 0 offen")
            P(f"v_lshlrev_b32 {v(vPF+1)}, 17, {v(vPF)}")
            P.raw(f"buffer_load_dword {v(vPF+2)}, {v(vPF+1)}, {s(sOUT,4)}, 0 offen")
        gid[0] += 1; lab = f"{name}_g{gid[0]}"
        P(f"s_cmp_lg_u32 {s(sWV)}, 7"); P(f"s_cbranch_scc1 {lab}"); f(); P.label(lab)
    def pf_w(i):
        if i == 0:
            bfe(P, T0, 5, 1); bfe(P, T1, 0, 5); P(f"v_lshlrev_b32 {v(T1)}, 4, {v(T1)}"); P(f"v_lshl_add_u32 v42, {v(T0)}, 13, {v(T1)}")
        P(f"s_lshl_b32 {s(sPF)}, {s(sMT)}, 19"); P(f"s_lshl_b32 s7, {s(sWV)}, 16"); P(f"s_add_u32 {s(sPF)}, {s(sPF)}, s7")
        P(f"s_lshl_b32 s7, {s(sH0)}, 8"); P(f"s_add_u32 {s(sPF)}, {s(sPF)}, s7"); P(f"s_add_u32 {s(sPF)}, {s(sPF)}, {i*2*8192}")
        P.raw(f"buffer_load_dwordx4 {v(vPF,4)}, v42, {s(sWKV,4)}, {s(sPF)} offen {NTP.get(sWKV, '')}"); P.vq.append((set(), "pf"))
    pf_k = [lambda: pf(sCKV, "chip", 1024, 0)] + [lambda i=i: pf_w(i) for i in range(4)]
    def pf_code():
        gid[0] += 1; lab = f"{name}_pc{gid[0]}"
        P.raw("s_getpc_b64 s[90:91]")
        P.label(lab)
        P("s_and_b32 s90, s90, 0xffffff80")
        P(f"s_lshl_b32 {s(sPF)}, {s(sJ)}, 3"); P(f"s_add_u32 {s(sPF)}, {s(sPF)}, {s(sWV)}"); P(f"s_lshl_b32 {s(sPF)}, {s(sPF)}, 10")
        P.raw(f"s_min_u32 {s(sPF)}, {s(sPF)}, ({name}_end-{lab}-1024)&0xffffff80")
        P(f"v_add_u32 v42, {s(sPF)}, {v(vL16)}")
        P.raw(f"global_load_dwordx4 {v(vPF,4)}, v42, s[90:91]"); P.vq.append((set(), "pf"))
    PFS = {"c": [pf_code], "k": pf_k, "t": [pf_tlb], "o": pf_wo, "m": pf_xm, "x": pf_xl, "q": pf_wq, "b": pf_bx + pf_bw}
    pf_sched = {}
    for item in os.environ.get("PFS", "b10,m19,q21").split(","):
        if item:
            for i, f in enumerate(PFS[item[0]]): pf_sched.setdefault(int(item[1:]) + i, []).append(f)

    if os.environ.get("PFK0"):
        for f in pf_k: f()
    ACC = 64; FR = [192, 216]
    def fA(set_, tb): return FR[set_] + 4*tb
    def fW(set_, cb): return FR[set_] + 16 + 4*cb
    def reads(q):
        st, ks = q // 4, q % 4; h, kh = q // 2, q % 2; se = q % 2
        sl = st % 3
        def rA(tb):
            base = vA2 if sl == 2 else vA; off = (ASLOT[sl] if sl < 2 else 0) + tb*4096
            return f"ds_read_b128 {v(fA(se,tb),4)}, {v(base+ks)} offset:{off}"
        def rW(cb, i):
            return f"ds_read_b64_tr_b16 {v(fW(se,cb)+2*i,2)}, {v(vW+cb)} offset:{(h%4)*16384 + (16*kh+4*i)*512}"
        return [rW(0,0), rW(0,1), rA(0), rW(1,0), rW(1,1), rA(1), rA(2), rA(3)]
    def kv16():
        WF = [192, 208]; AF = 224
        def rA(h, tb):
            st = h // 2; sl = st % 3
            base = vA2 if sl == 2 else vA; off = (ASLOT[sl] if sl < 2 else 0) + tb*2048
            return f"ds_read_b128 {v(AF + 4*(tb%4),4)}, {v(base + h%2)} offset:{off}"
        def rW(h, cb, i): return f"ds_read_b64_tr_b16 {v(WF[h%2]+4*cb+2*i,2)}, {v(vW16+cb)} offset:{(h%4)*16384 + 4*i*512}"
        P.wait_tag(lambda t: t in (("A", 0), ("W", 0))); P("s_barrier")
        SP()
        for cb in range(4):
            for i in range(2): P(rW(0, cb, i))
            if cb < 3: P(rA(0, cb))
        st0 = P.state()
        P(f"s_cmp_ge_u32 {s(sNT)}, 2"); P(f"s_cbranch_scc1 {name}_V")
        for isV in (0, 1):
            if isV: P.label(f"{name}_V"); P.set_state(st0)
            chunks[:] = list(ch1)
            for h in range(16):
                for tb in range(8):
                    mf = []
                    for cb in range(4):
                        n = (tb//2)*4 + cb if isV else (tb//2)*4 + (cb//2)*2 + tb%2
                        d = v(ACC + 8*n + 4*(tb%2 if isV else cb%2), 4)
                        x, y = (AF + 4*(tb%4), WF[h%2] + 4*cb) if isV else (WF[h%2] + 4*cb, AF + 4*(tb%4))
                        mf.append(f"v_mfma_f32_16x16x32_bf16 {d}, {v(x,4)}, {v(y,4)}, {'0' if h == 0 else d}")
                    fill = []
                    if tb == 5:
                        def sync(h=h):
                            if h < 15: P.wait_tag(lambda t: t == ("W", h+1) or t == ("A", (h+1)//2))
                            else: P.wait_tag(lambda t: t == ("B", 0))
                            P.wait_lds_all(); P("s_barrier")
                        for _ in range(int(os.environ.get("SYP", "0"))): fill.append(lambda: None)
                        fill.append(sync)
                    if tb + 3 < 8: fill.append(rA(h, tb + 3))
                    elif h < 15: fill.append(rA(h + 1, tb + 3 - 8))
                    if h < 15 and tb >= 5:
                        allw = [(cb, i) for cb in range(4) for i in range(2)]
                        cut = [int(c) for c in os.environ.get("WCUT", "36")]
                        for cb, i in [allw[:cut[0]], allw[cut[0]:cut[1]], allw[cut[1]:]][tb - 5]: fill.append(rW(h + 1, cb, i))
                    hp = h if tb >= 5 else h - 1
                    if h == 0 and tb == 0: fill.append(lambda: dma_w(2))
                    if h == 0 and tb == 2: fill.append(lambda: dma_w(3))
                    if h == 0 and tb in (3, 4): fill.append(lambda tb=tb: dma_act(2, [0, 1] if tb == 3 else [2, 3]))
                    if tb == 6 and h + 4 <= 15: fill.append(lambda h=h: dma_w(h + 4))
                    if tb == 1 and hp >= 1:
                        sa = (hp + 1) // 2 + 2
                        if sa <= 7: fill.append(lambda hp=hp, sa=sa: dma_act(sa, [0, 1] if hp % 2 == 1 else [2, 3]))
                        if hp == 11: fill.append(lambda: dma_b(0, 0))
                        if hp == 13: fill.append(lambda: dma_b(1, 0))
                        if hp == 14: fill.append(lambda: dma_b(2, 1))
                    if tb == 6 and h == 12: fill.append(lambda: dma_b(0, 1))
                    if tb == 6 and h == 13: pass
                    if tb == 3 and h == 14: fill.append(lambda: dma_b(1, 1))
                    if tb == 6 and h == 14: fill.append(lambda: dma_b(2, 0))
                    if h == 15 and tb >= 6: fill.append(lambda tb=tb: dma_b(tb - 3))
                    if tb in (2, 4):
                        for f in pf_sched.get(2*h + (tb == 4), []): fill.append(f)
                    if h < 3: fill.insert(0 if tb != 5 else 1, lambda: emit_chunks(5)); fill.append(lambda: emit_chunks(5))
                    interleave(P, mf, fill)
                if h == 2: assert not chunks, len(chunks)
            if not isV: P(f"s_branch {name}_J")
    if K16: kv16()
    else:
        P.wait_tag(lambda t: t in (("A", 0), ("W", 0))); P("s_barrier")
        SP()
        for r in reads(0): P(r)
        st0 = P.state()
        P(f"s_cmp_ge_u32 {s(sNT)}, 2"); P(f"s_cbranch_scc1 {name}_V")
        for isV in (0, 1):
            if isV: P.label(f"{name}_V"); P.set_state(st0)
            chunks[:] = list(ch1)
            for q in range(32):
                se = q % 2; hs = q // 2
                mf = []
                for tb in range(4):
                    for cb in range(2):
                        d = v(ACC + (tb*2+cb)*16, 16); c = "0" if q == 0 else d
                        x, y = (fA(se,tb), fW(se,cb)) if isV else (fW(se,cb), fA(se,tb))
                        if os.environ.get("KV16"):
                            for hh in range(2):
                                dd = v(ACC + (tb*2+cb)*16 + 8*(q%2) + 4*hh, 4)
                                mf.append(f"v_mfma_f32_16x16x32_bf16 {dd}, {v(x,4)}, {v(y,4)}, {'0' if q < 2 else dd}")
                        else: mf.append(f"v_mfma_f32_32x32x16_bf16 {d}, {v(x,4)}, {v(y,4)}, {c}")
                fill = []
                if KVT:
                    if q % 2 == 1:
                        def sync(hs=hs):
                            if hs < 15: P.wait_tag(lambda t: t == ("W", hs+1) or t == ("A", (hs+1)//2))
                            else: P.wait_tag(lambda t: t == ("B", 0))
                            P.wait_lds_all(); P("s_barrier")
                        fill.append(sync)
                    if q < 31: fill += reads(q + 1)
                    if q == 0: fill.insert(2, lambda: dma_w(2)); fill.insert(6, lambda: dma_w(3))
                    if q == 1: fill.insert(5, lambda: dma_act(2, [0, 1])); fill.insert(9, lambda: dma_act(2, [2, 3]))
                    if q % 2 == 1:
                        if hs + 4 <= 15: fill.insert(3, lambda hs=hs: dma_w(hs + 4))
                        sa = (hs + 1) // 2 + 2
                        if hs >= 1 and sa <= 7: fill.insert(6, lambda hs=hs, sa=sa: dma_act(sa, [0,1] if hs % 2 == 1 else [2,3]))
                        if hs == 11: fill.insert(6, lambda: dma_b(0, 0))
                        if hs == 12: fill.insert(3, lambda: dma_b(0, 1))
                        if hs == 13: fill.insert(3, lambda: dma_b(1))
                        if hs == 14: fill.insert(3, lambda: dma_b(2))
                        if hs == 15: fill.append(lambda: dma_b(3)); fill.append(lambda: dma_b(4))
                else:
                    if q % 2 == 1 and q < 31:
                        def sync(hs=hs):
                            P.wait_tag(lambda t: t == ("W", hs+1) or t == ("A", (hs+1)//2))
                            P("s_barrier")
                        fill.append(sync)
                    if q < 31: fill += reads(q + 1)
                    if q == 0: fill.insert(2, lambda: dma_w(2)); fill.insert(6, lambda: dma_w(3))
                    if q == 1: fill.insert(3, lambda: dma_act(2, [0, 1])); fill.insert(7, lambda: dma_act(2, [2, 3]))
                    if q % 2 == 1:
                        if 1 <= hs <= 12: fill.insert(3, lambda hs=hs: dma_w(hs + 3))
                        sa = hs // 2 + 2
                        if hs >= 2 and sa <= 7: fill.insert(6, lambda hs=hs, sa=sa: dma_act(sa, [0,1] if hs % 2 == 0 else [2,3]))
                        if hs == 12: fill.insert(6, lambda: dma_b(0))
                        if hs == 14: fill.insert(3, lambda: dma_b(1))
                        if hs == 15: fill.insert(1, lambda: dma_b(2))
                for f in pf_sched.get(q, []): fill.insert(2, f)
                if q < 6:
                    for i in range(8): fill.insert(min(len(fill), 1 + 2*i), lambda: emit_chunks(5))
                interleave(P, mf, fill)
                if q == 5: assert not chunks, len(chunks)
            if not isV: P(f"s_branch {name}_J")
    P.label(f"{name}_J")
    dup[0] = False
    SP()
    BFR = [192 + 12*i for i in range(4)]
    BACC = 160
    BPK = 44
    def baddr(st):
        return [f"v_add_u32 {v(vBAc+ks)}, {BSLOT[st%5]}, {v(vBA+ks)}" for ks in range(4)] + [f"v_add_u32 {v(vBWc)}, {BSLOT[st%5]}, {v(vBW)}"]
    def breads(q):
        ks = q % 4; se = q % 4
        return [f"ds_read_b64_tr_b16 {v(BFR[se]+8,2)}, {v(vBWc)} offset:{(16*ks)*256}",
                f"ds_read_b64_tr_b16 {v(BFR[se]+10,2)}, {v(vBWc)} offset:{(16*ks+4)*256}",
                f"ds_read_b128 {v(BFR[se],4)}, {v(vBAc+ks)} offset:0",
                f"ds_read_b128 {v(BFR[se]+4,4)}, {v(vBAc+ks)} offset:4096"]
    def PKB(tile): return ACC + 16*tile if tile < 6 else 44 + 8*(tile - 6)
    def kvcvt(tile):
        out = [f"v_cvt_pk_bf16_f32 {v(PKB(tile)+i)}, {v(ACC+16*tile+2*i)}, {v(ACC+16*tile+2*i+1)}" for i in range(8)]
        if K16: out += [f"v_permlane32_swap_b32 {v(PKB(tile)+x)}, {v(PKB(tile)+y)}" for x, y in ((0,2),(1,3),(4,6),(5,7))]
        return out
    def kvstore(n):
        if os.environ.get("X_NOST"): return
        tb, r = n // 4, n % 4
        P(f"s_add_u32 {s(sSt)}, {s(sOutKV)}, {tb*8192}")
        P(f"buffer_store_dwordx4 {v(PKB(n//2) + 4*(n%2),4)}, {v(vKVo if K16 else vL16)}, {s(sWS,4)}, {s(sSt)} offen offset:{(r//2)*2048 + (r%2)*256 if K16 else r*1024} {'' if KVP else ST}", ("S", n))
    def bstore(n):
        tb, c = n // 2, n % 2
        P(f"s_add_u32 {s(sSt)}, {s(sOutB)}, {tb*120*1024}")
        P(f"buffer_store_dwordx4 {v(BPK+tb*8+4*c,4)}, {v(vL16)}, {s(sWS,4)}, {s(sSt)} offen offset:{c*1024} {ST}", ("S", 16+n))
    for x in baddr(0): P(x)
    if not KVT: P.wait_tag(lambda t: t == ("B", 0)); P("s_barrier")
    for r in breads(0) + breads(1): P(r)
    for x in kvcvt(6) + kvcvt(7): P(x)
    order = [6, 7, 4, 5, 0, 1, 2, 3]
    late = [lambda n=2*tl+h: kvstore(n) for tl in order for h in range(2)]
    cvts = sum([kvcvt(tl) for tl in order[2:]], [])
    SB = [int(c) for c in os.environ.get("SB", "2222222200" if KVP else "1111111111")]
    SQ = [int(c) for c in os.environ.get("SQ", "2200000000" if KVP else "2222200000")]
    PUB = int(os.environ.get("PUB", "5"))
    chunks[:] = list(ch2)
    NQ = 40
    for q in range(NQ):
        st, ks = q // 4, q % 4; se = q % 4
        mf = []
        for tb in range(2):
            d = v(BACC + tb*16, 16); c = "0" if q == 0 else d
            mf.append(f"v_mfma_f32_32x32x16_bf16 {d}, {v(BFR[se]+8,4)}, {v(BFR[se]+4*tb,4)}, {c}")
        fill = []
        if ks == 2:
            def sync(st=st):
                if st < 9: P.wait_tag(lambda t: t == ("B", st+1))
                P.wait_lds_all(); P("s_barrier")
                if st < 9:
                    for x in baddr(st+1): P(x)
            fill.append(sync)
        if q + 2 < NQ: fill += breads(q + 2)
        if q == 0 and not KVT: fill.insert(1, lambda: dma_b(3))
        if q == 1 and not KVT: fill.insert(1, lambda: dma_b(4))
        for i in range(3):
            if cvts: fill.insert(1 + i, cvts.pop(0))
        if q < 16: fill.insert(len(fill)//2, lambda: emit_chunks(4)); fill.append(lambda: emit_chunks(4))
        def bl(st):
            if st <= 4: return [lambda: dma_b(st + 5, 0), lambda: dma_b(st + 5, 1)]
            if st == 7: return [lambda: dma_qw(0), lambda: dma_qw(1)]
            xs = {5: 0, 6: 1, 8: 2, 9: 3}[st]
            return [lambda: dma_x(xs, [0, 1]), lambda: dma_x(xs, [2, 3])]
        def bl1(st):
            if st <= 4: return [lambda h=h, i=i: dma_b(st + 5, h, [i]) for h in range(2) for i in range(2)]
            if st == 7: return [lambda a=a, i=i: dma_qw(a, [i]) for a in range(2) for i in range(2)]
            xs = {5: 0, 6: 1, 8: 2, 9: 3}[st]
            return [lambda i=i: dma_x(xs, [i]) for i in range(4)]
        BSP = os.environ.get("BSP", "0")
        if BSP == "0":
            if ks >= 2: fill.append(bl(st)[ks - 2])
        elif BSP == "1":
            if ks >= 2: fill.insert(2, bl1(st)[ks - 2])
            elif st >= 1: fill.insert(2, bl1(st - 1)[ks + 2])
            if st == 9 and ks == 3: fill += bl1(9)[2:]
        elif BSP == "2":
            if ks == 2:
                for i, f in enumerate(bl1(st)): fill.insert(1 + i, f)
        if ks == int(os.environ.get("BSK", "0")):
            for _ in range(SB[st]):
                if late: fill.append(late.pop(0))
        if q == 5: fill.append(lambda: (P(f"v_mov_b32 {v(T3)}, 0"), P(f"buffer_load_dwordx2 {v(8,2)}, {v(T3)}, {s(sDBG,4)}, 0 offen sc1")))
        if q == 29: fill.append(nonce_get)
        for f in pf_sched.get(100 + q, []): fill.append(f)
        interleave(P, mf, fill)
        if q == 15: assert not chunks, len(chunks)
    SP()
    QACC = 128; QFR = [192, 208, 224]
    def xaddr(st): return [f"v_add_u32 {v(vXc+i)}, {XSLOT[st%4]}, {v(vXr+i)}" for i in range(8)]
    def qreads(q):
        st, ks = q // 4, q % 4; se = q % 3
        def w(cb, i): return f"ds_read_b64_tr_b16 {v(QFR[se]+4*cb+2*i,2)}, {v(vQWr+cb)} offset:{(st%2)*16384 + (16*ks+4*i)*256}"
        def x(r): return f"ds_read_b128 {v(QFR[se]+8+4*r,4)}, {v(vXc+4*r+ks)} offset:0"
        return [w(0,0), w(0,1), x(0), w(1,0), w(1,1), x(1)]
    for x in xaddr(0): P(x)
    if KVP: P("s_waitcnt vmcnt(0)")
    P.wait_tag(lambda t: t in (("X", 0), ("Q", 0))); P("s_barrier")
    if KVP:
        dup[0] = True
        P(f"s_cmp_lg_u32 {s(sWV)}, 4"); P(f"s_cbranch_scc1 {name}_nowb")
        P.raw("buffer_wbl2 sc1")
        if PROF and os.environ.get("WBT"): P.raw("s_memtime s[96:97]"); P.raw("s_waitcnt vmcnt(0) lgkmcnt(0)"); P.raw("s_mov_b32 s3, s96"); P.raw("s_memtime s[96:97]"); P.raw("s_waitcnt lgkmcnt(0)"); P.raw("s_sub_u32 s3, s96, s3"); P.raw(f"v_writelane_b32 {v(vSTAMP)}, s3, 23")
        P.label(f"{name}_nowb")
    for r in qreads(0) + qreads(1): P(r)
    for tb in range(2):
        for i in range(8): P(f"v_cvt_pk_bf16_f32 {v(BPK+tb*8+i)}, {v(BACC+tb*16+2*i)}, {v(BACC+tb*16+2*i+1)}")
    for tb in range(2):
        b = BPK + tb*8
        for (x, y) in ((0,2),(1,3),(4,6),(5,7)): P(f"v_permlane32_swap_b32 {v(b+x)}, {v(b+y)}")
    late += [lambda n=n: bstore(n) for n in range(4)]
    def poll(soff, nfl, lab, own_off=False):
        P(f"s_mov_b32 {s(sT2)}, {int(os.environ.get('POLLMAX', '0x40000'), 0)}")
        if not own_off: P(f"v_lshrrev_b32 {v(T3)}, 1, {v(vL16)}")
        if nfl < 64: P(f"s_mov_b64 exec, {hex((1 << nfl) - 1)}")
        P.label(lab)
        P(f"buffer_load_dwordx2 {v(246,2)}, {v(T3)}, {s(sWS,4)}, {s(soff)} offen sc1")
        P("s_waitcnt vmcnt(0)")
        for i in range(2): P(f"v_xor_b32 {v(246+i)}, {s(sNON + i)}, {v(246+i)}")
        P(f"v_or_b32 {v(246)}, {v(246)}, {v(247)}")
        P(f"v_cmp_ne_u32 vcc, 0, {v(246)}")
        P(f"s_cbranch_vccz {lab}_ok")
        P("s_sleep 4")
        P(f"s_sub_u32 {s(sT2)}, {s(sT2)}, 1"); P(f"s_cmp_lg_u32 {s(sT2)}, 0"); P(f"s_cbranch_scc1 {lab}")
        P.label(lab + "_ok")
        if nfl < 64: P("s_mov_b64 exec, -1")
    ctx = dict(P=P, SP=SP, name=name, poll=poll, publish=publish)
    import attn
    early = attn.gen_attn(dict(ctx, early_only=True))
    vEX, sQS = 9, 92
    def setup3():
        P(f"s_mov_b32 {s(sQS)}, {fbits(QSCALE)}"); P(f"s_mov_b32 {s(sQS+1)}, {fbits(QSCALE)}")
        P(f"s_add_u32 {s(sT)}, {s(sM4)}, {131072}"); P(f"v_add_u32 {v(vEX)}, {s(sT)}, {v(vL16)}")
        early.setup(P)
    chunks[:] = record(setup3)
    EREQ = int(os.environ.get('EREQ', '30')); ETRY = int(os.environ.get('ETRY', '35'))
    for q in range(40):
        st, ks = q // 4, q % 4; se = q % 3
        mf = []
        for r in range(2):
            for cb in range(2):
                d = v(QACC + (r*2+cb)*16, 16); c = "0" if q == 0 else d
                mf.append(f"v_mfma_f32_32x32x16_bf16 {d}, {v(QFR[se]+4*cb,4)}, {v(QFR[se]+8+4*r,4)}, {c}")
        fill = []
        if ks == 2:
            def sync(st=st):
                if st < 9: P.wait_tag(lambda t: t in (("X", st+1), ("Q", st+1)))
                if st == PUB and KVP: guard(False, lambda: P.raw("s_waitcnt vmcnt(0)"))
                if st == PUB: P.wait_tag(lambda t: t is not None and t[0] == "S")
                P.wait_lds_all()
                if st < 9 or st == PUB: P("s_barrier")
                if st == PUB: publish([sFK, sFQ], f"{name}_pubk")
                if st < 9:
                    for x in xaddr(st+1): P(x)
            fill.append(sync)
        if q + 2 < 40: fill += qreads(q + 2)
        vm = []
        if ks == 2 and st + 2 <= 9: vm += [lambda i=i, st=st: dma_qw(st + 2, [i]) for i in range(2)]
        if ks in (3, 0):
            s0 = st if ks == 3 else st - 1
            if s0 >= 0 and s0 + 4 <= 9: vm += [lambda i=i, s0=s0: dma_x(s0 + 4, [i]) for i in ([0, 1] if ks == 3 else [2, 3])]
        if ks == SQK:
            for _ in range(SQ[st]):
                if late: vm.append(late.pop(0))
        if 22 <= q < 34: fill.insert(2, lambda: emit_chunks(5)); fill.append(lambda: emit_chunks(5))
        if q == 34: assert not chunks, len(chunks)
        if q == EREQ: vm.append(early.req)
        if q == ETRY: vm.append(early.try_); eops = early.ops()
        if q > ETRY:
            n = -(-len(eops) // (40 - q))
            vm += eops[:n]; eops = eops[n:]
        base = 1 if ks == 2 else 0
        stp = 3 if len(vm) <= 3 else 2
        for i, x in enumerate(vm): fill.insert(min(len(fill), base + 1 + i * stp), x)
        interleave(P, mf, fill)
    assert not late
    SP()
    early()
    SND = 96
    for i in range(32, 64, 2): P(f"v_pk_mul_f32 {v(QACC+i,2)}, {v(QACC+i,2)}, {s(sQS,2)}")
    for i in range(16): P(f"v_cvt_pk_bf16_f32 {v(SND+i)}, {v(QACC+32+2*i)}, {v(QACC+32+2*i+1)}")
    for i in range(4): P(f"ds_write_b128 {v(vEX)}, {v(SND+4*i,4)} offset:{i*1024}")
    for i in range(0, 32, 2): P(f"v_pk_mul_f32 {v(QACC+i,2)}, {v(QACC+i,2)}, {s(sQS,2)}")
    P(f"v_xor_b32 {v(vEX)}, 0x4000, {v(vEX)}")
    P("s_waitcnt lgkmcnt(0)"); P("s_barrier")
    for i in range(4): P(f"ds_read_b128 {v(16+4*i,4)}, {v(vEX)} offset:{i*1024}")
    for i in range(16): P(f"v_cvt_pk_bf16_f32 {v(i)}, {v(QACC+2*i)}, {v(QACC+2*i+1)}")
    attn.gen_attn(ctx)
    P.label("L_stop")
    SP(idx=13); SP(True); SP.flush()
    P.label(f"{name}_end"); P("s_endpgm")
    return kernel_desc(name, 256, sgpr=100)
```

```python
from common import *
import math
ST = os.environ.get("ST", "sc1")
LD = os.environ.get("LD", "sc1")
STOP = os.environ.get("STOP", "")
FK, FQ, FA, FC, FB = 70*MB, 70*MB + 4096, 70*MB + 8192, 70*MB + 16384, 70*MB + 32768
KVT = int(os.environ.get("KVT", "1"))
WSB = int(os.environ.get("WSB", "0")) * MB
K16 = int(os.environ.get("K16", "1"))
KVP = int(os.environ.get("KVP", "0"))
HIDMA = int(os.environ.get("HIDMA", "1"))
SQK = int(os.environ.get("SQK", "3"))
STAG = int(os.environ.get("STAG", "1"))
QSPREAD = int(os.environ.get("QSPREAD", "1"))
PF1 = int(os.environ.get("PF1", "1")); PF2 = int(os.environ.get("PF2", "10"))
QSCALE = math.log2(math.e) / math.sqrt(128.0)
import struct
def fbits(x): return "0x%08x" % struct.unpack("<I", struct.pack("<f", x))[0]

sCKV, sWKV, sWS, sBX, sBW, sAX, sWQ, sWO, sBWO, sOUT, sDBG = 8, 12, 16, 20, 24, 28, 32, 36, 40, 44, 48
sX, sJ, sWV, sT, sT2, sTa, sTw, sM4, sM2 = 52, 53, 54, 55, 56, 57, 58, 59, 60
sOffA, sOffW, sOutKV, sOffBA, sOffBW, sOutB, sSt = 61, 62, 63, 4, 5, 66, 67
sOffX, sOffQW, sH, sG, sRow0, sJL, sREM, sNB = 68, 69, 70, 71, 72, 73, 74, 75
sSlot, sDOff, sDIdx, sDLim, sDBase, sTHR, sDM0 = 76, 77, 78, 79, 80, 81, 82
sNON = 84
sU0, sU1, sU2, sU3 = 86, 87, 88, 89
sM = 90
sFK, sFQ, sISV, sPF, sOffX2 = 94, 95, 83, 6, 99
sSTAMP = 96
vL16, vTID, vSTAMP = 240, 241, 255
T0, T1, T2, T3 = 242, 243, 244, 245

class Stamp:
    def __init__(self, P): self.P = P; self.n = 0
    def __call__(self, real=False, idx=None):
        if not PROF: return
        if idx is not None: self.n = idx
        if os.environ.get("RT"): real = True
        P = self.P
        P.raw(f"{'s_memrealtime' if real else 's_memtime'} {s(sSTAMP,2)}"); P("s_waitcnt lgkmcnt(0)")
        P.raw(f"v_writelane_b32 {v(vSTAMP)}, {s(sSTAMP)}, {self.n}")
        if os.environ.get("STOPAT") == str(self.n): P.raw("s_waitcnt vmcnt(0)"); P.raw("s_branch L_stop")
        self.n += 1
    def flush(self):
        if not PROF: return
        P = self.P
        if os.environ.get("DBGOUT"):
            P.raw(f"s_cmp_lg_u32 s2, {os.environ['DBGOUT']}"); P.raw("s_cbranch_scc1 L_nodbg"); P.raw(f"s_cmp_lg_u32 {s(sWV)}, 0"); P.raw("s_cbranch_scc1 L_nodbg")
            P.raw(f"v_readlane_b32 s3, {v(vSTAMP)}, 0"); P.raw("s_nop 3"); P.raw(f"v_subrev_u32 {v(T0)}, s3, {v(vSTAMP)}")
            P.raw(f"v_lshrrev_b32 {v(T1)}, 2, {v(vL16)}"); P.raw("s_mov_b64 exec, 0x3ffe"); P.raw("s_nop 1")
            P.raw(f"buffer_store_dword {v(T0)}, {v(T1)}, {s(sDBG,4)}, 0 offen offset:4")
            P.raw("s_mov_b64 exec, -1")
            P.raw("L_nodbg:")
            return
        P.raw(f"s_lshl_b32 s3, s2, 3"); P.raw(f"s_add_u32 s3, s3, {s(sWV)}"); P.raw("s_lshl_b32 s3, s3, 8")
        P.raw(f"s_add_u32 s3, s3, {PROFOFF}")
        P.raw(f"v_lshrrev_b32 {v(T0)}, 2, {v(vL16)}"); P.raw("s_nop 1")
        P.raw(f"buffer_store_dword {v(vSTAMP)}, {v(T0)}, {s(sWS,4)}, s3 offen")

_m = {"c": sCKV, "w": sWKV, "x": sAX, "q": sWQ, "b": sBX, "v": sBW, "o": sWO}
NT = {_m[c]: "nt" for c in os.environ.get("NT", "w")}
NTP = {_m[c]: "nt" for c in os.environ.get("NTP", "")}
def bfe(P, dst, off, n): P(f"v_bfe_u32 {v(dst)}, {v(vTID)}, {off}, {n}")

def act_voff(P, dst, i, stride):
    bfe(P, T0, 4, 2)
    if i % 2: P(f"v_xor_b32 {v(T0)}, 4, {v(T0)}")
    bfe(P, T1, 0, 3); P(f"v_xor_b32 {v(T0)}, {v(T0)}, {v(T1)}"); P(f"v_lshlrev_b32 {v(T0)}, 4, {v(T0)}")
    bfe(P, T1, 3, 3)
    P(f"v_mul_u32_u24 {v(T1)}, {stride}, {v(T1)}")
    P(f"v_add_u32 {v(T0)}, {v(T0)}, {v(T1)}")
    P(f"v_add_u32 {v(dst)}, {8*i*stride - i*1024}, {v(T0)}")
def w256_voff(P, dst, i, stride):
    bfe(P, T0, 4, 2); bfe(P, T1, 2, 2)
    P(f"v_xor_b32 {v(T1)}, {v(T1)}, {v(T0)}"); P(f"v_lshlrev_b32 {v(T1)}, 6, {v(T1)}")
    bfe(P, T2, 0, 2); P(f"v_lshl_add_u32 {v(T1)}, {v(T2)}, 4, {v(T1)}")
    P(f"v_mul_u32_u24 {v(T0)}, {stride}, {v(T0)}")
    P(f"v_add_u32 {v(T1)}, {v(T1)}, {v(T0)}")
    P(f"v_add_u32 {v(dst)}, {4*i*stride - i*1024}, {v(T1)}")
def w512_voff(P, dst, i, stride_log):
    bfe(P, T2, 5, 1)
    P(f"v_add_u32 {v(T0)}, {2*i}, {v(T2)}")
    bfe(P, T1, 2, 3); P(f"v_xor_b32 {v(T1)}, {v(T1)}, {v(T0)}"); P(f"v_lshlrev_b32 {v(T1)}, 6, {v(T1)}")
    bfe(P, T0, 0, 2); P(f"v_lshl_add_u32 {v(T1)}, {v(T0)}, 4, {v(T1)}")
    P(f"v_lshl_add_u32 {v(T1)}, {v(T2)}, {stride_log}, {v(T1)}")
    P(f"v_add_u32 {v(dst)}, {(2*i << stride_log) - i*1024}, {v(T1)}")
def w512_voff16(P, dst, i, stride_log, sb3):
    bfe(P, T2, 5, 1)
    P(f"v_add_u32 {v(T0)}, {2*i}, {v(T2)}"); P(f"v_lshl_add_u32 {v(T0)}, {v(T0)}, 2, {sb3}")
    bfe(P, T1, 0, 5); P(f"v_xor_b32 {v(T1)}, {v(T1)}, {v(T0)}"); P(f"v_lshlrev_b32 {v(T1)}, 4, {v(T1)}")
    P(f"v_lshl_add_u32 {v(T1)}, {v(T2)}, {stride_log}, {v(T1)}")
    P(f"v_add_u32 {v(dst)}, {(2*i << stride_log) - i*1024}, {v(T1)}")
def act_raddr16(P, dst, ks, sbase):
    bfe(P, T0, 4, 2); P(f"v_add_u32 {v(T0)}, {4*ks}, {v(T0)}"); bfe(P, T1, 1, 3)
    P(f"v_xor_b32 {v(T0)}, {v(T0)}, {v(T1)}"); P(f"v_lshlrev_b32 {v(T0)}, 4, {v(T0)}")
    bfe(P, T1, 0, 4); P(f"v_lshl_add_u32 {v(T0)}, {v(T1)}, 7, {v(T0)}")
    P(f"v_add_u32 {v(dst)}, {sbase}, {v(T0)}")
def w_raddr16(P, dst, blk, rowlog, base):
    bfe(P, T0, 2, 2); bfe(P, T2, 4, 1); P(f"v_lshl_add_u32 {v(T1)}, {v(T0)}, 1, {v(T2)}")
    P(f"v_xor_b32 {v(T1)}, {blk}, {v(T1)}"); P(f"v_lshlrev_b32 {v(T1)}, 5, {v(T1)}")
    bfe(P, T2, 4, 2); P(f"v_lshl_add_u32 {v(T0)}, {v(T2)}, 3, {v(T0)}"); P(f"v_lshl_add_u32 {v(T1)}, {v(T0)}, {rowlog}, {v(T1)}")
    bfe(P, T0, 0, 2); P(f"v_lshl_add_u32 {v(T1)}, {v(T0)}, 3, {v(T1)}")
    P(f"v_add_u32 {v(dst)}, {base}, {v(T1)}")
def act_raddr(P, dst, ks, sbase):
    bfe(P, T0, 5, 1); P(f"v_add_u32 {v(T0)}, {2*ks}, {v(T0)}"); bfe(P, T1, 1, 3)
    P(f"v_xor_b32 {v(T0)}, {v(T0)}, {v(T1)}"); P(f"v_lshlrev_b32 {v(T0)}, 4, {v(T0)}")
    bfe(P, T1, 0, 5); P(f"v_lshl_add_u32 {v(T0)}, {v(T1)}, 7, {v(T0)}")
    P(f"v_add_u32 {v(dst)}, {sbase}, {v(T0)}")
def w_raddr(P, dst, unit, rowlog, base):
    bfe(P, T0, 2, 2); P(f"v_xor_b32 {v(T1)}, {unit}, {v(T0)}"); P(f"v_lshlrev_b32 {v(T1)}, 6, {v(T1)}")
    bfe(P, T2, 5, 1); P(f"v_lshl_add_u32 {v(T0)}, {v(T2)}, 3, {v(T0)}"); P(f"v_lshl_add_u32 {v(T1)}, {v(T0)}, {rowlog}, {v(T1)}")
    bfe(P, T0, 4, 1); P(f"v_lshl_add_u32 {v(T1)}, {v(T0)}, 5, {v(T1)}")
    bfe(P, T0, 0, 2); P(f"v_lshl_add_u32 {v(T1)}, {v(T0)}, 3, {v(T1)}")
    P(f"v_add_u32 {v(dst)}, {base}, {v(T1)}")

def gen(P, name):
    kernel_start(P, name, 256)
    SP = Stamp(P)
    if PROF: P.raw("s_memrealtime s[98:99]")
    P(f"s_load_dwordx16 s[64:79], s[0:1], 0"); P(f"s_load_dwordx8 s[80:87], s[0:1], 64")
    P(f"v_mov_b32 {v(vTID)}, v0")
    P(f"v_lshrrev_b32 v1, 6, v0")
    P(f"s_and_b32 {s(sX)}, s2, 7"); P(f"s_lshr_b32 {s(sJ)}, s2, 3")
    P(f"v_readfirstlane_b32 {s(sWV)}, v1")
    P(f"v_and_b32 v1, 63, v0"); P(f"v_lshlrev_b32 {v(vL16)}, 4, v1")
    vA, vA2, vW, voffA, voffW, voffBA, voffBW, vBA, vBW, vBAc, vBWc = 10, 14, 18, 20, 24, 26, 28, 32, 36, 37, 41
    voffX, voffQW, vXr, vQWr, vXc = 10, 14, 16, 24, 0
    vPF = 60
    for i in range(4): act_voff(P, voffA + i, i, 1024)
    if K16:
        P(f"s_and_b32 {s(sT)}, {s(sWV)}, 2")
        for i in range(2): w512_voff16(P, voffW + i, i, 13, s(sT))
    else:
        for i in range(2): w512_voff(P, voffW + i, i, 13)
    sMT, sNT, sH0 = sU2, sU3, 3
    P(f"s_and_b32 {s(sMT)}, {s(sJ)}, 7"); P(f"s_lshr_b32 {s(sNT)}, {s(sJ)}, 3")
    P(f"s_lshl_b32 {s(sM4)}, {s(sWV)}, 12"); P(f"s_lshl_b32 {s(sM2)}, {s(sWV)}, 11")
    P(f"s_and_b32 {s(sH0)}, {s(sNT)}, 1"); P(f"s_lshl_b32 {s(sH0)}, {s(sH0)}, 1"); P(f"s_lshl_b32 {s(sT2)}, {s(sX)}, 2"); P(f"s_add_u32 {s(sH0)}, {s(sH0)}, {s(sT2)}")
    P(f"s_lshl_b32 {s(sOffW)}, {s(sH0)}, 8"); P(f"s_lshl_b32 {s(sT2)}, {s(sWV)}, 15"); P(f"s_add_u32 {s(sOffW)}, {s(sOffW)}, {s(sT2)}")
    P(f"s_lshl_b32 {s(sOffA)}, {s(sMT)}, 18"); P(f"s_add_u32 {s(sOffA)}, {s(sOffA)}, {s(sT2)}")
    P("s_waitcnt lgkmcnt(0)")
    if os.environ.get("STOPAT") in ("1", "2"): make_srd(P, sWS, 86, SZ["ws"])
    SP(True)
    if PROF: P.raw(f"v_writelane_b32 {v(vSTAMP)}, s98, 0")
    SP()
    if PROF: P.raw(f"v_writelane_b32 {v(vSTAMP)}, s98, 0")
    make_srd(P, sCKV, 66, SZ["A_ckv"])
    P(f"s_cmp_ge_u32 {s(sNT)}, 2")
    P(f"s_cselect_b32 {s(sWKV)}, s72, s70"); P(f"s_cselect_b32 {s(sWKV+1)}, s73, s71")
    P(f"s_mov_b32 {s(sWKV+2)}, {SZ['A_wuk']}"); P(f"s_mov_b32 {s(sWKV+3)}, 0x20000")

    ASLOT = [0, 32768, 65536]; WSLOT = [98304 + 16384*i for i in range(4)]
    BSLOT = [65536, 0, 98304, 32768, 131072]
    XSLOT = [65536, 0, 32768, 131072]; QSLOT = [98304, 114688]
    gid = [0]
    def guard(hi, fn, sim=True):
        gid[0] += 1; lab = f"{name}_g{gid[0]}"
        P(f"s_cmp_lt_u32 {s(sWV)}, 4"); P(f"s_cbranch_scc{0 if hi else 1} {lab}")
        st = P.state(); fn(); P.label(lab)
        if not sim: P.set_state(st)
    def dma1(voff, srd, soff_reg, soff_base, soff_add, m0base, m0add, part, tag):
        P(f"s_add_u32 m0, {s(m0base)}, {m0add}")
        P(f"s_add_u32 {s(soff_reg)}, {s(soff_base)}, {soff_add}")
        for i in part: P(f"buffer_load_dwordx4 {v(voff+i)}, {s(srd,4)}, {s(soff_reg)} offen offset:{i*1024} {NT.get(srd, '')} lds", tag)
    dup = [bool(HIDMA)]
    DUP = {sOffA: 4 << 15, sOffW: 4 << 15, sOffBA: 4*16*1280, sOffBW: 4*8*3840, sOffQW: 4 << 16}
    def dma(voff, srd, soff_reg, soff_base, soff_add, m0base, m0add, part, tag):
        if not dup[0]: return dma1(voff, srd, soff_reg, soff_base, soff_add, m0base, m0add, part, tag)
        def f():
            dma1(voff, srd, soff_reg, soff_base, soff_add, m0base, m0add, part, tag)
            if soff_base == sOffX: return dma1(voff, srd, soff_reg, sOffX2, soff_add, m0base, m0add + 16384, part, tag)
            dma1(voff, srd, soff_reg, soff_base, soff_add + DUP[soff_base], m0base, m0add + (16384 if m0base == sM4 else 8192), part, tag)
        guard(True, f)
    def dma_act(st, part=range(4)): dma(voffA, sCKV, sTa, sOffA, st*128, sM4, ASLOT[st%3], part, ("A", st))
    def dma_w(h): dma(voffW, sWKV, sTw, sOffW, h*32*8192, sM2, WSLOT[h%4], range(2), ("W", h))
    def dma_b(st, half=None, part=range(2)):
        if half != 1: dma(voffBA, sBX, sTa, sOffBA, st*128, sM2, BSLOT[st%5], part, ("B", st))
        if half != 0: dma(voffBW, sBW, sTw, sOffBW, st*64*3840, sM2, BSLOT[st%5]+16384, part, ("B", st))
    def dma_x(st, part=range(4)): dma(voffX, sAX, sTa, sOffX, st*128, sM4, XSLOT[st%4], part, ("X", st))
    def dma_qw(st, part=range(2)): dma(voffQW, sWQ, sTw, sOffQW, st*64*8192, sM2, QSLOT[st%2], part, ("Q", st))
    dma_w(0); dma_act(0)
    P("s_barrier")
    dma_w(1)
    P(f"s_and_b32 {s(sT)}, {s(sWV)}, 1"); P(f"s_lshl_b32 {s(sT2)}, {s(sT)}, 14")
    vW16, vKVo = 16, 43
    if K16:
        for ks in range(2): act_raddr16(P, vA + ks, ks, s(sT2))
        P(f"s_and_b32 {s(sT)}, {s(sWV)}, 6"); P(f"s_lshl_b32 {s(sT)}, {s(sT)}, 1")
        for cb in range(4):
            P(f"s_add_u32 {s(sT2)}, {s(sT)}, {cb}")
            w_raddr16(P, vW16 + cb, s(sT2), 9, 98304)
    else:
        for ks in range(4): act_raddr(P, vA + ks, ks, s(sT2))
        P(f"s_and_b32 {s(sT)}, {s(sWV)}, 6")
        for cb in range(2):
            P(f"s_add_u32 {s(sT2)}, {s(sT)}, {cb}")
            w_raddr(P, vW + cb, s(sT2), 9, 98304)
    dma_act(1)
    def record(fn):
        nonlocal P
        PM = P; P = Prog(); P.auto = False
        fn()
        txt = [i.text for i in P.ins]; P = PM
        ch = []
        for x in txt:
            if x.startswith("s_cselect") or x.startswith("s_addc"): ch[-1].append(x)
            else: ch.append([x])
        return ch
    sCB, sTB = 64, 65
    def setup1():
        for ks in range(2 if K16 else 4): P(f"v_add_u32 {v(vA2+ks)}, 0x10000, {v(vA+ks)}")
        if K16:
            bfe(P, T0, 5, 1); bfe(P, T1, 4, 1); P(f"v_lshlrev_b32 {v(T1)}, 9, {v(T1)}"); P(f"v_lshl_add_u32 {v(T0)}, {v(T0)}, 10, {v(T1)}")
            bfe(P, T1, 0, 4); P(f"v_lshl_add_u32 {v(vKVo)}, {v(T1)}, 4, {v(T0)}")
        if WSB:
            P(f"s_add_u32 {s(sWS)}, s86, {WSB}"); P.ins[-1].text += " ; +carry"; P(f"s_addc_u32 {s(sWS+1)}, s87, 0")
            P(f"s_mov_b32 {s(sWS+2)}, {SZ['ws'] - WSB}"); P(f"s_mov_b32 {s(sWS+3)}, 0x20000")
        else: make_srd(P, sWS, 86, SZ["ws"])
        make_srd(P, sBX, 76, SZ["B_x"]); make_srd(P, sBW, 78, SZ["B_wqkv"])
        make_srd(P, sAX, 64, SZ["A_x"]); make_srd(P, sWQ, 68, SZ["A_wq"]); make_srd(P, sWO, 74, SZ["A_wo"])
        make_srd(P, sBWO, 80, SZ["B_wo"]); make_srd(P, sOUT, 82, SZ["out"]); make_srd(P, sDBG, 84, SZ["dbg"])
        P.raw("; NONCE")
        P(f"s_min_u32 {s(sT)}, {s(sJ)}, 29"); P(f"s_and_b32 {s(sT2)}, {s(sX)}, 1"); P(f"s_mul_i32 {s(sT2)}, {s(sT2)}, 30"); P(f"s_add_u32 {s(sT)}, {s(sT)}, {s(sT2)}")
        P(f"s_lshr_b32 {s(sCB)}, {s(sT)}, 2"); P(f"s_and_b32 {s(sTB)}, {s(sT)}, 3")
        P(f"s_lshr_b32 {s(sT2)}, {s(sX)}, 1"); P(f"s_lshl_b32 {s(sT2)}, {s(sT2)}, 2"); P(f"s_add_u32 {s(sTB)}, {s(sTB)}, {s(sT2)}")
        P(f"s_lshl_b32 {s(sT)}, {s(sTB)}, 3"); P(f"s_add_u32 {s(sT)}, {s(sT)}, {s(sWV)}"); P(f"s_mul_i32 {s(sOffBA)}, {s(sT)}, {16*1280}")
        P(f"s_mul_i32 {s(sOffBW)}, {s(sWV)}, {8*3840}"); P(f"s_lshl_b32 {s(sT)}, {s(sCB)}, 8"); P(f"s_add_u32 {s(sOffBW)}, {s(sOffBW)}, {s(sT)}")
        P(f"s_and_b32 {s(sT2)}, {s(sWV)}, 1"); P(f"s_lshl_b32 {s(sT)}, {s(sTB)}, 1"); P(f"s_add_u32 {s(sT)}, {s(sT)}, {s(sT2)}"); P(f"s_mul_i32 {s(sOutB)}, {s(sT)}, {2*120*1024}")
        P(f"s_lshr_b32 {s(sT2)}, {s(sWV)}, 1"); P(f"s_lshl_b32 {s(sT)}, {s(sCB)}, 2"); P(f"s_add_u32 {s(sT)}, {s(sT)}, {s(sT2)}"); P(f"s_lshl_b32 {s(sT)}, {s(sT)}, 11")
        P(f"s_add_u32 {s(sOutB)}, {s(sOutB)}, {s(sT)}"); P(f"s_add_u32 {s(sOutB)}, {s(sOutB)}, {QKV}")
        P(f"s_lshl_b32 {s(sFQ)}, {s(sTB)}, 7"); P(f"s_lshl_b32 {s(sT)}, {s(sCB)}, 3"); P(f"s_add_u32 {s(sFQ)}, {s(sFQ)}, {s(sT)}"); P(f"s_add_u32 {s(sFQ)}, {s(sFQ)}, {FQ}")
        P(f"s_lshl_b32 {s(sFK)}, {s(sH0)}, 6"); P(f"s_lshr_b32 {s(sT2)}, {s(sNT)}, 1"); P(f"s_lshl_b32 {s(sT2)}, {s(sT2)}, 3"); P(f"s_add_u32 {s(sT2)}, {s(sT2)}, {s(sMT)}")
        P(f"s_lshl_b32 {s(sT2)}, {s(sT2)}, 3"); P(f"s_add_u32 {s(sFK)}, {s(sFK)}, {s(sT2)}"); P(f"s_add_u32 {s(sFK)}, {s(sFK)}, {FK}")
        P(f"s_lshr_b32 {s(sT2)}, {s(sWV)}, 2"); P(f"s_add_u32 {s(sT)}, {s(sH0)}, {s(sT2)}"); P(f"s_lshl_b32 {s(sOutKV)}, {s(sT)}, 19")
        P(f"s_lshl_b32 {s(sT)}, {s(sMT)}, 16"); P(f"s_add_u32 {s(sOutKV)}, {s(sOutKV)}, {s(sT)}")
        P(f"s_and_b32 {s(sT)}, {s(sWV)}, 1"); P(f"s_lshl_b32 {s(sT)}, {s(sT)}, 15"); P(f"s_add_u32 {s(sOutKV)}, {s(sOutKV)}, {s(sT)}")
        P(f"s_and_b32 {s(sT)}, {s(sWV)}, 2"); P(f"s_lshl_b32 {s(sT)}, {s(sT)}, 11"); P(f"s_add_u32 {s(sOutKV)}, {s(sOutKV)}, {s(sT)}")
        P(f"s_lshr_b32 {s(sT)}, {s(sNT)}, 1"); P(f"s_lshl_b32 {s(sT)}, {s(sT)}, 24"); P(f"s_add_u32 {s(sOutKV)}, {s(sOutKV)}, {s(sT)}")
        P(f"s_and_b32 {s(sH)}, {s(sJ)}, 3"); P(f"s_lshl_b32 {s(sT)}, {s(sX)}, 2"); P(f"s_add_u32 {s(sH)}, {s(sH)}, {s(sT)}")
        P(f"s_lshr_b32 {s(sG)}, {s(sJ)}, 2")
        P(f"s_lshl_b32 {s(sT)}, {s(sG)}, 2"); P(f"s_add_u32 {s(sT)}, {s(sT)}, {s(sWV)}")
        P(f"s_sub_u32 {s(sT2)}, 63, {s(sT)}"); P(f"s_sub_u32 {s(sT)}, {s(sT)}, 4")
        P(f"s_cmp_lt_u32 {s(sWV)}, 4"); P(f"s_cselect_b32 {s(sJL)}, {s(sT2)}, {s(sT)}")
        P(f"s_lshl_b32 {s(sRow0)}, {s(sJL)}, 5")
        P(f"s_mul_i32 {s(sOffX)}, {s(sRow0)}, 1280")
        P(f"s_mul_i32 {s(sOffX2)}, {s(sT)}, {32*1280}"); P(f"s_add_u32 {s(sOffX2)}, {s(sOffX2)}, {4*32*1280}")
        P(f"s_lshl_b32 {s(sOffQW)}, {s(sH)}, 8"); P(f"s_lshl_b32 {s(sT)}, {s(sWV)}, 16"); P(f"s_add_u32 {s(sOffQW)}, {s(sOffQW)}, {s(sT)}")
        for i in range(2): act_voff(P, voffBA + i, i, 1280)
        for i in range(2): w256_voff(P, voffBW + i, i, 3840)
        P(f"s_and_b32 {s(sT)}, {s(sWV)}, 1"); P(f"s_lshl_b32 {s(sT)}, {s(sT)}, 13")
        for ks in range(4): act_raddr(P, vBA + ks, ks, s(sT))
        P(f"s_lshr_b32 {s(sT2)}, {s(sWV)}, 1")
        w_raddr(P, vBW, s(sT2), 8, 16384)
    def setup2():
        for i in range(4): act_voff(P, voffX + i, i, 1280)
        for i in range(2): w256_voff(P, voffQW + i, i, 8192)
        P(f"s_lshr_b32 {s(sT)}, {s(sWV)}, 2"); P(f"s_lshl_b32 {s(sT)}, {s(sT)}, 1")
        for cb in range(2):
            P(f"s_add_u32 {s(sT2)}, {s(sT)}, {cb}")
            w_raddr(P, vQWr + cb, s(sT2), 8, 98304)
        P(f"s_xor_b32 {s(sT)}, {s(sM4)}, 0x4000")
        for ks in range(4):
            act_raddr(P, vXr + ks, ks, s(sM4))
            P(f"v_add_u32 {v(vXr+4+ks)}, {s(sT)}, {v(T0)}")
    ch1, ch2 = record(setup1), record(setup2)
    chunks = []
    lab_id = [0]
    def nonce():
        lab_id[0] += 1; lab = f"{name}_nonon{lab_id[0]}"
        P(f"s_lshl_b32 {s(sT)}, s2, 3"); P(f"s_add_u32 {s(sT)}, {s(sT)}, {s(sWV)}")
        P(f"s_cmp_lg_u32 {s(sT)}, 4"); P(f"s_cbranch_scc1 {lab}")
        P.raw(f"s_memrealtime {s(sNON,2)}"); P("s_waitcnt lgkmcnt(0)")
        P(f"s_or_b32 {s(sNON)}, {s(sNON)}, 1")
        P(f"v_mov_b32 v4, {s(sNON)}"); P(f"v_mov_b32 v5, {s(sNON+1)}"); P("v_mov_b32 v8, 0")
        P("s_mov_b64 exec, 1")
        P.raw(f"buffer_store_dwordx2 v[4:5], v8, {s(sDBG,4)}, 0 offen sc1")
        P("s_mov_b64 exec, -1")
        P.label(lab)
    def nonce_get():
        lab_id[0] += 1; lab = f"{name}_nget{lab_id[0]}"
        P(f"v_readfirstlane_b32 {s(sNON)}, v8"); P(f"v_readfirstlane_b32 {s(sNON+1)}, v9")
        P(f"s_cmp_lg_u32 {s(sNON)}, 0"); P(f"s_cbranch_scc1 {lab}_ok")
        P.raw(f"s_mov_b32 {s(sT2)}, {int(os.environ.get('POLLMAX', '0x40000'), 0)}")
        P.label(lab)
        P.raw(f"buffer_load_dwordx2 {v(8,2)}, {v(T3)}, {s(sDBG,4)}, 0 offen sc1"); P.raw("s_waitcnt vmcnt(0)")
        P.raw(f"v_readfirstlane_b32 {s(sNON)}, v8"); P.raw(f"v_readfirstlane_b32 {s(sNON+1)}, v9")
        P.raw(f"s_sub_u32 {s(sT2)}, {s(sT2)}, 1"); P.raw(f"s_cbranch_scc1 {lab}_ok")
        P.raw(f"s_cmp_eq_u32 {s(sNON)}, 0"); P.raw(f"s_cbranch_scc1 {lab}")
        P.label(lab + "_ok")
    def emit_chunks(n):
        for _ in range(n):
            if not chunks: return
            c = chunks.pop(0)
            if c[0] == "; NONCE":
                st = P.state(); nonce(); P.set_state(st)
            else:
                for x in c: P(x)
    def publish(sreg, lab):
        P(f"s_cmp_lg_u32 {s(sWV)}, 4"); P(f"s_cbranch_scc1 {lab}")
        P(f"v_mov_b32 v114, {s(sNON)}"); P(f"v_mov_b32 v115, {s(sNON+1)}"); P(f"v_mov_b32 v116, 0")
        P("s_mov_b64 exec, 1")
        for r in (sreg if isinstance(sreg, list) else [sreg]):
            P.raw(f"buffer_store_dwordx2 v[114:115], v116, {s(sWS,4)}, {s(r)} offen sc1")
        P("s_mov_b64 exec, -1")
        P.label(lab)
    def pf(srd, idx_kind, mul, add, xmul=0):
        def one(delta):
            if idx_kind == "xcd": P(f"s_lshl_b32 {s(sPF)}, {s(sJ)}, 3")
            else: P(f"s_lshl_b32 {s(sPF)}, s2, 3")
            P(f"s_add_u32 {s(sPF)}, {s(sPF)}, {s(sWV)}")
            if delta: P(f"s_sub_u32 {s(sPF)}, {s(sPF)}, {delta}")
            P(f"s_mul_i32 {s(sPF)}, {s(sPF)}, {mul}")
            if callable(add): add()
            elif add: P(f"s_add_u32 {s(sPF)}, {s(sPF)}, {add}")
            P.raw(f"buffer_load_dwordx4 {v(vPF,4)}, {v(vL16)}, {s(srd,4)}, {s(sPF)} offen {NTP.get(srd, '')}")
        if HIDMA: guard(False, lambda: (one(0), one(4)), sim=False)
        else: one(0); P.vq.append((set(), "pf"))
    def addx(shift, mul, const):
        def f():
            if shift == "lo": P(f"s_and_b32 {s(7)}, {s(sX)}, 1")
            else: P(f"s_lshr_b32 {s(7)}, {s(sX)}, {shift}")
            P(f"s_mul_i32 {s(7)}, {s(7)}, {mul}"); P(f"s_add_u32 {s(sPF)}, {s(sPF)}, {s(7)}")
            if const: P(f"s_add_u32 {s(sPF)}, {s(sPF)}, {const}")
        return f
    pf_xm = [lambda i=i: pf(sAX, "chip", 1280, i*1024) for i in range(2)]
    pf_xl = [lambda i=i: pf(sAX, "xcd", 10240, i*1024) for i in range(10)]
    pf_wq = [lambda i=i: pf(sWQ, "xcd", 3*8192, addx(0, 1024, i*8192)) for i in range(3)]
    pf_bx = [lambda i=i: pf(sBX, "xcd", 2560, addx(1, 512*1280, i*1024)) for i in range(3)]
    pf_bw = [lambda i=i, c=c: pf(sBW, "xcd", 3*3840, addx("lo", 1792, i*3840 + c*1024)) for i in range(3) for c in range(2)]
    pf_wo = [lambda i=i: pf(sWO, "chip", 2560, i*1024) for i in range(3)] + [lambda: pf(sBWO, "chip", 1024, 0)]
    def pf_tlb():
        def f():
            P(f"v_lshrrev_b32 {v(vPF)}, 4, {v(vL16)}"); P(f"v_mul_u32_u24 {v(vPF+1)}, {int(os.environ.get('TLBS', '0x180000'), 0)}, {v(vPF)}")
            P.raw(f"buffer_load_dword {v(vPF+2)}, {v(vPF+1)}, {s(sWS,4)}, 0 offen")
            P(f"v_lshlrev_b32 {v(vPF+1)}, 17, {v(vPF)}")
            P.raw(f"buffer_load_dword {v(vPF+2)}, {v(vPF+1)}, {s(sOUT,4)}, 0 offen")
        gid[0] += 1; lab = f"{name}_g{gid[0]}"
        P(f"s_cmp_lg_u32 {s(sWV)}, 7"); P(f"s_cbranch_scc1 {lab}"); f(); P.label(lab)
    def pf_w(i):
        if i == 0:
            bfe(P, T0, 5, 1); bfe(P, T1, 0, 5); P(f"v_lshlrev_b32 {v(T1)}, 4, {v(T1)}"); P(f"v_lshl_add_u32 v42, {v(T0)}, 13, {v(T1)}")
        P(f"s_lshl_b32 {s(sPF)}, {s(sMT)}, 19"); P(f"s_lshl_b32 s7, {s(sWV)}, 16"); P(f"s_add_u32 {s(sPF)}, {s(sPF)}, s7")
        P(f"s_lshl_b32 s7, {s(sH0)}, 8"); P(f"s_add_u32 {s(sPF)}, {s(sPF)}, s7"); P(f"s_add_u32 {s(sPF)}, {s(sPF)}, {i*2*8192}")
        P.raw(f"buffer_load_dwordx4 {v(vPF,4)}, v42, {s(sWKV,4)}, {s(sPF)} offen {NTP.get(sWKV, '')}"); P.vq.append((set(), "pf"))
    pf_k = [lambda: pf(sCKV, "chip", 1024, 0)] + [lambda i=i: pf_w(i) for i in range(4)]
    def pf_code():
        gid[0] += 1; lab = f"{name}_pc{gid[0]}"
        P.raw("s_getpc_b64 s[90:91]")
        P.label(lab)
        P("s_and_b32 s90, s90, 0xffffff80")
        P(f"s_lshl_b32 {s(sPF)}, {s(sJ)}, 3"); P(f"s_add_u32 {s(sPF)}, {s(sPF)}, {s(sWV)}"); P(f"s_lshl_b32 {s(sPF)}, {s(sPF)}, 10")
        P.raw(f"s_min_u32 {s(sPF)}, {s(sPF)}, ({name}_end-{lab}-1024)&0xffffff80")
        P(f"v_add_u32 v42, {s(sPF)}, {v(vL16)}")
        P.raw(f"global_load_dwordx4 {v(vPF,4)}, v42, s[90:91]"); P.vq.append((set(), "pf"))
    PFS = {"c": [pf_code], "k": pf_k, "t": [pf_tlb], "o": pf_wo, "m": pf_xm, "x": pf_xl, "q": pf_wq, "b": pf_bx + pf_bw}
    pf_sched = {}
    for item in os.environ.get("PFS", "c6,b10,m19,q21").split(","):
        if item:
            for i, f in enumerate(PFS[item[0]]): pf_sched.setdefault(int(item[1:]) + i, []).append(f)

    if os.environ.get("PFK0"):
        for f in pf_k: f()
    ACC = 64; FR = [192, 216]
    def fA(set_, tb): return FR[set_] + 4*tb
    def fW(set_, cb): return FR[set_] + 16 + 4*cb
    def reads(q):
        st, ks = q // 4, q % 4; h, kh = q // 2, q % 2; se = q % 2
        sl = st % 3
        def rA(tb):
            base = vA2 if sl == 2 else vA; off = (ASLOT[sl] if sl < 2 else 0) + tb*4096
            return f"ds_read_b128 {v(fA(se,tb),4)}, {v(base+ks)} offset:{off}"
        def rW(cb, i):
            return f"ds_read_b64_tr_b16 {v(fW(se,cb)+2*i,2)}, {v(vW+cb)} offset:{(h%4)*16384 + (16*kh+4*i)*512}"
        return [rW(0,0), rW(0,1), rA(0), rW(1,0), rW(1,1), rA(1), rA(2), rA(3)]
    def kv16():
        WF = [192, 208]; AF = 224
        def rA(h, tb):
            st = h // 2; sl = st % 3
            base = vA2 if sl == 2 else vA; off = (ASLOT[sl] if sl < 2 else 0) + tb*2048
            return f"ds_read_b128 {v(AF + 4*(tb%4),4)}, {v(base + h%2)} offset:{off}"
        def rW(h, cb, i): return f"ds_read_b64_tr_b16 {v(WF[h%2]+4*cb+2*i,2)}, {v(vW16+cb)} offset:{(h%4)*16384 + 4*i*512}"
        P.wait_tag(lambda t: t in (("A", 0), ("W", 0))); P("s_barrier")
        SP()
        for cb in range(4):
            for i in range(2): P(rW(0, cb, i))
            if cb < 3: P(rA(0, cb))
        st0 = P.state()
        P(f"s_cmp_ge_u32 {s(sNT)}, 2"); P(f"s_cbranch_scc1 {name}_V")
        for isV in (0, 1):
            if isV: P.label(f"{name}_V"); P.set_state(st0)
            chunks[:] = list(ch1)
            for h in range(16):
                for tb in range(8):
                    mf = []
                    for cb in range(4):
                        n = (tb//2)*4 + cb if isV else (tb//2)*4 + (cb//2)*2 + tb%2
                        d = v(ACC + 8*n + 4*(tb%2 if isV else cb%2), 4)
                        x, y = (AF + 4*(tb%4), WF[h%2] + 4*cb) if isV else (WF[h%2] + 4*cb, AF + 4*(tb%4))
                        mf.append(f"v_mfma_f32_16x16x32_bf16 {d}, {v(x,4)}, {v(y,4)}, {'0' if h == 0 else d}")
                    fill = []
                    if tb == 5:
                        def sync(h=h):
                            if h < 15: P.wait_tag(lambda t: t == ("W", h+1) or t == ("A", (h+1)//2))
                            else: P.wait_tag(lambda t: t == ("B", 0))
                            P.wait_lds_all(); P("s_barrier")
                        for _ in range(int(os.environ.get("SYP", "0"))): fill.append(lambda: None)
                        fill.append(sync)
                    if tb + 3 < 8: fill.append(rA(h, tb + 3))
                    elif h < 15: fill.append(rA(h + 1, tb + 3 - 8))
                    if h < 15 and tb >= 5:
                        allw = [(cb, i) for cb in range(4) for i in range(2)]
                        cut = [int(c) for c in os.environ.get("WCUT", "36")]
                        for cb, i in [allw[:cut[0]], allw[cut[0]:cut[1]], allw[cut[1]:]][tb - 5]: fill.append(rW(h + 1, cb, i))
                    hp = h if tb >= 5 else h - 1
                    if h == 0 and tb == 0: fill.append(lambda: dma_w(2))
                    if h == 0 and tb == 2: fill.append(lambda: dma_w(3))
                    if h == 0 and tb in (3, 4): fill.append(lambda tb=tb: dma_act(2, [0, 1] if tb == 3 else [2, 3]))
                    if tb == 6 and h + 4 <= 15: fill.append(lambda h=h: dma_w(h + 4))
                    if tb == 1 and hp >= 1:
                        sa = (hp + 1) // 2 + 2
                        if sa <= 7: fill.append(lambda hp=hp, sa=sa: dma_act(sa, [0, 1] if hp % 2 == 1 else [2, 3]))
                        if hp == 11: fill.append(lambda: dma_b(0, 0))
                        if hp == 13: fill.append(lambda: dma_b(1, 0))
                        if hp == 14: fill.append(lambda: dma_b(2, 1))
                    if tb == 6 and h == 12: fill.append(lambda: dma_b(0, 1))
                    if tb == 6 and h == 13: pass
                    if tb == 3 and h == 14: fill.append(lambda: dma_b(1, 1))
                    if tb == 6 and h == 14: fill.append(lambda: dma_b(2, 0))
                    if h == 15 and tb >= 6: fill.append(lambda tb=tb: dma_b(tb - 3))
                    if tb in (2, 4):
                        for f in pf_sched.get(2*h + (tb == 4), []): fill.append(f)
                    if h < 3: fill.insert(0 if tb != 5 else 1, lambda: emit_chunks(5)); fill.append(lambda: emit_chunks(5))
                    interleave(P, mf, fill)
                if h == 2: assert not chunks, len(chunks)
            if not isV: P(f"s_branch {name}_J")
    if K16: kv16()
    else:
        P.wait_tag(lambda t: t in (("A", 0), ("W", 0))); P("s_barrier")
        SP()
        for r in reads(0): P(r)
        st0 = P.state()
        P(f"s_cmp_ge_u32 {s(sNT)}, 2"); P(f"s_cbranch_scc1 {name}_V")
        for isV in (0, 1):
            if isV: P.label(f"{name}_V"); P.set_state(st0)
            chunks[:] = list(ch1)
            for q in range(32):
                se = q % 2; hs = q // 2
                mf = []
                for tb in range(4):
                    for cb in range(2):
                        d = v(ACC + (tb*2+cb)*16, 16); c = "0" if q == 0 else d
                        x, y = (fA(se,tb), fW(se,cb)) if isV else (fW(se,cb), fA(se,tb))
                        if os.environ.get("KV16"):
                            for hh in range(2):
                                dd = v(ACC + (tb*2+cb)*16 + 8*(q%2) + 4*hh, 4)
                                mf.append(f"v_mfma_f32_16x16x32_bf16 {dd}, {v(x,4)}, {v(y,4)}, {'0' if q < 2 else dd}")
                        else: mf.append(f"v_mfma_f32_32x32x16_bf16 {d}, {v(x,4)}, {v(y,4)}, {c}")
                fill = []
                if KVT:
                    if q % 2 == 1:
                        def sync(hs=hs):
                            if hs < 15: P.wait_tag(lambda t: t == ("W", hs+1) or t == ("A", (hs+1)//2))
                            else: P.wait_tag(lambda t: t == ("B", 0))
                            P.wait_lds_all(); P("s_barrier")
                        fill.append(sync)
                    if q < 31: fill += reads(q + 1)
                    if q == 0: fill.insert(2, lambda: dma_w(2)); fill.insert(6, lambda: dma_w(3))
                    if q == 1: fill.insert(5, lambda: dma_act(2, [0, 1])); fill.insert(9, lambda: dma_act(2, [2, 3]))
                    if q % 2 == 1:
                        if hs + 4 <= 15: fill.insert(3, lambda hs=hs: dma_w(hs + 4))
                        sa = (hs + 1) // 2 + 2
                        if hs >= 1 and sa <= 7: fill.insert(6, lambda hs=hs, sa=sa: dma_act(sa, [0,1] if hs % 2 == 1 else [2,3]))
                        if hs == 11: fill.insert(6, lambda: dma_b(0, 0))
                        if hs == 12: fill.insert(3, lambda: dma_b(0, 1))
                        if hs == 13: fill.insert(3, lambda: dma_b(1))
                        if hs == 14: fill.insert(3, lambda: dma_b(2))
                        if hs == 15: fill.append(lambda: dma_b(3)); fill.append(lambda: dma_b(4))
                else:
                    if q % 2 == 1 and q < 31:
                        def sync(hs=hs):
                            P.wait_tag(lambda t: t == ("W", hs+1) or t == ("A", (hs+1)//2))
                            P("s_barrier")
                        fill.append(sync)
                    if q < 31: fill += reads(q + 1)
                    if q == 0: fill.insert(2, lambda: dma_w(2)); fill.insert(6, lambda: dma_w(3))
                    if q == 1: fill.insert(3, lambda: dma_act(2, [0, 1])); fill.insert(7, lambda: dma_act(2, [2, 3]))
                    if q % 2 == 1:
                        if 1 <= hs <= 12: fill.insert(3, lambda hs=hs: dma_w(hs + 3))
                        sa = hs // 2 + 2
                        if hs >= 2 and sa <= 7: fill.insert(6, lambda hs=hs, sa=sa: dma_act(sa, [0,1] if hs % 2 == 0 else [2,3]))
                        if hs == 12: fill.insert(6, lambda: dma_b(0))
                        if hs == 14: fill.insert(3, lambda: dma_b(1))
                        if hs == 15: fill.insert(1, lambda: dma_b(2))
                for f in pf_sched.get(q, []): fill.insert(2, f)
                if q < 6:
                    for i in range(8): fill.insert(min(len(fill), 1 + 2*i), lambda: emit_chunks(5))
                interleave(P, mf, fill)
                if q == 5: assert not chunks, len(chunks)
            if not isV: P(f"s_branch {name}_J")
    P.label(f"{name}_J")
    dup[0] = False
    SP()
    BFR = [192 + 12*i for i in range(4)]
    BACC = 160
    BPK = 44
    def baddr(st):
        return [f"v_add_u32 {v(vBAc+ks)}, {BSLOT[st%5]}, {v(vBA+ks)}" for ks in range(4)] + [f"v_add_u32 {v(vBWc)}, {BSLOT[st%5]}, {v(vBW)}"]
    def breads(q):
        ks = q % 4; se = q % 4
        return [f"ds_read_b64_tr_b16 {v(BFR[se]+8,2)}, {v(vBWc)} offset:{(16*ks)*256}",
                f"ds_read_b64_tr_b16 {v(BFR[se]+10,2)}, {v(vBWc)} offset:{(16*ks+4)*256}",
                f"ds_read_b128 {v(BFR[se],4)}, {v(vBAc+ks)} offset:0",
                f"ds_read_b128 {v(BFR[se]+4,4)}, {v(vBAc+ks)} offset:4096"]
    def PKB(tile): return ACC + 16*tile if tile < 6 else 44 + 8*(tile - 6)
    def kvcvt(tile):
        out = [f"v_cvt_pk_bf16_f32 {v(PKB(tile)+i)}, {v(ACC+16*tile+2*i)}, {v(ACC+16*tile+2*i+1)}" for i in range(8)]
        if K16: out += [f"v_permlane32_swap_b32 {v(PKB(tile)+x)}, {v(PKB(tile)+y)}" for x, y in ((0,2),(1,3),(4,6),(5,7))]
        return out
    def kvstore(n):
        if os.environ.get("X_NOST"): return
        tb, r = n // 4, n % 4
        P(f"s_add_u32 {s(sSt)}, {s(sOutKV)}, {tb*8192}")
        P(f"buffer_store_dwordx4 {v(PKB(n//2) + 4*(n%2),4)}, {v(vKVo if K16 else vL16)}, {s(sWS,4)}, {s(sSt)} offen offset:{(r//2)*2048 + (r%2)*256 if K16 else r*1024} {'' if KVP else ST}", ("S", n))
    def bstore(n):
        tb, c = n // 2, n % 2
        P(f"s_add_u32 {s(sSt)}, {s(sOutB)}, {tb*120*1024}")
        P(f"buffer_store_dwordx4 {v(BPK+tb*8+4*c,4)}, {v(vL16)}, {s(sWS,4)}, {s(sSt)} offen offset:{c*1024} {ST}", ("S", 16+n))
    for x in baddr(0): P(x)
    if not KVT: P.wait_tag(lambda t: t == ("B", 0)); P("s_barrier")
    for r in breads(0) + breads(1): P(r)
    for x in kvcvt(6) + kvcvt(7): P(x)
    order = [6, 7, 4, 5, 0, 1, 2, 3]
    late = [lambda n=2*tl+h: kvstore(n) for tl in order for h in range(2)]
    cvts = sum([kvcvt(tl) for tl in order[2:]], [])
    SB = [int(c) for c in os.environ.get("SB", "2222222200" if KVP else "1111111111")]
    SQ = [int(c) for c in os.environ.get("SQ", "2200000000" if KVP else "2222200000")]
    PUB = int(os.environ.get("PUB", "5"))
    chunks[:] = list(ch2)
    NQ = 40
    for q in range(NQ):
        st, ks = q // 4, q % 4; se = q % 4
        mf = []
        for tb in range(2):
            d = v(BACC + tb*16, 16); c = "0" if q == 0 else d
            mf.append(f"v_mfma_f32_32x32x16_bf16 {d}, {v(BFR[se]+8,4)}, {v(BFR[se]+4*tb,4)}, {c}")
        fill = []
        if ks == 2:
            def sync(st=st):
                if st < 9: P.wait_tag(lambda t: t == ("B", st+1))
                P.wait_lds_all(); P("s_barrier")
                if st < 9:
                    for x in baddr(st+1): P(x)
            fill.append(sync)
        if q + 2 < NQ: fill += breads(q + 2)
        if q == 0 and not KVT: fill.insert(1, lambda: dma_b(3))
        if q == 1 and not KVT: fill.insert(1, lambda: dma_b(4))
        for i in range(3):
            if cvts: fill.insert(1 + i, cvts.pop(0))
        if q < 16: fill.insert(len(fill)//2, lambda: emit_chunks(4)); fill.append(lambda: emit_chunks(4))
        def bl(st):
            if st <= 4: return [lambda: dma_b(st + 5, 0), lambda: dma_b(st + 5, 1)]
            if st == 7: return [lambda: dma_qw(0), lambda: dma_qw(1)]
            xs = {5: 0, 6: 1, 8: 2, 9: 3}[st]
            return [lambda: dma_x(xs, [0, 1]), lambda: dma_x(xs, [2, 3])]
        def bl1(st):
            if st <= 4: return [lambda h=h, i=i: dma_b(st + 5, h, [i]) for h in range(2) for i in range(2)]
            if st == 7: return [lambda a=a, i=i: dma_qw(a, [i]) for a in range(2) for i in range(2)]
            xs = {5: 0, 6: 1, 8: 2, 9: 3}[st]
            return [lambda i=i: dma_x(xs, [i]) for i in range(4)]
        BSP = os.environ.get("BSP", "0")
        if BSP == "0":
            if ks >= 2: fill.append(bl(st)[ks - 2])
        elif BSP == "1":
            if ks >= 2: fill.insert(2, bl1(st)[ks - 2])
            elif st >= 1: fill.insert(2, bl1(st - 1)[ks + 2])
            if st == 9 and ks == 3: fill += bl1(9)[2:]
        elif BSP == "2":
            if ks == 2:
                for i, f in enumerate(bl1(st)): fill.insert(1 + i, f)
        if ks == int(os.environ.get("BSK", "0")):
            for _ in range(SB[st]):
                if late: fill.append(late.pop(0))
        if q == 5: fill.append(lambda: (P(f"v_mov_b32 {v(T3)}, 0"), P(f"buffer_load_dwordx2 {v(8,2)}, {v(T3)}, {s(sDBG,4)}, 0 offen sc1")))
        if q == 29: fill.append(nonce_get)
        for f in pf_sched.get(100 + q, []): fill.append(f)
        interleave(P, mf, fill)
        if q == 15: assert not chunks, len(chunks)
    SP()
    QACC = 128; QFR = [192, 208, 224]
    def xaddr(st): return [f"v_add_u32 {v(vXc+i)}, {XSLOT[st%4]}, {v(vXr+i)}" for i in range(8)]
    def qreads(q):
        st, ks = q // 4, q % 4; se = q % 3
        def w(cb, i): return f"ds_read_b64_tr_b16 {v(QFR[se]+4*cb+2*i,2)}, {v(vQWr+cb)} offset:{(st%2)*16384 + (16*ks+4*i)*256}"
        def x(r): return f"ds_read_b128 {v(QFR[se]+8+4*r,4)}, {v(vXc+4*r+ks)} offset:0"
        return [w(0,0), w(0,1), x(0), w(1,0), w(1,1), x(1)]
    for x in xaddr(0): P(x)
    if KVP: P("s_waitcnt vmcnt(0)")
    P.wait_tag(lambda t: t in (("X", 0), ("Q", 0))); P("s_barrier")
    if KVP:
        dup[0] = True
        P(f"s_cmp_lg_u32 {s(sWV)}, 4"); P(f"s_cbranch_scc1 {name}_nowb")
        P.raw("buffer_wbl2 sc1")
        if PROF and os.environ.get("WBT"): P.raw("s_memtime s[96:97]"); P.raw("s_waitcnt vmcnt(0) lgkmcnt(0)"); P.raw("s_mov_b32 s3, s96"); P.raw("s_memtime s[96:97]"); P.raw("s_waitcnt lgkmcnt(0)"); P.raw("s_sub_u32 s3, s96, s3"); P.raw(f"v_writelane_b32 {v(vSTAMP)}, s3, 23")
        P.label(f"{name}_nowb")
    for r in qreads(0) + qreads(1): P(r)
    for tb in range(2):
        for i in range(8): P(f"v_cvt_pk_bf16_f32 {v(BPK+tb*8+i)}, {v(BACC+tb*16+2*i)}, {v(BACC+tb*16+2*i+1)}")
    for tb in range(2):
        b = BPK + tb*8
        for (x, y) in ((0,2),(1,3),(4,6),(5,7)): P(f"v_permlane32_swap_b32 {v(b+x)}, {v(b+y)}")
    late += [lambda n=n: bstore(n) for n in range(4)]
    def poll(soff, nfl, lab, own_off=False):
        P(f"s_mov_b32 {s(sT2)}, {int(os.environ.get('POLLMAX', '0x40000'), 0)}")
        if not own_off: P(f"v_lshrrev_b32 {v(T3)}, 1, {v(vL16)}")
        if nfl < 64: P(f"s_mov_b64 exec, {hex((1 << nfl) - 1)}")
        P.label(lab)
        P(f"buffer_load_dwordx2 {v(246,2)}, {v(T3)}, {s(sWS,4)}, {s(soff)} offen sc1")
        P("s_waitcnt vmcnt(0)")
        for i in range(2): P(f"v_xor_b32 {v(246+i)}, {s(sNON + i)}, {v(246+i)}")
        P(f"v_or_b32 {v(246)}, {v(246)}, {v(247)}")
        P(f"v_cmp_ne_u32 vcc, 0, {v(246)}")
        P(f"s_cbranch_vccz {lab}_ok")
        P("s_sleep 4")
        P(f"s_sub_u32 {s(sT2)}, {s(sT2)}, 1"); P(f"s_cmp_lg_u32 {s(sT2)}, 0"); P(f"s_cbranch_scc1 {lab}")
        P.label(lab + "_ok")
        if nfl < 64: P("s_mov_b64 exec, -1")
    ctx = dict(P=P, SP=SP, name=name, poll=poll, publish=publish)
    import attn
    early = attn.gen_attn(dict(ctx, early_only=True))
    vEX, sQS = 9, 92
    def setup3():
        P(f"s_mov_b32 {s(sQS)}, {fbits(QSCALE)}"); P(f"s_mov_b32 {s(sQS+1)}, {fbits(QSCALE)}")
        P(f"s_add_u32 {s(sT)}, {s(sM4)}, {131072}"); P(f"v_add_u32 {v(vEX)}, {s(sT)}, {v(vL16)}")
        early.setup(P)
    chunks[:] = record(setup3)
    EREQ = int(os.environ.get('EREQ', '30')); ETRY = int(os.environ.get('ETRY', '35'))
    for q in range(40):
        st, ks = q // 4, q % 4; se = q % 3
        mf = []
        for r in range(2):
            for cb in range(2):
                d = v(QACC + (r*2+cb)*16, 16); c = "0" if q == 0 else d
                mf.append(f"v_mfma_f32_32x32x16_bf16 {d}, {v(QFR[se]+4*cb,4)}, {v(QFR[se]+8+4*r,4)}, {c}")
        fill = []
        if ks == 2:
            def sync(st=st):
                if st < 9: P.wait_tag(lambda t: t in (("X", st+1), ("Q", st+1)))
                if st == PUB and KVP: guard(False, lambda: P.raw("s_waitcnt vmcnt(0)"))
                if st == PUB: P.wait_tag(lambda t: t is not None and t[0] == "S")
                P.wait_lds_all()
                if st < 9 or st == PUB: P("s_barrier")
                if st == PUB: publish([sFK, sFQ], f"{name}_pubk")
                if st < 9:
                    for x in xaddr(st+1): P(x)
            fill.append(sync)
        if q + 2 < 40: fill += qreads(q + 2)
        vm = []
        if ks == 2 and st + 2 <= 9: vm += [lambda i=i, st=st: dma_qw(st + 2, [i]) for i in range(2)]
        if ks in (3, 0):
            s0 = st if ks == 3 else st - 1
            if s0 >= 0 and s0 + 4 <= 9: vm += [lambda i=i, s0=s0: dma_x(s0 + 4, [i]) for i in ([0, 1] if ks == 3 else [2, 3])]
        if ks == SQK:
            for _ in range(SQ[st]):
                if late: vm.append(late.pop(0))
        if 22 <= q < 34: fill.insert(2, lambda: emit_chunks(5)); fill.append(lambda: emit_chunks(5))
        if q == 34: assert not chunks, len(chunks)
        if q == EREQ: vm.append(early.req)
        if q == ETRY: vm.append(early.try_); eops = early.ops()
        if q > ETRY:
            n = -(-len(eops) // (40 - q))
            vm += eops[:n]; eops = eops[n:]
        base = 1 if ks == 2 else 0
        stp = 3 if len(vm) <= 3 else 2
        for i, x in enumerate(vm): fill.insert(min(len(fill), base + 1 + i * stp), x)
        interleave(P, mf, fill)
    assert not late
    SP()
    early()
    SND = 96
    for i in range(32, 64, 2): P(f"v_pk_mul_f32 {v(QACC+i,2)}, {v(QACC+i,2)}, {s(sQS,2)}")
    for i in range(16): P(f"v_cvt_pk_bf16_f32 {v(SND+i)}, {v(QACC+32+2*i)}, {v(QACC+32+2*i+1)}")
    for i in range(4): P(f"ds_write_b128 {v(vEX)}, {v(SND+4*i,4)} offset:{i*1024}")
    for i in range(0, 32, 2): P(f"v_pk_mul_f32 {v(QACC+i,2)}, {v(QACC+i,2)}, {s(sQS,2)}")
    P(f"v_xor_b32 {v(vEX)}, 0x4000, {v(vEX)}")
    P("s_waitcnt lgkmcnt(0)"); P("s_barrier")
    for i in range(4): P(f"ds_read_b128 {v(16+4*i,4)}, {v(vEX)} offset:{i*1024}")
    for i in range(16): P(f"v_cvt_pk_bf16_f32 {v(i)}, {v(QACC+2*i)}, {v(QACC+2*i+1)}")
    attn.gen_attn(ctx)
    P.label("L_stop")
    SP(idx=13); SP(True); SP.flush()
    P.label(f"{name}_end"); P("s_endpgm")
    return kernel_desc(name, 256, sgpr=100)
```

```python
from aux_part import *

vO, vS, vP, vNM, vF, vT = 32, 96, 128, 144, 160, 192
vLsum, vLS, vCur, vD, vMX, vMX2, vNI = 200, 201, 202, 203, 204, 205, 206
vRdFull, vWrFree, vRdFree, vWrFull, vFV, vCV, vFullV = 248, 249, 250, 251, 252, 253, 254
sCNT, sSEC, sNeed, sLd, sU = sREM, sNB, sOffA, sOffW, sOutKV
PD = int(os.environ.get("PD", "7"))
WAIT2 = int(os.environ.get("WAIT2", "1"))
SPINMAX = int(os.environ.get("SPINMAX", "0x100000"), 0)
E = os.environ.get
X_NOVALU, X_NOLDS, X_PRIO = E("X_NOVALU"), E("X_NOLDS"), E("X_PRIO", "lo")
SLEEP = int(E("SLEEP", "1"))
DGAP = E("DGAP", "s_nop_15+s_nop_5").replace("p_", "p ")
RG0 = int(E("RG0", "1")); RSP = int(E("RSP", "1")); BEARLY = 0; BMID = int(E("BMID", "0"))
EPI2 = int(E("EPI2", "1")); NLF = int(E("NLF", "3"))
WOPF = int(E("WOPF", "-1" if int(E("ERT", "0")) else "3"))
DSPR = int(E("DSPR", "1")); DGAP1 = E("DGAP1", "s_nop_7").replace("p_", "p ")
ERT = int(E("ERT", "0"))
L2W = int(E("L2W", "0"))
CAP = float(E("CAP", "24"))

def gen_attn(ctx):
    P, SP, name = ctx["P"], ctx["SP"], ctx["name"]
    def vq(role, i): return 4*i if role == "hi" else 4*((i + 4) % 8)
    def dma_ops(first=False):
        ops = []
        def pre():
            P(f"s_lshl_b32 {s(sDOff)}, {s(sDIdx)}, 13"); P(f"s_add_u32 {s(sDOff)}, {s(sDOff)}, {s(sDBase)}")
            P(f"s_cmp_le_u32 {s(sDIdx)}, {s(sDLim)}"); P(f"s_cselect_b32 {s(sDOff)}, {s(sDOff)}, {OOB}")
            if first:
                P(f"s_cmp_eq_u32 {s(sWV)}, 6"); P(f"s_cselect_b32 {s(sDOff)}, {s(sU0)}, {s(sDOff)}")
            P(f"s_add_u32 m0, {s(sSlot)}, {s(sDM0)}")
            P(f"s_add_u32 {s(sDIdx)}, {s(sDIdx)}, 2")
        def ld(i):
            if E("X_NODMA"): return
            P(f"buffer_load_dwordx4 {v(vL16)}, {s(sWS,4)}, {s(sDOff)} offen offset:{(i%4)*1024} {LD} lds", ("kv", dma_ops.n))
        def mid(): P(f"s_add_u32 m0, m0, 4096"); P(f"s_add_u32 {s(sDOff)}, {s(sDOff)}, 4096")
        def post():
            P(f"s_add_u32 {s(sSlot)}, {s(sSlot)}, 32768"); P(f"s_and_b32 {s(sSlot)}, {s(sSlot)}, {NSLOT*32768-1}")
            P(f"s_add_u32 {s(sLd)}, {s(sLd)}, 1"); dma_ops.n += 1
        ops.append(lambda: (pre(), ld(0)))
        for i in range(1, 8): ops.append((lambda i=i: (mid(), ld(i))) if i == 4 else (lambda i=i: ld(i)))
        ops.append(post)
        return ops
    dma_ops.n = 0
    def dma_stage(first=False, gap=None):
        for i, f in enumerate(dma_ops(first)):
            f()
            if gap and i < 7:
                for g_ in gap.split("+"): P(g_)

    sOK = sAM
    vFK = 112
    def fk_off():
        P(f"s_lshr_b32 {s(sT)}, {s(sH)}, 1"); P(f"s_lshl_b32 {s(sT)}, {s(sT)}, 7"); P(f"s_add_u32 {s(sT)}, {s(sT)}, {FK}")
    def lo_only(lab, fn):
        P(f"s_cmp_lt_u32 {s(sWV)}, 4"); P(f"s_cbranch_scc1 {lab}")
        st = P.state(); fn(); P.label(lab); P.set_state(st)
    def early_req():
        def f():
            fk_off()
            P(f"v_lshrrev_b32 {v(T3)}, 1, {v(vL16)}"); P(f"v_and_b32 {v(T3)}, 0x78, {v(T3)}")
            P(f"buffer_load_dwordx2 {v(vFK,2)}, {v(T3)}, {s(sWS,4)}, {s(sT)} offen sc1")
            P(f"s_lshl_b32 {s(sDBase)}, {s(sH)}, 19")
            P(f"s_sub_u32 {s(sT)}, {s(sWV)}, 4"); P(f"s_lshl_b32 {s(sDM0)}, {s(sT)}, 13")
            P(f"s_and_b32 {s(sDIdx)}, {s(sT)}, 1"); P(f"s_add_u32 {s(sDIdx)}, {s(sDIdx)}, 1")
            P(f"s_cmp_ge_u32 {s(sT)}, 2"); P(f"s_cselect_b32 {s(sT2)}, 2, 0"); P(f"s_sub_u32 {s(sDIdx)}, {s(sDIdx)}, {s(sT2)}")
            P(f"s_cmp_ge_u32 {s(sT)}, 2"); P(f"s_cselect_b32 {s(sT2)}, {VF}, 0")
            P(f"s_mov_b32 {s(sU0)}, {s(sDBase)}")
            P(f"s_add_u32 {s(sDBase)}, {s(sDBase)}, {s(sT2)}")
            P(f"s_mov_b32 {s(sSlot)}, 32768"); P(f"s_mov_b32 {s(sLd)}, 0")
        P(f"s_lshl_b32 {s(sT)}, {s(sG)}, 2"); P(f"s_sub_u32 {s(sDLim)}, 63, {s(sT)}")
        lo_only(f"{name}_er", f)
    def early_try():
        def f():
            P("s_waitcnt vmcnt(0)")
            P(f"v_xor_b32 {v(vFK)}, {s(sNON)}, {v(vFK)}"); P(f"v_xor_b32 {v(vFK+1)}, {s(sNON+1)}, {v(vFK+1)}"); P(f"v_or_b32 {v(vFK)}, {v(vFK)}, {v(vFK+1)}")
            P(f"v_cmp_ne_u32 vcc, 0, {v(vFK)}"); P(f"s_cbranch_vccnz {name}_et")
            P(f"s_mov_b32 {s(sOK)}, 1")
        lo_only(f"{name}_et", f)
    def early_ops():
        out = []
        for k, f in enumerate(dma_ops(True) + dma_ops()):
            def g(k=k, f=f):
                P(f"s_cmp_eq_u32 {s(sOK)}, 0"); P(f"s_cbranch_scc1 {name}_eo{k}")
                st = P.state(); f(); P.label(f"{name}_eo{k}"); P.set_state(st)
            out.append(g)
        return out
    def early():
        P(f"s_lshr_b32 {s(sU)}, {s(sDLim)}, 1"); P(f"s_add_u32 {s(sU)}, {s(sU)}, 1")
        def f():
            P(f"s_cmp_lg_u32 {s(sLd)}, 0"); P(f"s_cbranch_scc1 {name}_nodma0")
            fk_off(); ctx["poll"](sT, 16, f"{name}_poll1")
            dma_stage(True); dma_stage()
        lo_only(f"{name}_nodma0", f)
    def setup(P):
        P(f"s_mov_b32 {s(sOK)}, 0")
        for i in range(64): P(f"v_mov_b32 {v(vO+i)}, 0")
        P(f"v_lshrrev_b32 {v(T0)}, 2, {v(vL16)}"); P(f"v_add_u32 {v(T0)}, {CT}, {v(T0)}")
        bfe(P, T1, 0, 2); P(f"v_lshl_add_u32 {v(vRdFull)}, {v(T1)}, 8, {v(T0)}")
        bfe(P, T1, 0, 3); P(f"v_lshl_add_u32 {v(vRdFree)}, {v(T1)}, 8, {v(T0)}"); P(f"v_add_u32 {v(vRdFree)}, 1024, {v(vRdFree)}")
        P(f"s_lshl_b32 {s(sT)}, {s(sWV)}, 8"); P(f"v_add_u32 {v(vWrFull)}, {s(sT)}, {v(T0)}")
        P(f"v_add_u32 {v(vWrFree)}, 1024, {v(vWrFull)}"); P(f"v_subrev_u32 {v(vWrFull)}, 1024, {v(vWrFull)}")
        P(f"v_mov_b32 {v(vFV)}, 0"); P(f"v_mov_b32 {v(vFullV)}, 1")
        if PROF: P("s_mov_b32 s98, 0"); P("s_mov_b32 s7, 0"); P("s_mov_b32 s3, 0")
        P(f"s_mov_b32 {s(sTHR)}, {fbits(THR)}"); P(f"s_mov_b32 {s(sNeed)}, 2")
        P(f"s_max_u32 {s(sCNT)}, {s(sJL)}, 1"); P(f"s_sub_u32 {s(sCNT)}, {s(sCNT)}, 1")
        P(f"s_cmp_eq_u32 {s(sJL)}, 0"); P(f"s_cselect_b32 {s(sSEC)}, 1, 0")
    def wo_warm(i):
        P(f"s_cmp_lt_u32 {s(sWV)}, 4"); P(f"s_cbranch_scc0 {name}_ww{i}")
        P(f"s_lshl_b32 {s(sTw)}, s2, 2"); P(f"s_add_u32 {s(sTw)}, {s(sTw)}, {s(sWV)}")
        if i < 5:
            P(f"s_mul_i32 {s(sTw)}, {s(sTw)}, 5120"); P(f"s_add_u32 {s(sTw)}, {s(sTw)}, {i*1024}")
        else: P(f"s_lshl_b32 {s(sTw)}, {s(sTw)}, 10")
        P.raw(f"buffer_load_dwordx4 v[120:123], {v(vL16)}, {s(sWO if i < 5 else sBWO,4)}, {s(sTw)} offen")
        P.label(f"{name}_ww{i}")
    early.wo = wo_warm if ERT else None
    early.req, early.try_, early.setup, early.ops = early_req, early_try, setup, early_ops
    if ctx.get("early_only"): return early

    P(f"s_cmp_lt_u32 {s(sWV)}, 4"); P(f"s_cbranch_scc1 {name}_nodma1")
    st = P.state()
    dma_stage()
    P.label(f"{name}_nodma1")
    P.set_state(st)
    for i in range(8): P(f"v_mov_b32 {v(vP+8+i)}, 0")
    P(f"v_mov_b32 {v(vLsum)}, 0"); P(f"v_add_u32 {v(vCur)}, 0x8000, {v(vL16)}"); P(f"v_mov_b32 {v(vNI)}, 0xff800000")
    bfe(P, T1, 0, 5); bfe(P, T2, 5, 1); P(f"v_lshlrev_b32 {v(T2)}, 2, {v(T2)}"); P(f"v_sub_u32 {v(vD)}, {v(T1)}, {v(T2)}")
    P(f"v_subrev_u32 {v(T0)}, {1024 + 3*256}, {v(vWrFree)}")
    P("s_waitcnt lgkmcnt(0)")
    P(f"s_cmp_lg_u32 {s(sWV)}, 3"); P(f"s_cbranch_scc1 {name}_noinit")
    for i in range(12): P(f"ds_write_b32 {v(T0)}, {v(vFullV if i < 4 else vFV)} offset:{i*256}")
    P.label(f"{name}_noinit")
    P(f"s_waitcnt vmcnt(16) lgkmcnt(0)")
    P("s_barrier")
    SP()
    P.vq = []; P.lq = []
    def mask_nm():
        for r in range(16):
            m = s(sM + 2*(r%2), 2)
            P(f"v_cmp_gt_i32 {m}, {8*(r//4) + r%4}, {v(vD)}")
            P(f"v_cndmask_b32 {v(vNM+r)}, {v(vNM+r)}, {v(vNI)}, {m}")
    for i in range(8): P(f"ds_read_b128 {v(vF+4*i,4)}, {v(vCur)} offset:{16384 + i*1024}")
    P("s_waitcnt lgkmcnt(0)")
    P(f"s_cmp_lt_u32 {s(sWV)}, 4"); P(f"s_cbranch_scc0 {name}_a0lo")
    for role in ("hi", "lo"):
        if role == "lo": P.label(f"{name}_a0lo")
        if X_PRIO == role: P("s_setprio 1")
        if role == "hi" and WOPF >= 0:
            P(f"s_mov_b32 {s(sCNT)}, {WOPF}"); P(f"s_mov_b32 {s(sSEC)}, 2")
        if role == "lo":
            P(f"s_sub_u32 {s(sAR)}, {s(sWV)}, 4"); P(f"s_mul_i32 {s(sAR)}, {s(sAR)}, {AREA}"); P(f"s_add_u32 {s(sAR)}, {s(sAR)}, {SCR}")
        if role == "lo" and ERT:
            P(f"s_cmp_lt_u32 {s(sG)}, 4"); P(f"s_cbranch_scc1 {name}_noert")
            P(f"s_lshl_b32 {s(sAW)}, s2, 2"); P(f"s_add_u32 {s(sAW)}, {s(sAW)}, {s(sWV)}"); P(f"s_sub_u32 {s(sAW)}, {s(sAW)}, {4 + 512}")
            P(f"s_add_u32 {s(sU1)}, {s(sDM0)}, 4096")
            P.vq = [(set(), ("kv", 1))]*8 + [(set(), ("kv", 2))]*8
            r = [retile_chunks(ctx, 0, 208, sAR, sAK, sAM), retile_chunks(ctx, 1, 208, sDM0, sU2, sU3), retile_chunks(ctx, 2, 208, sU1, sOffX, sOffQW)]
            for x in r: x[0]()
            for k in (1, 2):
                P(f"v_mov_b32 {v(vFullV)}, {k+1}"); P.wait_tag(lambda t: t == ("kv", k)); P(f"ds_write_b32 {v(vWrFull)}, {v(vFullV)}")
            for x in r: x[1]()
            P(f"s_mov_b32 {s(sCNT)}, 6"); P(f"s_mov_b32 {s(sSEC)}, 2")
            P("s_waitcnt lgkmcnt(0)")
            P.label(f"{name}_noert")
            P.vq = []; P.lq = []
        if role == "lo":
            P(f"s_cmp_lg_u32 {s(sJL)}, 0"); P(f"s_cbranch_scc1 {name}_nomask0")
            for i in range(16): P(f"v_mov_b32 {v(vNM+i)}, 0")
            mask_nm()
            P(f"v_mfma_f32_32x32x16_bf16 {v(vS,16)}, {v(vF,4)}, {v(vq(role,0),4)}, {v(vNM,16)}")
            P(f"s_branch {name}_mask0j")
            P.label(f"{name}_nomask0")
        for i in range(8):
            P(f"v_mfma_f32_32x32x16_bf16 {v(vS,16)}, {v(vF+4*i,4)}, {v(vq(role,i),4)}, {'0' if i == 0 else v(vS,16)}")
            if role == "lo" and i == 0: P.label(f"{name}_mask0j")
        if role == "hi": P(f"s_branch {name}_a0j")
    P.label(f"{name}_a0j")
    def frag_read(n, par):
        if X_NOLDS and frag_read.loop: return "; none"
        off = (par*8192 + n*1024) if n < 8 else (16384 + par*8192 + (n-8)*1024)
        return f"ds_read_b128 {v(vF+4*(n%8),4)}, {v(vCur)} offset:{off}"
    frag_read.loop = bool(X_NOLDS)
    def rowmax(S):
        P(f"v_max3_f32 {v(vMX)}, {v(S)}, {v(S+1)}, {v(S+2)}")
        for i in range(3, 15, 2): P(f"v_max3_f32 {v(vMX)}, {v(vMX)}, {v(S+i)}, {v(S+i+1)}")
        P(f"v_max_f32 {v(vMX)}, {v(vMX)}, {v(S+15)}")
        P(f"v_mov_b32 {v(vMX2)}, {v(vMX)}")
        P(f"v_permlane32_swap_b32 {v(vMX)}, {v(vMX2)}")
        P(f"v_max_f32 {v(vMX)}, {v(vMX)}, {v(vMX2)}")
    SP()
    for n in range(PD): P(frag_read(n, 0))
    rowmax(vS)
    for i in range(16): P(f"v_sub_f32 {v(vS+i)}, {v(vS+i)}, {v(vMX)}")
    for i in range(16): P(f"v_sub_f32 {v(vNM+i)}, 0, {v(vMX)}")
    sidx = SP.n
    entry = P.state()
    P(f"s_cmp_lt_u32 {s(sWV)}, 4"); P(f"s_cbranch_scc0 {name}_lo_E")

    def softmax_ops(par):
        S = vS + 16*par; PP = vP + 8*par
        ops = []
        for r in range(16):
            ops.append((8, f"v_exp_f32 {v(vT + r%8)}, {v(S+r)}"))
            if r >= 1:
                q = r - 1
                if q == 1: ops.append((4, f"v_add_f32 {v(vLS)}, {v(vT)}, {v(vT+1)}"))
                elif q > 1: ops.append((4, f"v_add_f32 {v(vLS)}, {v(vLS)}, {v(vT + q%8)}"))
                if q % 2 == 1: ops.append((4, f"v_cvt_pk_bf16_f32 {v(PP + q//2)}, {v(vT + (q-1)%8)}, {v(vT + q%8)}"))
        ops.append((4, f"v_cvt_pk_bf16_f32 {v(PP+7)}, {v(vT+6)}, {v(vT+7)}"))
        ops.append((4, f"v_add_f32 {v(vLS)}, {v(vLS)}, {v(vT+7)}"))
        ops.append((4, f"v_cmp_nge_f32 vcc, {s(sTHR)}, {v(vLS)}"))
        return ops
    def check(par, role, kind):
        P(f"s_cbranch_vccnz {name}_{role}_fb{kind}{par}")
        P.label(f"{name}_{role}_fbr{kind}{par}")
        P(f"v_add_f32 {v(vLsum)}, {v(vLsum)}, {v(vLS)}")
    def fallback(par, role, kind):
        S = vS + 16*par; S2 = vS + 16*(1-par)
        P.label(f"{name}_{role}_fb{kind}{par}")
        rowmax(S)
        P(f"v_max_f32 {v(vMX)}, 0, {v(vMX)}")
        P(f"v_sub_f32 {v(vMX2)}, 0, {v(vMX)}"); P(f"v_exp_f32 {v(vMX2)}, {v(vMX2)}")
        for i in range(16): P(f"v_sub_f32 {v(S+i)}, {v(S+i)}, {v(vMX)}")
        for i in range(16): P(f"v_sub_f32 {v(S2+i)}, {v(S2+i)}, {v(vMX)}")
        for i in range(16): P(f"v_sub_f32 {v(vNM+i)}, {v(vNM+i)}, {v(vMX)}")
        for i in range(64): P(f"v_mul_f32 {v(vO+i)}, {v(vMX2)}, {v(vO+i)}")
        P(f"v_mul_f32 {v(vLsum)}, {v(vMX2)}, {v(vLsum)}")
        for c, o in softmax_ops(par)[:-1]: P(o)
        P(f"s_branch {name}_{role}_fbr{kind}{par}")
    spins = []
    def ctl_cmp(sreg): P(f"v_cmp_gt_u32 vcc, {s(sreg)}, {v(vCV)}")
    def ctl_check(addr, sreg, lab, cmp=True):
        if cmp: ctl_cmp(sreg)
        P(f"s_cbranch_vccnz {lab}")
        P.label(lab + "_r")
        spins.append((addr, sreg, lab))
    def emit_spins():
        for addr, sreg, lab in spins:
            P.label(lab)
            if PROF: P.raw(f"s_add_u32 s{98 if addr == vRdFull else 7}, s{98 if addr == vRdFull else 7}, 0x10000")
            P.raw(f"s_mov_b32 {s(sT2)}, {SPINMAX}")
            P.label(lab + "_l")
            if PROF: P.raw(f"s_add_u32 s{98 if addr == vRdFull else 7}, s{98 if addr == vRdFull else 7}, 1")
            P.raw(f"ds_read_b32 {v(vCV)}, {v(addr)}"); P.raw("s_waitcnt lgkmcnt(0)")
            P.raw(f"v_cmp_gt_u32 vcc, {s(sreg)}, {v(vCV)}")
            P.raw(f"s_cbranch_vccz {lab}_r")
            P.raw(f"s_sleep {SLEEP if '_ld' in lab else 1}")
            P.raw(f"s_sub_u32 {s(sT2)}, {s(sT2)}, 1"); P.raw(f"s_cmp_lg_u32 {s(sT2)}, 0"); P.raw(f"s_cbranch_scc1 {lab}_l")
            P.raw(f"s_branch {lab}_r")
        spins.clear()
    def advance():
        P(f"v_add_u32 {v(vCur)}, 0x8000, {v(vCur)}"); P(f"v_and_b32 {v(vCur)}, {NSLOT*32768-1}, {v(vCur)}")
        P(f"s_add_u32 {s(sNeed)}, {s(sNeed)}, 1")
    def free_write():
        P(f"ds_write_b32 {v(vWrFree)}, {v(vFV)}"); P(f"v_add_u32 {v(vFV)}, 1, {v(vFV)}")
    def full_publish(cnt, delta):
        P(f"s_add_u32 {s(sT)}, {s(sLd)}, {delta & 0xffffffff}" if delta else f"s_mov_b32 {s(sT)}, {s(sLd)}")
        P(f"v_mov_b32 {v(vFullV)}, {s(sT)}")
        if callable(cnt): cnt()
        else: P(f"s_waitcnt vmcnt({cnt})")
        P(f"ds_write_b32 {v(vWrFull)}, {v(vFullV)}")
    def mfA(par, i, role):
        S = vS + 16*(1-par)
        return f"v_mfma_f32_32x32x16_bf16 {v(S,16)}, {v(vF+4*i,4)}, {v(vq(role,i),4)}, {v(vNM,16) if i == 0 else v(S,16)}"
    def mfC(par, i):
        db, t = i // 2, i % 2
        return f"v_mfma_f32_32x32x16_bf16 {v(vO+16*db,16)}, {v(vF+4*i,4)}, {v(vP+8*(1-par)+4*t,4)}, {v(vO+16*db,16)}"
    def period(par, role):
        R = f"{name}_{role}"
        ops = [] if X_NOVALU else softmax_ops(par)
        extra = {n: [] for n in range(16)}
        if par == 0:
            extra[0].append((8, free_write))
            if role == "lo":
                extra[1].append((4, lambda: P(f"ds_read_b32 {v(vCV)}, {v(vRdFree)}")))
                extra[4].append((8, lambda: (P(f"s_sub_u32 {s(sTa)}, {s(sLd)}, 3"), ctl_cmp(sTa))))
                extra[5].append((4, lambda: ctl_check(vRdFree, sTa, f"{R}_spF", False)))
                period.dq = dma_ops()
                if DSPR:
                    for i in range(4): extra[6 + 3*i].append((4, period.dq[i]))
                else:
                    for i, f in enumerate(period.dq): extra[6 + i].append((4, f))
        else:
            if role == "lo" and DSPR:
                extra[0].append((16, lambda: full_publish(4, 0)))
                for i in range(4, 9): extra[min(3*(i-3), 13) + (1 if i == 8 else 0)].append((4, period.dq[i]))
            elif role == "lo": extra[0].append((16, lambda: full_publish(8, -1)))
            extra[2].append((4, lambda: P(f"ds_read_b32 {v(vCV)}, {v(vRdFull)}")))
            extra[14-PD].append((4, lambda: ctl_cmp(sNeed)))
            extra[15-PD].append((16, lambda: (ctl_check(vRdFull, sNeed, f"{R}_spU", False), advance())))
        if E("X_NOCHK"): ops = [o for o in ops if "v_cmp" not in o[1]]
        k = 0
        carry = 0.0
        for n in range(16):
            if n % 2 == 0 and WAIT2: P.needr(v(vF+4*(n%8),4), v(vF+4*((n+1)%8),4))
            P(mfA(par, n, role) if n < 8 else mfC(par, n - 8))
            used = 4 + (4 if n % 2 == 1 else 0) + sum(c for c, _ in extra[n])
            m = n + PD
            pre = [f for c, f in extra[n]]
            if par == 1 and n == 15-PD:
                P(frag_read(m, par))
                for f in pre: f()
            else:
                P(frag_read(m, par) if m < 16 else frag_read(m - 16, 1 - par))
                for f in pre: f()
            rem_cost = sum(c for c, _ in ops[k:])
            cap = CAP
            if n == 14: cap = 1e9
            while k < len(ops) and n < 15 and (used + ops[k][0] <= cap + carry or rem_cost > (14 - n) * 18):
                P(ops[k][1]); used += ops[k][0]; rem_cost -= ops[k][0]; k += 1
            carry = 0.0
        assert k == len(ops)
        if E("X_NOCHK"): P.label(f"{name}_{role}_fbrm{par}")
        else: check(par, role, "m")
    def epilogue(role, mid=None):
        P(f"v_mov_b32 {v(vFV)}, {BIG}"); P(f"ds_write_b32 {v(vWrFree)}, {v(vFV)}")
        if mid: mid()
        P(f"v_mov_b32 {v(vMX2)}, {v(vLsum)}")
        P(f"v_permlane32_swap_b32 {v(vLsum)}, {v(vMX2)}")
        P(f"v_add_f32 {v(vLsum)}, {v(vLsum)}, {v(vMX2)}"); P(f"v_rcp_f32 {v(vLsum)}, {v(vLsum)}")
        bfe(P, T0, 4, 1); bfe(P, T1, 0, 4); P(f"v_lshlrev_b32 {v(T1)}, 4, {v(T1)}"); P(f"v_lshl_add_u32 {v(T0)}, {v(T0)}, 10, {v(T1)}")
        bfe(P, T1, 5, 1); P(f"v_lshl_add_u32 {v(vD)}, {v(T1)}, 8, {v(T0)}")
        P(f"s_lshr_b32 {s(sT)}, {s(sRow0)}, 6"); P(f"s_lshl_b32 {s(sT)}, {s(sT)}, 19"); P(f"s_lshl_b32 {s(sT2)}, {s(sH)}, 14"); P(f"s_add_u32 {s(sT)}, {s(sT)}, {s(sT2)}")
        P(f"s_and_b32 {s(sT2)}, {s(sRow0)}, 32"); P(f"s_lshl_b32 {s(sT2)}, {s(sT2)}, 6"); P(f"s_add_u32 {s(sT)}, {s(sT)}, {s(sT2)}")
        P(f"s_add_u32 {s(sSt)}, {s(sT)}, {CTX}")
        for db in range(4):
            if mid and (db == 2 or (EPI2 == 2 and db in (1, 3))): mid()
            for i in range(16): P(f"v_mul_f32 {v(vO+16*db+i)}, {v(vLsum)}, {v(vO+16*db+i)}")
            for i in range(8): P(f"v_cvt_pk_bf16_f32 {v(vS+8*db+i)}, {v(vO+16*db+2*i)}, {v(vO+16*db+2*i+1)}")
            for u in range(2): P(f"buffer_store_dwordx4 {v(vS+8*db+4*u,4)}, {v(vD)}, {s(sWS,4)}, {s(sSt)} offen offset:{u*512} {ST}", "ctx")
            if db < 3: P(f"s_add_u32 {s(sSt)}, {s(sSt)}, 4096")
    def wave_flag(fn_off, tag):
        fn_off()
        P(f"v_mov_b32 {v(T0)}, {s(sNON)}"); P(f"v_mov_b32 {v(T1)}, {s(sNON+1)}"); P(f"v_mov_b32 {v(T2)}, 0")
        P.wait_tag(lambda t: t == tag)
        P("s_mov_b64 exec, 1")
        P(f"buffer_store_dwordx2 {v(T0,2)}, {v(T2)}, {s(sWS,4)}, {s(sT)} offen sc1", "flag")
        P("s_mov_b64 exec, -1")
    def ctx_off():
        P(f"s_lshl_b32 {s(sT)}, {s(sJL)}, 8"); P(f"s_lshl_b32 {s(sT2)}, {s(sH)}, 3"); P(f"s_add_u32 {s(sT)}, {s(sT)}, {s(sT2)}"); P(f"s_add_u32 {s(sT)}, {s(sT)}, {FC}")
    def loader_iter(lab):
        P(f"s_cmp_gt_u32 {s(sLd)}, {s(sU)}"); P(f"s_cbranch_scc1 {lab}_skip")
        st = P.state()
        P(f"ds_read_b32 {v(vCV)}, {v(vRdFree)}")
        P(f"s_sub_u32 {s(sTa)}, {s(sLd)}, 3")
        ctl_check(vRdFree, sTa, lab)
        dma_stage(gap=DGAP1)
        n = dma_ops.n
        full_publish(lambda: P.wait_tag(lambda t: isinstance(t, tuple) and t[0] == "kv" and t[1] <= n - 2), -1)
        st2 = P.state()
        P.label(f"{lab}_skip")
        P.set_state(merge_states(st, st2))
    for role in ("hi", "lo"):
        R = f"{name}_{role}"
        P.set_state(entry)
        for par in (0, 1):
            P.label(f"{R}_{'EO'[par]}")
            P(f"s_sub_u32 {s(sCNT)}, {s(sCNT)}, 1"); P(f"s_cbranch_scc1 {R}_sp{par}")
            P.label(f"{R}_go{par}")
            period(par, role)
            st = P.state()
            assert X_NOLDS or [sorted(x) for x in st[0]] == [sorted(x) for x in entry[0]], (st[0], entry[0])
        P(f"s_branch {R}_E")
        for par in (0, 1):
            P.set_state(entry); fallback(par, role, "m")
        for par in (0, 1):
            P.set_state(entry)
            P.label(f"{R}_sp{par}")
            if role == "lo" and ERT and par == 0:
                P(f"s_cmp_lg_u32 {s(sSEC)}, 2"); P(f"s_cbranch_scc1 {R}_spn")
                P(f"s_mov_b32 {s(sSEC)}, 0"); P(f"s_sub_u32 {s(sCNT)}, {s(sJL)}, {6 + 2}")
                P(f"s_lshl_b32 {s(sT)}, {s(sAW)}, 3"); P(f"s_add_u32 {s(sT)}, {s(sT)}, {FA}")
                P(f"v_mov_b32 {v(T0)}, {s(sNON)}"); P(f"v_mov_b32 {v(T1)}, {s(sNON+1)}"); P(f"v_mov_b32 {v(T2)}, 0")
                P("s_mov_b64 exec, 1")
                P.raw(f"buffer_store_dwordx2 {v(T0,2)}, {v(T2)}, {s(sWS,4)}, {s(sT)} offen sc1")
                P("s_mov_b64 exec, -1")
                P(f"s_branch {R}_go{par}")
                P.label(f"{R}_spn")
            if role == "hi" and WOPF >= 0 and par == WOPF % 2:
                P(f"s_cmp_lg_u32 {s(sSEC)}, 2"); P(f"s_cbranch_scc1 {R}_spn")
                P(f"s_mov_b32 {s(sSEC)}, 0"); P(f"s_sub_u32 {s(sCNT)}, {s(sJL)}, {WOPF + 2}")
                P(f"s_lshl_b32 {s(sT)}, s2, 2"); P(f"s_add_u32 {s(sT)}, {s(sT)}, {s(sWV)}"); P(f"s_mul_i32 {s(sT2)}, {s(sT)}, 5120")
                for i in range(5):
                    if i == 4: P(f"s_add_u32 {s(sT2)}, {s(sT2)}, 4096")
                    P.raw(f"buffer_load_dwordx4 v[208:211], {v(vL16)}, {s(sWO,4)}, {s(sT2)} offen offset:{(i%4)*1024}")
                P(f"s_lshl_b32 {s(sT2)}, {s(sT)}, 10")
                P.raw(f"buffer_load_dwordx4 v[208:211], {v(vL16)}, {s(sBWO,4)}, {s(sT2)} offen")
                P(f"s_branch {R}_go{par}")
                P.label(f"{R}_spn")
            P(f"s_cmp_lg_u32 {s(sSEC)}, 0"); P(f"s_cbranch_scc1 {R}_tail{par}")
            P(f"s_mov_b32 {s(sSEC)}, 1"); P(f"s_mov_b32 {s(sCNT)}, 0")
            mask_nm()
            P(f"s_branch {R}_go{par}")
        for par in (0, 1):
            P.set_state(entry)
            P.label(f"{R}_tail{par}")
            P("s_waitcnt lgkmcnt(0)")
            if par == 0: free_write()
            for n in range(8, 16): P(frag_read(n, par))
            if par == 1: P(f"ds_read_b32 {v(vCV)}, {v(vRdFull)}")
            if role == "lo" and par == 1:
                if DSPR:
                    for f in dma_ops()[4:]: f()
                full_publish(8, -1)
            interleave(P, [mfC(par, i) for i in range(8)], [o for c, o in softmax_ops(par)])
            check(par, role, "t")
            if par == 1:
                ctl_check(vRdFull, sNeed, f"{R}_spT"); advance()
            for n in range(8, 16): P(frag_read(n, 1 - par))
            for i in range(8): P(mfC(1 - par, i))
            P(f"s_branch {R}_epi")
            fallback(par, role, "t")
        emit_spins()
        P.label(f"{R}_epi")
        P.lq = []
        dma_ops.n = 10
        P.vq = [(set(), ("kv", 8))]*8 + [(set(), ("kv", 9))]*8 if role == "lo" else []
        SP(idx=sidx)
        if X_PRIO == role and E("PRIO0", "2") == "1": P("s_setprio 0")
        it = [0]
        def li(n=1):
            for _ in range(n):
                it[0] += 1; loader_iter(f"{R}_ld{it[0]}")
        epilogue(role, li if (role == "lo" and EPI2) else None)
        SP()
        if role == "hi":
            ctx["hiflag"] = lambda: wave_flag(ctx_off, "ctx")
            ctx["hi_state"] = P.state()
            P(f"s_branch {name}_att_done")
        else:
            bc = battn_chunks(ctx, 0)
            bc[0]()
            def aux_off():
                P(f"s_lshl_b32 {s(sT)}, {s(sAW)}, 3"); P(f"s_add_u32 {s(sT)}, {s(sT)}, {FA}")
            if not ERT:
                P(f"s_lshl_b32 {s(sAW)}, s2, 2"); P(f"s_add_u32 {s(sAW)}, {s(sAW)}, {s(sWV)}"); P(f"s_sub_u32 {s(sAW)}, {s(sAW)}, {4 + 128*RG0}")
                P(f"s_sub_u32 {s(sT)}, {s(sG)}, {RG0}"); P(f"s_cmp_ge_u32 {s(sT)}, {AUXG}"); P(f"s_cbranch_scc1 {R}_nort")
                stx = P.state(); nx = dma_ops.n
                r = [retile_chunks(ctx, i) for i in range(3)]
                r[0][0](); li(RSP)
                r[0][1](); r[1][0](); li(RSP)
                r[1][1](); r[2][0](); li(RSP)
                wave_flag(ctx_off, "ctx")
                r[2][1](); li(2)
                def aux_off():
                    P(f"s_lshl_b32 {s(sT)}, {s(sAW)}, 3"); P(f"s_add_u32 {s(sT)}, {s(sT)}, {FA}")
                wave_flag(aux_off, "aux")
                P.needr(v(0, 4))
                P(f"s_branch {R}_rtj")
                P.label(f"{R}_nort"); P.set_state(stx); dma_ops.n = nx
            li(NLF)
            wave_flag(ctx_off, "ctx")
            P.needr(v(0, 4))
            if not ERT: P.label(f"{R}_rtj")
            dma_ops.n += 20
            P.vq = [(set(), ("kv", dma_ops.n - 1))]; P.lq = []
            bc[1]()
            if BMID:
                li(1); bc[2](); li(1); bc[3](); li(1); bc[4](); li(1); bc[5]()
            if E("PRIO0", "2") == "2": P("s_setprio 0")
            P(f"s_sub_u32 {s(sAM)}, {s(sU)}, {BEARLY}")
            P.label(f"{R}_rest")
            P(f"s_cmp_gt_u32 {s(sLd)}, {s(sAM)}"); P(f"s_cbranch_scc1 {R}_fin")
            P(f"ds_read_b32 {v(vCV)}, {v(vRdFree)}")
            P(f"s_sub_u32 {s(sTa)}, {s(sLd)}, 3")
            ctl_check(vRdFree, sTa, f"{R}_ldr")
            if PROF: P.raw("s_memtime s[96:97]"); P.raw("s_waitcnt lgkmcnt(0)"); P.raw("s_sub_u32 s3, s3, s96")
            dma_stage(gap=DGAP)
            if PROF and E("TDMA"): P.raw("s_memtime s[96:97]"); P.raw("s_waitcnt lgkmcnt(0)"); P.raw("s_add_u32 s3, s3, s96")
            full_publish(8, -1)
            if PROF and not E("TDMA"): P.raw("s_memtime s[96:97]"); P.raw("s_waitcnt lgkmcnt(0)"); P.raw("s_add_u32 s3, s3, s96")
            P(f"s_branch {R}_rest")
            P.label(f"{R}_fin")
            full_publish(0, 0); P.vq = []
            P(f"s_mov_b32 {s(sT)}, {FA}")
            for i in range(4): P(f"buffer_load_dwordx4 {v(16+4*i,4)}, {v(vL16)}, {s(sWS,4)}, {s(sT)} offen offset:{i*1024} sc1")
            import outp
            if L2W: outp.fc_request(P, 4)
            LP = int(E("L2P", "4"))
            for f in bc[2:LP]: f()
            if L2W and LP == 4: P.wait_tag(lambda t: t == "bst")
            if L2W:
                P.needr(v(4, 2), v(16, 16))
                outp.l2_warm(P, name)
            for f in bc[LP:]: f()
            P(f"s_mov_b32 {s(sT)}, {FA}"); P(f"s_mov_b32 {s(sT2)}, {int(E('POLLMAX', '0x40000'), 0)}")
            P.needr(v(16, 16))
            st = P.state()
            P(f"s_branch {name}_pollA_c")
            P.label(f"{name}_pollA")
            for i in range(4): P(f"buffer_load_dwordx4 {v(16+4*i,4)}, {v(vL16)}, {s(sWS,4)}, {s(sT)} offen offset:{i*1024} sc1")
            P("s_waitcnt vmcnt(0)")
            P.label(f"{name}_pollA_c")
            for i in range(16): P(f"v_xor_b32 {v(16+i)}, {s(sNON + i%2)}, {v(16+i)}")
            for i in range(1, 15, 2): P(f"v_or3_b32 v16, v16, {v(16+i)}, {v(17+i)}")
            P("v_or_b32 v16, v16, v31")
            P("v_cmp_ne_u32 vcc, 0, v16"); P(f"s_cbranch_vccz {name}_pollA_ok")
            P("s_sleep 4"); P(f"s_sub_u32 {s(sT2)}, {s(sT2)}, 1"); P(f"s_cmp_lg_u32 {s(sT2)}, 0"); P(f"s_cbranch_scc1 {name}_pollA")
            P.label(f"{name}_pollA_ok")
            P.set_state(st)
            import outp
            outp.wof_prefetch(P)
            ctx["lo_state"] = P.state()
            def b_off():
                P(f"s_lshl_b32 {s(sT)}, s2, 2"); P(f"s_add_u32 {s(sT)}, {s(sT)}, {s(sWV)}"); P(f"s_lshl_b32 {s(sT)}, {s(sT)}, 3"); P(f"s_add_u32 {s(sT)}, {s(sT)}, {FB - 32}")
            ctx["bflag"] = lambda: wave_flag(b_off, "aux")
            P(f"s_branch {name}_att_done")
            emit_spins()
    P.label(f"{name}_att_done")
    if PROF:
        P.raw(f"v_writelane_b32 {v(vSTAMP)}, s98, 20"); P.raw(f"v_writelane_b32 {v(vSTAMP)}, s7, 21"); P.raw(f"v_writelane_b32 {v(vSTAMP)}, s3, 22")
    P.vq = []; P.lq = []
    SP()
    import outp
    outp.gen_out(ctx)
```

```python
from fused import *

NSLOT = 4
SCR = 131072
AREA = 7424
CT = SCR + 4*AREA
OOB = 0x7f000000
BIG = 0x7fffffff
THR = 2.0**40
AUXG = int(os.environ.get("AUXG", "4"))
BINV = int(os.environ.get("BINV", "0"))
LDB = "" if BINV else LD
sAR = sOutB
sAW, sAK, sAM = 4, 5, 6

def retile_chunks(ctx, rnd, vb=32, sbuf=None, sK=None, sMQ=None):
    P, name = ctx["P"], ctx["name"]
    vo, va, vd = vb, vb + 4, vb + 8
    if sbuf is None: sbuf, sK, sMQ = sAR, sAK, sAM
    L = f"{name}_rt{rnd}"
    def c1():
        P(f"s_add_u32 {s(sT)}, {s(sAW)}, {512*rnd}")
        P(f"s_mul_i32 {s(sK)}, {s(sT)}, 6554"); P(f"s_lshr_b32 {s(sK)}, {s(sK)}, 16")
        P(f"s_mul_i32 {s(sT2)}, {s(sK)}, 10"); P(f"s_sub_u32 {s(sMQ)}, {s(sT)}, {s(sT2)}")
        bfe(P, T0, 3, 3); P(f"v_mul_u32_u24 {v(T0)}, 1280, {v(T0)}"); bfe(P, T1, 0, 3); P(f"v_lshl_add_u32 {v(T0)}, {v(T1)}, 4, {v(T0)}")
        for i in range(4): P(f"v_add_u32 {v(vo+i)}, {i*(8*1280-1024)}, {v(T0)}")
        P(f"s_mov_b32 m0, {s(sbuf)}")
        P(f"s_mul_i32 {s(sT)}, {s(sK)}, {32*1280}"); P(f"s_lshl_b32 {s(sT2)}, {s(sMQ)}, 7"); P(f"s_add_u32 {s(sT)}, {s(sT)}, {s(sT2)}")
        P(f"s_cmp_ge_u32 {s(sK)}, 128"); P(f"s_cbranch_scc1 {L}_b")
        st = P.state()
        for i in range(4): P(f"buffer_load_dwordx4 {v(vo+i)}, {s(sWO,4)}, {s(sT)} offen offset:{i*1024} {NT.get(sWO, '')} lds", ("rt", rnd))
        P(f"s_branch {L}_j")
        P.label(f"{L}_b"); P.set_state(st)
        P(f"s_sub_u32 {s(sT)}, {s(sT)}, {128*32*1280}")
        for i in range(4): P(f"buffer_load_dwordx4 {v(vo+i)}, {s(sBWO,4)}, {s(sT)} offen offset:{i*1024} lds", ("rt", rnd))
        P.label(f"{L}_j")
    def c2():
        bfe(P, T0, 2, 2); bfe(P, T1, 0, 2); P(f"v_lshlrev_b32 {v(T1)}, 3, {v(T1)}"); P(f"v_lshl_add_u32 {v(T0)}, {v(T0)}, 7, {v(T1)}")
        P(f"v_add_u32 {v(T0)}, {s(sbuf)}, {v(T0)}")
        P.wait_tag(lambda t: t == ("rt", rnd))
        P(f"s_cmp_ge_u32 {s(sK)}, 128"); P(f"s_cbranch_scc1 {L}_b2")
        st = P.state()
        for isB in (0, 1):
            if isB:
                P.label(f"{L}_b2"); P.set_state(st)
                bfe(P, T1, 4, 2); P(f"v_lshl_add_u32 {v(va)}, {v(T1)}, 10, {v(T0)}"); step = 4*128
                P(f"s_sub_u32 {s(sTw)}, {s(sK)}, 128"); P(f"s_mul_i32 {s(sTw)}, {s(sTw)}, 5120"); P(f"s_add_u32 {s(sTw)}, {s(sTw)}, {BWOF}")
                P(f"s_cmp_lt_u32 {s(sK)}, 148"); P(f"s_cselect_b32 {s(sTw)}, {s(sTw)}, {OOB}")
            else:
                bfe(P, T1, 5, 1); P(f"v_lshl_add_u32 {v(va)}, {v(T1)}, 11, {v(T0)}")
                bfe(P, T1, 4, 1); P(f"v_lshl_add_u32 {v(va)}, {v(T1)}, 9, {v(va)}"); step = 8*128
                P(f"s_mul_i32 {s(sTw)}, {s(sK)}, 5120"); P(f"s_add_u32 {s(sTw)}, {s(sTw)}, {WOF}")
            for f in range(4):
                for i in range(2): P(f"ds_read_b64_tr_b16 {v(vd+4*f+2*i,2)}, {v(va)} offset:{f*32 + i*step}")
            nk = 20 if isB else 128
            for f in range(4):
                P(f"s_lshl_b32 {s(sT)}, {s(sMQ)}, 2"); P(f"s_add_u32 {s(sT)}, {s(sT)}, {f}")
                P(f"s_mul_i32 {s(sT2)}, {s(sT)}, 205"); P(f"s_lshr_b32 {s(sT2)}, {s(sT2)}, 10")
                P(f"s_mul_i32 {s(sTa)}, {s(sT2)}, 5"); P(f"s_sub_u32 {s(sT)}, {s(sT)}, {s(sTa)}"); P(f"s_lshl_b32 {s(sT)}, {s(sT)}, 10")
                P(f"s_mul_i32 {s(sT2)}, {s(sT2)}, {nk*5120}"); P(f"s_add_u32 {s(sT)}, {s(sT)}, {s(sT2)}"); P(f"s_add_u32 {s(sT)}, {s(sT)}, {s(sTw)}")
                P(f"buffer_store_dwordx4 {v(vd+4*f,4)}, {v(vL16)}, {s(sWS,4)}, {s(sT)} offen {ST}", "aux")
            if not isB: P(f"s_branch {L}_j2")
        P.label(f"{L}_j2")
    return [c1, c2]

def battn_chunks(ctx, rnd):
    P, name = ctx["P"], ctx["name"]
    sID, sBS = sISV, sFQ
    vTok, vH, vCA, vCB, vCC, vTP = 32, 33, 34, 35, 36, 40
    D = 48
    LG, PP, OO = 218, 226, 48
    vo = 230
    tmp = [233, 234, 235, 236, 237, 238]
    vFl = 0
    def flag_offs(which):
        if which == 0: P(f"s_lshr_b32 {s(sT)}, {s(sID)}, 4")
        else:
            P(f"s_lshr_b32 {s(sT)}, {s(sID)}, 2"); P(f"s_max_u32 {s(sT)}, {s(sT)}, 1"); P(f"s_sub_u32 {s(sT)}, {s(sT)}, 1"); P(f"s_lshr_b32 {s(sT)}, {s(sT)}, 2")
        P(f"s_lshl_b32 {s(sT)}, {s(sT)}, 7"); P(f"s_add_u32 {s(sT)}, {s(sT)}, {FQ}")
    def c0():
        P(f"s_mov_b32 {s(sID)}, s2")
        P(f"v_lshrrev_b32 {v(T3)}, 1, {v(vL16)}"); P(f"v_min_u32 {v(T3)}, 112, {v(T3)}")
        for wh in range(2):
            flag_offs(wh)
            P(f"buffer_load_dwordx2 {v(vFl+2*wh,2)}, {v(T3)}, {s(sWS,4)}, {s(sT)} offen sc1")
    def c1():
        for i in range(4): P(f"v_xor_b32 {v(vFl+i)}, {s(sNON + i%2)}, {v(vFl+i)}")
        P(f"v_or3_b32 {v(vFl)}, {v(vFl)}, {v(vFl+1)}, {v(vFl+2)}"); P(f"v_or_b32 {v(vFl)}, {v(vFl)}, {v(vFl+3)}")
        P(f"v_cmp_ne_u32 vcc, 0, {v(vFl)}"); P(f"s_cbranch_vccz {name}_pq{rnd}ok")
        st = P.state()
        for wh in range(2):
            flag_offs(wh); ctx['poll'](sT, 15, f"{name}_pq{rnd}{wh}")
        P.label(f"{name}_pq{rnd}ok"); P.set_state(st)
        P(f"s_lshr_b32 {s(sT)}, {s(sID)}, 2"); P(f"s_lshl_b32 {s(sT)}, {s(sT)}, 5")
        bfe(P, T0, 0, 5); P(f"v_add_u32 {v(vTok)}, {s(sT)}, {v(T0)}")
        P(f"s_and_b32 {s(sT)}, {s(sID)}, 3"); P(f"s_lshl_b32 {s(sT)}, {s(sT)}, 2"); P(f"s_add_u32 {s(sT)}, {s(sT)}, {s(sWV)}"); P(f"s_sub_u32 {s(sT)}, {s(sT)}, 4")
        P(f"s_lshl_b32 {s(sT)}, {s(sT)}, 1")
        bfe(P, T0, 5, 1); P(f"v_add_u32 {v(vH)}, {s(sT)}, {v(T0)}")
        P(f"v_mul_u32_u24 {v(vH)}, 20, {v(vH)}")
        P(f"v_lshl_add_u32 {v(vCA)}, {v(T0)}, 2, {v(vH)}"); P(f"v_add_u32 {v(vCB)}, 8, {v(vCA)}")
        P(f"v_lshlrev_b32 {v(T1)}, 4, {v(T0)}"); P(f"v_sub_u32 {v(vCC)}, {v(vH)}, {v(T1)}"); P(f"v_add_u32 {v(vCC)}, 16, {v(vCC)}")
        P(f"v_lshrrev_b32 {v(T0)}, 6, {v(vTok)}"); P(f"v_mul_u32_u24 {v(T0)}, 81920, {v(T0)}")
        P(f"v_bfe_u32 {v(T1)}, {v(vTok)}, 4, 2"); P(f"v_lshl_add_u32 {v(T0)}, {v(T1)}, 10, {v(T0)}")
        P(f"v_and_b32 {v(T1)}, 15, {v(vTok)}"); P(f"v_lshl_add_u32 {v(T0)}, {v(T1)}, 4, {v(T0)}")
        for i, c in enumerate((vCA, vCB, vCC)):
            P(f"v_lshrrev_b32 {v(T1)}, 5, {v(c)}"); P(f"v_lshl_add_u32 {v(vo+i)}, {v(T1)}, 12, {v(T0)}")
            P(f"v_bfe_u32 {v(T1)}, {v(c)}, 3, 2"); P(f"v_lshl_add_u32 {v(vo+i)}, {v(T1)}, 8, {v(vo+i)}")
            P(f"v_and_b32 {v(T1)}, 7, {v(c)}"); P(f"v_lshl_add_u32 {v(vo+i)}, {v(T1)}, 1, {v(vo+i)}")
        for c in (vCA, vCB, vCC):
            P(f"v_and_b32 {v(T1)}, 7, {v(c)}"); P(f"v_lshlrev_b32 {v(T1)}, 1, {v(T1)}")
            P(f"v_lshrrev_b32 {v(c)}, 3, {v(c)}"); P(f"v_lshl_add_u32 {v(c)}, {v(c)}, 9, {v(T1)}")
        bfe(P, T0, 0, 5); P(f"v_lshlrev_b32 {v(T0)}, 4, {v(T0)}")
        for c in (vCA, vCB, vCC): P(f"v_add_u32 {v(c)}, {v(c)}, {v(T0)}")
        P(f"s_lshr_b32 {s(sT)}, {s(sID)}, 2"); P(f"s_mul_i32 {s(sU0)}, {s(sT)}, {120*1024}"); P(f"s_add_u32 {s(sU0)}, {s(sU0)}, {QKV}")
        P(f"buffer_load_dwordx4 {v(D,4)}, {v(vCA)}, {s(sWS,4)}, {s(sU0)} offen {LD}")
        P(f"buffer_load_dwordx4 {v(D+4,4)}, {v(vCB)}, {s(sWS,4)}, {s(sU0)} offen {LD}")
        P(f"buffer_load_dwordx2 {v(D+8,2)}, {v(vCC)}, {s(sWS,4)}, {s(sU0)} offen {LD}")
        P(f"s_cmp_eq_u32 {s(sT)}, 0"); P(f"s_cselect_b32 {s(sT2)}, 0, {120*1024}"); P(f"s_sub_u32 {s(sU0)}, {s(sU0)}, {s(sT2)}")
        bfe(P, T1, 5, 1); P(f"v_mul_lo_u32 {v(T1)}, {v(T1)}, {s(sT2)}"); P(f"v_add_u32 {v(vTP)}, {v(T0)}, {v(T1)}")
        P(f"s_and_b32 {s(sT)}, {s(sID)}, 3"); P(f"s_lshl_b32 {s(sT)}, {s(sT)}, 2"); P(f"s_add_u32 {s(sT)}, {s(sT)}, {s(sWV)}"); P(f"s_sub_u32 {s(sT)}, {s(sT)}, 4")
        P(f"s_mul_i32 {s(sT)}, {s(sT)}, 2560"); P(f"s_add_u32 {s(sBS)}, {s(sU0)}, {s(sT)}")
        stage(1)
        bfe(P, T1, 5, 1); P(f"v_add_u32 {v(T0)}, {s(sAR)}, {v(T0)}"); P(f"v_add_u32 {v(T0)}, {18*16}, {v(T0)}")
        P(f"v_mul_u32_u24 {v(T2)}, 3072, {v(T1)}"); P(f"v_add_u32 {v(vTP+1)}, {v(T0)}, {v(T2)}")
        P(f"v_lshl_add_u32 {v(vTP+2)}, {v(T1)}, 3, {v(T0)}")
    def stage(sec):
        for c in range(5):
            P(f"s_add_u32 m0, {s(sAR)}, {c*1024}"); P(f"s_add_u32 {s(sT)}, {s(sBS)}, {sec*40*1024 + c*512}")
            P(f"buffer_load_dwordx4 {v(vTP)}, {s(sWS,4)}, {s(sT)} offen {LD} lds", "bst")
    def rows(first):
        P.wait_tag(lambda t: t == "bst")
        for w in range(8):
            d = D + 10*(first + w); o = 32*(7 - w)
            P(f"ds_read_b128 {v(d,4)}, {v(vTP+1)} offset:{o}"); P(f"ds_read_b128 {v(d+4,4)}, {v(vTP+1)} offset:{o + 1024}")
            P(f"ds_read_b64 {v(d+8,2)}, {v(vTP+2)} offset:{o + 2048}")
    def c2():
        rows(1)
        P.wait_lds_all()
        stage(2)
        for w in range(8):
            for i in range(10):
                c = "0" if i == 0 else v(LG+w)
                P(f"v_dot2_f32_bf16 {v(LG+w)}, {v(D+i)}, {v(D+10*(1+w)+i)}, {c}")
    def c2b():
        P(f"s_mov_b32 {s(sU0)}, {fbits(20**-0.5)}"); P(f"s_mov_b32 {s(sU1)}, 0xffff0000"); P(f"s_mov_b32 {s(sU2)}, {fbits(math.log2(math.e))}")
        def round_pairs():
            for w in range(0, 8, 2): P(f"v_cvt_pk_bf16_f32 {v(PP+w//2)}, {v(LG+w)}, {v(LG+w+1)}")
            for w in range(0, 8, 2):
                P(f"v_lshlrev_b32 {v(LG+w)}, 16, {v(PP+w//2)}"); P(f"v_and_b32 {v(LG+w+1)}, {s(sU1)}, {v(PP+w//2)}")
        round_pairs()
        for w in range(8): P(f"v_mul_f32 {v(LG+w)}, {s(sU0)}, {v(LG+w)}")
        round_pairs()
        P(f"v_mov_b32 {v(T1)}, {fbits(-1e9)}")
        for w in range(1, 8):
            m = s(sM + 2*(w%2), 2)
            P(f"v_cmp_gt_u32 {m}, {2*w}, {v(vTok)}")
            P(f"v_cndmask_b32 {v(LG+w)}, {v(LG+w)}, {v(T1)}, {m}")
        P(f"v_max3_f32 {v(T0)}, {v(LG)}, {v(LG+1)}, {v(LG+2)}"); P(f"v_max3_f32 {v(T0)}, {v(T0)}, {v(LG+3)}, {v(LG+4)}")
        P(f"v_max3_f32 {v(T0)}, {v(T0)}, {v(LG+5)}, {v(LG+6)}"); P(f"v_max_f32 {v(T0)}, {v(T0)}, {v(LG+7)}")
        for w in range(8): P(f"v_sub_f32 {v(LG+w)}, {v(LG+w)}, {v(T0)}")
        for w in range(8): P(f"v_mul_f32 {v(LG+w)}, {s(sU2)}, {v(LG+w)}")
        for w in range(8): P(f"v_exp_f32 {v(LG+w)}, {v(LG+w)}")
        P(f"v_add_f32 {v(T0)}, {v(LG)}, {v(LG+1)}")
        for w in range(2, 8): P(f"v_add_f32 {v(T0)}, {v(T0)}, {v(LG+w)}")
        P(f"v_rcp_f32 {v(T0)}, {v(T0)}")
        for w in range(8): P(f"v_mul_f32 {v(LG+w)}, {v(T0)}, {v(LG+w)}")
        for w in range(0, 8, 2): P(f"v_cvt_pk_bf16_f32 {v(PP+w//2)}, {v(LG+w)}, {v(LG+w+1)}")
    def c3(wps):
        if 0 in wps: rows(9)
        P(f"s_mov_b32 {s(sU0)}, 0x05040100"); P(f"s_mov_b32 {s(sU1)}, 0x07060302")
        tq = [LG + i for i in range(8)]
        n = 0
        for wp in wps:
            for i in range(10):
                a0, a1 = D + 10*(9+2*wp) + i, D + 10*(10+2*wp) + i
                t0, t1 = tq[(2*n) % 8], tq[(2*n+1) % 8]; n += 1
                P(f"v_perm_b32 {v(t0)}, {v(a1)}, {v(a0)}, {s(sU0)}"); P(f"v_perm_b32 {v(t1)}, {v(a1)}, {v(a0)}, {s(sU1)}")
                P(f"v_dot2_f32_bf16 {v(OO+2*i)}, {v(t0)}, {v(PP+wp)}, {'0' if wp == 0 else v(OO+2*i)}")
                P(f"v_dot2_f32_bf16 {v(OO+2*i+1)}, {v(t1)}, {v(PP+wp)}, {'0' if wp == 0 else v(OO+2*i+1)}")
        if 3 not in wps: return
        R = 72
        for i in range(10): P(f"v_cvt_pk_bf16_f32 {v(R+i)}, {v(OO+2*i)}, {v(OO+2*i+1)}")
        P(f"s_mov_b32 {s(sU0)}, {BO}")
        if os.environ.get("X_NOBO") == "1": return
        if os.environ.get("X_NOBO") == "2":
            P(f"buffer_store_dwordx4 {v(R,4)}, {v(vo)}, {s(sWS,4)}, {s(sU0)} offen {ST}", "aux")
            P(f"buffer_store_dwordx4 {v(R+4,4)}, {v(vo+1)}, {s(sWS,4)}, {s(sU0)} offen {ST}", "aux")
            return
        if os.environ.get("BOSW", "0") == "1":
            P(f"v_mov_b32 {v(R+10)}, {v(R+8)}"); P(f"v_mov_b32 {v(R+11)}, {v(R+9)}")
            P(f"buffer_store_dwordx4 {v(R,4)}, {v(vo)}, {s(sWS,4)}, {s(sU0)} offen {ST}", "aux")
            P(f"buffer_store_dwordx4 {v(R+4,4)}, {v(vo+1)}, {s(sWS,4)}, {s(sU0)} offen {ST}", "aux")
            P(f"v_permlane32_swap_b32 {v(R+8)}, {v(R+10)}"); P(f"v_permlane32_swap_b32 {v(R+9)}, {v(R+11)}")
            P("s_mov_b64 exec, 0xffffffff")
            P(f"buffer_store_dwordx4 {v(R+8,4)}, {v(vo+2)}, {s(sWS,4)}, {s(sU0)} offen {ST}", "aux")
            P("s_mov_b64 exec, -1")
            return
        P(f"buffer_store_dwordx4 {v(R,4)}, {v(vo)}, {s(sWS,4)}, {s(sU0)} offen {ST}", "aux")
        P(f"buffer_store_dwordx4 {v(R+4,4)}, {v(vo+1)}, {s(sWS,4)}, {s(sU0)} offen {ST}", "aux")
        P(f"buffer_store_dwordx2 {v(R+8,2)}, {v(vo+2)}, {s(sWS,4)}, {s(sU0)} offen {ST}", "aux")


    return [c0, c1, c2, c2b, lambda: c3([0, 1]), lambda: c3([2, 3])]
```

```python
from common import *
import math
ST = os.environ.get("ST", "sc1")
LD = os.environ.get("LD", "sc1")
STOP = os.environ.get("STOP", "")
FK, FQ, FA, FC, FB = 70*MB, 70*MB + 4096, 70*MB + 8192, 70*MB + 16384, 70*MB + 32768
KVT = int(os.environ.get("KVT", "1"))
WSB = int(os.environ.get("WSB", "0")) * MB
K16 = int(os.environ.get("K16", "1"))
KVP = int(os.environ.get("KVP", "0"))
HIDMA = int(os.environ.get("HIDMA", "1"))
SQK = int(os.environ.get("SQK", "3"))
STAG = int(os.environ.get("STAG", "1"))
QSPREAD = int(os.environ.get("QSPREAD", "1"))
PF1 = int(os.environ.get("PF1", "1")); PF2 = int(os.environ.get("PF2", "10"))
QSCALE = math.log2(math.e) / math.sqrt(128.0)
import struct
def fbits(x): return "0x%08x" % struct.unpack("<I", struct.pack("<f", x))[0]

sCKV, sWKV, sWS, sBX, sBW, sAX, sWQ, sWO, sBWO, sOUT, sDBG = 8, 12, 16, 20, 24, 28, 32, 36, 40, 44, 48
sX, sJ, sWV, sT, sT2, sTa, sTw, sM4, sM2 = 52, 53, 54, 55, 56, 57, 58, 59, 60
sOffA, sOffW, sOutKV, sOffBA, sOffBW, sOutB, sSt = 61, 62, 63, 4, 5, 66, 67
sOffX, sOffQW, sH, sG, sRow0, sJL, sREM, sNB = 68, 69, 70, 71, 72, 73, 74, 75
sSlot, sDOff, sDIdx, sDLim, sDBase, sTHR, sDM0 = 76, 77, 78, 79, 80, 81, 82
sNON = 84
sU0, sU1, sU2, sU3 = 86, 87, 88, 89
sM = 90
sFK, sFQ, sISV, sPF, sOffX2 = 94, 95, 83, 6, 99
sSTAMP = 96
vL16, vTID, vSTAMP = 240, 241, 255
T0, T1, T2, T3 = 242, 243, 244, 245

class Stamp:
    def __init__(self, P): self.P = P; self.n = 0
    def __call__(self, real=False, idx=None):
        if not PROF: return
        if idx is not None: self.n = idx
        if os.environ.get("RT"): real = True
        P = self.P
        P.raw(f"{'s_memrealtime' if real else 's_memtime'} {s(sSTAMP,2)}"); P("s_waitcnt lgkmcnt(0)")
        P.raw(f"v_writelane_b32 {v(vSTAMP)}, {s(sSTAMP)}, {self.n}")
        if os.environ.get("STOPAT") == str(self.n): P.raw("s_waitcnt vmcnt(0)"); P.raw("s_branch L_stop")
        self.n += 1
    def flush(self):
        if not PROF: return
        P = self.P
        if os.environ.get("DBGOUT"):
            P.raw(f"s_cmp_lg_u32 s2, {os.environ['DBGOUT']}"); P.raw("s_cbranch_scc1 L_nodbg"); P.raw(f"s_cmp_lg_u32 {s(sWV)}, 0"); P.raw("s_cbranch_scc1 L_nodbg")
            P.raw(f"v_readlane_b32 s3, {v(vSTAMP)}, 0"); P.raw("s_nop 3"); P.raw(f"v_subrev_u32 {v(T0)}, s3, {v(vSTAMP)}")
            P.raw(f"v_lshrrev_b32 {v(T1)}, 2, {v(vL16)}"); P.raw("s_mov_b64 exec, 0x3ffe"); P.raw("s_nop 1")
            P.raw(f"buffer_store_dword {v(T0)}, {v(T1)}, {s(sDBG,4)}, 0 offen offset:4")
            P.raw("s_mov_b64 exec, -1")
            P.raw("L_nodbg:")
            return
        P.raw(f"s_lshl_b32 s3, s2, 3"); P.raw(f"s_add_u32 s3, s3, {s(sWV)}"); P.raw("s_lshl_b32 s3, s3, 8")
        P.raw(f"s_add_u32 s3, s3, {PROFOFF}")
        P.raw(f"v_lshrrev_b32 {v(T0)}, 2, {v(vL16)}"); P.raw("s_nop 1")
        P.raw(f"buffer_store_dword {v(vSTAMP)}, {v(T0)}, {s(sWS,4)}, s3 offen")

_m = {"c": sCKV, "w": sWKV, "x": sAX, "q": sWQ, "b": sBX, "v": sBW, "o": sWO}
NT = {_m[c]: "nt" for c in os.environ.get("NT", "w")}
NTP = {_m[c]: "nt" for c in os.environ.get("NTP", "")}
def bfe(P, dst, off, n): P(f"v_bfe_u32 {v(dst)}, {v(vTID)}, {off}, {n}")

def act_voff(P, dst, i, stride):
    bfe(P, T0, 4, 2)
    if i % 2: P(f"v_xor_b32 {v(T0)}, 4, {v(T0)}")
    bfe(P, T1, 0, 3); P(f"v_xor_b32 {v(T0)}, {v(T0)}, {v(T1)}"); P(f"v_lshlrev_b32 {v(T0)}, 4, {v(T0)}")
    bfe(P, T1, 3, 3)
    P(f"v_mul_u32_u24 {v(T1)}, {stride}, {v(T1)}")
    P(f"v_add_u32 {v(T0)}, {v(T0)}, {v(T1)}")
    P(f"v_add_u32 {v(dst)}, {8*i*stride - i*1024}, {v(T0)}")
def w256_voff(P, dst, i, stride):
    bfe(P, T0, 4, 2); bfe(P, T1, 2, 2)
    P(f"v_xor_b32 {v(T1)}, {v(T1)}, {v(T0)}"); P(f"v_lshlrev_b32 {v(T1)}, 6, {v(T1)}")
    bfe(P, T2, 0, 2); P(f"v_lshl_add_u32 {v(T1)}, {v(T2)}, 4, {v(T1)}")
    P(f"v_mul_u32_u24 {v(T0)}, {stride}, {v(T0)}")
    P(f"v_add_u32 {v(T1)}, {v(T1)}, {v(T0)}")
    P(f"v_add_u32 {v(dst)}, {4*i*stride - i*1024}, {v(T1)}")
def w512_voff(P, dst, i, stride_log):
    bfe(P, T2, 5, 1)
    P(f"v_add_u32 {v(T0)}, {2*i}, {v(T2)}")
    bfe(P, T1, 2, 3); P(f"v_xor_b32 {v(T1)}, {v(T1)}, {v(T0)}"); P(f"v_lshlrev_b32 {v(T1)}, 6, {v(T1)}")
    bfe(P, T0, 0, 2); P(f"v_lshl_add_u32 {v(T1)}, {v(T0)}, 4, {v(T1)}")
    P(f"v_lshl_add_u32 {v(T1)}, {v(T2)}, {stride_log}, {v(T1)}")
    P(f"v_add_u32 {v(dst)}, {(2*i << stride_log) - i*1024}, {v(T1)}")
def w512_voff16(P, dst, i, stride_log, sb3):
    bfe(P, T2, 5, 1)
    P(f"v_add_u32 {v(T0)}, {2*i}, {v(T2)}"); P(f"v_lshl_add_u32 {v(T0)}, {v(T0)}, 2, {sb3}")
    bfe(P, T1, 0, 5); P(f"v_xor_b32 {v(T1)}, {v(T1)}, {v(T0)}"); P(f"v_lshlrev_b32 {v(T1)}, 4, {v(T1)}")
    P(f"v_lshl_add_u32 {v(T1)}, {v(T2)}, {stride_log}, {v(T1)}")
    P(f"v_add_u32 {v(dst)}, {(2*i << stride_log) - i*1024}, {v(T1)}")
def act_raddr16(P, dst, ks, sbase):
    bfe(P, T0, 4, 2); P(f"v_add_u32 {v(T0)}, {4*ks}, {v(T0)}"); bfe(P, T1, 1, 3)
    P(f"v_xor_b32 {v(T0)}, {v(T0)}, {v(T1)}"); P(f"v_lshlrev_b32 {v(T0)}, 4, {v(T0)}")
    bfe(P, T1, 0, 4); P(f"v_lshl_add_u32 {v(T0)}, {v(T1)}, 7, {v(T0)}")
    P(f"v_add_u32 {v(dst)}, {sbase}, {v(T0)}")
def w_raddr16(P, dst, blk, rowlog, base):
    bfe(P, T0, 2, 2); bfe(P, T2, 4, 1); P(f"v_lshl_add_u32 {v(T1)}, {v(T0)}, 1, {v(T2)}")
    P(f"v_xor_b32 {v(T1)}, {blk}, {v(T1)}"); P(f"v_lshlrev_b32 {v(T1)}, 5, {v(T1)}")
    bfe(P, T2, 4, 2); P(f"v_lshl_add_u32 {v(T0)}, {v(T2)}, 3, {v(T0)}"); P(f"v_lshl_add_u32 {v(T1)}, {v(T0)}, {rowlog}, {v(T1)}")
    bfe(P, T0, 0, 2); P(f"v_lshl_add_u32 {v(T1)}, {v(T0)}, 3, {v(T1)}")
    P(f"v_add_u32 {v(dst)}, {base}, {v(T1)}")
def act_raddr(P, dst, ks, sbase):
    bfe(P, T0, 5, 1); P(f"v_add_u32 {v(T0)}, {2*ks}, {v(T0)}"); bfe(P, T1, 1, 3)
    P(f"v_xor_b32 {v(T0)}, {v(T0)}, {v(T1)}"); P(f"v_lshlrev_b32 {v(T0)}, 4, {v(T0)}")
    bfe(P, T1, 0, 5); P(f"v_lshl_add_u32 {v(T0)}, {v(T1)}, 7, {v(T0)}")
    P(f"v_add_u32 {v(dst)}, {sbase}, {v(T0)}")
def w_raddr(P, dst, unit, rowlog, base):
    bfe(P, T0, 2, 2); P(f"v_xor_b32 {v(T1)}, {unit}, {v(T0)}"); P(f"v_lshlrev_b32 {v(T1)}, 6, {v(T1)}")
    bfe(P, T2, 5, 1); P(f"v_lshl_add_u32 {v(T0)}, {v(T2)}, 3, {v(T0)}"); P(f"v_lshl_add_u32 {v(T1)}, {v(T0)}, {rowlog}, {v(T1)}")
    bfe(P, T0, 4, 1); P(f"v_lshl_add_u32 {v(T1)}, {v(T0)}, 5, {v(T1)}")
    bfe(P, T0, 0, 2); P(f"v_lshl_add_u32 {v(T1)}, {v(T0)}, 3, {v(T1)}")
    P(f"v_add_u32 {v(dst)}, {base}, {v(T1)}")

def gen(P, name):
    kernel_start(P, name, 256)
    SP = Stamp(P)
    if PROF: P.raw("s_memrealtime s[98:99]")
    P(f"s_load_dwordx16 s[64:79], s[0:1], 0"); P(f"s_load_dwordx8 s[80:87], s[0:1], 64")
    P(f"v_mov_b32 {v(vTID)}, v0")
    P(f"v_lshrrev_b32 v1, 6, v0")
    P(f"s_and_b32 {s(sX)}, s2, 7"); P(f"s_lshr_b32 {s(sJ)}, s2, 3")
    P(f"v_readfirstlane_b32 {s(sWV)}, v1")
    P(f"v_and_b32 v1, 63, v0"); P(f"v_lshlrev_b32 {v(vL16)}, 4, v1")
    vA, vA2, vW, voffA, voffW, voffBA, voffBW, vBA, vBW, vBAc, vBWc = 10, 14, 18, 20, 24, 26, 28, 32, 36, 37, 41
    voffX, voffQW, vXr, vQWr, vXc = 10, 14, 16, 24, 0
    vPF = 60
    for i in range(4): act_voff(P, voffA + i, i, 1024)
    if K16:
        P(f"s_and_b32 {s(sT)}, {s(sWV)}, 2")
        for i in range(2): w512_voff16(P, voffW + i, i, 13, s(sT))
    else:
        for i in range(2): w512_voff(P, voffW + i, i, 13)
    sMT, sNT, sH0 = sU2, sU3, 3
    P(f"s_and_b32 {s(sMT)}, {s(sJ)}, 7"); P(f"s_lshr_b32 {s(sNT)}, {s(sJ)}, 3")
    P(f"s_lshl_b32 {s(sM4)}, {s(sWV)}, 12"); P(f"s_lshl_b32 {s(sM2)}, {s(sWV)}, 11")
    P(f"s_and_b32 {s(sH0)}, {s(sNT)}, 1"); P(f"s_lshl_b32 {s(sH0)}, {s(sH0)}, 1"); P(f"s_lshl_b32 {s(sT2)}, {s(sX)}, 2"); P(f"s_add_u32 {s(sH0)}, {s(sH0)}, {s(sT2)}")
    P(f"s_lshl_b32 {s(sOffW)}, {s(sH0)}, 8"); P(f"s_lshl_b32 {s(sT2)}, {s(sWV)}, 15"); P(f"s_add_u32 {s(sOffW)}, {s(sOffW)}, {s(sT2)}")
    P(f"s_lshl_b32 {s(sOffA)}, {s(sMT)}, 18"); P(f"s_add_u32 {s(sOffA)}, {s(sOffA)}, {s(sT2)}")
    P("s_waitcnt lgkmcnt(0)")
    if os.environ.get("STOPAT") in ("1", "2"): make_srd(P, sWS, 86, SZ["ws"])
    SP(True)
    if PROF: P.raw(f"v_writelane_b32 {v(vSTAMP)}, s98, 0")
    SP()
    if PROF: P.raw(f"v_writelane_b32 {v(vSTAMP)}, s98, 0")
    make_srd(P, sCKV, 66, SZ["A_ckv"])
    P(f"s_cmp_ge_u32 {s(sNT)}, 2")
    P(f"s_cselect_b32 {s(sWKV)}, s72, s70"); P(f"s_cselect_b32 {s(sWKV+1)}, s73, s71")
    P(f"s_mov_b32 {s(sWKV+2)}, {SZ['A_wuk']}"); P(f"s_mov_b32 {s(sWKV+3)}, 0x20000")

    ASLOT = [0, 32768, 65536]; WSLOT = [98304 + 16384*i for i in range(4)]
    BSLOT = [65536, 0, 98304, 32768, 131072]
    XSLOT = [65536, 0, 32768, 131072]; QSLOT = [98304, 114688]
    gid = [0]
    def guard(hi, fn, sim=True):
        gid[0] += 1; lab = f"{name}_g{gid[0]}"
        P(f"s_cmp_lt_u32 {s(sWV)}, 4"); P(f"s_cbranch_scc{0 if hi else 1} {lab}")
        st = P.state(); fn(); P.label(lab)
        if not sim: P.set_state(st)
    def dma1(voff, srd, soff_reg, soff_base, soff_add, m0base, m0add, part, tag):
        P(f"s_add_u32 m0, {s(m0base)}, {m0add}")
        P(f"s_add_u32 {s(soff_reg)}, {s(soff_base)}, {soff_add}")
        for i in part: P(f"buffer_load_dwordx4 {v(voff+i)}, {s(srd,4)}, {s(soff_reg)} offen offset:{i*1024} {NT.get(srd, '')} lds", tag)
    dup = [bool(HIDMA)]
    DUP = {sOffA: 4 << 15, sOffW: 4 << 15, sOffBA: 4*16*1280, sOffBW: 4*8*3840, sOffQW: 4 << 16}
    def dma(voff, srd, soff_reg, soff_base, soff_add, m0base, m0add, part, tag):
        if not dup[0]: return dma1(voff, srd, soff_reg, soff_base, soff_add, m0base, m0add, part, tag)
        def f():
            dma1(voff, srd, soff_reg, soff_base, soff_add, m0base, m0add, part, tag)
            if soff_base == sOffX: return dma1(voff, srd, soff_reg, sOffX2, soff_add, m0base, m0add + 16384, part, tag)
            dma1(voff, srd, soff_reg, soff_base, soff_add + DUP[soff_base], m0base, m0add + (16384 if m0base == sM4 else 8192), part, tag)
        if HIDMA == 2:
            hi = soff_base in (sOffW, sOffBW)
            if hi: guard(True, f)
            else:
                def g():
                    dma1(voff, srd, soff_reg, soff_base, soff_add, m0base, m0add, part, tag)
                    dma1(voff, srd, soff_reg, soff_base, (soff_add - DUP[soff_base]) & 0xffffffff, m0base, (m0add - (16384 if m0base == sM4 else 8192)) & 0xffffffff, part, tag)
                as_lo(lambda: guard(False, g))
            return
        guard(True, f)
    loq = []
    def as_lo(fn):
        nonlocal loq
        keep = P.vq; P.vq = loq; fn(); loq = P.vq; P.vq = keep
    def wait2(pred):
        if HIDMA != 2: return P.wait_tag(pred)
        def has(q): return any((any(pred(x) for x in tg) if isinstance(tg, list) else pred(tg)) for _, tg in q)
        if has(P.vq): guard(True, lambda: P.wait_tag(pred))
        if has(loq): as_lo(lambda: guard(False, lambda: P.wait_tag(pred)))
    def dma_act(st, part=range(4)): dma(voffA, sCKV, sTa, sOffA, st*128, sM4, ASLOT[st%3], part, ("A", st))
    def dma_w(h): dma(voffW, sWKV, sTw, sOffW, h*32*8192, sM2, WSLOT[h%4], range(2), ("W", h))
    def dma_b(st, half=None, part=range(2)):
        if half != 1: dma(voffBA, sBX, sTa, sOffBA, st*128, sM2, BSLOT[st%5], part, ("B", st))
        if half != 0: dma(voffBW, sBW, sTw, sOffBW, st*64*3840, sM2, BSLOT[st%5]+16384, part, ("B", st))
    def dma_x(st, part=range(4)): dma(voffX, sAX, sTa, sOffX, st*128, sM4, XSLOT[st%4], part, ("X", st))
    def dma_qw(st, part=range(2)): dma(voffQW, sWQ, sTw, sOffQW, st*64*8192, sM2, QSLOT[st%2], part, ("Q", st))
    dma_w(0); dma_act(0)
    P("s_barrier")
    dma_w(1)
    P(f"s_and_b32 {s(sT)}, {s(sWV)}, 1"); P(f"s_lshl_b32 {s(sT2)}, {s(sT)}, 14")
    vW16, vKVo = 16, 43
    if K16:
        for ks in range(2): act_raddr16(P, vA + ks, ks, s(sT2))
        P(f"s_and_b32 {s(sT)}, {s(sWV)}, 6"); P(f"s_lshl_b32 {s(sT)}, {s(sT)}, 1")
        for cb in range(4):
            P(f"s_add_u32 {s(sT2)}, {s(sT)}, {cb}")
            w_raddr16(P, vW16 + cb, s(sT2), 9, 98304)
    else:
        for ks in range(4): act_raddr(P, vA + ks, ks, s(sT2))
        P(f"s_and_b32 {s(sT)}, {s(sWV)}, 6")
        for cb in range(2):
            P(f"s_add_u32 {s(sT2)}, {s(sT)}, {cb}")
            w_raddr(P, vW + cb, s(sT2), 9, 98304)
    dma_act(1)
    def record(fn):
        nonlocal P
        PM = P; P = Prog(); P.auto = False
        fn()
        txt = [i.text for i in P.ins]; P = PM
        ch = []
        for x in txt:
            if x.startswith("s_cselect") or x.startswith("s_addc"): ch[-1].append(x)
            else: ch.append([x])
        return ch
    sCB, sTB = 64, 65
    def setup1():
        for ks in range(2 if K16 else 4): P(f"v_add_u32 {v(vA2+ks)}, 0x10000, {v(vA+ks)}")
        if K16:
            bfe(P, T0, 5, 1); bfe(P, T1, 4, 1); P(f"v_lshlrev_b32 {v(T1)}, 9, {v(T1)}"); P(f"v_lshl_add_u32 {v(T0)}, {v(T0)}, 10, {v(T1)}")
            bfe(P, T1, 0, 4); P(f"v_lshl_add_u32 {v(vKVo)}, {v(T1)}, 4, {v(T0)}")
        if WSB:
            P(f"s_add_u32 {s(sWS)}, s86, {WSB}"); P.ins[-1].text += " ; +carry"; P(f"s_addc_u32 {s(sWS+1)}, s87, 0")
            P(f"s_mov_b32 {s(sWS+2)}, {SZ['ws'] - WSB}"); P(f"s_mov_b32 {s(sWS+3)}, 0x20000")
        else: make_srd(P, sWS, 86, SZ["ws"])
        make_srd(P, sBX, 76, SZ["B_x"]); make_srd(P, sBW, 78, SZ["B_wqkv"])
        make_srd(P, sAX, 64, SZ["A_x"]); make_srd(P, sWQ, 68, SZ["A_wq"]); make_srd(P, sWO, 74, SZ["A_wo"])
        make_srd(P, sBWO, 80, SZ["B_wo"]); make_srd(P, sOUT, 82, SZ["out"]); make_srd(P, sDBG, 84, SZ["dbg"])
        P.raw("; NONCE")
        P(f"s_min_u32 {s(sT)}, {s(sJ)}, 29"); P(f"s_and_b32 {s(sT2)}, {s(sX)}, 1"); P(f"s_mul_i32 {s(sT2)}, {s(sT2)}, 30"); P(f"s_add_u32 {s(sT)}, {s(sT)}, {s(sT2)}")
        P(f"s_lshr_b32 {s(sCB)}, {s(sT)}, 2"); P(f"s_and_b32 {s(sTB)}, {s(sT)}, 3")
        P(f"s_lshr_b32 {s(sT2)}, {s(sX)}, 1"); P(f"s_lshl_b32 {s(sT2)}, {s(sT2)}, 2"); P(f"s_add_u32 {s(sTB)}, {s(sTB)}, {s(sT2)}")
        P(f"s_lshl_b32 {s(sT)}, {s(sTB)}, 3"); P(f"s_add_u32 {s(sT)}, {s(sT)}, {s(sWV)}"); P(f"s_mul_i32 {s(sOffBA)}, {s(sT)}, {16*1280}")
        P(f"s_mul_i32 {s(sOffBW)}, {s(sWV)}, {8*3840}"); P(f"s_lshl_b32 {s(sT)}, {s(sCB)}, 8"); P(f"s_add_u32 {s(sOffBW)}, {s(sOffBW)}, {s(sT)}")
        P(f"s_and_b32 {s(sT2)}, {s(sWV)}, 1"); P(f"s_lshl_b32 {s(sT)}, {s(sTB)}, 1"); P(f"s_add_u32 {s(sT)}, {s(sT)}, {s(sT2)}"); P(f"s_mul_i32 {s(sOutB)}, {s(sT)}, {2*120*1024}")
        P(f"s_lshr_b32 {s(sT2)}, {s(sWV)}, 1"); P(f"s_lshl_b32 {s(sT)}, {s(sCB)}, 2"); P(f"s_add_u32 {s(sT)}, {s(sT)}, {s(sT2)}"); P(f"s_lshl_b32 {s(sT)}, {s(sT)}, 11")
        P(f"s_add_u32 {s(sOutB)}, {s(sOutB)}, {s(sT)}"); P(f"s_add_u32 {s(sOutB)}, {s(sOutB)}, {QKV}")
        P(f"s_lshl_b32 {s(sFQ)}, {s(sTB)}, 7"); P(f"s_lshl_b32 {s(sT)}, {s(sCB)}, 3"); P(f"s_add_u32 {s(sFQ)}, {s(sFQ)}, {s(sT)}"); P(f"s_add_u32 {s(sFQ)}, {s(sFQ)}, {FQ}")
        P(f"s_lshl_b32 {s(sFK)}, {s(sH0)}, 6"); P(f"s_lshr_b32 {s(sT2)}, {s(sNT)}, 1"); P(f"s_lshl_b32 {s(sT2)}, {s(sT2)}, 3"); P(f"s_add_u32 {s(sT2)}, {s(sT2)}, {s(sMT)}")
        P(f"s_lshl_b32 {s(sT2)}, {s(sT2)}, 3"); P(f"s_add_u32 {s(sFK)}, {s(sFK)}, {s(sT2)}"); P(f"s_add_u32 {s(sFK)}, {s(sFK)}, {FK}")
        P(f"s_lshr_b32 {s(sT2)}, {s(sWV)}, 2"); P(f"s_add_u32 {s(sT)}, {s(sH0)}, {s(sT2)}"); P(f"s_lshl_b32 {s(sOutKV)}, {s(sT)}, 19")
        P(f"s_lshl_b32 {s(sT)}, {s(sMT)}, 16"); P(f"s_add_u32 {s(sOutKV)}, {s(sOutKV)}, {s(sT)}")
        P(f"s_and_b32 {s(sT)}, {s(sWV)}, 1"); P(f"s_lshl_b32 {s(sT)}, {s(sT)}, 15"); P(f"s_add_u32 {s(sOutKV)}, {s(sOutKV)}, {s(sT)}")
        P(f"s_and_b32 {s(sT)}, {s(sWV)}, 2"); P(f"s_lshl_b32 {s(sT)}, {s(sT)}, 11"); P(f"s_add_u32 {s(sOutKV)}, {s(sOutKV)}, {s(sT)}")
        P(f"s_lshr_b32 {s(sT)}, {s(sNT)}, 1"); P(f"s_lshl_b32 {s(sT)}, {s(sT)}, 24"); P(f"s_add_u32 {s(sOutKV)}, {s(sOutKV)}, {s(sT)}")
        P(f"s_and_b32 {s(sH)}, {s(sJ)}, 3"); P(f"s_lshl_b32 {s(sT)}, {s(sX)}, 2"); P(f"s_add_u32 {s(sH)}, {s(sH)}, {s(sT)}")
        P(f"s_lshr_b32 {s(sG)}, {s(sJ)}, 2")
        P(f"s_lshl_b32 {s(sT)}, {s(sG)}, 2"); P(f"s_add_u32 {s(sT)}, {s(sT)}, {s(sWV)}")
        P(f"s_sub_u32 {s(sT2)}, 63, {s(sT)}"); P(f"s_sub_u32 {s(sT)}, {s(sT)}, 4")
        P(f"s_cmp_lt_u32 {s(sWV)}, 4"); P(f"s_cselect_b32 {s(sJL)}, {s(sT2)}, {s(sT)}")
        P(f"s_lshl_b32 {s(sRow0)}, {s(sJL)}, 5")
        P(f"s_mul_i32 {s(sOffX)}, {s(sRow0)}, 1280")
        P(f"s_mul_i32 {s(sOffX2)}, {s(sT)}, {32*1280}"); P(f"s_add_u32 {s(sOffX2)}, {s(sOffX2)}, {4*32*1280}")
        P(f"s_lshl_b32 {s(sOffQW)}, {s(sH)}, 8"); P(f"s_lshl_b32 {s(sT)}, {s(sWV)}, 16"); P(f"s_add_u32 {s(sOffQW)}, {s(sOffQW)}, {s(sT)}")
        for i in range(2): act_voff(P, voffBA + i, i, 1280)
        for i in range(2): w256_voff(P, voffBW + i, i, 3840)
        P(f"s_and_b32 {s(sT)}, {s(sWV)}, 1"); P(f"s_lshl_b32 {s(sT)}, {s(sT)}, 13")
        for ks in range(4): act_raddr(P, vBA + ks, ks, s(sT))
        P(f"s_lshr_b32 {s(sT2)}, {s(sWV)}, 1")
        w_raddr(P, vBW, s(sT2), 8, 16384)
    def setup2():
        for i in range(4): act_voff(P, voffX + i, i, 1280)
        for i in range(2): w256_voff(P, voffQW + i, i, 8192)
        P(f"s_lshr_b32 {s(sT)}, {s(sWV)}, 2"); P(f"s_lshl_b32 {s(sT)}, {s(sT)}, 1")
        for cb in range(2):
            P(f"s_add_u32 {s(sT2)}, {s(sT)}, {cb}")
            w_raddr(P, vQWr + cb, s(sT2), 8, 98304)
        P(f"s_xor_b32 {s(sT)}, {s(sM4)}, 0x4000")
        for ks in range(4):
            act_raddr(P, vXr + ks, ks, s(sM4))
            P(f"v_add_u32 {v(vXr+4+ks)}, {s(sT)}, {v(T0)}")
    ch1, ch2 = record(setup1), record(setup2)
    chunks = []
    lab_id = [0]
    def nonce():
        lab_id[0] += 1; lab = f"{name}_nonon{lab_id[0]}"
        P(f"s_lshl_b32 {s(sT)}, s2, 3"); P(f"s_add_u32 {s(sT)}, {s(sT)}, {s(sWV)}")
        P(f"s_cmp_lg_u32 {s(sT)}, 4"); P(f"s_cbranch_scc1 {lab}")
        P.raw(f"s_memrealtime {s(sNON,2)}"); P("s_waitcnt lgkmcnt(0)")
        P(f"s_or_b32 {s(sNON)}, {s(sNON)}, 1")
        P(f"v_mov_b32 v4, {s(sNON)}"); P(f"v_mov_b32 v5, {s(sNON+1)}"); P("v_mov_b32 v8, 0")
        P("s_mov_b64 exec, 1")
        P.raw(f"buffer_store_dwordx2 v[4:5], v8, {s(sDBG,4)}, 0 offen sc1")
        P("s_mov_b64 exec, -1")
        P.label(lab)
    def nonce_get():
        lab_id[0] += 1; lab = f"{name}_nget{lab_id[0]}"
        P(f"v_readfirstlane_b32 {s(sNON)}, v8"); P(f"v_readfirstlane_b32 {s(sNON+1)}, v9")
        P(f"s_cmp_lg_u32 {s(sNON)}, 0"); P(f"s_cbranch_scc1 {lab}_ok")
        P.raw(f"s_mov_b32 {s(sT2)}, {int(os.environ.get('POLLMAX', '0x40000'), 0)}")
        P.label(lab)
        P.raw(f"buffer_load_dwordx2 {v(8,2)}, {v(T3)}, {s(sDBG,4)}, 0 offen sc1"); P.raw("s_waitcnt vmcnt(0)")
        P.raw(f"v_readfirstlane_b32 {s(sNON)}, v8"); P.raw(f"v_readfirstlane_b32 {s(sNON+1)}, v9")
        P.raw(f"s_sub_u32 {s(sT2)}, {s(sT2)}, 1"); P.raw(f"s_cbranch_scc1 {lab}_ok")
        P.raw(f"s_cmp_eq_u32 {s(sNON)}, 0"); P.raw(f"s_cbranch_scc1 {lab}")
        P.label(lab + "_ok")
    def emit_chunks(n):
        for _ in range(n):
            if not chunks: return
            c = chunks.pop(0)
            if c[0] == "; NONCE":
                st = P.state(); nonce(); P.set_state(st)
            else:
                for x in c: P(x)
    def publish(sreg, lab):
        P(f"s_cmp_lg_u32 {s(sWV)}, 4"); P(f"s_cbranch_scc1 {lab}")
        P(f"v_mov_b32 v114, {s(sNON)}"); P(f"v_mov_b32 v115, {s(sNON+1)}"); P(f"v_mov_b32 v116, 0")
        P("s_mov_b64 exec, 1")
        for r in (sreg if isinstance(sreg, list) else [sreg]):
            P.raw(f"buffer_store_dwordx2 v[114:115], v116, {s(sWS,4)}, {s(r)} offen sc1")
        P("s_mov_b64 exec, -1")
        P.label(lab)
    def pf(srd, idx_kind, mul, add, xmul=0):
        def one(delta):
            if idx_kind == "xcd": P(f"s_lshl_b32 {s(sPF)}, {s(sJ)}, 3")
            else: P(f"s_lshl_b32 {s(sPF)}, s2, 3")
            P(f"s_add_u32 {s(sPF)}, {s(sPF)}, {s(sWV)}")
            if delta: P(f"s_sub_u32 {s(sPF)}, {s(sPF)}, {delta}")
            P(f"s_mul_i32 {s(sPF)}, {s(sPF)}, {mul}")
            if callable(add): add()
            elif add: P(f"s_add_u32 {s(sPF)}, {s(sPF)}, {add}")
            P.raw(f"buffer_load_dwordx4 {v(vPF,4)}, {v(vL16)}, {s(srd,4)}, {s(sPF)} offen {NTP.get(srd, '')}")
        if HIDMA == 2: as_lo(lambda: (guard(False, lambda: (one(0), one(4))), P.vq.extend([(set(), "pf")]*2)))
        elif HIDMA: guard(False, lambda: (one(0), one(4)), sim=False)
        else: one(0); P.vq.append((set(), "pf"))
    def addx(shift, mul, const):
        def f():
            if shift == "lo": P(f"s_and_b32 {s(7)}, {s(sX)}, 1")
            else: P(f"s_lshr_b32 {s(7)}, {s(sX)}, {shift}")
            P(f"s_mul_i32 {s(7)}, {s(7)}, {mul}"); P(f"s_add_u32 {s(sPF)}, {s(sPF)}, {s(7)}")
            if const: P(f"s_add_u32 {s(sPF)}, {s(sPF)}, {const}")
        return f
    pf_xm = [lambda i=i: pf(sAX, "chip", 1280, i*1024) for i in range(2)]
    pf_xl = [lambda i=i: pf(sAX, "xcd", 10240, i*1024) for i in range(10)]
    pf_wq = [lambda i=i: pf(sWQ, "xcd", 3*8192, addx(0, 1024, i*8192)) for i in range(3)]
    pf_bx = [lambda i=i: pf(sBX, "xcd", 2560, addx(1, 512*1280, i*1024)) for i in range(3)]
    pf_bw = [lambda i=i, c=c: pf(sBW, "xcd", 3*3840, addx("lo", 1792, i*3840 + c*1024)) for i in range(3) for c in range(2)]
    pf_wo = [lambda i=i: pf(sWO, "chip", 2560, i*1024) for i in range(3)] + [lambda: pf(sBWO, "chip", 1024, 0)]
    def pf_tlb():
        def f():
            P(f"v_lshrrev_b32 {v(vPF)}, 4, {v(vL16)}"); P(f"v_mul_u32_u24 {v(vPF+1)}, {int(os.environ.get('TLBS', '0x180000'), 0)}, {v(vPF)}")
            P.raw(f"buffer_load_dword {v(vPF+2)}, {v(vPF+1)}, {s(sWS,4)}, 0 offen")
            P(f"v_lshlrev_b32 {v(vPF+1)}, 17, {v(vPF)}")
            P.raw(f"buffer_load_dword {v(vPF+2)}, {v(vPF+1)}, {s(sOUT,4)}, 0 offen")
        gid[0] += 1; lab = f"{name}_g{gid[0]}"
        P(f"s_cmp_lg_u32 {s(sWV)}, 7"); P(f"s_cbranch_scc1 {lab}"); f(); P.label(lab)
    def pf_w(i):
        def f():
            if i == 0:
                bfe(P, T0, 5, 1); bfe(P, T1, 0, 5); P(f"v_lshlrev_b32 {v(T1)}, 4, {v(T1)}"); P(f"v_lshl_add_u32 v42, {v(T0)}, 13, {v(T1)}")
            P(f"s_lshl_b32 {s(sPF)}, {s(sMT)}, 16"); P(f"s_lshl_b32 s7, {s(sWV)}, 14"); P(f"s_add_u32 {s(sPF)}, {s(sPF)}, s7")
            P(f"s_lshl_b32 s7, {s(sH0)}, 8"); P(f"s_add_u32 {s(sPF)}, {s(sPF)}, s7"); P(f"s_add_u32 {s(sPF)}, {s(sPF)}, {(i*64*8192 - (4 << 14)) & 0xffffffff}")
            P.raw(f"buffer_load_dwordx4 {v(vPF,4)}, v42, {s(sWKV,4)}, {s(sPF)} offen {NTP.get(sWKV, '')}")
        guard(False, f, sim=False)
    pf_k = [lambda: pf(sCKV, "chip", 1024, 0)] + [lambda i=i: pf_w(i) for i in range(8)]
    def pf_code():
        gid[0] += 1; lab = f"{name}_pc{gid[0]}"
        P.raw("s_getpc_b64 s[90:91]")
        P.label(lab)
        P("s_and_b32 s90, s90, 0xffffff80")
        P(f"s_lshl_b32 {s(sPF)}, {s(sJ)}, 3"); P(f"s_add_u32 {s(sPF)}, {s(sPF)}, {s(sWV)}"); P(f"s_lshl_b32 {s(sPF)}, {s(sPF)}, 10")
        P.raw(f"s_min_u32 {s(sPF)}, {s(sPF)}, ({name}_end-{lab}-1024)&0xffffff80")
        P(f"v_add_u32 v9, {s(sPF)}, {v(vL16)}")
        P.raw(f"global_load_dwordx4 {v(vPF,4)}, v9, s[90:91]"); P.vq.append((set(), "pf")); loq.append((set(), "pf"))
    PFS = {"c": [pf_code], "k": pf_k, "t": [pf_tlb], "o": pf_wo, "m": pf_xm, "x": pf_xl, "q": pf_wq, "b": pf_bx + pf_bw}
    pf_sched = {}
    for item in os.environ.get("PFS", "c6,b10,m19,q21").split(","):
        if item:
            for i, f in enumerate(PFS[item[0]]): pf_sched.setdefault(int(item[1:]) + i, []).append(f)

    for f in pf_k[:int(os.environ.get("PFK0", "0"))]: f()
    ACC = 64; FR = [192, 216]
    def fA(set_, tb): return FR[set_] + 4*tb
    def fW(set_, cb): return FR[set_] + 16 + 4*cb
    def reads(q):
        st, ks = q // 4, q % 4; h, kh = q // 2, q % 2; se = q % 2
        sl = st % 3
        def rA(tb):
            base = vA2 if sl == 2 else vA; off = (ASLOT[sl] if sl < 2 else 0) + tb*4096
            return f"ds_read_b128 {v(fA(se,tb),4)}, {v(base+ks)} offset:{off}"
        def rW(cb, i):
            return f"ds_read_b64_tr_b16 {v(fW(se,cb)+2*i,2)}, {v(vW+cb)} offset:{(h%4)*16384 + (16*kh+4*i)*512}"
        return [rW(0,0), rW(0,1), rA(0), rW(1,0), rW(1,1), rA(1), rA(2), rA(3)]
    def kv16():
        WF = [192, 208]; AF = 224
        def rA(h, tb):
            st = h // 2; sl = st % 3
            base = vA2 if sl == 2 else vA; off = (ASLOT[sl] if sl < 2 else 0) + tb*2048
            return f"ds_read_b128 {v(AF + 4*(tb%4),4)}, {v(base + h%2)} offset:{off}"
        def rW(h, cb, i): return f"ds_read_b64_tr_b16 {v(WF[h%2]+4*cb+2*i,2)}, {v(vW16+cb)} offset:{(h%4)*16384 + 4*i*512}"
        nonlocal loq
        wait2(lambda t: t in (("A", 0), ("W", 0))); P("s_barrier")
        SP()
        for cb in range(4):
            for i in range(2): P(rW(0, cb, i))
            if cb < 3: P(rA(0, cb))
        st0 = P.state(); lo0 = list(loq)
        P(f"s_cmp_ge_u32 {s(sNT)}, 2"); P(f"s_cbranch_scc1 {name}_V")
        for isV in (0, 1):
            if isV: P.label(f"{name}_V"); P.set_state(st0); loq = list(lo0)
            chunks[:] = list(ch1)
            for h in range(16):
                for tb in range(8):
                    mf = []
                    for cb in range(4):
                        n = (tb//2)*4 + cb if isV else (tb//2)*4 + (cb//2)*2 + tb%2
                        d = v(ACC + 8*n + 4*(tb%2 if isV else cb%2), 4)
                        x, y = (AF + 4*(tb%4), WF[h%2] + 4*cb) if isV else (WF[h%2] + 4*cb, AF + 4*(tb%4))
                        mf.append(f"v_mfma_f32_16x16x32_bf16 {d}, {v(x,4)}, {v(y,4)}, {'0' if h == 0 else d}")
                    fill = []
                    if tb == 5:
                        def sync(h=h):
                            if h < 15: wait2(lambda t: t == ("W", h+1) or t == ("A", (h+1)//2))
                            else: wait2(lambda t: t == ("B", 0))
                            P.wait_lds_all(); P("s_barrier")
                        for _ in range(int(os.environ.get("SYP", "0"))): fill.append(lambda: None)
                        fill.append(sync)
                    if tb + 3 < 8: fill.append(rA(h, tb + 3))
                    elif h < 15: fill.append(rA(h + 1, tb + 3 - 8))
                    if h < 15 and tb >= 5:
                        allw = [(cb, i) for cb in range(4) for i in range(2)]
                        cut = [int(c) for c in os.environ.get("WCUT", "36")]
                        for cb, i in [allw[:cut[0]], allw[cut[0]:cut[1]], allw[cut[1]:]][tb - 5]: fill.append(rW(h + 1, cb, i))
                    hp = h if tb >= 5 else h - 1
                    if h == 0 and tb == 0: fill.append(lambda: dma_w(2))
                    if h == 0 and tb == 2: fill.append(lambda: dma_w(3))
                    if h == 0 and tb in (3, 4): fill.append(lambda tb=tb: dma_act(2, [0, 1] if tb == 3 else [2, 3]))
                    if tb == 6 and h + 4 <= 15: fill.append(lambda h=h: dma_w(h + 4))
                    if tb == 1 and hp >= 1:
                        sa = (hp + 1) // 2 + 2
                        if sa <= 7: fill.append(lambda hp=hp, sa=sa: dma_act(sa, [0, 1] if hp % 2 == 1 else [2, 3]))
                        if hp == 11: fill.append(lambda: dma_b(0, 0))
                        if hp == 13: fill.append(lambda: dma_b(1, 0))
                        if hp == 14: fill.append(lambda: dma_b(2, 1))
                    if tb == 6 and h == 12: fill.append(lambda: dma_b(0, 1))
                    if tb == 6 and h == 13: pass
                    if tb == 3 and h == 14: fill.append(lambda: dma_b(1, 1))
                    if tb == 6 and h == 14: fill.append(lambda: dma_b(2, 0))
                    if h == 15 and tb >= 6: fill.append(lambda tb=tb: dma_b(tb - 3))
                    if tb in (2, 4):
                        for f in pf_sched.get(2*h + (tb == 4), []): fill.append(f)
                    if h < 3: fill.insert(0 if tb != 5 else 1, lambda: emit_chunks(5)); fill.append(lambda: emit_chunks(5))
                    interleave(P, mf, fill)
                if h == 2: assert not chunks, len(chunks)
            if not isV: P(f"s_branch {name}_J")
    if K16: kv16()
    else:
        P.wait_tag(lambda t: t in (("A", 0), ("W", 0))); P("s_barrier")
        SP()
        for r in reads(0): P(r)
        st0 = P.state()
        P(f"s_cmp_ge_u32 {s(sNT)}, 2"); P(f"s_cbranch_scc1 {name}_V")
        for isV in (0, 1):
            if isV: P.label(f"{name}_V"); P.set_state(st0)
            chunks[:] = list(ch1)
            for q in range(32):
                se = q % 2; hs = q // 2
                mf = []
                for tb in range(4):
                    for cb in range(2):
                        d = v(ACC + (tb*2+cb)*16, 16); c = "0" if q == 0 else d
                        x, y = (fA(se,tb), fW(se,cb)) if isV else (fW(se,cb), fA(se,tb))
                        if os.environ.get("KV16"):
                            for hh in range(2):
                                dd = v(ACC + (tb*2+cb)*16 + 8*(q%2) + 4*hh, 4)
                                mf.append(f"v_mfma_f32_16x16x32_bf16 {dd}, {v(x,4)}, {v(y,4)}, {'0' if q < 2 else dd}")
                        else: mf.append(f"v_mfma_f32_32x32x16_bf16 {d}, {v(x,4)}, {v(y,4)}, {c}")
                fill = []
                if KVT:
                    if q % 2 == 1:
                        def sync(hs=hs):
                            if hs < 15: P.wait_tag(lambda t: t == ("W", hs+1) or t == ("A", (hs+1)//2))
                            else: P.wait_tag(lambda t: t == ("B", 0))
                            P.wait_lds_all(); P("s_barrier")
                        fill.append(sync)
                    if q < 31: fill += reads(q + 1)
                    if q == 0: fill.insert(2, lambda: dma_w(2)); fill.insert(6, lambda: dma_w(3))
                    if q == 1: fill.insert(5, lambda: dma_act(2, [0, 1])); fill.insert(9, lambda: dma_act(2, [2, 3]))
                    if q % 2 == 1:
                        if hs + 4 <= 15: fill.insert(3, lambda hs=hs: dma_w(hs + 4))
                        sa = (hs + 1) // 2 + 2
                        if hs >= 1 and sa <= 7: fill.insert(6, lambda hs=hs, sa=sa: dma_act(sa, [0,1] if hs % 2 == 1 else [2,3]))
                        if hs == 11: fill.insert(6, lambda: dma_b(0, 0))
                        if hs == 12: fill.insert(3, lambda: dma_b(0, 1))
                        if hs == 13: fill.insert(3, lambda: dma_b(1))
                        if hs == 14: fill.insert(3, lambda: dma_b(2))
                        if hs == 15: fill.append(lambda: dma_b(3)); fill.append(lambda: dma_b(4))
                else:
                    if q % 2 == 1 and q < 31:
                        def sync(hs=hs):
                            P.wait_tag(lambda t: t == ("W", hs+1) or t == ("A", (hs+1)//2))
                            P("s_barrier")
                        fill.append(sync)
                    if q < 31: fill += reads(q + 1)
                    if q == 0: fill.insert(2, lambda: dma_w(2)); fill.insert(6, lambda: dma_w(3))
                    if q == 1: fill.insert(3, lambda: dma_act(2, [0, 1])); fill.insert(7, lambda: dma_act(2, [2, 3]))
                    if q % 2 == 1:
                        if 1 <= hs <= 12: fill.insert(3, lambda hs=hs: dma_w(hs + 3))
                        sa = hs // 2 + 2
                        if hs >= 2 and sa <= 7: fill.insert(6, lambda hs=hs, sa=sa: dma_act(sa, [0,1] if hs % 2 == 0 else [2,3]))
                        if hs == 12: fill.insert(6, lambda: dma_b(0))
                        if hs == 14: fill.insert(3, lambda: dma_b(1))
                        if hs == 15: fill.insert(1, lambda: dma_b(2))
                for f in pf_sched.get(q, []): fill.insert(2, f)
                if q < 6:
                    for i in range(8): fill.insert(min(len(fill), 1 + 2*i), lambda: emit_chunks(5))
                interleave(P, mf, fill)
                if q == 5: assert not chunks, len(chunks)
            if not isV: P(f"s_branch {name}_J")
    P.label(f"{name}_J")
    dup[0] = False
    if HIDMA == 2: P.set_state(merge_states(P.state(), (P.state()[0], loq)))
    SP()
    BFR = [192 + 12*i for i in range(4)]
    BACC = 160
    BPK = 44
    def baddr(st):
        return [f"v_add_u32 {v(vBAc+ks)}, {BSLOT[st%5]}, {v(vBA+ks)}" for ks in range(4)] + [f"v_add_u32 {v(vBWc)}, {BSLOT[st%5]}, {v(vBW)}"]
    def breads(q):
        ks = q % 4; se = q % 4
        return [f"ds_read_b64_tr_b16 {v(BFR[se]+8,2)}, {v(vBWc)} offset:{(16*ks)*256}",
                f"ds_read_b64_tr_b16 {v(BFR[se]+10,2)}, {v(vBWc)} offset:{(16*ks+4)*256}",
                f"ds_read_b128 {v(BFR[se],4)}, {v(vBAc+ks)} offset:0",
                f"ds_read_b128 {v(BFR[se]+4,4)}, {v(vBAc+ks)} offset:4096"]
    def PKB(tile): return ACC + 16*tile if tile < 6 else 44 + 8*(tile - 6)
    def kvcvt(tile):
        out = [f"v_cvt_pk_bf16_f32 {v(PKB(tile)+i)}, {v(ACC+16*tile+2*i)}, {v(ACC+16*tile+2*i+1)}" for i in range(8)]
        if K16: out += [f"v_permlane32_swap_b32 {v(PKB(tile)+x)}, {v(PKB(tile)+y)}" for x, y in ((0,2),(1,3),(4,6),(5,7))]
        return out
    def kvstore(n):
        if os.environ.get("X_NOST"): return
        tb, r = n // 4, n % 4
        P(f"s_add_u32 {s(sSt)}, {s(sOutKV)}, {tb*8192}")
        P(f"buffer_store_dwordx4 {v(PKB(n//2) + 4*(n%2),4)}, {v(vKVo if K16 else vL16)}, {s(sWS,4)}, {s(sSt)} offen offset:{(r//2)*2048 + (r%2)*256 if K16 else r*1024} {'' if KVP else ST}", ("S", n))
    def bstore(n):
        tb, c = n // 2, n % 2
        P(f"s_add_u32 {s(sSt)}, {s(sOutB)}, {tb*120*1024}")
        P(f"buffer_store_dwordx4 {v(BPK+tb*8+4*c,4)}, {v(vL16)}, {s(sWS,4)}, {s(sSt)} offen offset:{c*1024} {ST}", ("S", 16+n))
    for x in baddr(0): P(x)
    if not KVT: P.wait_tag(lambda t: t == ("B", 0)); P("s_barrier")
    for r in breads(0) + breads(1): P(r)
    for x in kvcvt(6) + kvcvt(7): P(x)
    order = [6, 7, 4, 5, 0, 1, 2, 3]
    late = [lambda n=2*tl+h: kvstore(n) for tl in order for h in range(2)]
    cvts = sum([kvcvt(tl) for tl in order[2:]], [])
    SB = [int(c) for c in os.environ.get("SB", "2222222200" if KVP else "1111111111")]
    SQ = [int(c) for c in os.environ.get("SQ", "2200000000" if KVP else "2222200000")]
    PUB = int(os.environ.get("PUB", "5"))
    chunks[:] = list(ch2)
    NQ = 40
    for q in range(NQ):
        st, ks = q // 4, q % 4; se = q % 4
        mf = []
        for tb in range(2):
            d = v(BACC + tb*16, 16); c = "0" if q == 0 else d
            mf.append(f"v_mfma_f32_32x32x16_bf16 {d}, {v(BFR[se]+8,4)}, {v(BFR[se]+4*tb,4)}, {c}")
        fill = []
        if ks == 2:
            def sync(st=st):
                if st < 9: P.wait_tag(lambda t: t == ("B", st+1))
                P.wait_lds_all(); P("s_barrier")
                if st < 9:
                    for x in baddr(st+1): P(x)
            fill.append(sync)
        if q + 2 < NQ: fill += breads(q + 2)
        if q == 0 and not KVT: fill.insert(1, lambda: dma_b(3))
        if q == 1 and not KVT: fill.insert(1, lambda: dma_b(4))
        for i in range(3):
            if cvts: fill.insert(1 + i, cvts.pop(0))
        if q < 16: fill.insert(len(fill)//2, lambda: emit_chunks(4)); fill.append(lambda: emit_chunks(4))
        def bl(st):
            if st <= 4: return [lambda: dma_b(st + 5, 0), lambda: dma_b(st + 5, 1)]
            if st == 7: return [lambda: dma_qw(0), lambda: dma_qw(1)]
            xs = {5: 0, 6: 1, 8: 2, 9: 3}[st]
            return [lambda: dma_x(xs, [0, 1]), lambda: dma_x(xs, [2, 3])]
        def bl1(st):
            if st <= 4: return [lambda h=h, i=i: dma_b(st + 5, h, [i]) for h in range(2) for i in range(2)]
            if st == 7: return [lambda a=a, i=i: dma_qw(a, [i]) for a in range(2) for i in range(2)]
            xs = {5: 0, 6: 1, 8: 2, 9: 3}[st]
            return [lambda i=i: dma_x(xs, [i]) for i in range(4)]
        BSP = os.environ.get("BSP", "0")
        if BSP == "0":
            if ks >= 2: fill.append(bl(st)[ks - 2])
        elif BSP == "1":
            if ks >= 2: fill.insert(2, bl1(st)[ks - 2])
            elif st >= 1: fill.insert(2, bl1(st - 1)[ks + 2])
            if st == 9 and ks == 3: fill += bl1(9)[2:]
        elif BSP == "2":
            if ks == 2:
                for i, f in enumerate(bl1(st)): fill.insert(1 + i, f)
        if ks == int(os.environ.get("BSK", "0")):
            for _ in range(SB[st]):
                if late: fill.append(late.pop(0))
        if q == 5: fill.append(lambda: (P(f"v_mov_b32 {v(T3)}, 0"), P(f"buffer_load_dwordx2 {v(8,2)}, {v(T3)}, {s(sDBG,4)}, 0 offen sc1")))
        if q == 29: fill.append(nonce_get)
        for f in pf_sched.get(100 + q, []): fill.append(f)
        interleave(P, mf, fill)
        if q == 15: assert not chunks, len(chunks)
    SP()
    QACC = 128; QFR = [192, 208, 224]
    def xaddr(st): return [f"v_add_u32 {v(vXc+i)}, {XSLOT[st%4]}, {v(vXr+i)}" for i in range(8)]
    def qreads(q):
        st, ks = q // 4, q % 4; se = q % 3
        def w(cb, i): return f"ds_read_b64_tr_b16 {v(QFR[se]+4*cb+2*i,2)}, {v(vQWr+cb)} offset:{(st%2)*16384 + (16*ks+4*i)*256}"
        def x(r): return f"ds_read_b128 {v(QFR[se]+8+4*r,4)}, {v(vXc+4*r+ks)} offset:0"
        return [w(0,0), w(0,1), x(0), w(1,0), w(1,1), x(1)]
    for x in xaddr(0): P(x)
    if KVP: P("s_waitcnt vmcnt(0)")
    P.wait_tag(lambda t: t in (("X", 0), ("Q", 0))); P("s_barrier")
    if KVP:
        dup[0] = True
        P(f"s_cmp_lg_u32 {s(sWV)}, 4"); P(f"s_cbranch_scc1 {name}_nowb")
        P.raw("buffer_wbl2 sc1")
        if PROF and os.environ.get("WBT"): P.raw("s_memtime s[96:97]"); P.raw("s_waitcnt vmcnt(0) lgkmcnt(0)"); P.raw("s_mov_b32 s3, s96"); P.raw("s_memtime s[96:97]"); P.raw("s_waitcnt lgkmcnt(0)"); P.raw("s_sub_u32 s3, s96, s3"); P.raw(f"v_writelane_b32 {v(vSTAMP)}, s3, 23")
        P.label(f"{name}_nowb")
    for r in qreads(0) + qreads(1): P(r)
    for tb in range(2):
        for i in range(8): P(f"v_cvt_pk_bf16_f32 {v(BPK+tb*8+i)}, {v(BACC+tb*16+2*i)}, {v(BACC+tb*16+2*i+1)}")
    for tb in range(2):
        b = BPK + tb*8
        for (x, y) in ((0,2),(1,3),(4,6),(5,7)): P(f"v_permlane32_swap_b32 {v(b+x)}, {v(b+y)}")
    late += [lambda n=n: bstore(n) for n in range(4)]
    def poll(soff, nfl, lab, own_off=False):
        P(f"s_mov_b32 {s(sT2)}, {int(os.environ.get('POLLMAX', '0x40000'), 0)}")
        if not own_off: P(f"v_lshrrev_b32 {v(T3)}, 1, {v(vL16)}")
        if nfl < 64: P(f"s_mov_b64 exec, {hex((1 << nfl) - 1)}")
        P.label(lab)
        P(f"buffer_load_dwordx2 {v(246,2)}, {v(T3)}, {s(sWS,4)}, {s(soff)} offen sc1")
        P("s_waitcnt vmcnt(0)")
        for i in range(2): P(f"v_xor_b32 {v(246+i)}, {s(sNON + i)}, {v(246+i)}")
        P(f"v_or_b32 {v(246)}, {v(246)}, {v(247)}")
        P(f"v_cmp_ne_u32 vcc, 0, {v(246)}")
        P(f"s_cbranch_vccz {lab}_ok")
        P("s_sleep 4")
        P(f"s_sub_u32 {s(sT2)}, {s(sT2)}, 1"); P(f"s_cmp_lg_u32 {s(sT2)}, 0"); P(f"s_cbranch_scc1 {lab}")
        P.label(lab + "_ok")
        if nfl < 64: P("s_mov_b64 exec, -1")
    ctx = dict(P=P, SP=SP, name=name, poll=poll, publish=publish)
    import attn
    early = attn.gen_attn(dict(ctx, early_only=True))
    vEX, sQS = 9, 92
    def setup3():
        P(f"s_mov_b32 {s(sQS)}, {fbits(QSCALE)}"); P(f"s_mov_b32 {s(sQS+1)}, {fbits(QSCALE)}")
        P(f"s_add_u32 {s(sT)}, {s(sM4)}, {131072}"); P(f"v_add_u32 {v(vEX)}, {s(sT)}, {v(vL16)}")
        early.setup(P)
    chunks[:] = record(setup3)
    EREQ = int(os.environ.get('EREQ', '30')); ETRY = int(os.environ.get('ETRY', '35'))
    for q in range(40):
        st, ks = q // 4, q % 4; se = q % 3
        mf = []
        for r in range(2):
            for cb in range(2):
                d = v(QACC + (r*2+cb)*16, 16); c = "0" if q == 0 else d
                mf.append(f"v_mfma_f32_32x32x16_bf16 {d}, {v(QFR[se]+4*cb,4)}, {v(QFR[se]+8+4*r,4)}, {c}")
        fill = []
        if ks == 2:
            def sync(st=st):
                if st < 9: P.wait_tag(lambda t: t in (("X", st+1), ("Q", st+1)))
                if st == PUB and KVP: guard(False, lambda: P.raw("s_waitcnt vmcnt(0)"))
                if st == PUB: P.wait_tag(lambda t: t is not None and t[0] == "S")
                P.wait_lds_all()
                if st < 9 or st == PUB: P("s_barrier")
                if st == PUB: publish([sFK, sFQ], f"{name}_pubk")
                if st < 9:
                    for x in xaddr(st+1): P(x)
            fill.append(sync)
        if q + 2 < 40: fill += qreads(q + 2)
        vm = []
        if ks == 2 and st + 2 <= 9: vm += [lambda i=i, st=st: dma_qw(st + 2, [i]) for i in range(2)]
        if ks in (3, 0):
            s0 = st if ks == 3 else st - 1
            if s0 >= 0 and s0 + 4 <= 9: vm += [lambda i=i, s0=s0: dma_x(s0 + 4, [i]) for i in ([0, 1] if ks == 3 else [2, 3])]
        if ks == SQK:
            for _ in range(SQ[st]):
                if late: vm.append(late.pop(0))
        if 22 <= q < 34: fill.insert(2, lambda: emit_chunks(5)); fill.append(lambda: emit_chunks(5))
        if q == 34: assert not chunks, len(chunks)
        WOQ = int(os.environ.get("WOQ", "34"))
        if early.wo and WOQ <= q < WOQ + 6: vm.append(lambda i=q-WOQ: early.wo(i))
        if q == EREQ: vm.append(early.req)
        if q == ETRY: vm.append(early.try_); eops = early.ops()
        if q > ETRY:
            n = -(-len(eops) // (40 - q))
            vm += eops[:n]; eops = eops[n:]
        base = 1 if ks == 2 else 0
        stp = 3 if len(vm) <= 3 else 2
        for i, x in enumerate(vm): fill.insert(min(len(fill), base + 1 + i * stp), x)
        interleave(P, mf, fill)
    assert not late
    SP()
    early()
    SND = 96
    for i in range(32, 64, 2): P(f"v_pk_mul_f32 {v(QACC+i,2)}, {v(QACC+i,2)}, {s(sQS,2)}")
    for i in range(16): P(f"v_cvt_pk_bf16_f32 {v(SND+i)}, {v(QACC+32+2*i)}, {v(QACC+32+2*i+1)}")
    for i in range(4): P(f"ds_write_b128 {v(vEX)}, {v(SND+4*i,4)} offset:{i*1024}")
    for i in range(0, 32, 2): P(f"v_pk_mul_f32 {v(QACC+i,2)}, {v(QACC+i,2)}, {s(sQS,2)}")
    P(f"v_xor_b32 {v(vEX)}, 0x4000, {v(vEX)}")
    P("s_waitcnt lgkmcnt(0)"); P("s_barrier")
    for i in range(4): P(f"ds_read_b128 {v(16+4*i,4)}, {v(vEX)} offset:{i*1024}")
    for i in range(16): P(f"v_cvt_pk_bf16_f32 {v(i)}, {v(QACC+2*i)}, {v(QACC+2*i+1)}")
    attn.gen_attn(ctx)
    P.label("L_stop")
    SP(idx=13); SP(True); SP.flush()
    P.label(f"{name}_end"); P("s_endpgm")
    return kernel_desc(name, 256, sgpr=100)
```

```python
from fused import *
E = os.environ.get
DECW = 131072 + 4*7424 + 1024
XBF = int(E('XBF', '1')); NX = 5 if XBF else 10
XB = 72*MB
FX = 70*MB + 49152

def wof_prefetch(P):
    if E("WPF", "0") == "0": return
    P(f"s_lshl_b32 {s(sT)}, {s(sJ)}, 2"); P(f"s_add_u32 {s(sT)}, {s(sT)}, {s(sWV)}"); P(f"s_sub_u32 {s(sT)}, {s(sT)}, 4")
    P(f"s_lshr_b32 {s(sT2)}, {s(sT)}, 4"); P(f"s_mul_i32 {s(sT2)}, {s(sT2)}, {128*5120}")
    P(f"s_and_b32 {s(sT)}, {s(sT)}, 15"); P(f"s_mul_i32 {s(sT)}, {s(sT)}, 10240"); P(f"s_add_u32 {s(sT)}, {s(sT)}, {s(sT2)}")
    P(f"s_lshr_b32 {s(sT2)}, {s(sX)}, 1"); P(f"s_mul_i32 {s(sT2)}, {s(sT2)}, {32*5120}"); P(f"s_add_u32 {s(sT)}, {s(sT)}, {s(sT2)}")
    P(f"s_add_u32 {s(sT)}, {s(sT)}, {WOF}")
    for i in range(10):
        P.raw(f"buffer_load_dwordx4 v[16:19], {v(vL16)}, {s(sWS,4)}, {s(sT)} offen offset:{(i%4)*1024} {LD}"); P.vq.append((set(parse_reg("v[16:19]")), "pf"))
        if i % 4 == 3: P(f"s_add_u32 {s(sT)}, {s(sT)}, 4096")

def fc_request(P, vr):
    P(f"s_and_b32 {s(sT)}, {s(sX)}, 1"); P(f"s_lshl_b32 {s(sT2)}, {s(sG)}, 1"); P(f"s_add_u32 {s(sT)}, {s(sT)}, {s(sT2)}"); P(f"s_lshl_b32 {s(sT)}, {s(sT)}, 10")
    P(f"s_lshr_b32 {s(sT2)}, {s(sX)}, 1"); P(f"s_lshl_b32 {s(sT2)}, {s(sT2)}, 6"); P(f"s_add_u32 {s(sT)}, {s(sT)}, {s(sT2)}"); P(f"s_add_u32 {s(sT)}, {s(sT)}, {FC}")
    bfe(P, T0, 3, 2); bfe(P, T1, 0, 3); P(f"v_lshlrev_b32 {v(T1)}, 3, {v(T1)}"); P(f"v_lshl_add_u32 {v(T0)}, {v(T0)}, 8, {v(T1)}")
    P(f"buffer_load_dwordx2 {v(vr,2)}, {v(T0)}, {s(sWS,4)}, {s(sT)} offen sc1")

def l2_warm(P, name):
    NW, NC = int(E("L2WN", "10")), int(E("L2CN", "16"))
    st = P.state()
    for i in range(16): P(f"v_xor_b32 {v(8 + i%2)}, {s(sNON + i%2)}, {v(16+i)}") if i < 2 else (P(f"v_xor_b32 v10, {s(sNON + i%2)}, {v(16+i)}"), P(f"v_or_b32 v8, v8, v10"))
    P("v_or_b32 v8, v8, v9"); P("v_cmp_ne_u32 vcc, 0, v8"); P(f"s_cbranch_vccnz {name}_now")
    P(f"s_lshl_b32 {s(sT)}, {s(sJ)}, 2"); P(f"s_add_u32 {s(sT)}, {s(sT)}, {s(sWV)}"); P(f"s_sub_u32 {s(sT)}, {s(sT)}, 4")
    P(f"s_lshr_b32 {s(sT2)}, {s(sT)}, 4"); P(f"s_mul_i32 {s(sT2)}, {s(sT2)}, {128*5120}")
    P(f"s_and_b32 {s(sT)}, {s(sT)}, 15"); P(f"s_mul_i32 {s(sT)}, {s(sT)}, 10240"); P(f"s_add_u32 {s(sT)}, {s(sT)}, {s(sT2)}")
    P(f"s_lshr_b32 {s(sT2)}, {s(sX)}, 1"); P(f"s_mul_i32 {s(sT2)}, {s(sT2)}, {32*5120}"); P(f"s_add_u32 {s(sT)}, {s(sT)}, {s(sT2)}")
    P(f"s_add_u32 {s(sT)}, {s(sT)}, {WOF}")
    for i in range(NW):
        P.raw(f"buffer_load_dwordx4 v[12:15], {v(vL16)}, {s(sWS,4)}, {s(sT)} offen offset:{(i%4)*1024} {LD}")
        if i % 4 == 3: P(f"s_add_u32 {s(sT)}, {s(sT)}, 4096")
    P.label(f"{name}_now")
    P(f"v_xor_b32 v4, {s(sNON)}, v4"); P(f"v_xor_b32 v5, {s(sNON+1)}, v5"); P("v_or_b32 v4, v4, v5")
    P("v_cmp_ne_u32 vcc, 0, v4"); P(f"s_cbranch_vccnz {name}_noc")
    P(f"s_and_b32 {s(sT)}, {s(sX)}, 1"); P(f"s_lshl_b32 {s(sT2)}, {s(sG)}, 1"); P(f"s_add_u32 {s(sT)}, {s(sT)}, {s(sT2)}"); P(f"s_lshl_b32 {s(sT)}, {s(sT)}, 20")
    P(f"s_lshr_b32 {s(sT2)}, {s(sX)}, 1"); P(f"s_lshl_b32 {s(sT2)}, {s(sT2)}, 17"); P(f"s_add_u32 {s(sT)}, {s(sT)}, {s(sT2)}")
    P(f"s_bfe_u32 {s(sT2)}, {s(sJ)}, 0x10001"); P(f"s_lshl_b32 {s(sT2)}, {s(sT2)}, 19"); P(f"s_add_u32 {s(sT)}, {s(sT)}, {s(sT2)}")
    P(f"s_and_b32 {s(sT2)}, {s(sJ)}, 1"); P(f"s_lshl_b32 {s(sT2)}, {s(sT2)}, 16"); P(f"s_add_u32 {s(sT)}, {s(sT)}, {s(sT2)}")
    P(f"s_and_b32 {s(sT2)}, {s(sWV)}, 3"); P(f"s_lshl_b32 {s(sT2)}, {s(sT2)}, 14"); P(f"s_add_u32 {s(sT)}, {s(sT)}, {s(sT2)}")
    P(f"s_add_u32 {s(sT)}, {s(sT)}, {CTX}")
    for i in range(NC):
        P.raw(f"buffer_load_dwordx4 v[12:15], {v(vL16)}, {s(sWS,4)}, {s(sT)} offen offset:{(i%4)*1024} {LD}")
        if i % 4 == 3: P(f"s_add_u32 {s(sT)}, {s(sT)}, 4096")
    P.label(f"{name}_noc")
    P.set_state(st)

def gen_out(ctx):
    P, SP, name = ctx["P"], ctx["SP"], ctx["name"]
    NS = 4
    CS = [i*16384 for i in range(NS)]; WS_ = [65536 + i*20480 for i in range(NS)]
    ACC, ACB, FRG, RCV = 0, 40, 52, 112
    vRC, vRW, vOut, vRCb, vRWb = 232, 233, 235, 236, 237
    sSrc, sTile, sM0 = sU0, sU2, sU1
    sQB, sCK, sR, sGrp, sSrcB, sTileB, sXo = sDOff, sDIdx, sDLim, sDBase, sSlot, sDM0, sSt
    NA, NB = 16, 5
    N = NA + NB
    P(f"s_lshr_b32 {s(sR)}, {s(sX)}, 1")
    if E("QMAP", "1") == "1":
        P(f"s_and_b32 {s(sQB)}, {s(sX)}, 1"); P(f"s_lshl_b32 {s(sT)}, {s(sG)}, 1"); P(f"s_add_u32 {s(sQB)}, {s(sQB)}, {s(sT)}")
        P(f"s_and_b32 {s(sCK)}, {s(sJ)}, 3")
    else:
        P(f"s_and_b32 {s(sQB)}, {s(sX)}, 1"); P(f"s_lshl_b32 {s(sQB)}, {s(sQB)}, 3"); P(f"s_and_b32 {s(sT)}, {s(sJ)}, 7"); P(f"s_add_u32 {s(sQB)}, {s(sQB)}, {s(sT)}")
        P(f"s_lshr_b32 {s(sCK)}, {s(sJ)}, 3")
    P(f"s_lshl_b32 {s(sGrp)}, {s(sQB)}, 2"); P(f"s_add_u32 {s(sGrp)}, {s(sGrp)}, {s(sCK)}")
    P(f"s_and_b32 {s(sT)}, {s(sWV)}, 2"); P(f"s_lshl_b32 {s(sT)}, {s(sT)}, 12"); P(f"s_and_b32 {s(sT2)}, {s(sWV)}, 1"); P(f"s_lshl_b32 {s(sT2)}, {s(sT2)}, 11")
    P(f"s_add_u32 {s(sT)}, {s(sT)}, {s(sT2)}"); P(f"v_add_u32 {v(vRC)}, {s(sT)}, {v(vL16)}")
    P(f"s_lshr_b32 {s(sT2)}, {s(sWV)}, 2"); P(f"s_mul_i32 {s(sT)}, {s(sT2)}, 10240"); P(f"s_add_u32 {s(sT)}, {s(sT)}, 65536"); P(f"v_add_u32 {v(vRW)}, {s(sT)}, {v(vL16)}")
    P(f"v_add_u32 {v(vRW+1)}, 40960, {v(vRW)}")
    P(f"s_mul_i32 {s(sT)}, {s(sT2)}, 3072"); P(f"s_add_u32 {s(sT)}, {s(sT)}, 65536"); P(f"v_add_u32 {v(vRWb)}, {s(sT)}, {v(vL16)}")
    P(f"v_add_u32 {v(vRWb+1)}, 40960, {v(vRWb)}")
    P(f"s_and_b32 {s(sT)}, {s(sWV)}, 3"); P(f"s_lshl_b32 {s(sT2)}, {s(sT)}, 10"); P(f"v_add_u32 {v(vRCb)}, {s(sT2)}, {v(vL16)}")
    bfe(P, T0, 0, 4); P(f"v_mul_u32_u24 {v(T0)}, 2560, {v(T0)}"); bfe(P, T1, 4, 2); P(f"v_lshl_add_u32 {v(vOut)}, {v(T1)}, 3, {v(T0)}")
    P(f"s_lshl_b32 {s(sTile)}, {s(sQB)}, 2"); P(f"s_add_u32 {s(sTile)}, {s(sTile)}, {s(sR)}"); P(f"s_mul_i32 {s(sTile)}, {s(sTile)}, {32*2560}")
    P(f"s_lshl_b32 {s(sT)}, {s(sCK)}, 1"); P(f"s_lshr_b32 {s(sT2)}, {s(sWV)}, 2"); P(f"s_add_u32 {s(sT)}, {s(sT)}, {s(sT2)}"); P(f"s_mul_i32 {s(sT)}, {s(sT)}, 160")
    P(f"s_add_u32 {s(sTile)}, {s(sTile)}, {s(sT)}")
    sTBb, sCBb = sOffA, sOffW
    P(f"s_lshl_b32 {s(sTBb)}, {s(sQB)}, 1"); P(f"s_lshr_b32 {s(sT)}, {s(sR)}, 1"); P(f"s_add_u32 {s(sTBb)}, {s(sTBb)}, {s(sT)}")
    P(f"s_lshl_b32 {s(sCBb)}, {s(sCK)}, 1"); P(f"s_and_b32 {s(sT)}, {s(sR)}, 1"); P(f"s_add_u32 {s(sCBb)}, {s(sCBb)}, {s(sT)}")
    P(f"s_lshl_b32 {s(sTileB)}, {s(sTBb)}, 2"); P(f"s_and_b32 {s(sT)}, {s(sWV)}, 3"); P(f"s_add_u32 {s(sTileB)}, {s(sTileB)}, {s(sT)}"); P(f"s_mul_i32 {s(sTileB)}, {s(sTileB)}, {16*2560}")
    P(f"s_mul_i32 {s(sT)}, {s(sCBb)}, 160"); P(f"s_add_u32 {s(sTileB)}, {s(sTileB)}, {s(sT)}")
    P(f"s_lshr_b32 {s(sT)}, {s(sWV)}, 2"); P(f"s_mul_i32 {s(sT)}, {s(sT)}, 96"); P(f"s_add_u32 {s(sTileB)}, {s(sTileB)}, {s(sT)}")
    P(f"s_cmp_lt_u32 {s(sWV)}, 4"); P(f"s_cbranch_scc0 {name}_o_lo")
    st0 = P.state()
    for role in ("hi", "lo"):
        nm = 3 if role == "hi" else 2
        unit = 4096 if role == "hi" else 5120
        if role == "lo": P.label(f"{name}_o_lo"); P.set_state(ctx["lo_state"])
        else: P.set_state(ctx["hi_state"])
        P(f"s_and_b32 {s(sT)}, {s(sWV)}, 3"); P(f"s_mul_i32 {s(sM0)}, {s(sT)}, {unit}")
        blk = sQB if role == "hi" else sCK
        P(f"s_lshl_b32 {s(sSrc)}, {s(blk)}, 1"); P(f"s_bfe_u32 {s(sT2)}, {s(sWV)}, 0x10001"); P(f"s_add_u32 {s(sSrc)}, {s(sSrc)}, {s(sT2)}")
        P(f"s_lshl_b32 {s(sSrc)}, {s(sSrc)}, 7"); P(f"s_lshl_b32 {s(sT2)}, {s(sR)}, 5"); P(f"s_add_u32 {s(sSrc)}, {s(sSrc)}, {s(sT2)}")
        P(f"s_and_b32 {s(sT2)}, {s(sWV)}, 1"); P(f"s_add_u32 {s(sSrc)}, {s(sSrc)}, {s(sT2)}")
        P(f"s_mul_i32 {s(sSrc)}, {s(sSrc)}, {unit}"); P(f"s_add_u32 {s(sSrc)}, {s(sSrc)}, {CTX if role == 'hi' else WOF}")
        P(f"s_mul_i32 {s(sSrcB)}, {s(sTBb if role == 'hi' else sCBb)}, {20*unit}"); P(f"s_add_u32 {s(sSrcB)}, {s(sSrcB)}, {s(sM0)}")
        P(f"s_add_u32 {s(sSrcB)}, {s(sSrcB)}, {BO if role == 'hi' else BWOF}")
        def dma_ops(st):
            if st >= N: return []
            src = sSrc if st < NA else sSrcB
            def ld(i, so): P(f"buffer_load_dwordx4 {v(vL16)}, {s(sWS,4)}, {s(so)} offen offset:{i*1024} {LD} lds", st)
            def pre():
                if st == NA and role == "hi": fb_check()
                if st == NA // 2:
                    if role == "hi": fc_check()
                    P(f"s_add_u32 {s(sSrc)}, {s(sSrc)}, {s(sJump)}")
                P(f"s_add_u32 m0, {s(sM0)}, {(CS if role == 'hi' else WS_)[st%NS]}"); P(f"s_add_u32 {s(sTa)}, {s(src)}, 4096")
                ld(0, src)
            def last():
                if role == "lo":
                    P(f"s_add_u32 m0, m0, 4096"); P(f"s_add_u32 {s(src)}, {s(src)}, {(2 if st < NA else 4)*unit}"); ld(0, sTa)
                else: P(f"s_add_u32 {s(src)}, {s(src)}, {(2 if st < NA else 4)*unit}")
            return [pre, lambda: ld(1, src), lambda: ld(2, src), lambda: ld(3, src), last]
        def dma(st):
            for f in dma_ops(st): f()
        vFB = RCV
        def fb_off(): P(f"s_lshl_b32 {s(sT)}, {s(sTBb)}, 8"); P(f"s_add_u32 {s(sT)}, {s(sT)}, {FB}")
        def fb_req():
            fb_off(); P(f"v_lshrrev_b32 {v(T3)}, 1, {v(vL16)}"); P(f"v_and_b32 {v(T3)}, 0xf8, {v(T3)}")
            P(f"buffer_load_dwordx2 {v(vFB,2)}, {v(T3)}, {s(sWS,4)}, {s(sT)} offen sc1")
        def fb_check():
            P(f"v_xor_b32 {v(vFB)}, {s(sNON)}, {v(vFB)}"); P(f"v_xor_b32 {v(vFB+1)}, {s(sNON+1)}, {v(vFB+1)}"); P(f"v_or_b32 {v(vFB)}, {v(vFB)}, {v(vFB+1)}")
            P(f"v_cmp_ne_u32 vcc, 0, {v(vFB)}"); P(f"s_cbranch_vccz {name}_fbok")
            st = P.state(); fb_off(); ctx["poll"](sT, 32, f"{name}_poll4")
            P.label(f"{name}_fbok"); P.set_state(st)
        sFCo, sJump = sRow0, sU3
        vDec, vFo = 130, 131
        P(f"v_mov_b32 {v(vDec)}, {DECW}")
        if role == "hi":
            P(f"s_lshl_b32 {s(sFCo)}, {s(sQB)}, 10"); P(f"s_lshl_b32 {s(sT2)}, {s(sR)}, 6"); P(f"s_add_u32 {s(sFCo)}, {s(sFCo)}, {s(sT2)}"); P(f"s_add_u32 {s(sFCo)}, {s(sFCo)}, {FC}")
            bfe(P, T0, 3, 2); bfe(P, T1, 0, 3); P(f"v_lshlrev_b32 {v(T1)}, 3, {v(T1)}"); P(f"v_lshl_add_u32 {v(vFo)}, {v(T0)}, 8, {v(T1)}")
            P(f"buffer_load_dwordx2 {v(128,2)}, {v(vFo)}, {s(sWS,4)}, {s(sFCo)} offen sc1")
            ctx["hiflag"]()
            P(f"s_cmp_lg_u32 {s(sWV)}, 0"); P(f"s_cbranch_scc1 {name}_nodec")
            st = P.state()
            P(f"s_mov_b32 {s(sT2)}, {int(E('POLLMAX', '0x40000'), 0)}")
            P.needr(v(128, 2))
            P.label(f"{name}_dec")
            P(f"v_xor_b32 v128, {s(sNON)}, v128"); P(f"v_xor_b32 v129, {s(sNON+1)}, v129"); P(f"v_or_b32 v128, v128, v129")
            P(f"v_cmp_ne_u32 vcc, 0, v128")
            P(f"s_mov_b32 {s(sT)}, 0x7fffffff"); P(f"s_and_b32 {s(sTa)}, vcc_lo, {'0x0f0f0f0f' if E('DYN', '1') == '1' else '-1'}"); P(f"s_cbranch_scc0 {name}_decd")
            P(f"s_mov_b32 {s(sT)}, 0x7ffffffe"); P(f"s_and_b32 {s(sTa)}, vcc_lo, {'0xf0f0f0f0' if E('DYN', '1') == '1' else '-1'}"); P(f"s_cbranch_scc0 {name}_decd")
            P("s_sleep 2")
            P(f"buffer_load_dwordx2 {v(128,2)}, {v(vFo)}, {s(sWS,4)}, {s(sFCo)} offen sc1"); P("s_waitcnt vmcnt(0)")
            P(f"s_sub_u32 {s(sT2)}, {s(sT2)}, 1"); P(f"s_cbranch_scc0 {name}_dec")
            P.label(f"{name}_decd")
            P(f"v_mov_b32 v128, {s(sT)}"); P(f"ds_write_b32 {v(vDec)}, v128")
            P.label(f"{name}_nodec"); P.set_state(st)
        P("s_waitcnt lgkmcnt(0)"); P("s_barrier")
        P(f"ds_read_b32 v128, {v(vDec)}")
        P(f"v_readfirstlane_b32 {s(sT)}, v128")
        P(f"s_bitcmp1_b32 {s(sT)}, 0")
        P(f"s_cselect_b32 {s(sT2)}, 0, {16*unit}"); P(f"s_cselect_b32 {s(sJump)}, 0, {(-32*unit) & 0xffffffff}")
        P(f"s_add_u32 {s(sSrc)}, {s(sSrc)}, {s(sT2)}")
        def fc_req(): P(f"buffer_load_dwordx2 {v(128,2)}, {v(vFo)}, {s(sWS,4)}, {s(sFCo)} offen sc1")
        def fc_check():
            P(f"v_xor_b32 v128, {s(sNON)}, v128"); P(f"v_xor_b32 v129, {s(sNON+1)}, v129"); P(f"v_or_b32 v128, v128, v129")
            P(f"v_cmp_ne_u32 vcc, 0, v128"); P(f"s_cbranch_vccz {name}_fcok")
            st = P.state(); P(f"v_mov_b32 {v(T3)}, {v(vFo)}")
            ctx["poll"](sFCo, 64, f"{name}_poll3", own_off=True)
            P.label(f"{name}_fcok"); P.set_state(st)
        SP(idx=11)
        for st in range(NS): dma(st)
        def readsA(st, k, i):
            b = FRG + 28*(i % 2); sl = st % NS
            out = [f"ds_read_b128 {v(b+4*ii,4)}, {v(vRC)} offset:{CS[sl] + k*4096 + ii*1024}" for ii in range(2)]
            out += [f"ds_read_b128 {v(b+8+4*m,4)}, {v(vRW + sl//2)} offset:{(sl%2)*20480 + k*5120 + m*1024}" for m in range(5)]
            return [out[0], out[2], out[1]] + out[3:]
        def readsB(st, k, i):
            b = FRG + 28*(i % 2); sl = st % NS
            out = [f"ds_read_b128 {v(b,4)}, {v(vRCb)} offset:{CS[sl] + k*4096}"]
            out += [f"ds_read_b128 {v(b+4+4*m,4)}, {v(vRWb + sl//2)} offset:{(sl%2)*20480 + k*5120 + m*1024}" for m in range(nm)]
            return out
        def is_owner(lab, want):
            P(f"s_and_b32 {s(sT)}, {s(sWV)}, 3"); P(f"s_cmp_eq_u32 {s(sT)}, {s(sR)}"); P(f"s_cbranch_scc{0 if want else 1} {lab}")
        def send():
            lab = f"{name}_snd{role}"
            is_owner(lab, False)
            P(f"s_lshl_b32 {s(sXo)}, {s(sGrp)}, 2"); P(f"s_add_u32 {s(sXo)}, {s(sXo)}, {s(sT)}"); P(f"s_lshl_b32 {s(sXo)}, {s(sXo)}, 2"); P(f"s_add_u32 {s(sXo)}, {s(sXo)}, {s(sR)}")
            P(f"s_mul_i32 {s(sXo)}, {s(sXo)}, 20480"); P(f"s_add_u32 {s(sXo)}, {s(sXo)}, {XB + (0 if role == 'hi' else 10240)}")
            st = P.state()
            if XBF:
                for e in range(20): P(f"v_cvt_pk_bf16_f32 {v(ACC+e)}, {v(ACC+2*e)}, {v(ACC+2*e+1)}")
            for t in range(NX):
                P(f"buffer_store_dwordx4 {v(ACC+4*t,4)}, {v(vL16)}, {s(sWS,4)}, {s(sXo)} offen offset:{(t%4)*1024} {ST}", "x")
                if t % 4 == 3: P(f"s_add_u32 {s(sXo)}, {s(sXo)}, 4096")
            s2_ = P.state()
            P.label(lab); P.set_state(merge_states(st, s2_))
        def send_flag():
            lab = f"{name}_sfl{role}"
            is_owner(lab, False)
            st = P.state()
            P(f"s_lshl_b32 {s(sT2)}, {s(sGrp)}, 2"); P(f"s_add_u32 {s(sT)}, {s(sT)}, {s(sT2)}"); P(f"s_lshl_b32 {s(sT)}, {s(sT)}, 6")
            P(f"s_lshl_b32 {s(sT2)}, {s(sR)}, 3"); P(f"s_add_u32 {s(sT)}, {s(sT)}, {s(sT2)}"); P(f"s_add_u32 {s(sT)}, {s(sT)}, {FX + (0 if role == 'hi' else 32)}")
            P(f"v_mov_b32 {v(T0)}, {s(sNON)}"); P(f"v_mov_b32 {v(T1)}, {s(sNON+1)}"); P(f"v_mov_b32 {v(T2)}, 0")
            P.wait_tag(lambda t: t == "x")
            SP(idx=30)
            P("s_mov_b64 exec, 1")
            P(f"buffer_store_dwordx2 {v(T0,2)}, {v(T2)}, {s(sWS,4)}, {s(sT)} offen sc1")
            P("s_mov_b64 exec, -1")
            P.label(lab); P.set_state(st)
        sGot = sJL
        P(f"s_mov_b32 {s(sGot)}, 0")
        vFX = 238
        def fx_addr():
            P(f"s_lshl_b32 {s(sXo)}, {s(sGrp)}, 2"); P(f"s_add_u32 {s(sXo)}, {s(sXo)}, {s(sR)}")
            P(f"s_lshl_b32 {s(sT)}, {s(sXo)}, 6"); P(f"s_add_u32 {s(sT)}, {s(sT)}, {FX + (0 if role == 'hi' else 32)}")
            bfe(P, T0, 0, 2); P(f"v_min_u32 {v(T0)}, 2, {v(T0)}")
            P(f"v_add_u32 {v(T0)}, {s(sR)}, {v(T0)}"); P(f"v_add_u32 {v(T0)}, 1, {v(T0)}"); P(f"v_and_b32 {v(T0)}, 3, {v(T0)}"); P(f"v_lshlrev_b32 {v(T3)}, 3, {v(T0)}")
        def recv_loads():
            P(f"s_mul_i32 {s(sXo)}, {s(sXo)}, {4*20480}"); P(f"s_add_u32 {s(sXo)}, {s(sXo)}, {XB + (0 if role == 'hi' else 10240)}")
            for j in range(3):
                P(f"s_add_u32 {s(sT)}, {s(sR)}, {j+1}"); P(f"s_and_b32 {s(sT)}, {s(sT)}, 3"); P(f"s_mul_i32 {s(sT)}, {s(sT)}, 20480"); P(f"s_add_u32 {s(sT)}, {s(sT)}, {s(sXo)}")
                for tt in range(NX):
                    P(f"buffer_load_dwordx4 {v(RCV+40*j+4*tt,4)}, {v(vL16)}, {s(sWS,4)}, {s(sT)} offen offset:{(tt%4)*1024} {LD}")
                    if tt % 4 == 3: P(f"s_add_u32 {s(sT)}, {s(sT)}, 4096")
        def fx_req():
            lab = f"{name}_fxr{role}"; is_owner(lab, True); st = P.state()
            fx_addr(); P(f"buffer_load_dwordx2 {v(vFX,2)}, {v(T3)}, {s(sWS,4)}, {s(sT)} offen sc1")
            P.label(lab); P.set_state(st)
        def fx_try():
            lab = f"{name}_fxt{role}"; is_owner(lab, True); st = P.state()
            P("s_waitcnt vmcnt(0)")
            P(f"v_xor_b32 {v(vFX)}, {s(sNON)}, {v(vFX)}"); P(f"v_xor_b32 {v(vFX+1)}, {s(sNON+1)}, {v(vFX+1)}"); P(f"v_or_b32 {v(vFX)}, {v(vFX)}, {v(vFX+1)}")
            P(f"v_cmp_ne_u32 vcc, 0, {v(vFX)}"); P(f"s_cbranch_vccnz {lab}")
            P(f"s_mov_b32 {s(sGot)}, 1"); recv_loads()
            P.label(lab); P.set_state(st)
        XRQ, XTR = [tuple(int(c) for c in E(k_, d_)) for k_, d_ in (("XRQ", "33"), ("XTR", "41"))]
        steps = [(st, k) for st in range(NA) for k in range(2)] + [(st, k) for st in range(NA, N) for k in range(4)]
        def rd(i):
            st, k = steps[i]
            r = readsA(st, k, i) if st < NA else readsB(st, k, i)
            return r
        P.wait_tag(lambda t: t == 0); P("s_barrier")
        SP(idx=24)
        if role == "lo": ctx["bflag"]()
        for r in rd(0): P(r)
        pend = []
        for i, (st, k) in enumerate(steps):
            b = FRG + 28*(i % 2)
            mf = []
            if st < NA:
                for m in range(5):
                    for ii in range(2):
                        d = v(ACC + 4*(ii*5 + m), 4)
                        mf.append(f"v_mfma_f32_16x16x32_bf16 {d}, {v(b+8+4*m,4)}, {v(b+4*ii,4)}, {'0' if i == 0 else d}")
            else:
                for m in range(nm):
                    d = v(ACB + 4*m, 4)
                    mf.append(f"v_mfma_f32_16x16x32_bf16 {d}, {v(b+4+4*m,4)}, {v(b,4)}, {'0' if (st == NA and k == 0) else d}")
            fill = []
            lastk = (k == (1 if st < NA else 3))
            if lastk and st + 1 < N:
                def sync(st=st):
                    P.wait_tag(lambda t: t == st + 1); P.wait_lds_all(); P("s_barrier")
                fill.append(sync)
                pend = dma_ops(st + NS)
            if i + 1 < len(steps): fill += rd(i + 1)
            ntake = len(pend) if st >= NA and not lastk and k == 2 else (3 if st < NA else 2)
            take, pend = pend[:ntake], pend[ntake:]
            for j, f in enumerate(take): fill.insert(min(len(fill), (2 if lastk else 1) + 3*j), f)
            if role == "hi" and st == NA - NS - 3 and k == 0: fill.append(fb_req)
            if role == "hi" and st == 2 and k == 0: fill.append(fc_req)
            if st == NA and k == int(E('SNDK', '1')): fill.append(send)
            if (st - NA, k) == tuple(int(c) for c in E("SFL", "22")): fill.append(send_flag)
            if (st - NA, k) == XRQ: fill.append(fx_req)
            if (st - NA, k) == XTR: fill.append(fx_try)
            if E("P5NOMF"): mf = ["s_nop 0"] * len(mf)
            if E("P5NOLDS"): fill = [f for f in fill if callable(f)]
            interleave(P, mf, fill)
            if k == 0 and st in (4, 8, 12, NA): SP(idx={4: 25, 8: 26, 12: 27, NA: 28}[st])
        assert not pend
        SP(idx=12)
        for m in range(nm):
            r = ACB + 4*m
            P(f"v_cvt_pk_bf16_f32 {v(r)}, {v(r)}, {v(r+1)}"); P(f"v_cvt_pk_bf16_f32 {v(r+1)}, {v(r+2)}, {v(r+3)}")
            P(f"buffer_store_dwordx2 {v(r,2)}, {v(vOut)}, {s(sOUT,4)}, {s(sTileB)} offen offset:{m*32 + 1280}")
        is_owner(f"{name}_o_done", True)
        P(f"s_cmp_lg_u32 {s(sGot)}, 0"); P(f"s_cbranch_scc1 {name}_got{role}")
        fx_addr()
        ctx["poll"](sT, 3, f"{name}_poll5{role}", own_off=True)
        recv_loads()
        P.label(f"{name}_got{role}")
        SP(idx=29)
        if PROF: P.raw(f"v_writelane_b32 {v(vSTAMP)}, {s(sGot)}, 31")
        P("s_waitcnt vmcnt(0)")
        SP(idx=32)
        if XBF:
            P(f"s_mov_b32 {s(sT)}, 0x3f80"); P(f"s_mov_b32 {s(sT2)}, 0x3f800000")
            for j in range(3):
                for e in range(20):
                    P(f"v_dot2_f32_bf16 {v(ACC+2*e)}, {v(RCV+40*j+e)}, {s(sT)}, {v(ACC+2*e)}")
                    P(f"v_dot2_f32_bf16 {v(ACC+2*e+1)}, {v(RCV+40*j+e)}, {s(sT2)}, {v(ACC+2*e+1)}")
        else:
            for j in range(3):
                for e in range(0, 40, 2): P(f"v_pk_add_f32 {v(ACC+e,2)}, {v(ACC+e,2)}, {v(RCV+40*j+e,2)}")
        P(f"s_add_u32 {s(sT)}, {s(sTile)}, {16*2560}")
        for t in range(10):
            i, m = t // 5, t % 5; r = ACC + 4*t
            P(f"v_cvt_pk_bf16_f32 {v(r)}, {v(r)}, {v(r+1)}"); P(f"v_cvt_pk_bf16_f32 {v(r+1)}, {v(r+2)}, {v(r+3)}")
            P(f"buffer_store_dwordx2 {v(r,2)}, {v(vOut)}, {s(sOUT,4)}, {s(sTile if i == 0 else sT)} offen offset:{m*32}")
        if role == "hi": P(f"s_branch {name}_o_done")
    P.label(f"{name}_o_done")
    if PROF: P("s_waitcnt vmcnt(0)")
```

```python
from aux_part import *

vO, vS, vP, vNM, vF, vT = 32, 96, 128, 144, 160, 192
vLsum, vLS, vCur, vD, vMX, vMX2, vNI = 200, 201, 202, 203, 204, 205, 206
vRdFull, vWrFree, vRdFree, vWrFull, vFV, vCV, vFullV = 248, 249, 250, 251, 252, 253, 254
sCNT, sSEC, sNeed, sLd, sU = sREM, sNB, sOffA, sOffW, sOutKV
PD = int(os.environ.get("PD", "7"))
WAIT2 = int(os.environ.get("WAIT2", "1"))
SPINMAX = int(os.environ.get("SPINMAX", "0x100000"), 0)
E = os.environ.get
X_NOVALU, X_NOLDS, X_PRIO = E("X_NOVALU"), E("X_NOLDS"), E("X_PRIO", "lo")
SLEEP = int(E("SLEEP", "1"))
DGAP = E("DGAP", "chk2").replace("p_", "p ")
RG0 = int(E("RG0", "1")); RSP = int(E("RSP", "1")); BEARLY = int(E("BEARLY", "0")); BMID = int(E("BMID", "0"))
EPI2 = int(E("EPI2", "1")); NLF = int(E("NLF", "3"))
WOPF = int(E("WOPF", "-1" if int(E("ERT", "0")) else "3"))
DSPR = int(E("DSPR", "1")); DGAP1 = E("DGAP1", "poll2").replace("p_", "p ")
ERT = int(E("ERT", "0"))
L2W = int(E("L2W", "0"))
MIDP = int(E("MIDP", "3"))
CAP = float(E("CAP", "24"))

def gen_attn(ctx):
    P, SP, name = ctx["P"], ctx["SP"], ctx["name"]
    def vq(role, i): return 4*i if role == "hi" else 4*((i + 4) % 8)
    def dma_ops(first=False):
        ops = []
        def pre():
            P(f"s_lshl_b32 {s(sDOff)}, {s(sDIdx)}, 13"); P(f"s_add_u32 {s(sDOff)}, {s(sDOff)}, {s(sDBase)}")
            P(f"s_cmp_le_u32 {s(sDIdx)}, {s(sDLim)}"); P(f"s_cselect_b32 {s(sDOff)}, {s(sDOff)}, {OOB}")
            if first:
                P(f"s_cmp_eq_u32 {s(sWV)}, 6"); P(f"s_cselect_b32 {s(sDOff)}, {s(sU0)}, {s(sDOff)}")
            P(f"s_add_u32 m0, {s(sSlot)}, {s(sDM0)}")
            P(f"s_add_u32 {s(sDIdx)}, {s(sDIdx)}, 2")
        def ld(i):
            if E("X_NODMA"): return
            P(f"buffer_load_dwordx4 {v(vL16)}, {s(sWS,4)}, {s(sDOff)} offen offset:{(i%4)*1024} {LD} lds", ("kv", dma_ops.n))
        def mid(): P(f"s_add_u32 m0, m0, 4096"); P(f"s_add_u32 {s(sDOff)}, {s(sDOff)}, 4096")
        def post():
            P(f"s_add_u32 {s(sSlot)}, {s(sSlot)}, 32768"); P(f"s_and_b32 {s(sSlot)}, {s(sSlot)}, {NSLOT*32768-1}")
            P(f"s_add_u32 {s(sLd)}, {s(sLd)}, 1"); dma_ops.n += 1
        ops.append(lambda: (pre(), ld(0)))
        for i in range(1, 8): ops.append((lambda i=i: (mid(), ld(i))) if i == 4 else (lambda i=i: ld(i)))
        ops.append(post)
        return ops
    dma_ops.n = 0
    def dma_stage(first=False, gap=None, mid=None):
        for i, f in enumerate(dma_ops(first)):
            f()
            if mid and i == MIDP: mid(); continue
            if gap and i < 7:
                for g_ in gap.split("+"):
                    if g_ == "poll":
                        P(f"ds_read_b32 {v(vCV)}, {v(vRdFree)}"); P("s_waitcnt lgkmcnt(0)")
                    elif g_.startswith("chk"):
                        P(f"ds_read_b32 {v(vCV)}, {v(vRdFree)}"); P(f"ds_read_b32 {v(vFV)}, {v(vRdFull)}"); P("s_waitcnt lgkmcnt(0)")
                        n_ = int(g_[3:])
                        if n_ >= 1: P(f"v_min_u32 {v(vFV)}, {v(vFV)}, {v(vCV)}")
                        if n_ >= 2: P(f"v_cmp_gt_u32 vcc, {s(sTa)}, {v(vFV)}")
                        if n_ >= 3: P(f"s_cmp_eq_u64 vcc, 0")
                    elif g_ == "poll2":
                        if i % 2: P(f"ds_read_b32 {v(vCV)}, {v(vRdFree)}"); P("s_waitcnt lgkmcnt(0)")
                    else: P(g_)

    sOK = sAM
    vFK = 112
    def fk_off():
        P(f"s_lshr_b32 {s(sT)}, {s(sH)}, 1"); P(f"s_lshl_b32 {s(sT)}, {s(sT)}, 7"); P(f"s_add_u32 {s(sT)}, {s(sT)}, {FK}")
    def lo_only(lab, fn):
        P(f"s_cmp_lt_u32 {s(sWV)}, 4"); P(f"s_cbranch_scc1 {lab}")
        st = P.state(); fn(); P.label(lab); P.set_state(st)
    def early_req():
        def f():
            fk_off()
            P(f"v_lshrrev_b32 {v(T3)}, 1, {v(vL16)}"); P(f"v_and_b32 {v(T3)}, 0x78, {v(T3)}")
            P(f"buffer_load_dwordx2 {v(vFK,2)}, {v(T3)}, {s(sWS,4)}, {s(sT)} offen sc1")
            P(f"s_lshl_b32 {s(sDBase)}, {s(sH)}, 19")
            P(f"s_sub_u32 {s(sT)}, {s(sWV)}, 4"); P(f"s_lshl_b32 {s(sDM0)}, {s(sT)}, 13")
            P(f"s_and_b32 {s(sDIdx)}, {s(sT)}, 1"); P(f"s_add_u32 {s(sDIdx)}, {s(sDIdx)}, 1")
            P(f"s_cmp_ge_u32 {s(sT)}, 2"); P(f"s_cselect_b32 {s(sT2)}, 2, 0"); P(f"s_sub_u32 {s(sDIdx)}, {s(sDIdx)}, {s(sT2)}")
            P(f"s_cmp_ge_u32 {s(sT)}, 2"); P(f"s_cselect_b32 {s(sT2)}, {VF}, 0")
            P(f"s_mov_b32 {s(sU0)}, {s(sDBase)}")
            P(f"s_add_u32 {s(sDBase)}, {s(sDBase)}, {s(sT2)}")
            P(f"s_mov_b32 {s(sSlot)}, {0 if Q34 else 32768}"); P(f"s_mov_b32 {s(sLd)}, 0")
        P(f"s_lshl_b32 {s(sT)}, {s(sG)}, 2"); P(f"s_sub_u32 {s(sDLim)}, 63, {s(sT)}")
        lo_only(f"{name}_er", f)
    def early_try():
        def f():
            P("s_waitcnt vmcnt(0)")
            P(f"v_xor_b32 {v(vFK)}, {s(sNON)}, {v(vFK)}"); P(f"v_xor_b32 {v(vFK+1)}, {s(sNON+1)}, {v(vFK+1)}"); P(f"v_or_b32 {v(vFK)}, {v(vFK)}, {v(vFK+1)}")
            P(f"v_cmp_ne_u32 vcc, 0, {v(vFK)}"); P(f"s_cbranch_vccnz {name}_et")
            P(f"s_mov_b32 {s(sOK)}, 1")
        lo_only(f"{name}_et", f)
    def early_ops():
        out = []
        for k, f in enumerate(dma_ops(True) + dma_ops()):
            def g(k=k, f=f):
                P(f"s_cmp_eq_u32 {s(sOK)}, 0"); P(f"s_cbranch_scc1 {name}_eo{k}")
                st = P.state(); f(); P.label(f"{name}_eo{k}"); P.set_state(st)
            out.append(g)
        return out
    def early():
        P(f"s_lshr_b32 {s(sU)}, {s(sDLim)}, 1"); P(f"s_add_u32 {s(sU)}, {s(sU)}, 1")
        def f():
            P(f"s_cmp_lg_u32 {s(sLd)}, 0"); P(f"s_cbranch_scc1 {name}_nodma0")
            fk_off(); ctx["poll"](sT, 16, f"{name}_poll1")
            dma_stage(True); dma_stage()
        lo_only(f"{name}_nodma0", f)
    def setup(P):
        P(f"s_mov_b32 {s(sOK)}, 0")
        for i in range(64): P(f"v_mov_b32 {v(vO+i)}, 0")
        P(f"v_lshrrev_b32 {v(T0)}, 2, {v(vL16)}"); P(f"v_add_u32 {v(T0)}, {CT}, {v(T0)}")
        bfe(P, T1, 0, 2); P(f"v_lshl_add_u32 {v(vRdFull)}, {v(T1)}, 8, {v(T0)}")
        bfe(P, T1, 0, 3); P(f"v_lshl_add_u32 {v(vRdFree)}, {v(T1)}, 8, {v(T0)}"); P(f"v_add_u32 {v(vRdFree)}, 1024, {v(vRdFree)}")
        P(f"s_lshl_b32 {s(sT)}, {s(sWV)}, 8"); P(f"v_add_u32 {v(vWrFull)}, {s(sT)}, {v(T0)}")
        P(f"v_add_u32 {v(vWrFree)}, 1024, {v(vWrFull)}"); P(f"v_subrev_u32 {v(vWrFull)}, 1024, {v(vWrFull)}")
        P(f"v_mov_b32 {v(vFV)}, 0"); P(f"v_mov_b32 {v(vFullV)}, 1")
        if PROF: P("s_mov_b32 s98, 0"); P("s_mov_b32 s7, 0"); P("s_mov_b32 s3, 0")
        P(f"s_mov_b32 {s(sTHR)}, {fbits(THR)}"); P(f"s_mov_b32 {s(sNeed)}, 2")
        P(f"s_max_u32 {s(sCNT)}, {s(sJL)}, 1"); P(f"s_sub_u32 {s(sCNT)}, {s(sCNT)}, 1")
        P(f"s_cmp_eq_u32 {s(sJL)}, 0"); P(f"s_cselect_b32 {s(sSEC)}, 1, 0")
    def wo_warm(i):
        P(f"s_cmp_lt_u32 {s(sWV)}, 4"); P(f"s_cbranch_scc0 {name}_ww{i}")
        P(f"s_lshl_b32 {s(sTw)}, s2, 2"); P(f"s_add_u32 {s(sTw)}, {s(sTw)}, {s(sWV)}")
        if i < 5:
            P(f"s_mul_i32 {s(sTw)}, {s(sTw)}, 5120"); P(f"s_add_u32 {s(sTw)}, {s(sTw)}, {i*1024}")
        else: P(f"s_lshl_b32 {s(sTw)}, {s(sTw)}, 10")
        P.raw(f"buffer_load_dwordx4 v[120:123], {v(vL16)}, {s(sWO if i < 5 else sBWO,4)}, {s(sTw)} offen")
        P.label(f"{name}_ww{i}")
    early.wo = wo_warm if ERT else None
    early.req, early.try_, early.setup, early.ops = early_req, early_try, setup, early_ops
    if ctx.get("early_only"): return early

    P(f"s_cmp_lt_u32 {s(sWV)}, 4"); P(f"s_cbranch_scc1 {name}_nodma1")
    st = P.state()
    dma_stage()
    P.label(f"{name}_nodma1")
    P.set_state(st)
    for i in range(8): P(f"v_mov_b32 {v(vP+8+i)}, 0")
    P(f"v_mov_b32 {v(vLsum)}, 0"); P(f"v_add_u32 {v(vCur)}, {0 if Q34 else 0x8000}, {v(vL16)}"); P(f"v_mov_b32 {v(vNI)}, 0xff800000")
    bfe(P, T1, 0, 5); bfe(P, T2, 5, 1); P(f"v_lshlrev_b32 {v(T2)}, 2, {v(T2)}"); P(f"v_sub_u32 {v(vD)}, {v(T1)}, {v(T2)}")
    P(f"v_subrev_u32 {v(T0)}, {1024 + 3*256}, {v(vWrFree)}")
    P("s_waitcnt lgkmcnt(0)")
    P(f"s_cmp_lg_u32 {s(sWV)}, 3"); P(f"s_cbranch_scc1 {name}_noinit")
    for i in range(12): P(f"ds_write_b32 {v(T0)}, {v(vFullV if i < 4 else vFV)} offset:{i*256}")
    P.label(f"{name}_noinit")
    P(f"s_waitcnt vmcnt(16) lgkmcnt(0)")
    P("s_barrier")
    SP()
    P.vq = []; P.lq = []
    def mask_nm():
        for r in range(16):
            m = s(sM + 2*(r%2), 2)
            P(f"v_cmp_gt_i32 {m}, {8*(r//4) + r%4}, {v(vD)}")
            P(f"v_cndmask_b32 {v(vNM+r)}, {v(vNM+r)}, {v(vNI)}, {m}")
    for i in range(8): P(f"ds_read_b128 {v(vF+4*i,4)}, {v(vCur)} offset:{16384 + i*1024}")
    P("s_waitcnt lgkmcnt(0)")
    P(f"s_cmp_lt_u32 {s(sWV)}, 4"); P(f"s_cbranch_scc0 {name}_a0lo")
    for role in ("hi", "lo"):
        if role == "lo": P.label(f"{name}_a0lo")
        if X_PRIO == role: P("s_setprio 1")
        if role == "hi" and WOPF >= 0:
            P(f"s_mov_b32 {s(sCNT)}, {WOPF}"); P(f"s_mov_b32 {s(sSEC)}, 2")
        if role == "lo":
            P(f"s_sub_u32 {s(sAR)}, {s(sWV)}, 4"); P(f"s_mul_i32 {s(sAR)}, {s(sAR)}, {AREA}"); P(f"s_add_u32 {s(sAR)}, {s(sAR)}, {SCR}")
        if role == "lo" and ERT:
            P(f"s_cmp_lt_u32 {s(sG)}, 4"); P(f"s_cbranch_scc1 {name}_noert")
            P(f"s_lshl_b32 {s(sAW)}, s2, 2"); P(f"s_add_u32 {s(sAW)}, {s(sAW)}, {s(sWV)}"); P(f"s_sub_u32 {s(sAW)}, {s(sAW)}, {4 + 512}")
            P(f"s_add_u32 {s(sU1)}, {s(sDM0)}, 4096")
            P.vq = [(set(), ("kv", 1))]*8 + [(set(), ("kv", 2))]*8
            r = [retile_chunks(ctx, 0, 208, sAR, sAK, sAM), retile_chunks(ctx, 1, 208, sDM0, sU2, sU3), retile_chunks(ctx, 2, 208, sU1, sOffX, sOffQW)]
            for x in r: x[0]()
            for k in (1, 2):
                P(f"v_mov_b32 {v(vFullV)}, {k+1}"); P.wait_tag(lambda t: t == ("kv", k)); P(f"ds_write_b32 {v(vWrFull)}, {v(vFullV)}")
            for x in r: x[1]()
            P(f"s_mov_b32 {s(sCNT)}, 6"); P(f"s_mov_b32 {s(sSEC)}, 2")
            P("s_waitcnt lgkmcnt(0)")
            P.label(f"{name}_noert")
            P.vq = []; P.lq = []
        if role == "lo":
            P(f"s_cmp_lg_u32 {s(sJL)}, 0"); P(f"s_cbranch_scc1 {name}_nomask0")
            for i in range(16): P(f"v_mov_b32 {v(vNM+i)}, 0")
            mask_nm()
            P(f"v_mfma_f32_32x32x16_bf16 {v(vS,16)}, {v(vF,4)}, {v(vq(role,0),4)}, {v(vNM,16)}")
            P(f"s_branch {name}_mask0j")
            P.label(f"{name}_nomask0")
        for i in range(8):
            P(f"v_mfma_f32_32x32x16_bf16 {v(vS,16)}, {v(vF+4*i,4)}, {v(vq(role,i),4)}, {'0' if i == 0 else v(vS,16)}")
            if role == "lo" and i == 0: P.label(f"{name}_mask0j")
        if role == "hi": P(f"s_branch {name}_a0j")
    P.label(f"{name}_a0j")
    def frag_read(n, par):
        if X_NOLDS and frag_read.loop: return "; none"
        off = (par*8192 + n*1024) if n < 8 else (16384 + par*8192 + (n-8)*1024)
        return f"ds_read_b128 {v(vF+4*(n%8),4)}, {v(vCur)} offset:{off}"
    frag_read.loop = bool(X_NOLDS)
    def rowmax(S):
        P(f"v_max3_f32 {v(vMX)}, {v(S)}, {v(S+1)}, {v(S+2)}")
        for i in range(3, 15, 2): P(f"v_max3_f32 {v(vMX)}, {v(vMX)}, {v(S+i)}, {v(S+i+1)}")
        P(f"v_max_f32 {v(vMX)}, {v(vMX)}, {v(S+15)}")
        P(f"v_mov_b32 {v(vMX2)}, {v(vMX)}")
        P(f"v_permlane32_swap_b32 {v(vMX)}, {v(vMX2)}")
        P(f"v_max_f32 {v(vMX)}, {v(vMX)}, {v(vMX2)}")
    SP()
    for n in range(PD): P(frag_read(n, 0))
    rowmax(vS)
    for i in range(16): P(f"v_sub_f32 {v(vS+i)}, {v(vS+i)}, {v(vMX)}")
    for i in range(16): P(f"v_sub_f32 {v(vNM+i)}, 0, {v(vMX)}")
    sidx = SP.n
    entry = P.state()
    P(f"s_cmp_lt_u32 {s(sWV)}, 4"); P(f"s_cbranch_scc0 {name}_lo_E")

    def softmax_ops(par):
        S = vS + 16*par; PP = vP + 8*par
        ops = []
        for r in range(16):
            ops.append((8, f"v_exp_f32 {v(vT + r%8)}, {v(S+r)}"))
            if r >= 1:
                q = r - 1
                if q == 1: ops.append((4, f"v_add_f32 {v(vLS)}, {v(vT)}, {v(vT+1)}"))
                elif q > 1: ops.append((4, f"v_add_f32 {v(vLS)}, {v(vLS)}, {v(vT + q%8)}"))
                if q % 2 == 1: ops.append((4, f"v_cvt_pk_bf16_f32 {v(PP + q//2)}, {v(vT + (q-1)%8)}, {v(vT + q%8)}"))
        ops.append((4, f"v_cvt_pk_bf16_f32 {v(PP+7)}, {v(vT+6)}, {v(vT+7)}"))
        ops.append((4, f"v_add_f32 {v(vLS)}, {v(vLS)}, {v(vT+7)}"))
        ops.append((4, f"v_cmp_nge_f32 vcc, {s(sTHR)}, {v(vLS)}"))
        return ops
    def check(par, role, kind):
        P(f"s_cbranch_vccnz {name}_{role}_fb{kind}{par}")
        P.label(f"{name}_{role}_fbr{kind}{par}")
        P(f"v_add_f32 {v(vLsum)}, {v(vLsum)}, {v(vLS)}")
    def fallback(par, role, kind):
        S = vS + 16*par; S2 = vS + 16*(1-par)
        P.label(f"{name}_{role}_fb{kind}{par}")
        rowmax(S)
        P(f"v_max_f32 {v(vMX)}, 0, {v(vMX)}")
        P(f"v_sub_f32 {v(vMX2)}, 0, {v(vMX)}"); P(f"v_exp_f32 {v(vMX2)}, {v(vMX2)}")
        for i in range(16): P(f"v_sub_f32 {v(S+i)}, {v(S+i)}, {v(vMX)}")
        for i in range(16): P(f"v_sub_f32 {v(S2+i)}, {v(S2+i)}, {v(vMX)}")
        for i in range(16): P(f"v_sub_f32 {v(vNM+i)}, {v(vNM+i)}, {v(vMX)}")
        for i in range(64): P(f"v_mul_f32 {v(vO+i)}, {v(vMX2)}, {v(vO+i)}")
        P(f"v_mul_f32 {v(vLsum)}, {v(vMX2)}, {v(vLsum)}")
        for c, o in softmax_ops(par)[:-1]: P(o)
        P(f"s_branch {name}_{role}_fbr{kind}{par}")
    spins = []
    def ctl_cmp(sreg): P(f"v_cmp_gt_u32 vcc, {s(sreg)}, {v(vCV)}")
    def ctl_check(addr, sreg, lab, cmp=True):
        if cmp: ctl_cmp(sreg)
        P(f"s_cbranch_vccnz {lab}")
        P.label(lab + "_r")
        spins.append((addr, sreg, lab))
    def emit_spins():
        for addr, sreg, lab in spins:
            P.label(lab)
            if PROF: P.raw(f"s_add_u32 s{98 if addr == vRdFull else 7}, s{98 if addr == vRdFull else 7}, 0x10000")
            P.raw(f"s_mov_b32 {s(sT2)}, {SPINMAX}")
            P.label(lab + "_l")
            if PROF: P.raw(f"s_add_u32 s{98 if addr == vRdFull else 7}, s{98 if addr == vRdFull else 7}, 1")
            P.raw(f"ds_read_b32 {v(vCV)}, {v(addr)}"); P.raw("s_waitcnt lgkmcnt(0)")
            P.raw(f"v_cmp_gt_u32 vcc, {s(sreg)}, {v(vCV)}")
            P.raw(f"s_cbranch_vccz {lab}_r")
            P.raw(f"s_sleep {SLEEP if '_ld' in lab else 1}")
            P.raw(f"s_sub_u32 {s(sT2)}, {s(sT2)}, 1"); P.raw(f"s_cmp_lg_u32 {s(sT2)}, 0"); P.raw(f"s_cbranch_scc1 {lab}_l")
            P.raw(f"s_branch {lab}_r")
        spins.clear()
    def advance():
        P(f"v_add_u32 {v(vCur)}, 0x8000, {v(vCur)}"); P(f"v_and_b32 {v(vCur)}, {NSLOT*32768-1}, {v(vCur)}")
        P(f"s_add_u32 {s(sNeed)}, {s(sNeed)}, 1")
    def free_write():
        P(f"ds_write_b32 {v(vWrFree)}, {v(vFV)}"); P(f"v_add_u32 {v(vFV)}, 1, {v(vFV)}")
    def full_publish(cnt, delta):
        P(f"s_add_u32 {s(sT)}, {s(sLd)}, {delta & 0xffffffff}" if delta else f"s_mov_b32 {s(sT)}, {s(sLd)}")
        P(f"v_mov_b32 {v(vFullV)}, {s(sT)}")
        if callable(cnt): cnt()
        else: P(f"s_waitcnt vmcnt({cnt})")
        P(f"ds_write_b32 {v(vWrFull)}, {v(vFullV)}")
    def mfA(par, i, role):
        S = vS + 16*(1-par)
        return f"v_mfma_f32_32x32x16_bf16 {v(S,16)}, {v(vF+4*i,4)}, {v(vq(role,i),4)}, {v(vNM,16) if i == 0 else v(S,16)}"
    def mfC(par, i):
        db, t = i // 2, i % 2
        return f"v_mfma_f32_32x32x16_bf16 {v(vO+16*db,16)}, {v(vF+4*i,4)}, {v(vP+8*(1-par)+4*t,4)}, {v(vO+16*db,16)}"
    def period(par, role):
        R = f"{name}_{role}"
        ops = [] if X_NOVALU else softmax_ops(par)
        extra = {n: [] for n in range(16)}
        if par == 0:
            extra[0].append((8, free_write))
            if role == "lo":
                extra[1].append((4, lambda: P(f"ds_read_b32 {v(vCV)}, {v(vRdFree)}")))
                extra[4].append((8, lambda: (P(f"s_sub_u32 {s(sTa)}, {s(sLd)}, 3"), ctl_cmp(sTa))))
                extra[5].append((4, lambda: ctl_check(vRdFree, sTa, f"{R}_spF", False)))
                period.dq = dma_ops()
                if DSPR:
                    for i in range(4): extra[6 + 3*i].append((4, period.dq[i]))
                else:
                    for i, f in enumerate(period.dq): extra[6 + i].append((4, f))
        else:
            if role == "lo" and DSPR:
                extra[0].append((16, lambda: full_publish(4, 0)))
                for i in range(4, 9): extra[min(3*(i-3), 13) + (1 if i == 8 else 0)].append((4, period.dq[i]))
            elif role == "lo": extra[0].append((16, lambda: full_publish(8, -1)))
            extra[2].append((4, lambda: P(f"ds_read_b32 {v(vCV)}, {v(vRdFull)}")))
            extra[14-PD].append((4, lambda: ctl_cmp(sNeed)))
            extra[15-PD].append((16, lambda: (ctl_check(vRdFull, sNeed, f"{R}_spU", False), advance())))
        if E("X_NOCHK"): ops = [o for o in ops if "v_cmp" not in o[1]]
        k = 0
        carry = 0.0
        for n in range(16):
            if n % 2 == 0 and WAIT2: P.needr(v(vF+4*(n%8),4), v(vF+4*((n+1)%8),4))
            P(mfA(par, n, role) if n < 8 else mfC(par, n - 8))
            used = 4 + (4 if n % 2 == 1 else 0) + sum(c for c, _ in extra[n])
            m = n + PD
            pre = [f for c, f in extra[n]]
            if par == 1 and n == 15-PD:
                P(frag_read(m, par))
                for f in pre: f()
            else:
                P(frag_read(m, par) if m < 16 else frag_read(m - 16, 1 - par))
                for f in pre: f()
            rem_cost = sum(c for c, _ in ops[k:])
            cap = CAP
            if n == 14: cap = 1e9
            while k < len(ops) and n < 15 and (used + ops[k][0] <= cap + carry or rem_cost > (14 - n) * 18):
                P(ops[k][1]); used += ops[k][0]; rem_cost -= ops[k][0]; k += 1
            carry = 0.0
        assert k == len(ops)
        if E("X_NOCHK"): P.label(f"{name}_{role}_fbrm{par}")
        else: check(par, role, "m")
    def epilogue(role, mid=None):
        P(f"v_mov_b32 {v(vFV)}, {BIG}"); P(f"ds_write_b32 {v(vWrFree)}, {v(vFV)}")
        if mid: mid()
        P(f"v_mov_b32 {v(vMX2)}, {v(vLsum)}")
        P(f"v_permlane32_swap_b32 {v(vLsum)}, {v(vMX2)}")
        P(f"v_add_f32 {v(vLsum)}, {v(vLsum)}, {v(vMX2)}"); P(f"v_rcp_f32 {v(vLsum)}, {v(vLsum)}")
        bfe(P, T0, 4, 1); bfe(P, T1, 0, 4); P(f"v_lshlrev_b32 {v(T1)}, 4, {v(T1)}"); P(f"v_lshl_add_u32 {v(T0)}, {v(T0)}, 10, {v(T1)}")
        bfe(P, T1, 5, 1); P(f"v_lshl_add_u32 {v(vD)}, {v(T1)}, 8, {v(T0)}")
        P(f"s_lshr_b32 {s(sT)}, {s(sRow0)}, 6"); P(f"s_lshl_b32 {s(sT)}, {s(sT)}, 19"); P(f"s_lshl_b32 {s(sT2)}, {s(sH)}, 14"); P(f"s_add_u32 {s(sT)}, {s(sT)}, {s(sT2)}")
        P(f"s_and_b32 {s(sT2)}, {s(sRow0)}, 32"); P(f"s_lshl_b32 {s(sT2)}, {s(sT2)}, 6"); P(f"s_add_u32 {s(sT)}, {s(sT)}, {s(sT2)}")
        P(f"s_add_u32 {s(sSt)}, {s(sT)}, {CTX}")
        for db in range(4):
            if mid and (db == 2 or (EPI2 == 2 and db in (1, 3))): mid()
            for i in range(16): P(f"v_mul_f32 {v(vO+16*db+i)}, {v(vLsum)}, {v(vO+16*db+i)}")
            for i in range(8): P(f"v_cvt_pk_bf16_f32 {v(vS+8*db+i)}, {v(vO+16*db+2*i)}, {v(vO+16*db+2*i+1)}")
            for u in range(2): P(f"buffer_store_dwordx4 {v(vS+8*db+4*u,4)}, {v(vD)}, {s(sWS,4)}, {s(sSt)} offen offset:{u*512} {ST}", "ctx")
            if db < 3: P(f"s_add_u32 {s(sSt)}, {s(sSt)}, 4096")
    def wave_flag(fn_off, tag):
        fn_off()
        P(f"v_mov_b32 {v(T0)}, {s(sNON)}"); P(f"v_mov_b32 {v(T1)}, {s(sNON+1)}"); P(f"v_mov_b32 {v(T2)}, 0")
        P.wait_tag(lambda t: t == tag)
        P("s_mov_b64 exec, 1")
        P(f"buffer_store_dwordx2 {v(T0,2)}, {v(T2)}, {s(sWS,4)}, {s(sT)} offen sc1", "flag")
        P("s_mov_b64 exec, -1")
    def ctx_off():
        P(f"s_lshl_b32 {s(sT)}, {s(sJL)}, 8"); P(f"s_lshl_b32 {s(sT2)}, {s(sH)}, 3"); P(f"s_add_u32 {s(sT)}, {s(sT)}, {s(sT2)}"); P(f"s_add_u32 {s(sT)}, {s(sT)}, {FC}")
    def loader_iter(lab):
        P(f"s_cmp_gt_u32 {s(sLd)}, {s(sU)}"); P(f"s_cbranch_scc1 {lab}_skip")
        st = P.state()
        P(f"ds_read_b32 {v(vCV)}, {v(vRdFree)}")
        P(f"s_sub_u32 {s(sTa)}, {s(sLd)}, 3")
        ctl_check(vRdFree, sTa, lab)
        dma_stage(gap=DGAP1)
        n = dma_ops.n
        full_publish(lambda: P.wait_tag(lambda t: isinstance(t, tuple) and t[0] == "kv" and t[1] <= n - 2), -1)
        st2 = P.state()
        P.label(f"{lab}_skip")
        P.set_state(merge_states(st, st2))
    for role in ("hi", "lo"):
        R = f"{name}_{role}"
        P.set_state(entry)
        for par in (0, 1):
            P.label(f"{R}_{'EO'[par]}")
            P(f"s_sub_u32 {s(sCNT)}, {s(sCNT)}, 1"); P(f"s_cbranch_scc1 {R}_sp{par}")
            P.label(f"{R}_go{par}")
            period(par, role)
            st = P.state()
            assert X_NOLDS or [sorted(x) for x in st[0]] == [sorted(x) for x in entry[0]], (st[0], entry[0])
        P(f"s_branch {R}_E")
        for par in (0, 1):
            P.set_state(entry); fallback(par, role, "m")
        for par in (0, 1):
            P.set_state(entry)
            P.label(f"{R}_sp{par}")
            if role == "lo" and ERT and par == 0:
                P(f"s_cmp_lg_u32 {s(sSEC)}, 2"); P(f"s_cbranch_scc1 {R}_spn")
                P(f"s_mov_b32 {s(sSEC)}, 0"); P(f"s_sub_u32 {s(sCNT)}, {s(sJL)}, {6 + 2}")
                P(f"s_lshl_b32 {s(sT)}, {s(sAW)}, 3"); P(f"s_add_u32 {s(sT)}, {s(sT)}, {FA}")
                P(f"v_mov_b32 {v(T0)}, {s(sNON)}"); P(f"v_mov_b32 {v(T1)}, {s(sNON+1)}"); P(f"v_mov_b32 {v(T2)}, 0")
                P("s_mov_b64 exec, 1")
                P.raw(f"buffer_store_dwordx2 {v(T0,2)}, {v(T2)}, {s(sWS,4)}, {s(sT)} offen sc1")
                P("s_mov_b64 exec, -1")
                P(f"s_branch {R}_go{par}")
                P.label(f"{R}_spn")
            if role == "hi" and WOPF >= 0 and par == WOPF % 2:
                P(f"s_cmp_lg_u32 {s(sSEC)}, 2"); P(f"s_cbranch_scc1 {R}_spn")
                P(f"s_mov_b32 {s(sSEC)}, 0"); P(f"s_sub_u32 {s(sCNT)}, {s(sJL)}, {WOPF + 2}")
                P(f"s_lshl_b32 {s(sT)}, s2, 2"); P(f"s_add_u32 {s(sT)}, {s(sT)}, {s(sWV)}"); P(f"s_mul_i32 {s(sT2)}, {s(sT)}, 5120")
                for i in range(5):
                    if i == 4: P(f"s_add_u32 {s(sT2)}, {s(sT2)}, 4096")
                    P.raw(f"buffer_load_dwordx4 v[208:211], {v(vL16)}, {s(sWO,4)}, {s(sT2)} offen offset:{(i%4)*1024}")
                P(f"s_lshl_b32 {s(sT2)}, {s(sT)}, 10")
                P.raw(f"buffer_load_dwordx4 v[208:211], {v(vL16)}, {s(sBWO,4)}, {s(sT2)} offen")
                P(f"s_branch {R}_go{par}")
                P.label(f"{R}_spn")
            P(f"s_cmp_lg_u32 {s(sSEC)}, 0"); P(f"s_cbranch_scc1 {R}_tail{par}")
            P(f"s_mov_b32 {s(sSEC)}, 1"); P(f"s_mov_b32 {s(sCNT)}, 0")
            mask_nm()
            P(f"s_branch {R}_go{par}")
        for par in (0, 1):
            P.set_state(entry)
            P.label(f"{R}_tail{par}")
            P("s_waitcnt lgkmcnt(0)")
            if par == 0: free_write()
            for n in range(8, 16): P(frag_read(n, par))
            if par == 1: P(f"ds_read_b32 {v(vCV)}, {v(vRdFull)}")
            if role == "lo" and par == 1:
                if DSPR:
                    for f in dma_ops()[4:]: f()
                full_publish(8, -1)
            interleave(P, [mfC(par, i) for i in range(8)], [o for c, o in softmax_ops(par)])
            check(par, role, "t")
            if par == 1:
                ctl_check(vRdFull, sNeed, f"{R}_spT"); advance()
            for n in range(8, 16): P(frag_read(n, 1 - par))
            for i in range(8): P(mfC(1 - par, i))
            P(f"s_branch {R}_epi")
            fallback(par, role, "t")
        emit_spins()
        P.label(f"{R}_epi")
        P.lq = []
        dma_ops.n = 10
        P.vq = [(set(), ("kv", 8))]*8 + [(set(), ("kv", 9))]*8 if role == "lo" else []
        SP(idx=sidx)
        if X_PRIO == role and E("PRIO0", "2") == "1": P("s_setprio 0")
        it = [0]
        def li(n=1):
            for _ in range(n):
                it[0] += 1; loader_iter(f"{R}_ld{it[0]}")
        epilogue(role, li if (role == "lo" and EPI2) else None)
        SP()
        if role == "hi":
            ctx["hiflag"] = lambda: wave_flag(ctx_off, "ctx")
            ctx["hi_state"] = P.state()
            P(f"s_branch {name}_att_done")
        else:
            bc = battn_chunks(ctx, 0)
            bc[0]()
            def aux_off():
                P(f"s_lshl_b32 {s(sT)}, {s(sAW)}, 3"); P(f"s_add_u32 {s(sT)}, {s(sT)}, {FA}")
            if not ERT:
                P(f"s_lshl_b32 {s(sAW)}, s2, 2"); P(f"s_add_u32 {s(sAW)}, {s(sAW)}, {s(sWV)}"); P(f"s_sub_u32 {s(sAW)}, {s(sAW)}, {4 + 128*RG0}")
                P(f"s_sub_u32 {s(sT)}, {s(sG)}, {RG0}"); P(f"s_cmp_ge_u32 {s(sT)}, {AUXG}"); P(f"s_cbranch_scc1 {R}_nort")
                stx = P.state(); nx = dma_ops.n
                r = [retile_chunks(ctx, i) for i in range(3)]
                r[0][0](); li(RSP)
                r[0][1](); r[1][0](); li(RSP)
                r[1][1](); r[2][0](); li(RSP)
                wave_flag(ctx_off, "ctx")
                r[2][1](); li(2)
                def aux_off():
                    P(f"s_lshl_b32 {s(sT)}, {s(sAW)}, 3"); P(f"s_add_u32 {s(sT)}, {s(sT)}, {FA}")
                wave_flag(aux_off, "aux")
                P.needr(v(0, 4))
                P(f"s_branch {R}_rtj")
                P.label(f"{R}_nort"); P.set_state(stx); dma_ops.n = nx
            li(NLF)
            wave_flag(ctx_off, "ctx")
            P.needr(v(0, 4))
            if not ERT: P.label(f"{R}_rtj")
            dma_ops.n += 20
            P.vq = [(set(), ("kv", dma_ops.n - 1))]; P.lq = []
            bc[1]()
            if BMID:
                li(1); bc[2](); li(1); bc[3](); li(1); bc[4](); li(1); bc[5]()
            if E("PRIO0", "2") == "2": P("s_setprio 0")
            P(f"s_sub_u32 {s(sAM)}, {s(sU)}, {BEARLY}")
            P.label(f"{R}_rest")
            P(f"s_cmp_gt_u32 {s(sLd)}, {s(sAM)}"); P(f"s_cbranch_scc1 {R}_fin")
            P(f"ds_read_b32 {v(vCV)}, {v(vRdFree)}")
            P(f"s_sub_u32 {s(sTa)}, {s(sLd)}, 3")
            ctl_check(vRdFree, sTa, f"{R}_ldr")
            if PROF: P.raw("s_memtime s[96:97]"); P.raw("s_waitcnt lgkmcnt(0)"); P.raw("s_sub_u32 s3, s3, s96")
            if MIDP >= 0: dma_stage(gap=DGAP, mid=lambda: full_publish(MIDP + 1, 0))
            else:
                dma_stage(gap=DGAP)
                full_publish(8, -1)
            if PROF and not E("TDMA"): P.raw("s_memtime s[96:97]"); P.raw("s_waitcnt lgkmcnt(0)"); P.raw("s_add_u32 s3, s3, s96")
            P(f"s_branch {R}_rest")
            P.label(f"{R}_fin")
            if BEARLY:
                dma_ops.n += 20
                P.vq = [(set(parse_reg(v(48, 10))), ["bst", ("kv", dma_ops.n - 1)])]; P.lq = []
                bc[2](); li(1); bc[3](); li(BEARLY - 1)
                bc = bc[:2] + [lambda: None]*2 + bc[4:]
            full_publish(0, 0); P.vq = []
            P(f"s_mov_b32 {s(sT)}, {FA}")
            for i in range(4): P(f"buffer_load_dwordx4 {v(16+4*i,4)}, {v(vL16)}, {s(sWS,4)}, {s(sT)} offen offset:{i*1024} sc1")
            import outp
            if L2W: outp.fc_request(P, 4)
            LP = int(E("L2P", "4"))
            for f in bc[2:LP]: f()
            if L2W and LP == 4: P.wait_tag(lambda t: t == "bst")
            if L2W:
                P.needr(v(4, 2), v(16, 16))
                outp.l2_warm(P, name)
            for f in bc[LP:]: f()
            P(f"s_mov_b32 {s(sT)}, {FA}"); P(f"s_mov_b32 {s(sT2)}, {int(E('POLLMAX', '0x40000'), 0)}")
            P.needr(v(16, 16))
            st = P.state()
            P(f"s_branch {name}_pollA_c")
            P.label(f"{name}_pollA")
            for i in range(4): P(f"buffer_load_dwordx4 {v(16+4*i,4)}, {v(vL16)}, {s(sWS,4)}, {s(sT)} offen offset:{i*1024} sc1")
            P("s_waitcnt vmcnt(0)")
            P.label(f"{name}_pollA_c")
            for i in range(16): P(f"v_xor_b32 {v(16+i)}, {s(sNON + i%2)}, {v(16+i)}")
            for i in range(1, 15, 2): P(f"v_or3_b32 v16, v16, {v(16+i)}, {v(17+i)}")
            P("v_or_b32 v16, v16, v31")
            P("v_cmp_ne_u32 vcc, 0, v16"); P(f"s_cbranch_vccz {name}_pollA_ok")
            P("s_sleep 4"); P(f"s_sub_u32 {s(sT2)}, {s(sT2)}, 1"); P(f"s_cmp_lg_u32 {s(sT2)}, 0"); P(f"s_cbranch_scc1 {name}_pollA")
            P.label(f"{name}_pollA_ok")
            P.set_state(st)
            import outp
            outp.wof_prefetch(P)
            ctx["lo_state"] = P.state()
            def b_off():
                P(f"s_lshl_b32 {s(sT)}, s2, 2"); P(f"s_add_u32 {s(sT)}, {s(sT)}, {s(sWV)}"); P(f"s_lshl_b32 {s(sT)}, {s(sT)}, 3"); P(f"s_add_u32 {s(sT)}, {s(sT)}, {FB - 32}")
            ctx["bflag"] = lambda: wave_flag(b_off, "aux")
            P(f"s_branch {name}_att_done")
            emit_spins()
    P.label(f"{name}_att_done")
    if PROF:
        P.raw(f"v_writelane_b32 {v(vSTAMP)}, s98, 20"); P.raw(f"v_writelane_b32 {v(vSTAMP)}, s7, 21"); P.raw(f"v_writelane_b32 {v(vSTAMP)}, s3, 22")
    P.vq = []; P.lq = []
    SP()
    import outp
    outp.gen_out(ctx)
```

```python
from common import *
import math
ST = os.environ.get("ST", "sc1")
LD = os.environ.get("LD", "sc1")
STOP = os.environ.get("STOP", "")
FK, FQ, FA, FC, FB = 70*MB, 70*MB + 4096, 70*MB + 8192, 70*MB + 16384, 70*MB + 32768
KVT = int(os.environ.get("KVT", "1"))
WSB = int(os.environ.get("WSB", "0")) * MB
Q34 = int(os.environ.get("Q34", "1"))
K16 = int(os.environ.get("K16", "1"))
KVP = int(os.environ.get("KVP", "0"))
HIDMA = int(os.environ.get("HIDMA", "1"))
SQK = int(os.environ.get("SQK", "1"))
STAG = int(os.environ.get("STAG", "1"))
QSPREAD = int(os.environ.get("QSPREAD", "1"))
PF1 = int(os.environ.get("PF1", "1")); PF2 = int(os.environ.get("PF2", "10"))
QSCALE = math.log2(math.e) / math.sqrt(128.0)
import struct
def fbits(x): return "0x%08x" % struct.unpack("<I", struct.pack("<f", x))[0]

sCKV, sWKV, sWS, sBX, sBW, sAX, sWQ, sWO, sBWO, sOUT, sDBG = 8, 12, 16, 20, 24, 28, 32, 36, 40, 44, 48
sX, sJ, sWV, sT, sT2, sTa, sTw, sM4, sM2 = 52, 53, 54, 55, 56, 57, 58, 59, 60
sOffA, sOffW, sOutKV, sOffBA, sOffBW, sOutB, sSt = 61, 62, 63, 4, 5, 66, 67
sOffX, sOffQW, sH, sG, sRow0, sJL, sREM, sNB = 68, 69, 70, 71, 72, 73, 74, 75
sSlot, sDOff, sDIdx, sDLim, sDBase, sTHR, sDM0 = 76, 77, 78, 79, 80, 81, 82
sNON = 84
sU0, sU1, sU2, sU3 = 86, 87, 88, 89
sM = 90
sFK, sFQ, sISV, sPF, sOffX2 = 94, 95, 83, 6, 99
sSTAMP = 96
vL16, vTID, vSTAMP = 240, 241, 255
T0, T1, T2, T3 = 242, 243, 244, 245

class Stamp:
    def __init__(self, P): self.P = P; self.n = 0
    def __call__(self, real=False, idx=None):
        if not PROF: return
        if idx is not None: self.n = idx
        if os.environ.get("RT"): real = True
        P = self.P
        P.raw(f"{'s_memrealtime' if real else 's_memtime'} {s(sSTAMP,2)}"); P("s_waitcnt lgkmcnt(0)")
        P.raw(f"v_writelane_b32 {v(vSTAMP)}, {s(sSTAMP)}, {self.n}")
        if os.environ.get("STOPAT") == str(self.n): P.raw("s_waitcnt vmcnt(0)"); P.raw("s_branch L_stop")
        self.n += 1
    def flush(self):
        if not PROF: return
        P = self.P
        if os.environ.get("DBGOUT"):
            P.raw(f"s_cmp_lg_u32 s2, {os.environ['DBGOUT']}"); P.raw("s_cbranch_scc1 L_nodbg"); P.raw(f"s_cmp_lg_u32 {s(sWV)}, 0"); P.raw("s_cbranch_scc1 L_nodbg")
            P.raw(f"v_readlane_b32 s3, {v(vSTAMP)}, 0"); P.raw("s_nop 3"); P.raw(f"v_subrev_u32 {v(T0)}, s3, {v(vSTAMP)}")
            P.raw(f"v_lshrrev_b32 {v(T1)}, 2, {v(vL16)}"); P.raw("s_mov_b64 exec, 0x3ffe"); P.raw("s_nop 1")
            P.raw(f"buffer_store_dword {v(T0)}, {v(T1)}, {s(sDBG,4)}, 0 offen offset:4")
            P.raw("s_mov_b64 exec, -1")
            P.raw("L_nodbg:")
            return
        P.raw(f"s_lshl_b32 s3, s2, 3"); P.raw(f"s_add_u32 s3, s3, {s(sWV)}"); P.raw("s_lshl_b32 s3, s3, 8")
        P.raw(f"s_add_u32 s3, s3, {PROFOFF}")
        P.raw(f"v_lshrrev_b32 {v(T0)}, 2, {v(vL16)}"); P.raw("s_nop 1")
        P.raw(f"buffer_store_dword {v(vSTAMP)}, {v(T0)}, {s(sWS,4)}, s3 offen")

_m = {"c": sCKV, "w": sWKV, "x": sAX, "q": sWQ, "b": sBX, "v": sBW, "o": sWO}
NT = {_m[c]: "nt" for c in os.environ.get("NT", "w")}
NTP = {_m[c]: "nt" for c in os.environ.get("NTP", "")}
def bfe(P, dst, off, n): P(f"v_bfe_u32 {v(dst)}, {v(vTID)}, {off}, {n}")

def act_voff(P, dst, i, stride):
    bfe(P, T0, 4, 2)
    if i % 2: P(f"v_xor_b32 {v(T0)}, 4, {v(T0)}")
    bfe(P, T1, 0, 3); P(f"v_xor_b32 {v(T0)}, {v(T0)}, {v(T1)}"); P(f"v_lshlrev_b32 {v(T0)}, 4, {v(T0)}")
    bfe(P, T1, 3, 3)
    P(f"v_mul_u32_u24 {v(T1)}, {stride}, {v(T1)}")
    P(f"v_add_u32 {v(T0)}, {v(T0)}, {v(T1)}")
    P(f"v_add_u32 {v(dst)}, {8*i*stride - i*1024}, {v(T0)}")
def w256_voff(P, dst, i, stride):
    bfe(P, T0, 4, 2); bfe(P, T1, 2, 2)
    P(f"v_xor_b32 {v(T1)}, {v(T1)}, {v(T0)}"); P(f"v_lshlrev_b32 {v(T1)}, 6, {v(T1)}")
    bfe(P, T2, 0, 2); P(f"v_lshl_add_u32 {v(T1)}, {v(T2)}, 4, {v(T1)}")
    P(f"v_mul_u32_u24 {v(T0)}, {stride}, {v(T0)}")
    P(f"v_add_u32 {v(T1)}, {v(T1)}, {v(T0)}")
    P(f"v_add_u32 {v(dst)}, {4*i*stride - i*1024}, {v(T1)}")
def w512_voff(P, dst, i, stride_log):
    bfe(P, T2, 5, 1)
    P(f"v_add_u32 {v(T0)}, {2*i}, {v(T2)}")
    bfe(P, T1, 2, 3); P(f"v_xor_b32 {v(T1)}, {v(T1)}, {v(T0)}"); P(f"v_lshlrev_b32 {v(T1)}, 6, {v(T1)}")
    bfe(P, T0, 0, 2); P(f"v_lshl_add_u32 {v(T1)}, {v(T0)}, 4, {v(T1)}")
    P(f"v_lshl_add_u32 {v(T1)}, {v(T2)}, {stride_log}, {v(T1)}")
    P(f"v_add_u32 {v(dst)}, {(2*i << stride_log) - i*1024}, {v(T1)}")
def w512_voff16(P, dst, i, stride_log, sb3):
    bfe(P, T2, 5, 1)
    P(f"v_add_u32 {v(T0)}, {2*i}, {v(T2)}"); P(f"v_lshl_add_u32 {v(T0)}, {v(T0)}, 2, {sb3}")
    bfe(P, T1, 0, 5); P(f"v_xor_b32 {v(T1)}, {v(T1)}, {v(T0)}"); P(f"v_lshlrev_b32 {v(T1)}, 4, {v(T1)}")
    P(f"v_lshl_add_u32 {v(T1)}, {v(T2)}, {stride_log}, {v(T1)}")
    P(f"v_add_u32 {v(dst)}, {(2*i << stride_log) - i*1024}, {v(T1)}")
def act_raddr16(P, dst, ks, sbase):
    bfe(P, T0, 4, 2); P(f"v_add_u32 {v(T0)}, {4*ks}, {v(T0)}"); bfe(P, T1, 1, 3)
    P(f"v_xor_b32 {v(T0)}, {v(T0)}, {v(T1)}"); P(f"v_lshlrev_b32 {v(T0)}, 4, {v(T0)}")
    bfe(P, T1, 0, 4); P(f"v_lshl_add_u32 {v(T0)}, {v(T1)}, 7, {v(T0)}")
    P(f"v_add_u32 {v(dst)}, {sbase}, {v(T0)}")
def w_raddr16(P, dst, blk, rowlog, base):
    bfe(P, T0, 2, 2); bfe(P, T2, 4, 1); P(f"v_lshl_add_u32 {v(T1)}, {v(T0)}, 1, {v(T2)}")
    P(f"v_xor_b32 {v(T1)}, {blk}, {v(T1)}"); P(f"v_lshlrev_b32 {v(T1)}, 5, {v(T1)}")
    bfe(P, T2, 4, 2); P(f"v_lshl_add_u32 {v(T0)}, {v(T2)}, 3, {v(T0)}"); P(f"v_lshl_add_u32 {v(T1)}, {v(T0)}, {rowlog}, {v(T1)}")
    bfe(P, T0, 0, 2); P(f"v_lshl_add_u32 {v(T1)}, {v(T0)}, 3, {v(T1)}")
    P(f"v_add_u32 {v(dst)}, {base}, {v(T1)}")
def act_raddr(P, dst, ks, sbase):
    bfe(P, T0, 5, 1); P(f"v_add_u32 {v(T0)}, {2*ks}, {v(T0)}"); bfe(P, T1, 1, 3)
    P(f"v_xor_b32 {v(T0)}, {v(T0)}, {v(T1)}"); P(f"v_lshlrev_b32 {v(T0)}, 4, {v(T0)}")
    bfe(P, T1, 0, 5); P(f"v_lshl_add_u32 {v(T0)}, {v(T1)}, 7, {v(T0)}")
    P(f"v_add_u32 {v(dst)}, {sbase}, {v(T0)}")
def w_raddr(P, dst, unit, rowlog, base):
    bfe(P, T0, 2, 2); P(f"v_xor_b32 {v(T1)}, {unit}, {v(T0)}"); P(f"v_lshlrev_b32 {v(T1)}, 6, {v(T1)}")
    bfe(P, T2, 5, 1); P(f"v_lshl_add_u32 {v(T0)}, {v(T2)}, 3, {v(T0)}"); P(f"v_lshl_add_u32 {v(T1)}, {v(T0)}, {rowlog}, {v(T1)}")
    bfe(P, T0, 4, 1); P(f"v_lshl_add_u32 {v(T1)}, {v(T0)}, 5, {v(T1)}")
    bfe(P, T0, 0, 2); P(f"v_lshl_add_u32 {v(T1)}, {v(T0)}, 3, {v(T1)}")
    P(f"v_add_u32 {v(dst)}, {base}, {v(T1)}")

def gen(P, name):
    kernel_start(P, name, 256)
    SP = Stamp(P)
    if PROF: P.raw("s_memrealtime s[98:99]")
    P(f"s_load_dwordx16 s[64:79], s[0:1], 0"); P(f"s_load_dwordx8 s[80:87], s[0:1], 64")
    P(f"v_mov_b32 {v(vTID)}, v0")
    P(f"v_lshrrev_b32 v1, 6, v0")
    P(f"s_and_b32 {s(sX)}, s2, 7"); P(f"s_lshr_b32 {s(sJ)}, s2, 3")
    P(f"v_readfirstlane_b32 {s(sWV)}, v1")
    P(f"v_and_b32 v1, 63, v0"); P(f"v_lshlrev_b32 {v(vL16)}, 4, v1")
    vA, vA2, vW, voffA, voffW, voffBA, voffBW, vBA, vBW, vBAc, vBWc = 10, 14, 18, 20, 24, 26, 28, 32, 36, 37, 41
    voffX, voffQW, vXr, vQWr, vXc = 10, 14, 16, 24, 0
    vPF = 60
    for i in range(4): act_voff(P, voffA + i, i, 1024)
    if K16:
        P(f"s_and_b32 {s(sT)}, {s(sWV)}, 2")
        for i in range(2): w512_voff16(P, voffW + i, i, 13, s(sT))
    else:
        for i in range(2): w512_voff(P, voffW + i, i, 13)
    sMT, sNT, sH0 = sU2, sU3, 3
    P(f"s_and_b32 {s(sMT)}, {s(sJ)}, 7"); P(f"s_lshr_b32 {s(sNT)}, {s(sJ)}, 3")
    P(f"s_lshl_b32 {s(sM4)}, {s(sWV)}, 12"); P(f"s_lshl_b32 {s(sM2)}, {s(sWV)}, 11")
    P(f"s_and_b32 {s(sH0)}, {s(sNT)}, 1"); P(f"s_lshl_b32 {s(sH0)}, {s(sH0)}, 1"); P(f"s_lshl_b32 {s(sT2)}, {s(sX)}, 2"); P(f"s_add_u32 {s(sH0)}, {s(sH0)}, {s(sT2)}")
    P(f"s_lshl_b32 {s(sOffW)}, {s(sH0)}, 8"); P(f"s_lshl_b32 {s(sT2)}, {s(sWV)}, 15"); P(f"s_add_u32 {s(sOffW)}, {s(sOffW)}, {s(sT2)}")
    P(f"s_lshl_b32 {s(sOffA)}, {s(sMT)}, 18"); P(f"s_add_u32 {s(sOffA)}, {s(sOffA)}, {s(sT2)}")
    P("s_waitcnt lgkmcnt(0)")
    if os.environ.get("STOPAT") in ("1", "2"): make_srd(P, sWS, 86, SZ["ws"])
    SP(True)
    if PROF: P.raw(f"v_writelane_b32 {v(vSTAMP)}, s98, 0")
    SP()
    if PROF: P.raw(f"v_writelane_b32 {v(vSTAMP)}, s98, 0")
    make_srd(P, sCKV, 66, SZ["A_ckv"])
    P(f"s_cmp_ge_u32 {s(sNT)}, 2")
    P(f"s_cselect_b32 {s(sWKV)}, s72, s70"); P(f"s_cselect_b32 {s(sWKV+1)}, s73, s71")
    P(f"s_mov_b32 {s(sWKV+2)}, {SZ['A_wuk']}"); P(f"s_mov_b32 {s(sWKV+3)}, 0x20000")

    ASLOT = [0, 32768, 65536]; WSLOT = [98304 + 16384*i for i in range(4)]
    BSLOT = [65536, 0, 98304, 32768, 131072]
    XSLOT = [65536, 0, 32768, 131072]; QSLOT = [98304, 114688]
    if Q34: XSLOT = [65536, 0, 32768]; QSLOT = [98304 + 16384*i for i in range(4)]
    NX, NQW = len(XSLOT), len(QSLOT)
    gid = [0]
    def guard(hi, fn, sim=True):
        gid[0] += 1; lab = f"{name}_g{gid[0]}"
        P(f"s_cmp_lt_u32 {s(sWV)}, 4"); P(f"s_cbranch_scc{0 if hi else 1} {lab}")
        st = P.state(); fn(); P.label(lab)
        if not sim: P.set_state(st)
    def dma1(voff, srd, soff_reg, soff_base, soff_add, m0base, m0add, part, tag):
        P(f"s_add_u32 m0, {s(m0base)}, {m0add}")
        P(f"s_add_u32 {s(soff_reg)}, {s(soff_base)}, {soff_add}")
        for i in part: P(f"buffer_load_dwordx4 {v(voff+i)}, {s(srd,4)}, {s(soff_reg)} offen offset:{i*1024} {NT.get(srd, '')} lds", tag)
    dup = [bool(HIDMA)]
    DUP = {sOffA: 4 << 15, sOffW: 4 << 15, sOffBA: 4*16*1280, sOffBW: 4*8*3840, sOffQW: 4 << 16}
    def dma(voff, srd, soff_reg, soff_base, soff_add, m0base, m0add, part, tag):
        if not dup[0]: return dma1(voff, srd, soff_reg, soff_base, soff_add, m0base, m0add, part, tag)
        def f():
            dma1(voff, srd, soff_reg, soff_base, soff_add, m0base, m0add, part, tag)
            if soff_base == sOffX: return dma1(voff, srd, soff_reg, sOffX2, soff_add, m0base, m0add + 16384, part, tag)
            dma1(voff, srd, soff_reg, soff_base, soff_add + DUP[soff_base], m0base, m0add + (16384 if m0base == sM4 else 8192), part, tag)
        if HIDMA == 2:
            hi = soff_base in (sOffW, sOffBW)
            if hi: guard(True, f)
            else:
                def g():
                    dma1(voff, srd, soff_reg, soff_base, soff_add, m0base, m0add, part, tag)
                    dma1(voff, srd, soff_reg, soff_base, (soff_add - DUP[soff_base]) & 0xffffffff, m0base, (m0add - (16384 if m0base == sM4 else 8192)) & 0xffffffff, part, tag)
                as_lo(lambda: guard(False, g))
            return
        guard(True, f)
    loq = []
    def as_lo(fn):
        nonlocal loq
        keep = P.vq; P.vq = loq; fn(); loq = P.vq; P.vq = keep
    def wait2(pred):
        if HIDMA != 2: return P.wait_tag(pred)
        def has(q): return any((any(pred(x) for x in tg) if isinstance(tg, list) else pred(tg)) for _, tg in q)
        if has(P.vq): guard(True, lambda: P.wait_tag(pred))
        if has(loq): as_lo(lambda: guard(False, lambda: P.wait_tag(pred)))
    def dma_act(st, part=range(4)): dma(voffA, sCKV, sTa, sOffA, st*128, sM4, ASLOT[st%3], part, ("A", st))
    def dma_w(h): dma(voffW, sWKV, sTw, sOffW, h*32*8192, sM2, WSLOT[h%4], range(2), ("W", h))
    def dma_b(st, half=None, part=range(2)):
        if half != 1: dma(voffBA, sBX, sTa, sOffBA, st*128, sM2, BSLOT[st%5], part, ("B", st))
        if half != 0: dma(voffBW, sBW, sTw, sOffBW, st*64*3840, sM2, BSLOT[st%5]+16384, part, ("B", st))
    def dma_x(st, part=range(4)): dma(voffX, sAX, sTa, sOffX, st*128, sM4, XSLOT[st%NX], part, ("X", st))
    def dma_qw(st, part=range(2)): dma(voffQW, sWQ, sTw, sOffQW, st*64*8192, sM2, QSLOT[st%NQW], part, ("Q", st))
    dma_w(0); dma_act(0)
    P("s_barrier")
    dma_w(1)
    P(f"s_and_b32 {s(sT)}, {s(sWV)}, 1"); P(f"s_lshl_b32 {s(sT2)}, {s(sT)}, 14")
    vW16, vKVo = 16, 43
    if K16:
        for ks in range(2): act_raddr16(P, vA + ks, ks, s(sT2))
        P(f"s_and_b32 {s(sT)}, {s(sWV)}, 6"); P(f"s_lshl_b32 {s(sT)}, {s(sT)}, 1")
        for cb in range(4):
            P(f"s_add_u32 {s(sT2)}, {s(sT)}, {cb}")
            w_raddr16(P, vW16 + cb, s(sT2), 9, 98304)
    else:
        for ks in range(4): act_raddr(P, vA + ks, ks, s(sT2))
        P(f"s_and_b32 {s(sT)}, {s(sWV)}, 6")
        for cb in range(2):
            P(f"s_add_u32 {s(sT2)}, {s(sT)}, {cb}")
            w_raddr(P, vW + cb, s(sT2), 9, 98304)
    dma_act(1)
    def record(fn):
        nonlocal P
        PM = P; P = Prog(); P.auto = False
        fn()
        txt = [i.text for i in P.ins]; P = PM
        ch = []
        for x in txt:
            if x.startswith("s_cselect") or x.startswith("s_addc"): ch[-1].append(x)
            else: ch.append([x])
        return ch
    sCB, sTB = 64, 65
    def setup1():
        for ks in range(2 if K16 else 4): P(f"v_add_u32 {v(vA2+ks)}, 0x10000, {v(vA+ks)}")
        if K16:
            bfe(P, T0, 5, 1); bfe(P, T1, 4, 1); P(f"v_lshlrev_b32 {v(T1)}, 9, {v(T1)}"); P(f"v_lshl_add_u32 {v(T0)}, {v(T0)}, 10, {v(T1)}")
            bfe(P, T1, 0, 4); P(f"v_lshl_add_u32 {v(vKVo)}, {v(T1)}, 4, {v(T0)}")
        if WSB:
            P(f"s_add_u32 {s(sWS)}, s86, {WSB}"); P.ins[-1].text += " ; +carry"; P(f"s_addc_u32 {s(sWS+1)}, s87, 0")
            P(f"s_mov_b32 {s(sWS+2)}, {SZ['ws'] - WSB}"); P(f"s_mov_b32 {s(sWS+3)}, 0x20000")
        else: make_srd(P, sWS, 86, SZ["ws"])
        make_srd(P, sBX, 76, SZ["B_x"]); make_srd(P, sBW, 78, SZ["B_wqkv"])
        make_srd(P, sAX, 64, SZ["A_x"]); make_srd(P, sWQ, 68, SZ["A_wq"]); make_srd(P, sWO, 74, SZ["A_wo"])
        make_srd(P, sBWO, 80, SZ["B_wo"]); make_srd(P, sOUT, 82, SZ["out"]); make_srd(P, sDBG, 84, SZ["dbg"])
        P.raw("; NONCE")
        P(f"s_min_u32 {s(sT)}, {s(sJ)}, 29"); P(f"s_and_b32 {s(sT2)}, {s(sX)}, 1"); P(f"s_mul_i32 {s(sT2)}, {s(sT2)}, 30"); P(f"s_add_u32 {s(sT)}, {s(sT)}, {s(sT2)}")
        P(f"s_lshr_b32 {s(sCB)}, {s(sT)}, 2"); P(f"s_and_b32 {s(sTB)}, {s(sT)}, 3")
        P(f"s_lshr_b32 {s(sT2)}, {s(sX)}, 1"); P(f"s_lshl_b32 {s(sT2)}, {s(sT2)}, 2"); P(f"s_add_u32 {s(sTB)}, {s(sTB)}, {s(sT2)}")
        P(f"s_lshl_b32 {s(sT)}, {s(sTB)}, 3"); P(f"s_add_u32 {s(sT)}, {s(sT)}, {s(sWV)}"); P(f"s_mul_i32 {s(sOffBA)}, {s(sT)}, {16*1280}")
        P(f"s_mul_i32 {s(sOffBW)}, {s(sWV)}, {8*3840}"); P(f"s_lshl_b32 {s(sT)}, {s(sCB)}, 8"); P(f"s_add_u32 {s(sOffBW)}, {s(sOffBW)}, {s(sT)}")
        P(f"s_and_b32 {s(sT2)}, {s(sWV)}, 1"); P(f"s_lshl_b32 {s(sT)}, {s(sTB)}, 1"); P(f"s_add_u32 {s(sT)}, {s(sT)}, {s(sT2)}"); P(f"s_mul_i32 {s(sOutB)}, {s(sT)}, {2*120*1024}")
        P(f"s_lshr_b32 {s(sT2)}, {s(sWV)}, 1"); P(f"s_lshl_b32 {s(sT)}, {s(sCB)}, 2"); P(f"s_add_u32 {s(sT)}, {s(sT)}, {s(sT2)}"); P(f"s_lshl_b32 {s(sT)}, {s(sT)}, 11")
        P(f"s_add_u32 {s(sOutB)}, {s(sOutB)}, {s(sT)}"); P(f"s_add_u32 {s(sOutB)}, {s(sOutB)}, {QKV}")
        P(f"s_lshl_b32 {s(sFQ)}, {s(sTB)}, 7"); P(f"s_lshl_b32 {s(sT)}, {s(sCB)}, 3"); P(f"s_add_u32 {s(sFQ)}, {s(sFQ)}, {s(sT)}"); P(f"s_add_u32 {s(sFQ)}, {s(sFQ)}, {FQ}")
        P(f"s_lshl_b32 {s(sFK)}, {s(sH0)}, 6"); P(f"s_lshr_b32 {s(sT2)}, {s(sNT)}, 1"); P(f"s_lshl_b32 {s(sT2)}, {s(sT2)}, 3"); P(f"s_add_u32 {s(sT2)}, {s(sT2)}, {s(sMT)}")
        P(f"s_lshl_b32 {s(sT2)}, {s(sT2)}, 3"); P(f"s_add_u32 {s(sFK)}, {s(sFK)}, {s(sT2)}"); P(f"s_add_u32 {s(sFK)}, {s(sFK)}, {FK}")
        P(f"s_lshr_b32 {s(sT2)}, {s(sWV)}, 2"); P(f"s_add_u32 {s(sT)}, {s(sH0)}, {s(sT2)}"); P(f"s_lshl_b32 {s(sOutKV)}, {s(sT)}, 19")
        P(f"s_lshl_b32 {s(sT)}, {s(sMT)}, 16"); P(f"s_add_u32 {s(sOutKV)}, {s(sOutKV)}, {s(sT)}")
        P(f"s_and_b32 {s(sT)}, {s(sWV)}, 1"); P(f"s_lshl_b32 {s(sT)}, {s(sT)}, 15"); P(f"s_add_u32 {s(sOutKV)}, {s(sOutKV)}, {s(sT)}")
        P(f"s_and_b32 {s(sT)}, {s(sWV)}, 2"); P(f"s_lshl_b32 {s(sT)}, {s(sT)}, 11"); P(f"s_add_u32 {s(sOutKV)}, {s(sOutKV)}, {s(sT)}")
        P(f"s_lshr_b32 {s(sT)}, {s(sNT)}, 1"); P(f"s_lshl_b32 {s(sT)}, {s(sT)}, 24"); P(f"s_add_u32 {s(sOutKV)}, {s(sOutKV)}, {s(sT)}")
        P(f"s_and_b32 {s(sH)}, {s(sJ)}, 3"); P(f"s_lshl_b32 {s(sT)}, {s(sX)}, 2"); P(f"s_add_u32 {s(sH)}, {s(sH)}, {s(sT)}")
        P(f"s_lshr_b32 {s(sG)}, {s(sJ)}, 2")
        P(f"s_lshl_b32 {s(sT)}, {s(sG)}, 2"); P(f"s_add_u32 {s(sT)}, {s(sT)}, {s(sWV)}")
        P(f"s_sub_u32 {s(sT2)}, 63, {s(sT)}"); P(f"s_sub_u32 {s(sT)}, {s(sT)}, 4")
        P(f"s_cmp_lt_u32 {s(sWV)}, 4"); P(f"s_cselect_b32 {s(sJL)}, {s(sT2)}, {s(sT)}")
        P(f"s_lshl_b32 {s(sRow0)}, {s(sJL)}, 5")
        P(f"s_mul_i32 {s(sOffX)}, {s(sRow0)}, 1280")
        P(f"s_mul_i32 {s(sOffX2)}, {s(sT)}, {32*1280}"); P(f"s_add_u32 {s(sOffX2)}, {s(sOffX2)}, {4*32*1280}")
        P(f"s_lshl_b32 {s(sOffQW)}, {s(sH)}, 8"); P(f"s_lshl_b32 {s(sT)}, {s(sWV)}, 16"); P(f"s_add_u32 {s(sOffQW)}, {s(sOffQW)}, {s(sT)}")
        for i in range(2): act_voff(P, voffBA + i, i, 1280)
        for i in range(2): w256_voff(P, voffBW + i, i, 3840)
        P(f"s_and_b32 {s(sT)}, {s(sWV)}, 1"); P(f"s_lshl_b32 {s(sT)}, {s(sT)}, 13")
        for ks in range(4): act_raddr(P, vBA + ks, ks, s(sT))
        P(f"s_lshr_b32 {s(sT2)}, {s(sWV)}, 1")
        w_raddr(P, vBW, s(sT2), 8, 16384)
    def setup2():
        for i in range(4): act_voff(P, voffX + i, i, 1280)
        for i in range(2): w256_voff(P, voffQW + i, i, 8192)
        P(f"s_lshr_b32 {s(sT)}, {s(sWV)}, 2"); P(f"s_lshl_b32 {s(sT)}, {s(sT)}, 1")
        for cb in range(2):
            P(f"s_add_u32 {s(sT2)}, {s(sT)}, {cb}")
            w_raddr(P, vQWr + cb, s(sT2), 8, 98304)
        P(f"s_xor_b32 {s(sT)}, {s(sM4)}, 0x4000")
        for ks in range(4):
            act_raddr(P, vXr + ks, ks, s(sM4))
            P(f"v_add_u32 {v(vXr+4+ks)}, {s(sT)}, {v(T0)}")
    ch1, ch2 = record(setup1), record(setup2)
    chunks = []
    lab_id = [0]
    def nonce():
        lab_id[0] += 1; lab = f"{name}_nonon{lab_id[0]}"
        P(f"s_lshl_b32 {s(sT)}, s2, 3"); P(f"s_add_u32 {s(sT)}, {s(sT)}, {s(sWV)}")
        P(f"s_cmp_lg_u32 {s(sT)}, 4"); P(f"s_cbranch_scc1 {lab}")
        P.raw(f"s_memrealtime {s(sNON,2)}"); P("s_waitcnt lgkmcnt(0)")
        P(f"s_or_b32 {s(sNON)}, {s(sNON)}, 1")
        P(f"v_mov_b32 v4, {s(sNON)}"); P(f"v_mov_b32 v5, {s(sNON+1)}"); P("v_mov_b32 v8, 0")
        P("s_mov_b64 exec, 1")
        P.raw(f"buffer_store_dwordx2 v[4:5], v8, {s(sDBG,4)}, 0 offen sc1")
        P("s_mov_b64 exec, -1")
        P.label(lab)
    def nonce_get():
        lab_id[0] += 1; lab = f"{name}_nget{lab_id[0]}"
        P(f"v_readfirstlane_b32 {s(sNON)}, v8"); P(f"v_readfirstlane_b32 {s(sNON+1)}, v9")
        P(f"s_cmp_lg_u32 {s(sNON)}, 0"); P(f"s_cbranch_scc1 {lab}_ok")
        P.raw(f"s_mov_b32 {s(sT2)}, {int(os.environ.get('POLLMAX', '0x40000'), 0)}")
        P.label(lab)
        P.raw(f"buffer_load_dwordx2 {v(8,2)}, {v(T3)}, {s(sDBG,4)}, 0 offen sc1"); P.raw("s_waitcnt vmcnt(0)")
        P.raw(f"v_readfirstlane_b32 {s(sNON)}, v8"); P.raw(f"v_readfirstlane_b32 {s(sNON+1)}, v9")
        P.raw(f"s_sub_u32 {s(sT2)}, {s(sT2)}, 1"); P.raw(f"s_cbranch_scc1 {lab}_ok")
        P.raw(f"s_cmp_eq_u32 {s(sNON)}, 0"); P.raw(f"s_cbranch_scc1 {lab}")
        P.label(lab + "_ok")
    def emit_chunks(n):
        for _ in range(n):
            if not chunks: return
            c = chunks.pop(0)
            if c[0] == "; NONCE":
                st = P.state(); nonce(); P.set_state(st)
            else:
                for x in c: P(x)
    def publish(sreg, lab):
        P(f"s_cmp_lg_u32 {s(sWV)}, 4"); P(f"s_cbranch_scc1 {lab}")
        P(f"v_mov_b32 v114, {s(sNON)}"); P(f"v_mov_b32 v115, {s(sNON+1)}"); P(f"v_mov_b32 v116, 0")
        P("s_mov_b64 exec, 1")
        for r in (sreg if isinstance(sreg, list) else [sreg]):
            P.raw(f"buffer_store_dwordx2 v[114:115], v116, {s(sWS,4)}, {s(r)} offen sc1")
        P("s_mov_b64 exec, -1")
        P.label(lab)
    def pf(srd, idx_kind, mul, add, xmul=0):
        def one(delta):
            if idx_kind == "xcd": P(f"s_lshl_b32 {s(sPF)}, {s(sJ)}, 3")
            else: P(f"s_lshl_b32 {s(sPF)}, s2, 3")
            P(f"s_add_u32 {s(sPF)}, {s(sPF)}, {s(sWV)}")
            if delta: P(f"s_sub_u32 {s(sPF)}, {s(sPF)}, {delta}")
            P(f"s_mul_i32 {s(sPF)}, {s(sPF)}, {mul}")
            if callable(add): add()
            elif add: P(f"s_add_u32 {s(sPF)}, {s(sPF)}, {add}")
            P.raw(f"buffer_load_dwordx4 {v(vPF,4)}, {v(vL16)}, {s(srd,4)}, {s(sPF)} offen {NTP.get(srd, '')}")
        if HIDMA == 2: as_lo(lambda: (guard(False, lambda: (one(0), one(4))), P.vq.extend([(set(), "pf")]*2)))
        elif HIDMA: guard(False, lambda: (one(0), one(4)), sim=False)
        else: one(0); P.vq.append((set(), "pf"))
    def addx(shift, mul, const):
        def f():
            if shift == "lo": P(f"s_and_b32 {s(7)}, {s(sX)}, 1")
            else: P(f"s_lshr_b32 {s(7)}, {s(sX)}, {shift}")
            P(f"s_mul_i32 {s(7)}, {s(7)}, {mul}"); P(f"s_add_u32 {s(sPF)}, {s(sPF)}, {s(7)}")
            if const: P(f"s_add_u32 {s(sPF)}, {s(sPF)}, {const}")
        return f
    pf_xm = [lambda i=i: pf(sAX, "chip", 1280, i*1024) for i in range(2)]
    pf_xl = [lambda i=i: pf(sAX, "xcd", 10240, i*1024) for i in range(10)]
    pf_wq = [lambda i=i: pf(sWQ, "xcd", 3*8192, addx(0, 1024, i*8192)) for i in range(3)]
    pf_bx = [lambda i=i: pf(sBX, "xcd", 2560, addx(1, 512*1280, i*1024)) for i in range(3)]
    pf_bw = [lambda i=i, c=c: pf(sBW, "xcd", 3*3840, addx("lo", 1792, i*3840 + c*1024)) for i in range(3) for c in range(2)]
    pf_wo = [lambda i=i: pf(sWO, "chip", 2560, i*1024) for i in range(3)] + [lambda: pf(sBWO, "chip", 1024, 0)]
    def pf_tlb():
        def f():
            P(f"v_lshrrev_b32 {v(vPF)}, 4, {v(vL16)}"); P(f"v_mul_u32_u24 {v(vPF+1)}, {int(os.environ.get('TLBS', '0x180000'), 0)}, {v(vPF)}")
            P.raw(f"buffer_load_dword {v(vPF+2)}, {v(vPF+1)}, {s(sWS,4)}, 0 offen")
            P(f"v_lshlrev_b32 {v(vPF+1)}, 17, {v(vPF)}")
            P.raw(f"buffer_load_dword {v(vPF+2)}, {v(vPF+1)}, {s(sOUT,4)}, 0 offen")
        gid[0] += 1; lab = f"{name}_g{gid[0]}"
        P(f"s_cmp_lg_u32 {s(sWV)}, 7"); P(f"s_cbranch_scc1 {lab}"); f(); P.label(lab)
    def pf_w(i):
        def f():
            if i == 0:
                bfe(P, T0, 5, 1); bfe(P, T1, 0, 5); P(f"v_lshlrev_b32 {v(T1)}, 4, {v(T1)}"); P(f"v_lshl_add_u32 v42, {v(T0)}, 13, {v(T1)}")
            P(f"s_lshl_b32 {s(sPF)}, {s(sMT)}, 16"); P(f"s_lshl_b32 s7, {s(sWV)}, 14"); P(f"s_add_u32 {s(sPF)}, {s(sPF)}, s7")
            P(f"s_lshl_b32 s7, {s(sH0)}, 8"); P(f"s_add_u32 {s(sPF)}, {s(sPF)}, s7"); P(f"s_add_u32 {s(sPF)}, {s(sPF)}, {(i*64*8192 - (4 << 14)) & 0xffffffff}")
            P.raw(f"buffer_load_dwordx4 {v(vPF,4)}, v42, {s(sWKV,4)}, {s(sPF)} offen {NTP.get(sWKV, '')}")
        guard(False, f, sim=False)
    pf_k = [lambda: pf(sCKV, "chip", 1024, 0)] + [lambda i=i: pf_w(i) for i in range(8)]
    def pf_code():
        gid[0] += 1; lab = f"{name}_pc{gid[0]}"
        P.raw("s_getpc_b64 s[90:91]")
        P.label(lab)
        P("s_and_b32 s90, s90, 0xffffff80")
        P(f"s_lshl_b32 {s(sPF)}, {s(sJ)}, 3"); P(f"s_add_u32 {s(sPF)}, {s(sPF)}, {s(sWV)}"); P(f"s_lshl_b32 {s(sPF)}, {s(sPF)}, 10")
        P.raw(f"s_min_u32 {s(sPF)}, {s(sPF)}, ({name}_end-{lab}-1024)&0xffffff80")
        P(f"v_add_u32 v9, {s(sPF)}, {v(vL16)}")
        P.raw(f"global_load_dwordx4 {v(vPF,4)}, v9, s[90:91]"); P.vq.append((set(), "pf")); loq.append((set(), "pf"))
    PFS = {"c": [pf_code], "k": pf_k, "t": [pf_tlb], "o": pf_wo, "m": pf_xm, "x": pf_xl, "q": pf_wq, "b": pf_bx + pf_bw}
    pf_sched = {}
    for item in os.environ.get("PFS", "c6,b10,m19,q21").split(","):
        if item:
            for i, f in enumerate(PFS[item[0]]): pf_sched.setdefault(int(item[1:]) + i, []).append(f)

    for f in pf_k[:int(os.environ.get("PFK0", "0"))]: f()
    ACC = 64; FR = [192, 216]
    def fA(set_, tb): return FR[set_] + 4*tb
    def fW(set_, cb): return FR[set_] + 16 + 4*cb
    def reads(q):
        st, ks = q // 4, q % 4; h, kh = q // 2, q % 2; se = q % 2
        sl = st % 3
        def rA(tb):
            base = vA2 if sl == 2 else vA; off = (ASLOT[sl] if sl < 2 else 0) + tb*4096
            return f"ds_read_b128 {v(fA(se,tb),4)}, {v(base+ks)} offset:{off}"
        def rW(cb, i):
            return f"ds_read_b64_tr_b16 {v(fW(se,cb)+2*i,2)}, {v(vW+cb)} offset:{(h%4)*16384 + (16*kh+4*i)*512}"
        return [rW(0,0), rW(0,1), rA(0), rW(1,0), rW(1,1), rA(1), rA(2), rA(3)]
    def kv16():
        WF = [192, 208]; AF = 224
        def rA(h, tb):
            st = h // 2; sl = st % 3
            base = vA2 if sl == 2 else vA; off = (ASLOT[sl] if sl < 2 else 0) + tb*2048
            return f"ds_read_b128 {v(AF + 4*(tb%4),4)}, {v(base + h%2)} offset:{off}"
        def rW(h, cb, i): return f"ds_read_b64_tr_b16 {v(WF[h%2]+4*cb+2*i,2)}, {v(vW16+cb)} offset:{(h%4)*16384 + 4*i*512}"
        nonlocal loq
        wait2(lambda t: t in (("A", 0), ("W", 0))); P("s_barrier")
        SP()
        for cb in range(4):
            for i in range(2): P(rW(0, cb, i))
            if cb < 3: P(rA(0, cb))
        st0 = P.state(); lo0 = list(loq)
        P(f"s_cmp_ge_u32 {s(sNT)}, 2"); P(f"s_cbranch_scc1 {name}_V")
        for isV in (0, 1):
            if isV: P.label(f"{name}_V"); P.set_state(st0); loq = list(lo0)
            chunks[:] = list(ch1)
            for h in range(16):
                for tb in range(8):
                    mf = []
                    for cb in range(4):
                        n = (tb//2)*4 + cb if isV else (tb//2)*4 + (cb//2)*2 + tb%2
                        d = v(ACC + 8*n + 4*(tb%2 if isV else cb%2), 4)
                        x, y = (AF + 4*(tb%4), WF[h%2] + 4*cb) if isV else (WF[h%2] + 4*cb, AF + 4*(tb%4))
                        mf.append(f"v_mfma_f32_16x16x32_bf16 {d}, {v(x,4)}, {v(y,4)}, {'0' if h == 0 else d}")
                    fill = []
                    if tb == 5:
                        def sync(h=h):
                            if h < 15: wait2(lambda t: t == ("W", h+1) or t == ("A", (h+1)//2))
                            else: wait2(lambda t: t == ("B", 0))
                            P.wait_lds_all(); P("s_barrier")
                        for _ in range(int(os.environ.get("SYP", "0"))): fill.append(lambda: None)
                        fill.append(sync)
                    if tb + 3 < 8: fill.append(rA(h, tb + 3))
                    elif h < 15: fill.append(rA(h + 1, tb + 3 - 8))
                    if h < 15 and tb >= 5:
                        allw = [(cb, i) for cb in range(4) for i in range(2)]
                        cut = [int(c) for c in os.environ.get("WCUT", "36")]
                        for cb, i in [allw[:cut[0]], allw[cut[0]:cut[1]], allw[cut[1]:]][tb - 5]: fill.append(rW(h + 1, cb, i))
                    hp = h if tb >= 5 else h - 1
                    if h == 0 and tb == 0: fill.append(lambda: dma_w(2))
                    if h == 0 and tb == 2: fill.append(lambda: dma_w(3))
                    if h == 0 and tb in (3, 4): fill.append(lambda tb=tb: dma_act(2, [0, 1] if tb == 3 else [2, 3]))
                    if tb == 6 and h + 4 <= 15: fill.append(lambda h=h: dma_w(h + 4))
                    if tb == 1 and hp >= 1:
                        sa = (hp + 1) // 2 + 2
                        if sa <= 7: fill.append(lambda hp=hp, sa=sa: dma_act(sa, [0, 1] if hp % 2 == 1 else [2, 3]))
                        if hp == 11: fill.append(lambda: dma_b(0, 0))
                        if hp == 13: fill.append(lambda: dma_b(1, 0))
                        if hp == 14: fill.append(lambda: dma_b(2, 1))
                    if tb == 6 and h == 12: fill.append(lambda: dma_b(0, 1))
                    if tb == 6 and h == 13: pass
                    if tb == 3 and h == 14: fill.append(lambda: dma_b(1, 1))
                    if tb == 6 and h == 14: fill.append(lambda: dma_b(2, 0))
                    if h == 15 and tb >= 6: fill.append(lambda tb=tb: dma_b(tb - 3))
                    if tb in (2, 4):
                        for f in pf_sched.get(2*h + (tb == 4), []): fill.append(f)
                    if h < 3: fill.insert(0 if tb != 5 else 1, lambda: emit_chunks(5)); fill.append(lambda: emit_chunks(5))
                    interleave(P, mf, fill)
                if h == 2: assert not chunks, len(chunks)
            if not isV: P(f"s_branch {name}_J")
    if K16: kv16()
    else:
        P.wait_tag(lambda t: t in (("A", 0), ("W", 0))); P("s_barrier")
        SP()
        for r in reads(0): P(r)
        st0 = P.state()
        P(f"s_cmp_ge_u32 {s(sNT)}, 2"); P(f"s_cbranch_scc1 {name}_V")
        for isV in (0, 1):
            if isV: P.label(f"{name}_V"); P.set_state(st0)
            chunks[:] = list(ch1)
            for q in range(32):
                se = q % 2; hs = q // 2
                mf = []
                for tb in range(4):
                    for cb in range(2):
                        d = v(ACC + (tb*2+cb)*16, 16); c = "0" if q == 0 else d
                        x, y = (fA(se,tb), fW(se,cb)) if isV else (fW(se,cb), fA(se,tb))
                        if os.environ.get("KV16"):
                            for hh in range(2):
                                dd = v(ACC + (tb*2+cb)*16 + 8*(q%2) + 4*hh, 4)
                                mf.append(f"v_mfma_f32_16x16x32_bf16 {dd}, {v(x,4)}, {v(y,4)}, {'0' if q < 2 else dd}")
                        else: mf.append(f"v_mfma_f32_32x32x16_bf16 {d}, {v(x,4)}, {v(y,4)}, {c}")
                fill = []
                if KVT:
                    if q % 2 == 1:
                        def sync(hs=hs):
                            if hs < 15: P.wait_tag(lambda t: t == ("W", hs+1) or t == ("A", (hs+1)//2))
                            else: P.wait_tag(lambda t: t == ("B", 0))
                            P.wait_lds_all(); P("s_barrier")
                        fill.append(sync)
                    if q < 31: fill += reads(q + 1)
                    if q == 0: fill.insert(2, lambda: dma_w(2)); fill.insert(6, lambda: dma_w(3))
                    if q == 1: fill.insert(5, lambda: dma_act(2, [0, 1])); fill.insert(9, lambda: dma_act(2, [2, 3]))
                    if q % 2 == 1:
                        if hs + 4 <= 15: fill.insert(3, lambda hs=hs: dma_w(hs + 4))
                        sa = (hs + 1) // 2 + 2
                        if hs >= 1 and sa <= 7: fill.insert(6, lambda hs=hs, sa=sa: dma_act(sa, [0,1] if hs % 2 == 1 else [2,3]))
                        if hs == 11: fill.insert(6, lambda: dma_b(0, 0))
                        if hs == 12: fill.insert(3, lambda: dma_b(0, 1))
                        if hs == 13: fill.insert(3, lambda: dma_b(1))
                        if hs == 14: fill.insert(3, lambda: dma_b(2))
                        if hs == 15: fill.append(lambda: dma_b(3)); fill.append(lambda: dma_b(4))
                else:
                    if q % 2 == 1 and q < 31:
                        def sync(hs=hs):
                            P.wait_tag(lambda t: t == ("W", hs+1) or t == ("A", (hs+1)//2))
                            P("s_barrier")
                        fill.append(sync)
                    if q < 31: fill += reads(q + 1)
                    if q == 0: fill.insert(2, lambda: dma_w(2)); fill.insert(6, lambda: dma_w(3))
                    if q == 1: fill.insert(3, lambda: dma_act(2, [0, 1])); fill.insert(7, lambda: dma_act(2, [2, 3]))
                    if q % 2 == 1:
                        if 1 <= hs <= 12: fill.insert(3, lambda hs=hs: dma_w(hs + 3))
                        sa = hs // 2 + 2
                        if hs >= 2 and sa <= 7: fill.insert(6, lambda hs=hs, sa=sa: dma_act(sa, [0,1] if hs % 2 == 0 else [2,3]))
                        if hs == 12: fill.insert(6, lambda: dma_b(0))
                        if hs == 14: fill.insert(3, lambda: dma_b(1))
                        if hs == 15: fill.insert(1, lambda: dma_b(2))
                for f in pf_sched.get(q, []): fill.insert(2, f)
                if q < 6:
                    for i in range(8): fill.insert(min(len(fill), 1 + 2*i), lambda: emit_chunks(5))
                interleave(P, mf, fill)
                if q == 5: assert not chunks, len(chunks)
            if not isV: P(f"s_branch {name}_J")
    P.label(f"{name}_J")
    dup[0] = False
    if HIDMA == 2: P.set_state(merge_states(P.state(), (P.state()[0], loq)))
    SP()
    BFR = [192 + 12*i for i in range(4)]
    BACC = 160
    BPK = 44
    def baddr(st):
        return [f"v_add_u32 {v(vBAc+ks)}, {BSLOT[st%5]}, {v(vBA+ks)}" for ks in range(4)] + [f"v_add_u32 {v(vBWc)}, {BSLOT[st%5]}, {v(vBW)}"]
    def breads(q):
        ks = q % 4; se = q % 4
        return [f"ds_read_b64_tr_b16 {v(BFR[se]+8,2)}, {v(vBWc)} offset:{(16*ks)*256}",
                f"ds_read_b64_tr_b16 {v(BFR[se]+10,2)}, {v(vBWc)} offset:{(16*ks+4)*256}",
                f"ds_read_b128 {v(BFR[se],4)}, {v(vBAc+ks)} offset:0",
                f"ds_read_b128 {v(BFR[se]+4,4)}, {v(vBAc+ks)} offset:4096"]
    def PKB(tile): return ACC + 16*tile if tile < 6 else 44 + 8*(tile - 6)
    def kvcvt(tile):
        out = [f"v_cvt_pk_bf16_f32 {v(PKB(tile)+i)}, {v(ACC+16*tile+2*i)}, {v(ACC+16*tile+2*i+1)}" for i in range(8)]
        if K16: out += [f"v_permlane32_swap_b32 {v(PKB(tile)+x)}, {v(PKB(tile)+y)}" for x, y in ((0,2),(1,3),(4,6),(5,7))]
        return out
    def kvstore(n):
        if os.environ.get("X_NOST"): return
        tb, r = n // 4, n % 4
        P(f"s_add_u32 {s(sSt)}, {s(sOutKV)}, {tb*8192}")
        P(f"buffer_store_dwordx4 {v(PKB(n//2) + 4*(n%2),4)}, {v(vKVo if K16 else vL16)}, {s(sWS,4)}, {s(sSt)} offen offset:{(r//2)*2048 + (r%2)*256 if K16 else r*1024} {'' if KVP else ST}", ("S", n))
    def bstore(n):
        tb, c = n // 2, n % 2
        P(f"s_add_u32 {s(sSt)}, {s(sOutB)}, {tb*120*1024}")
        P(f"buffer_store_dwordx4 {v(BPK+tb*8+4*c,4)}, {v(vL16)}, {s(sWS,4)}, {s(sSt)} offen offset:{c*1024} {ST}", ("S", 16+n))
    for x in baddr(0): P(x)
    if not KVT: P.wait_tag(lambda t: t == ("B", 0)); P("s_barrier")
    for r in breads(0) + breads(1): P(r)
    for x in kvcvt(6) + kvcvt(7): P(x)
    order = [6, 7, 4, 5, 0, 1, 2, 3]
    late = [lambda n=2*tl+h: kvstore(n) for tl in order for h in range(2)]
    cvts = sum([kvcvt(tl) for tl in order[2:]], [])
    SB = [int(c) for c in os.environ.get("SB", "2222222200" if KVP else "1111111111")]
    SQ = [int(c) for c in os.environ.get("SQ", "2200000000" if KVP else "2222200000")]
    PUB = int(os.environ.get("PUB", "5"))
    chunks[:] = list(ch2)
    NQ = 40
    for q in range(NQ):
        st, ks = q // 4, q % 4; se = q % 4
        mf = []
        for tb in range(2):
            d = v(BACC + tb*16, 16); c = "0" if q == 0 else d
            mf.append(f"v_mfma_f32_32x32x16_bf16 {d}, {v(BFR[se]+8,4)}, {v(BFR[se]+4*tb,4)}, {c}")
        fill = []
        if ks == 2:
            def sync(st=st):
                if st < 9: P.wait_tag(lambda t: t == ("B", st+1))
                P.wait_lds_all(); P("s_barrier")
                if st < 9:
                    for x in baddr(st+1): P(x)
            fill.append(sync)
        if q + 2 < NQ: fill += breads(q + 2)
        if q == 0 and not KVT: fill.insert(1, lambda: dma_b(3))
        if q == 1 and not KVT: fill.insert(1, lambda: dma_b(4))
        for i in range(3):
            if cvts: fill.insert(1 + i, cvts.pop(0))
        if q < 16: fill.insert(len(fill)//2, lambda: emit_chunks(4)); fill.append(lambda: emit_chunks(4))
        def bl(st):
            if st <= 4: return [lambda: dma_b(st + 5, 0), lambda: dma_b(st + 5, 1)]
            if st == 7: return [lambda: dma_qw(0), lambda: dma_qw(1)]
            if st == 9 and Q34: return [lambda: dma_qw(2), lambda: dma_qw(3)]
            xs = {5: 0, 6: 1, 8: 2, 9: 3}[st]
            return [lambda: dma_x(xs, [0, 1]), lambda: dma_x(xs, [2, 3])]
        def bl1(st):
            if st <= 4: return [lambda h=h, i=i: dma_b(st + 5, h, [i]) for h in range(2) for i in range(2)]
            if st == 7: return [lambda a=a, i=i: dma_qw(a, [i]) for a in range(2) for i in range(2)]
            xs = {5: 0, 6: 1, 8: 2, 9: 3}[st]
            return [lambda i=i: dma_x(xs, [i]) for i in range(4)]
        BSP = os.environ.get("BSP", "0")
        if BSP == "0":
            if ks >= 2: fill.append(bl(st)[ks - 2])
        elif BSP == "1":
            if ks >= 2: fill.insert(2, bl1(st)[ks - 2])
            elif st >= 1: fill.insert(2, bl1(st - 1)[ks + 2])
            if st == 9 and ks == 3: fill += bl1(9)[2:]
        elif BSP == "2":
            if ks == 2:
                for i, f in enumerate(bl1(st)): fill.insert(1 + i, f)
        if ks == int(os.environ.get("BSK", "0")):
            for _ in range(SB[st]):
                if late: fill.append(late.pop(0))
        if q == 5: fill.append(lambda: (P(f"v_mov_b32 {v(T3)}, 0"), P(f"buffer_load_dwordx2 {v(8,2)}, {v(T3)}, {s(sDBG,4)}, 0 offen sc1")))
        if q == 29: fill.append(nonce_get)
        for f in pf_sched.get(100 + q, []): fill.append(f)
        interleave(P, mf, fill)
        if q == 15: assert not chunks, len(chunks)
    SP()
    QACC = 128; QFR = [192, 208, 224]
    def xaddr(st): return [f"v_add_u32 {v(vXc+i)}, {XSLOT[st%NX]}, {v(vXr+i)}" for i in range(8)]
    def qreads(q):
        st, ks = q // 4, q % 4; se = q % 3
        def w(cb, i): return f"ds_read_b64_tr_b16 {v(QFR[se]+4*cb+2*i,2)}, {v(vQWr+cb)} offset:{(st%NQW)*16384 + (16*ks+4*i)*256}"
        def x(r): return f"ds_read_b128 {v(QFR[se]+8+4*r,4)}, {v(vXc+4*r+ks)} offset:0"
        return [w(0,0), w(0,1), x(0), w(1,0), w(1,1), x(1)]
    for x in xaddr(0): P(x)
    if KVP: P("s_waitcnt vmcnt(0)")
    P.wait_tag(lambda t: t in (("X", 0), ("Q", 0))); P("s_barrier")
    if KVP:
        dup[0] = True
        P(f"s_cmp_lg_u32 {s(sWV)}, 4"); P(f"s_cbranch_scc1 {name}_nowb")
        P.raw("buffer_wbl2 sc1")
        if PROF and os.environ.get("WBT"): P.raw("s_memtime s[96:97]"); P.raw("s_waitcnt vmcnt(0) lgkmcnt(0)"); P.raw("s_mov_b32 s3, s96"); P.raw("s_memtime s[96:97]"); P.raw("s_waitcnt lgkmcnt(0)"); P.raw("s_sub_u32 s3, s96, s3"); P.raw(f"v_writelane_b32 {v(vSTAMP)}, s3, 23")
        P.label(f"{name}_nowb")
    for r in qreads(0) + qreads(1): P(r)
    for tb in range(2):
        for i in range(8): P(f"v_cvt_pk_bf16_f32 {v(BPK+tb*8+i)}, {v(BACC+tb*16+2*i)}, {v(BACC+tb*16+2*i+1)}")
    for tb in range(2):
        b = BPK + tb*8
        for (x, y) in ((0,2),(1,3),(4,6),(5,7)): P(f"v_permlane32_swap_b32 {v(b+x)}, {v(b+y)}")
    late += [lambda n=n: bstore(n) for n in range(4)]
    def poll(soff, nfl, lab, own_off=False):
        P(f"s_mov_b32 {s(sT2)}, {int(os.environ.get('POLLMAX', '0x40000'), 0)}")
        if not own_off: P(f"v_lshrrev_b32 {v(T3)}, 1, {v(vL16)}")
        if nfl < 64: P(f"s_mov_b64 exec, {hex((1 << nfl) - 1)}")
        P.label(lab)
        P(f"buffer_load_dwordx2 {v(246,2)}, {v(T3)}, {s(sWS,4)}, {s(soff)} offen sc1")
        P("s_waitcnt vmcnt(0)")
        for i in range(2): P(f"v_xor_b32 {v(246+i)}, {s(sNON + i)}, {v(246+i)}")
        P(f"v_or_b32 {v(246)}, {v(246)}, {v(247)}")
        P(f"v_cmp_ne_u32 vcc, 0, {v(246)}")
        P(f"s_cbranch_vccz {lab}_ok")
        P("s_sleep 4")
        P(f"s_sub_u32 {s(sT2)}, {s(sT2)}, 1"); P(f"s_cmp_lg_u32 {s(sT2)}, 0"); P(f"s_cbranch_scc1 {lab}")
        P.label(lab + "_ok")
        if nfl < 64: P("s_mov_b64 exec, -1")
    ctx = dict(P=P, SP=SP, name=name, poll=poll, publish=publish)
    import attn
    early = attn.gen_attn(dict(ctx, early_only=True))
    vEX, sQS = 9, 92
    def setup3():
        P(f"s_mov_b32 {s(sQS)}, {fbits(QSCALE)}"); P(f"s_mov_b32 {s(sQS+1)}, {fbits(QSCALE)}")
        P(f"s_add_u32 {s(sT)}, {s(sM4)}, {131072}"); P(f"v_add_u32 {v(vEX)}, {s(sT)}, {v(vL16)}")
        early.setup(P)
    chunks[:] = record(setup3)
    EREQ = int(os.environ.get('EREQ', '30')); ETRY = int(os.environ.get('ETRY', '35'))
    for q in range(40):
        st, ks = q // 4, q % 4; se = q % 3
        mf = []
        for r in range(2):
            for cb in range(2):
                d = v(QACC + (r*2+cb)*16, 16); c = "0" if q == 0 else d
                mf.append(f"v_mfma_f32_32x32x16_bf16 {d}, {v(QFR[se]+4*cb,4)}, {v(QFR[se]+8+4*r,4)}, {c}")
        fill = []
        if ks == 2:
            def sync(st=st):
                if st < 9: P.wait_tag(lambda t: t in (("X", st+1), ("Q", st+1)))
                if st == PUB and KVP: guard(False, lambda: P.raw("s_waitcnt vmcnt(0)"))
                if st == PUB: P.wait_tag(lambda t: t is not None and t[0] == "S")
                P.wait_lds_all()
                if st < 9 or st == PUB: P("s_barrier")
                if st == PUB: publish([sFK, sFQ], f"{name}_pubk")
                if st < 9:
                    for x in xaddr(st+1): P(x)
            fill.append(sync)
        if q + 2 < 40: fill += qreads(q + 2)
        vm = []
        if ks == 2 and st + NQW <= 9: vm += [lambda i=i, st=st: dma_qw(st + NQW, [i]) for i in range(2)]
        if ks in (3, 0):
            s0 = st if ks == 3 else st - 1
            if s0 >= 0 and s0 + NX <= 9: vm += [lambda i=i, s0=s0: dma_x(s0 + NX, [i]) for i in ([0, 1] if ks == 3 else [2, 3])]
        if ks == SQK:
            for _ in range(SQ[st]):
                if late: vm.append(late.pop(0))
        if 22 <= q < 34: fill.insert(2, lambda: emit_chunks(5)); fill.append(lambda: emit_chunks(5))
        if q == 34: assert not chunks, len(chunks)
        WOQ = int(os.environ.get("WOQ", "34"))
        if early.wo and WOQ <= q < WOQ + 6: vm.append(lambda i=q-WOQ: early.wo(i))
        if q == EREQ: vm.append(early.req)
        if q == ETRY: vm.append(early.try_); eops = early.ops()
        if q > ETRY:
            n = -(-len(eops) // (40 - q))
            vm += eops[:n]; eops = eops[n:]
        base = 1 if ks == 2 else 0
        stp = 3 if len(vm) <= 3 else 2
        for i, x in enumerate(vm): fill.insert(min(len(fill), base + 1 + i * stp), x)
        interleave(P, mf, fill)
    assert not late
    SP()
    early()
    SND = 96
    for i in range(32, 64, 2): P(f"v_pk_mul_f32 {v(QACC+i,2)}, {v(QACC+i,2)}, {s(sQS,2)}")
    for i in range(16): P(f"v_cvt_pk_bf16_f32 {v(SND+i)}, {v(QACC+32+2*i)}, {v(QACC+32+2*i+1)}")
    for i in range(4): P(f"ds_write_b128 {v(vEX)}, {v(SND+4*i,4)} offset:{i*1024}")
    for i in range(0, 32, 2): P(f"v_pk_mul_f32 {v(QACC+i,2)}, {v(QACC+i,2)}, {s(sQS,2)}")
    P(f"v_xor_b32 {v(vEX)}, 0x4000, {v(vEX)}")
    P("s_waitcnt lgkmcnt(0)"); P("s_barrier")
    for i in range(4): P(f"ds_read_b128 {v(16+4*i,4)}, {v(vEX)} offset:{i*1024}")
    for i in range(16): P(f"v_cvt_pk_bf16_f32 {v(i)}, {v(QACC+2*i)}, {v(QACC+2*i+1)}")
    attn.gen_attn(ctx)
    P.label("L_stop")
    SP(idx=13); SP(True); SP.flush()
    P.label(f"{name}_end"); P("s_endpgm")
    return kernel_desc(name, 256, sgpr=100)
```

```python
from fused import *
E = os.environ.get
DECW = 131072 + 4*7424 + 1024
XBF = int(E('XBF', '1')); NX = 5 if XBF else 10
XB = 72*MB
FX = 70*MB + 49152

def wof_prefetch(P):
    if E("WPF", "0") == "0": return
    P(f"s_lshl_b32 {s(sT)}, {s(sJ)}, 2"); P(f"s_add_u32 {s(sT)}, {s(sT)}, {s(sWV)}"); P(f"s_sub_u32 {s(sT)}, {s(sT)}, 4")
    P(f"s_lshr_b32 {s(sT2)}, {s(sT)}, 4"); P(f"s_mul_i32 {s(sT2)}, {s(sT2)}, {128*5120}")
    P(f"s_and_b32 {s(sT)}, {s(sT)}, 15"); P(f"s_mul_i32 {s(sT)}, {s(sT)}, 10240"); P(f"s_add_u32 {s(sT)}, {s(sT)}, {s(sT2)}")
    P(f"s_lshr_b32 {s(sT2)}, {s(sX)}, 1"); P(f"s_mul_i32 {s(sT2)}, {s(sT2)}, {32*5120}"); P(f"s_add_u32 {s(sT)}, {s(sT)}, {s(sT2)}")
    P(f"s_add_u32 {s(sT)}, {s(sT)}, {WOF}")
    for i in range(10):
        P.raw(f"buffer_load_dwordx4 v[16:19], {v(vL16)}, {s(sWS,4)}, {s(sT)} offen offset:{(i%4)*1024} {LD}"); P.vq.append((set(parse_reg("v[16:19]")), "pf"))
        if i % 4 == 3: P(f"s_add_u32 {s(sT)}, {s(sT)}, 4096")

def fc_request(P, vr):
    P(f"s_and_b32 {s(sT)}, {s(sX)}, 1"); P(f"s_lshl_b32 {s(sT2)}, {s(sG)}, 1"); P(f"s_add_u32 {s(sT)}, {s(sT)}, {s(sT2)}"); P(f"s_lshl_b32 {s(sT)}, {s(sT)}, 10")
    P(f"s_lshr_b32 {s(sT2)}, {s(sX)}, 1"); P(f"s_lshl_b32 {s(sT2)}, {s(sT2)}, 6"); P(f"s_add_u32 {s(sT)}, {s(sT)}, {s(sT2)}"); P(f"s_add_u32 {s(sT)}, {s(sT)}, {FC}")
    bfe(P, T0, 3, 2); bfe(P, T1, 0, 3); P(f"v_lshlrev_b32 {v(T1)}, 3, {v(T1)}"); P(f"v_lshl_add_u32 {v(T0)}, {v(T0)}, 8, {v(T1)}")
    P(f"buffer_load_dwordx2 {v(vr,2)}, {v(T0)}, {s(sWS,4)}, {s(sT)} offen sc1")

def l2_warm(P, name):
    NW, NC = int(E("L2WN", "10")), int(E("L2CN", "16"))
    st = P.state()
    for i in range(16): P(f"v_xor_b32 {v(8 + i%2)}, {s(sNON + i%2)}, {v(16+i)}") if i < 2 else (P(f"v_xor_b32 v10, {s(sNON + i%2)}, {v(16+i)}"), P(f"v_or_b32 v8, v8, v10"))
    P("v_or_b32 v8, v8, v9"); P("v_cmp_ne_u32 vcc, 0, v8"); P(f"s_cbranch_vccnz {name}_now")
    P(f"s_lshl_b32 {s(sT)}, {s(sJ)}, 2"); P(f"s_add_u32 {s(sT)}, {s(sT)}, {s(sWV)}"); P(f"s_sub_u32 {s(sT)}, {s(sT)}, 4")
    P(f"s_lshr_b32 {s(sT2)}, {s(sT)}, 4"); P(f"s_mul_i32 {s(sT2)}, {s(sT2)}, {128*5120}")
    P(f"s_and_b32 {s(sT)}, {s(sT)}, 15"); P(f"s_mul_i32 {s(sT)}, {s(sT)}, 10240"); P(f"s_add_u32 {s(sT)}, {s(sT)}, {s(sT2)}")
    P(f"s_lshr_b32 {s(sT2)}, {s(sX)}, 1"); P(f"s_mul_i32 {s(sT2)}, {s(sT2)}, {32*5120}"); P(f"s_add_u32 {s(sT)}, {s(sT)}, {s(sT2)}")
    P(f"s_add_u32 {s(sT)}, {s(sT)}, {WOF}")
    for i in range(NW):
        P.raw(f"buffer_load_dwordx4 v[12:15], {v(vL16)}, {s(sWS,4)}, {s(sT)} offen offset:{(i%4)*1024} {LD}")
        if i % 4 == 3: P(f"s_add_u32 {s(sT)}, {s(sT)}, 4096")
    P.label(f"{name}_now")
    P(f"v_xor_b32 v4, {s(sNON)}, v4"); P(f"v_xor_b32 v5, {s(sNON+1)}, v5"); P("v_or_b32 v4, v4, v5")
    P("v_cmp_ne_u32 vcc, 0, v4"); P(f"s_cbranch_vccnz {name}_noc")
    P(f"s_and_b32 {s(sT)}, {s(sX)}, 1"); P(f"s_lshl_b32 {s(sT2)}, {s(sG)}, 1"); P(f"s_add_u32 {s(sT)}, {s(sT)}, {s(sT2)}"); P(f"s_lshl_b32 {s(sT)}, {s(sT)}, 20")
    P(f"s_lshr_b32 {s(sT2)}, {s(sX)}, 1"); P(f"s_lshl_b32 {s(sT2)}, {s(sT2)}, 17"); P(f"s_add_u32 {s(sT)}, {s(sT)}, {s(sT2)}")
    P(f"s_bfe_u32 {s(sT2)}, {s(sJ)}, 0x10001"); P(f"s_lshl_b32 {s(sT2)}, {s(sT2)}, 19"); P(f"s_add_u32 {s(sT)}, {s(sT)}, {s(sT2)}")
    P(f"s_and_b32 {s(sT2)}, {s(sJ)}, 1"); P(f"s_lshl_b32 {s(sT2)}, {s(sT2)}, 16"); P(f"s_add_u32 {s(sT)}, {s(sT)}, {s(sT2)}")
    P(f"s_and_b32 {s(sT2)}, {s(sWV)}, 3"); P(f"s_lshl_b32 {s(sT2)}, {s(sT2)}, 14"); P(f"s_add_u32 {s(sT)}, {s(sT)}, {s(sT2)}")
    P(f"s_add_u32 {s(sT)}, {s(sT)}, {CTX}")
    for i in range(NC):
        P.raw(f"buffer_load_dwordx4 v[12:15], {v(vL16)}, {s(sWS,4)}, {s(sT)} offen offset:{(i%4)*1024} {LD}")
        if i % 4 == 3: P(f"s_add_u32 {s(sT)}, {s(sT)}, 4096")
    P.label(f"{name}_noc")
    P.set_state(st)

def gen_out(ctx):
    P, SP, name = ctx["P"], ctx["SP"], ctx["name"]
    NS = 4
    CS = [i*16384 for i in range(NS)]; WS_ = [65536 + i*20480 for i in range(NS)]
    ACC, ACB, FRG, RCV = 0, 40, 52, 112
    assert XBF
    RS, AC2 = 20, 172
    vRC, vRW, vOut, vRCb, vRWb = 232, 233, 235, 236, 237
    sSrc, sTile, sM0 = sU0, sU2, sU1
    sQB, sCK, sR, sGrp, sSrcB, sTileB, sXo = sDOff, sDIdx, sDLim, sDBase, sSlot, sDM0, sSt
    NA, NB = 16, 5
    N = NA + NB
    P(f"s_lshr_b32 {s(sR)}, {s(sX)}, 1")
    if E("QMAP", "1") == "1":
        P(f"s_and_b32 {s(sQB)}, {s(sX)}, 1"); P(f"s_lshl_b32 {s(sT)}, {s(sG)}, 1"); P(f"s_add_u32 {s(sQB)}, {s(sQB)}, {s(sT)}")
        P(f"s_and_b32 {s(sCK)}, {s(sJ)}, 3")
    else:
        P(f"s_and_b32 {s(sQB)}, {s(sX)}, 1"); P(f"s_lshl_b32 {s(sQB)}, {s(sQB)}, 3"); P(f"s_and_b32 {s(sT)}, {s(sJ)}, 7"); P(f"s_add_u32 {s(sQB)}, {s(sQB)}, {s(sT)}")
        P(f"s_lshr_b32 {s(sCK)}, {s(sJ)}, 3")
    P(f"s_lshl_b32 {s(sGrp)}, {s(sQB)}, 2"); P(f"s_add_u32 {s(sGrp)}, {s(sGrp)}, {s(sCK)}")
    P(f"s_and_b32 {s(sT)}, {s(sWV)}, 2"); P(f"s_lshl_b32 {s(sT)}, {s(sT)}, 12"); P(f"s_and_b32 {s(sT2)}, {s(sWV)}, 1"); P(f"s_lshl_b32 {s(sT2)}, {s(sT2)}, 11")
    P(f"s_add_u32 {s(sT)}, {s(sT)}, {s(sT2)}"); P(f"v_add_u32 {v(vRC)}, {s(sT)}, {v(vL16)}")
    P(f"s_lshr_b32 {s(sT2)}, {s(sWV)}, 2"); P(f"s_mul_i32 {s(sT)}, {s(sT2)}, 10240"); P(f"s_add_u32 {s(sT)}, {s(sT)}, 65536"); P(f"v_add_u32 {v(vRW)}, {s(sT)}, {v(vL16)}")
    P(f"v_add_u32 {v(vRW+1)}, 40960, {v(vRW)}")
    P(f"s_mul_i32 {s(sT)}, {s(sT2)}, 3072"); P(f"s_add_u32 {s(sT)}, {s(sT)}, 65536"); P(f"v_add_u32 {v(vRWb)}, {s(sT)}, {v(vL16)}")
    P(f"v_add_u32 {v(vRWb+1)}, 40960, {v(vRWb)}")
    P(f"s_and_b32 {s(sT)}, {s(sWV)}, 3"); P(f"s_lshl_b32 {s(sT2)}, {s(sT)}, 10"); P(f"v_add_u32 {v(vRCb)}, {s(sT2)}, {v(vL16)}")
    bfe(P, T0, 0, 4); P(f"v_mul_u32_u24 {v(T0)}, 2560, {v(T0)}"); bfe(P, T1, 4, 2); P(f"v_lshl_add_u32 {v(vOut)}, {v(T1)}, 3, {v(T0)}")
    P(f"s_lshl_b32 {s(sTile)}, {s(sQB)}, 2"); P(f"s_add_u32 {s(sTile)}, {s(sTile)}, {s(sR)}"); P(f"s_mul_i32 {s(sTile)}, {s(sTile)}, {32*2560}")
    P(f"s_lshl_b32 {s(sT)}, {s(sCK)}, 1"); P(f"s_lshr_b32 {s(sT2)}, {s(sWV)}, 2"); P(f"s_add_u32 {s(sT)}, {s(sT)}, {s(sT2)}"); P(f"s_mul_i32 {s(sT)}, {s(sT)}, 160")
    P(f"s_add_u32 {s(sTile)}, {s(sTile)}, {s(sT)}")
    sTBb, sCBb = sOffA, sOffW
    P(f"s_lshl_b32 {s(sTBb)}, {s(sQB)}, 1"); P(f"s_lshr_b32 {s(sT)}, {s(sR)}, 1"); P(f"s_add_u32 {s(sTBb)}, {s(sTBb)}, {s(sT)}")
    P(f"s_lshl_b32 {s(sCBb)}, {s(sCK)}, 1"); P(f"s_and_b32 {s(sT)}, {s(sR)}, 1"); P(f"s_add_u32 {s(sCBb)}, {s(sCBb)}, {s(sT)}")
    P(f"s_lshl_b32 {s(sTileB)}, {s(sTBb)}, 2"); P(f"s_and_b32 {s(sT)}, {s(sWV)}, 3"); P(f"s_add_u32 {s(sTileB)}, {s(sTileB)}, {s(sT)}"); P(f"s_mul_i32 {s(sTileB)}, {s(sTileB)}, {16*2560}")
    P(f"s_mul_i32 {s(sT)}, {s(sCBb)}, 160"); P(f"s_add_u32 {s(sTileB)}, {s(sTileB)}, {s(sT)}")
    P(f"s_lshr_b32 {s(sT)}, {s(sWV)}, 2"); P(f"s_mul_i32 {s(sT)}, {s(sT)}, 96"); P(f"s_add_u32 {s(sTileB)}, {s(sTileB)}, {s(sT)}")
    P(f"s_cmp_lt_u32 {s(sWV)}, 4"); P(f"s_cbranch_scc0 {name}_o_lo")
    st0 = P.state()
    for role in ("hi", "lo"):
        nm = 3 if role == "hi" else 2
        unit = 4096 if role == "hi" else 5120
        if role == "lo": P.label(f"{name}_o_lo"); P.set_state(ctx["lo_state"])
        else: P.set_state(ctx["hi_state"])
        P(f"s_and_b32 {s(sT)}, {s(sWV)}, 3"); P(f"s_mul_i32 {s(sM0)}, {s(sT)}, {unit}")
        blk = sQB if role == "hi" else sCK
        P(f"s_lshl_b32 {s(sSrc)}, {s(blk)}, 1"); P(f"s_bfe_u32 {s(sT2)}, {s(sWV)}, 0x10001"); P(f"s_add_u32 {s(sSrc)}, {s(sSrc)}, {s(sT2)}")
        P(f"s_lshl_b32 {s(sSrc)}, {s(sSrc)}, 7"); P(f"s_lshl_b32 {s(sT2)}, {s(sR)}, 5"); P(f"s_add_u32 {s(sSrc)}, {s(sSrc)}, {s(sT2)}")
        P(f"s_and_b32 {s(sT2)}, {s(sWV)}, 1"); P(f"s_add_u32 {s(sSrc)}, {s(sSrc)}, {s(sT2)}")
        P(f"s_mul_i32 {s(sSrc)}, {s(sSrc)}, {unit}"); P(f"s_add_u32 {s(sSrc)}, {s(sSrc)}, {CTX if role == 'hi' else WOF}")
        P(f"s_mul_i32 {s(sSrcB)}, {s(sTBb if role == 'hi' else sCBb)}, {20*unit}"); P(f"s_add_u32 {s(sSrcB)}, {s(sSrcB)}, {s(sM0)}")
        P(f"s_add_u32 {s(sSrcB)}, {s(sSrcB)}, {BO if role == 'hi' else BWOF}")
        def dma_ops(st):
            if st >= N: return []
            src = sSrc if st < NA else sSrcB
            def ld(i, so): P(f"buffer_load_dwordx4 {v(vL16)}, {s(sWS,4)}, {s(so)} offen offset:{i*1024} {LD} lds", st)
            def pre():
                if st == NA and role == "hi": fb_check()
                if st == NA // 2:
                    if role == "hi": fc_check()
                    P(f"s_add_u32 {s(sSrc)}, {s(sSrc)}, {s(sJump)}")
                P(f"s_add_u32 m0, {s(sM0)}, {(CS if role == 'hi' else WS_)[st%NS]}"); P(f"s_add_u32 {s(sTa)}, {s(src)}, 4096")
                ld(0, src)
            def last():
                if role == "lo":
                    P(f"s_add_u32 m0, m0, 4096"); P(f"s_add_u32 {s(src)}, {s(src)}, {(2 if st < NA else 4)*unit}"); ld(0, sTa)
                else: P(f"s_add_u32 {s(src)}, {s(src)}, {(2 if st < NA else 4)*unit}")
            return [pre, lambda: ld(1, src), lambda: ld(2, src), lambda: ld(3, src), last]
        def dma(st):
            for f in dma_ops(st): f()
        vFB = RCV
        def fb_off(): P(f"s_lshl_b32 {s(sT)}, {s(sTBb)}, 8"); P(f"s_add_u32 {s(sT)}, {s(sT)}, {FB}")
        def fb_req():
            fb_off(); P(f"v_lshrrev_b32 {v(T3)}, 1, {v(vL16)}"); P(f"v_and_b32 {v(T3)}, 0xf8, {v(T3)}")
            P(f"buffer_load_dwordx2 {v(vFB,2)}, {v(T3)}, {s(sWS,4)}, {s(sT)} offen sc1")
        def fb_check():
            P(f"v_xor_b32 {v(vFB)}, {s(sNON)}, {v(vFB)}"); P(f"v_xor_b32 {v(vFB+1)}, {s(sNON+1)}, {v(vFB+1)}"); P(f"v_or_b32 {v(vFB)}, {v(vFB)}, {v(vFB+1)}")
            P(f"v_cmp_ne_u32 vcc, 0, {v(vFB)}"); P(f"s_cbranch_vccz {name}_fbok")
            st = P.state(); fb_off(); ctx["poll"](sT, 32, f"{name}_poll4")
            P.label(f"{name}_fbok"); P.set_state(st)
        sFCo, sJump = sRow0, sU3
        vDec, vFo = 130, 131
        P(f"v_mov_b32 {v(vDec)}, {DECW}")
        if role == "hi":
            P(f"s_lshl_b32 {s(sFCo)}, {s(sQB)}, 10"); P(f"s_lshl_b32 {s(sT2)}, {s(sR)}, 6"); P(f"s_add_u32 {s(sFCo)}, {s(sFCo)}, {s(sT2)}"); P(f"s_add_u32 {s(sFCo)}, {s(sFCo)}, {FC}")
            bfe(P, T0, 3, 2); bfe(P, T1, 0, 3); P(f"v_lshlrev_b32 {v(T1)}, 3, {v(T1)}"); P(f"v_lshl_add_u32 {v(vFo)}, {v(T0)}, 8, {v(T1)}")
            P(f"buffer_load_dwordx2 {v(128,2)}, {v(vFo)}, {s(sWS,4)}, {s(sFCo)} offen sc1")
            ctx["hiflag"]()
            P(f"s_cmp_lg_u32 {s(sWV)}, 0"); P(f"s_cbranch_scc1 {name}_nodec")
            st = P.state()
            P(f"s_mov_b32 {s(sT2)}, {int(E('POLLMAX', '0x40000'), 0)}")
            P.needr(v(128, 2))
            P.label(f"{name}_dec")
            P(f"v_xor_b32 v128, {s(sNON)}, v128"); P(f"v_xor_b32 v129, {s(sNON+1)}, v129"); P(f"v_or_b32 v128, v128, v129")
            P(f"v_cmp_ne_u32 vcc, 0, v128")
            P(f"s_mov_b32 {s(sT)}, 0x7fffffff"); P(f"s_and_b32 {s(sTa)}, vcc_lo, {'0x0f0f0f0f' if E('DYN', '1') == '1' else '-1'}"); P(f"s_cbranch_scc0 {name}_decd")
            P(f"s_mov_b32 {s(sT)}, 0x7ffffffe"); P(f"s_and_b32 {s(sTa)}, vcc_lo, {'0xf0f0f0f0' if E('DYN', '1') == '1' else '-1'}"); P(f"s_cbranch_scc0 {name}_decd")
            P("s_sleep 2")
            P(f"buffer_load_dwordx2 {v(128,2)}, {v(vFo)}, {s(sWS,4)}, {s(sFCo)} offen sc1"); P("s_waitcnt vmcnt(0)")
            P(f"s_sub_u32 {s(sT2)}, {s(sT2)}, 1"); P(f"s_cbranch_scc0 {name}_dec")
            P.label(f"{name}_decd")
            P(f"v_mov_b32 v128, {s(sT)}"); P(f"ds_write_b32 {v(vDec)}, v128")
            P.label(f"{name}_nodec"); P.set_state(st)
        P("s_waitcnt lgkmcnt(0)"); P("s_barrier")
        P(f"ds_read_b32 v128, {v(vDec)}")
        P(f"v_readfirstlane_b32 {s(sT)}, v128")
        P(f"s_bitcmp1_b32 {s(sT)}, 0")
        P(f"s_cselect_b32 {s(sT2)}, 0, {16*unit}"); P(f"s_cselect_b32 {s(sJump)}, 0, {(-32*unit) & 0xffffffff}")
        P(f"s_add_u32 {s(sSrc)}, {s(sSrc)}, {s(sT2)}")
        def fc_req(): P(f"buffer_load_dwordx2 {v(128,2)}, {v(vFo)}, {s(sWS,4)}, {s(sFCo)} offen sc1")
        def fc_check():
            P(f"v_xor_b32 v128, {s(sNON)}, v128"); P(f"v_xor_b32 v129, {s(sNON+1)}, v129"); P(f"v_or_b32 v128, v128, v129")
            P(f"v_cmp_ne_u32 vcc, 0, v128"); P(f"s_cbranch_vccz {name}_fcok")
            st = P.state(); P(f"v_mov_b32 {v(T3)}, {v(vFo)}")
            ctx["poll"](sFCo, 64, f"{name}_poll3", own_off=True)
            P.label(f"{name}_fcok"); P.set_state(st)
        SP(idx=11)
        for st in range(NS): dma(st)
        def readsA(st, k, i):
            b = FRG + 28*(i % 2); sl = st % NS
            out = [f"ds_read_b128 {v(b+4*ii,4)}, {v(vRC)} offset:{CS[sl] + k*4096 + ii*1024}" for ii in range(2)]
            out += [f"ds_read_b128 {v(b+8+4*m,4)}, {v(vRW + sl//2)} offset:{(sl%2)*20480 + k*5120 + m*1024}" for m in range(5)]
            return [out[0], out[2], out[1]] + out[3:]
        def readsB(st, k, i):
            b = FRG + 28*(i % 2); sl = st % NS
            out = [f"ds_read_b128 {v(b,4)}, {v(vRCb)} offset:{CS[sl] + k*4096}"]
            out += [f"ds_read_b128 {v(b+4+4*m,4)}, {v(vRWb + sl//2)} offset:{(sl%2)*20480 + k*5120 + m*1024}" for m in range(nm)]
            return out
        def is_owner(lab, want):
            P(f"s_and_b32 {s(sT)}, {s(sWV)}, 3"); P(f"s_cmp_eq_u32 {s(sT)}, {s(sR)}"); P(f"s_cbranch_scc{0 if want else 1} {lab}")
        def send():
            lab = f"{name}_snd{role}"
            is_owner(lab, False)
            P(f"s_lshl_b32 {s(sXo)}, {s(sGrp)}, 2"); P(f"s_add_u32 {s(sXo)}, {s(sXo)}, {s(sT)}"); P(f"s_lshl_b32 {s(sXo)}, {s(sXo)}, 2"); P(f"s_add_u32 {s(sXo)}, {s(sXo)}, {s(sR)}")
            P(f"s_mul_i32 {s(sXo)}, {s(sXo)}, 20480"); P(f"s_add_u32 {s(sXo)}, {s(sXo)}, {XB + (0 if role == 'hi' else 10240)}")
            st = P.state()
            if XBF:
                for e in range(20): P(f"v_cvt_pk_bf16_f32 {v(ACC+e)}, {v(ACC+2*e)}, {v(ACC+2*e+1)}")
            for t in range(NX):
                P(f"buffer_store_dwordx4 {v(ACC+4*t,4)}, {v(vL16)}, {s(sWS,4)}, {s(sXo)} offen offset:{(t%4)*1024} {ST}", "x")
                if t % 4 == 3: P(f"s_add_u32 {s(sXo)}, {s(sXo)}, 4096")
            s2_ = P.state()
            P.label(lab); P.set_state(merge_states(st, s2_))
        def send_flag():
            lab = f"{name}_sfl{role}"
            is_owner(lab, False)
            st = P.state()
            P(f"s_lshl_b32 {s(sT2)}, {s(sGrp)}, 2"); P(f"s_add_u32 {s(sT)}, {s(sT)}, {s(sT2)}"); P(f"s_lshl_b32 {s(sT)}, {s(sT)}, 6")
            P(f"s_lshl_b32 {s(sT2)}, {s(sR)}, 3"); P(f"s_add_u32 {s(sT)}, {s(sT)}, {s(sT2)}"); P(f"s_add_u32 {s(sT)}, {s(sT)}, {FX + (0 if role == 'hi' else 32)}")
            P(f"v_mov_b32 {v(T0)}, {s(sNON)}"); P(f"v_mov_b32 {v(T1)}, {s(sNON+1)}"); P(f"v_mov_b32 {v(T2)}, 0")
            P.wait_tag(lambda t: t == "x")
            SP(idx=30)
            P("s_mov_b64 exec, 1")
            P(f"buffer_store_dwordx2 {v(T0,2)}, {v(T2)}, {s(sWS,4)}, {s(sT)} offen sc1")
            P("s_mov_b64 exec, -1")
            P.label(lab); P.set_state(st)
        sGot = sJL
        P(f"s_mov_b32 {s(sGot)}, 0")
        vFX = 238
        def fx_addr():
            P(f"s_lshl_b32 {s(sXo)}, {s(sGrp)}, 2"); P(f"s_add_u32 {s(sXo)}, {s(sXo)}, {s(sR)}")
            P(f"s_lshl_b32 {s(sT)}, {s(sXo)}, 6"); P(f"s_add_u32 {s(sT)}, {s(sT)}, {FX + (0 if role == 'hi' else 32)}")
            bfe(P, T0, 0, 2); P(f"v_min_u32 {v(T0)}, 2, {v(T0)}")
            P(f"v_add_u32 {v(T0)}, {s(sR)}, {v(T0)}"); P(f"v_add_u32 {v(T0)}, 1, {v(T0)}"); P(f"v_and_b32 {v(T0)}, 3, {v(T0)}"); P(f"v_lshlrev_b32 {v(T3)}, 3, {v(T0)}")
        def recv_loads():
            P(f"s_mul_i32 {s(sXo)}, {s(sXo)}, {4*20480}"); P(f"s_add_u32 {s(sXo)}, {s(sXo)}, {XB + (0 if role == 'hi' else 10240)}")
            for j in range(3):
                P(f"s_add_u32 {s(sT)}, {s(sR)}, {j+1}"); P(f"s_and_b32 {s(sT)}, {s(sT)}, 3"); P(f"s_mul_i32 {s(sT)}, {s(sT)}, 20480"); P(f"s_add_u32 {s(sT)}, {s(sT)}, {s(sXo)}")
                for tt in range(NX):
                    P(f"buffer_load_dwordx4 {v(RCV+RS*j+4*tt,4)}, {v(vL16)}, {s(sWS,4)}, {s(sT)} offen offset:{(tt%4)*1024} {LD}")
                    if tt % 4 == 3: P(f"s_add_u32 {s(sT)}, {s(sT)}, 4096")
        def fx_req():
            lab = f"{name}_fxr{role}"; is_owner(lab, True); st = P.state()
            fx_addr(); P(f"buffer_load_dwordx2 {v(vFX,2)}, {v(T3)}, {s(sWS,4)}, {s(sT)} offen sc1")
            P.label(lab); P.set_state(st)
        def fx_try():
            lab = f"{name}_fxt{role}"; is_owner(lab, True); st = P.state()
            P("s_waitcnt vmcnt(0)")
            P(f"v_xor_b32 {v(vFX)}, {s(sNON)}, {v(vFX)}"); P(f"v_xor_b32 {v(vFX+1)}, {s(sNON+1)}, {v(vFX+1)}"); P(f"v_or_b32 {v(vFX)}, {v(vFX)}, {v(vFX+1)}")
            P(f"v_cmp_ne_u32 vcc, 0, {v(vFX)}"); P(f"s_cbranch_vccnz {lab}")
            P(f"s_mov_b32 {s(sGot)}, 1"); recv_loads()
            P.label(lab); P.set_state(st)
        XRQ, XTR = [tuple(int(c) for c in E(k_, d_)) for k_, d_ in (("XRQ", "33"), ("XTR", "41"))]
        steps = [(st, k) for st in range(NA) for k in range(2)] + [(st, k) for st in range(NA, N) for k in range(4)]
        def rd(i):
            st, k = steps[i]
            r = readsA(st, k, i) if st < NA else readsB(st, k, i)
            return r
        P.wait_tag(lambda t: t == 0); P("s_barrier")
        SP(idx=24)
        if role == "lo": ctx["bflag"]()
        for r in rd(0): P(r)
        pend = []
        for i, (st, k) in enumerate(steps):
            b = FRG + 28*(i % 2)
            mf = []
            if st < NA:
                for m in range(5):
                    for ii in range(2):
                        d = v((ACC if st < NA//2 else AC2) + 4*(ii*5 + m), 4)
                        mf.append(f"v_mfma_f32_16x16x32_bf16 {d}, {v(b+8+4*m,4)}, {v(b+4*ii,4)}, {'0' if i in (0, NA) else d}")
            else:
                for m in range(nm):
                    d = v(ACB + 4*m, 4)
                    mf.append(f"v_mfma_f32_16x16x32_bf16 {d}, {v(b+4+4*m,4)}, {v(b,4)}, {'0' if (st == NA and k == 0) else d}")
            fill = []
            lastk = (k == (1 if st < NA else 3))
            if lastk and st + 1 < N:
                def sync(st=st):
                    P.wait_tag(lambda t: t == st + 1); P.wait_lds_all(); P("s_barrier")
                fill.append(sync)
                pend = dma_ops(st + NS)
            if i + 1 < len(steps): fill += rd(i + 1)
            ntake = len(pend) if st >= NA and not lastk and k == 2 else (3 if st < NA else 2)
            take, pend = pend[:ntake], pend[ntake:]
            for j, f in enumerate(take): fill.insert(min(len(fill), (2 if lastk else 1) + 3*j), f)
            if role == "hi" and st == NA - NS - 3 and k == 0: fill.append(fb_req)
            if role == "hi" and st == 2 and k == 0: fill.append(fc_req)
            if st == NA and k == 1:
                fill += [f"v_pk_add_f32 {v(ACC+e,2)}, {v(ACC+e,2)}, {v(AC2+e,2)}" for e in range(0, 40, 2)]
                fill.append(send)
            if (st - NA, k) == tuple(int(c) for c in E("SFL", "22")): fill.append(send_flag)
            if (st - NA, k) == XRQ: fill.append(fx_req)
            if (st - NA, k) == XTR: fill.append(fx_try)
            if E("P5NOMF"): mf = ["s_nop 0"] * len(mf)
            if E("P5NOLDS"): fill = [f for f in fill if callable(f)]
            interleave(P, mf, fill)
            if k == 0 and st in (4, 8, 12, NA): SP(idx={4: 25, 8: 26, 12: 27, NA: 28}[st])
        assert not pend
        SP(idx=12)
        for m in range(nm):
            r = ACB + 4*m
            P(f"v_cvt_pk_bf16_f32 {v(r)}, {v(r)}, {v(r+1)}"); P(f"v_cvt_pk_bf16_f32 {v(r+1)}, {v(r+2)}, {v(r+3)}")
            P(f"buffer_store_dwordx2 {v(r,2)}, {v(vOut)}, {s(sOUT,4)}, {s(sTileB)} offen offset:{m*32 + 1280}")
        is_owner(f"{name}_o_done", True)
        P(f"s_cmp_lg_u32 {s(sGot)}, 0"); P(f"s_cbranch_scc1 {name}_got{role}")
        fx_addr()
        ctx["poll"](sT, 3, f"{name}_poll5{role}", own_off=True)
        recv_loads()
        P.label(f"{name}_got{role}")
        SP(idx=29)
        if PROF: P.raw(f"v_writelane_b32 {v(vSTAMP)}, {s(sGot)}, 31")
        P("s_waitcnt vmcnt(0)")
        SP(idx=32)
        if XBF:
            P(f"s_mov_b32 {s(sT)}, 0x3f80"); P(f"s_mov_b32 {s(sT2)}, 0x3f800000")
            for j in range(3):
                for e in range(20):
                    P(f"v_dot2_f32_bf16 {v(ACC+2*e)}, {v(RCV+RS*j+e)}, {s(sT)}, {v(ACC+2*e)}")
                    P(f"v_dot2_f32_bf16 {v(ACC+2*e+1)}, {v(RCV+RS*j+e)}, {s(sT2)}, {v(ACC+2*e+1)}")
        else:
            for j in range(3):
                for e in range(0, 40, 2): P(f"v_pk_add_f32 {v(ACC+e,2)}, {v(ACC+e,2)}, {v(RCV+RS*j+e,2)}")
        P(f"s_add_u32 {s(sT)}, {s(sTile)}, {16*2560}")
        for t in range(10):
            i, m = t // 5, t % 5; r = ACC + 4*t
            P(f"v_cvt_pk_bf16_f32 {v(r)}, {v(r)}, {v(r+1)}"); P(f"v_cvt_pk_bf16_f32 {v(r+1)}, {v(r+2)}, {v(r+3)}")
            P(f"buffer_store_dwordx2 {v(r,2)}, {v(vOut)}, {s(sOUT,4)}, {s(sTile if i == 0 else sT)} offen offset:{m*32}")
        if role == "hi": P(f"s_branch {name}_o_done")
    P.label(f"{name}_o_done")
    if PROF: P("s_waitcnt vmcnt(0)")
```
